```python
import torch

def _softmax(x, axis=-1):
    return torch.softmax(x, dim=axis)
def _gelu(x):
    return torch.nn.functional.gelu(x, approximate="tanh")
def _silu(x):
    return torch.nn.functional.silu(x)
def _sigmoid(x):
    return torch.sigmoid(x)
def _layernorm(x, axis=-1, eps=1e-5):
    m = x.mean(dim=axis, keepdim=True)
    v = x.var(dim=axis, keepdim=True, unbiased=False)
    return (x - m) / torch.sqrt(v + eps)
def _scatter_add(tgt, idx, src, axis=0):
    return tgt.clone().index_add_(axis, idx, src)
def _segment_sum(src, seg, n):
    out = torch.zeros((n,) + src.shape[1:], dtype=src.dtype)
    return out.index_add_(0, seg, src)
def _pad(x, pw):
    flat = tuple(v for pair in reversed(pw) for v in pair)
    return torch.nn.functional.pad(x, flat)

kernel_name = 'recurrent_scan__mha_block__glu_gated_geglu__prompt'

def setup_inputs():

    _w = (lambda a: (lambda t: t.to(torch.bfloat16) if t.is_floating_point() else t)(torch.as_tensor(a)))
    def _A_setup():
        B, S, D, H = 1, 2048, 512, 32
        return {
            "x": _w((lambda *s: torch.randn(*s, dtype=torch.bfloat16) * 0.05)(B, S, D)),
            "wqkv": _w((lambda *s: torch.randn(*s, dtype=torch.bfloat16) * 0.2)(D, 3 * D)),
            "wo": _w((lambda *s: torch.randn(*s, dtype=torch.bfloat16) * 0.2)(D, D)),
        }
    _A_in = _A_setup()

    def _B_setup():
        B, S, Dm, Df = 1, 2048, 512, 1792
        return {
            "x": _w((lambda *s: torch.randn(*s, dtype=torch.bfloat16) * 0.05)(B, S, Dm)),
            "w_gate": _w((lambda *s: torch.randn(*s, dtype=torch.bfloat16) * 0.1)(Dm, Df) * (Dm ** -0.5)),
            "w_up": _w((lambda *s: torch.randn(*s, dtype=torch.bfloat16) * 0.1)(Dm, Df) * (Dm ** -0.5)),
            "w_down": _w((lambda *s: torch.randn(*s, dtype=torch.bfloat16) * 0.1)(Df, Dm) * (Df ** -0.5)),
        }
    _B_in = _B_setup()

    return {
        "A_x": _A_in["x"],
        "A_wqkv": _A_in["wqkv"],
        "A_wo": _A_in["wo"],
        "B_x": _B_in["x"],
        "B_w_gate": _B_in["w_gate"],
        "B_w_up": _B_in["w_up"],
        "B_w_down": _B_in["w_down"],
    }

def reference(A_x, A_wqkv, A_wo, B_x, B_w_gate, B_w_up, B_w_down):
    def _A_ref(x, wqkv, wo):
        B, S, D = x.shape
        H = 32
        Dh = D // H
        qkv = (lambda x, *d: x.permute(*d))((x @ wqkv).reshape(B, S, 3, H, Dh), 2, 0, 3, 1, 4)
        q, k, v = qkv[0], qkv[1], qkv[2]
        scores = torch.einsum("bhqd,bhkd->bhqk", q, k) * (Dh ** -0.5)
        p = _softmax(scores, axis=-1)
        o = torch.einsum("bhqk,bhkd->bhqd", p, v)
        return (lambda x, *d: x.permute(*d))(o, 0, 2, 1, 3).reshape(B, S, D) @ wo

    def _B_ref(x, w_gate, w_up, w_down):
        g = torch.einsum("bsd,df->bsf", x, w_gate)
        u = torch.einsum("bsd,df->bsf", x, w_up)
        h = _gelu(g) * u
        return torch.einsum("bsf,fd->bsd", h, w_down)

    x = A_x
    xn = _layernorm(x, axis=-1)
    s = _A_ref(xn, A_wqkv, A_wo)
    g = _silu(_B_ref(xn, B_w_gate, B_w_up, B_w_down))
    return x + s * g
```

```python
import struct, sys, math

NAME = 'recurrent_scan__mha_block__glu_gated_geglu__prompt'

def f2u(x): return struct.unpack('<I', struct.pack('<f', x))[0]
def hx(x): return '0x%x' % (x & 0xffffffff)

class Asm:
    def __init__(self): self.l = []
    def __call__(self, s):
        for line in s.split('\n'):
            line = line.strip()
            if not line: continue
            self.l.append(line if line.endswith(':') or line.startswith('.') else '    ' + line)
    def text(self): return '\n'.join(self.l) + '\n'

def v(a, n=1): return 'v%d' % a if n == 1 else 'v[%d:%d]' % (a, a + n - 1)
def s(a, n=1): return 's%d' % a if n == 1 else 's[%d:%d]' % (a, a + n - 1)
def mfma(d, a, b, c):
    return 'v_mfma_f32_32x32x16_bf16 %s, %s, %s, %s' % (v(d, 16), v(a, 4), v(b, 4), '0' if c is None else v(c, 16))
def srd(A, d, lo, hi, nbytes):
    A('s_mov_b32 %s, %s\ns_mov_b32 %s, %s\ns_mov_b32 %s, %s\ns_mov_b32 %s, 0x20000' % (s(d), lo, s(d+1), hi, s(d+2), nbytes, s(d+3)))

QF  = 0x000000
KV  = 0x200000
HF  = 0x600000
OF  = 0xD00000
WDF = 0xF00000
GG  = 0x1100000
WS_BYTES = 0x1300000

LOG2E = 1.4426950408889634
ONES = 0x3f803f80

def header(A, name):
    A('.globl %s\n.p2align 8\n.type %s,@function\n%s:' % (name, name, name))

def descriptor(name, nv, ns=96):
    return '''.p2align 6
.amdhsa_kernel %s
  .amdhsa_next_free_vgpr %d
  .amdhsa_next_free_sgpr %d
  .amdhsa_accum_offset %d
  .amdhsa_group_segment_fixed_size 0
  .amdhsa_kernarg_size 80
  .amdhsa_user_sgpr_count 2
  .amdhsa_user_sgpr_kernarg_segment_ptr 1
  .amdhsa_system_sgpr_workgroup_id_x 1
.end_amdhsa_kernel
''' % (name, nv, ns, (nv + 3) // 4 * 4)

PAN = 4224
APAN = 4352
WST = 4 * PAN + APAN
XST = 16 * 1040
K1_W = 0
K1_X = 4 * WST
K1_CS = K1_X + 3 * XST
K1_RS = K1_CS + 10 * 512
K1_PP = K1_RS + 4 * 512
K1_LDS = K1_PP + 8192

def gen_k1(A):
    header(A, 'k1_kernel')
    sX, sA, sH0, sH1, sWS, sDN = 16, 20, 24, 28, 32, 36
    sRB, sCG, sW = 40, 41, 42
    A(f'''
    s_cmp_ge_u32 s2, 256
    s_cbranch_scc1 L1_end
    s_load_dwordx4 s[4:7], s[0:1], 0
    s_load_dwordx4 s[8:11], s[0:1], 32
    s_load_dwordx2 s[12:13], s[0:1], 48
    s_load_dwordx2 s[14:15], s[0:1], 72
    v_lshrrev_b32 v1, 6, v0
    v_and_b32 v0, 63, v0
    s_and_b32 s3, s2, 7
    v_readfirstlane_b32 {s(sW)}, v1
    s_lshr_b32 s43, s2, 3
    s_lshr_b32 {s(sRB)}, s3, 2
    s_lshl_b32 {s(sRB)}, {s(sRB)}, 3
    s_and_b32 s44, s43, 7
    s_add_u32 {s(sRB)}, {s(sRB)}, s44
    s_and_b32 {s(sCG)}, s3, 3
    s_lshl_b32 {s(sCG)}, {s(sCG)}, 2
    s_lshr_b32 s44, s43, 3
    s_add_u32 {s(sCG)}, {s(sCG)}, s44
    ''')
    A(f'''
    v_bfe_u32 v5, v0, 4, 1
    v_bfe_u32 v6, v0, 2, 2
    v_lshrrev_b32 v7, 5, v0
    v_and_b32 v1, 3, v0
    v_lshlrev_b32 v1, 3, v1
    v_lshl_add_u32 v1, v7, 8, v1
    v_mul_u32_u24 v2, {PAN}, v5
    v_mul_u32_u24 v8, 1056, v6
    v_add3_u32 v2, v2, v8, v1
    v_mul_u32_u24 v8, 1088, v6
    v_lshl_add_u32 v3, v5, 5, v8
    v_add_u32 v3, v3, v1
    v_and_b32 v8, 15, v0
    v_mul_u32_u24 v8, 1040, v8
    v_lshl_add_u32 v4, v5, 8, v8
    v_lshl_add_u32 v4, v7, 4, v4
    s_and_b32 s44, {s(sW)}, 3
    s_lshr_b32 s45, s44, 1
    s_and_b32 s46, s44, 1
    s_mul_i32 s47, s45, {2*PAN}
    v_add_u32 v2, s47, v2
    s_lshl_b32 s47, s45, 6
    s_add_u32 s47, s47, {4*PAN}
    v_add_u32 v3, s47, v3
    s_waitcnt lgkmcnt(0)
    ''')
    srd(A, sWS, 's14', 's15', hx(WS_BYTES))
    A(f'''
    s_cmp_lt_u32 {s(sW)}, 4
    s_cbranch_scc1 L1_compute
    ''')
    srd(A, sX, 's4', 's5', 2097152)
    srd(A, sA, 's6', 's7', 1572864)
    srd(A, sDN, 's12', 's13', 1835008)
    sStrH, sColH = 48, 49
    sRowA, sRowH, sMH, sMA, sMX, sXo, sC, sStg, sXs, sOne, sJ = 50, 51, 52, 53, 54, 55, 56, 57, 58, 59, 60
    A(f'''
    s_add_u32 s62, s6, 256
    s_addc_u32 s63, s7, 0
    s_lshl_b32 s64, {s(sCG)}, 8
    s_lshl_b32 s65, {s(sCG)}, 9
    s_sub_u32 s65, s65, {14*512-2048}
    s_cmp_lt_u32 {s(sCG)}, 14
    s_cselect_b64 {s(sH0,2)}, s[8:9], s[6:7]
    s_cselect_b64 {s(sH1,2)}, s[10:11], s[62:63]
    s_mov_b32 {s(sH0+2)}, 1572864
    s_cmov_b32 {s(sH0+2)}, 1835008
    s_mov_b32 {s(sH1+2)}, {1572864-256}
    s_cmov_b32 {s(sH1+2)}, 1835008
    s_mov_b32 {s(sH0+3)}, 0x20000
    s_mov_b32 {s(sH1+3)}, 0x20000
    s_movk_i32 {s(sStrH)}, 3072
    s_cmovk_i32 {s(sStrH)}, 3584
    s_cselect_b32 {s(sColH)}, s64, s65
    v_lshrrev_b32 v8, 3, v0
    v_and_b32 v9, 7, v0
    v_lshlrev_b32 v9, 4, v9
    v_lshl_add_u32 v10, v8, 2, s44
    v_mul_u32_u24 v11, 3072, v10
    s_lshl_b32 s47, {s(sCG)}, 7
    v_add3_u32 v11, v11, v9, s47
    v_mul_lo_u32 v12, v10, {s(sStrH)}
    v_add3_u32 v12, v12, v9, {s(sColH)}
    v_and_b32 v13, 4, v8
    v_bfe_u32 v14, v8, 1, 1
    v_and_b32 v15, 1, v8
    v_lshl_add_u32 v14, v15, 1, v14
    v_add_u32 v13, v13, v14
    v_lshl_add_u32 v13, v13, 14, v9
    s_lshl_b32 s47, {s(sRB)}, 17
    s_lshl_b32 s61, s44, 11
    s_add_u32 s47, s47, s61
    v_add_u32 v13, s47, v13
    ''')
    A(f'''
    s_lshl_b32 s47, {s(sCG)}, 4
    s_add_u32 s47, s47, {s(sRB)}
    s_lshr_b32 s66, s47, 1
    s_and_b32 s67, s47, 1
    s_lshl_b32 s47, s66, 14
    s_lshl_b32 s61, s67, 9
    s_add_u32 s47, s47, s61
    s_lshl_b32 s61, s44, 7
    s_add_u32 s47, s47, s61
    v_lshl_add_u32 v14, v8, 10, v9
    s_lshl_b32 s68, s44, 11
    s_add_u32 s68, s68, {K1_PP}
    s_mul_i32 {s(sMX)}, s44, 2080
    s_add_u32 {s(sMX)}, {s(sMX)}, {K1_X}
    s_mov_b32 m0, {s(sMX)}
    s_mov_b32 {s(sRowA)}, 0
    buffer_load_dwordx4 v13, {s(sX,4)}, 0 offen lds
    s_add_u32 m0, {s(sMX)}, 16
    s_mov_b32 {s(sRowH)}, 0
    buffer_load_dwordx4 v13, {s(sX,4)}, 0 offen offset:1024 lds
    s_mov_b32 m0, s68
    s_mul_i32 {s(sMH)}, s44, 1056
    buffer_load_dwordx4 v14, {s(sDN,4)}, s47 offen lds
    s_add_u32 m0, s68, 1024
    s_add_u32 s47, s47, 8192
    buffer_load_dwordx4 v14, {s(sDN,4)}, s47 offen lds
    s_mul_i32 {s(sMA)}, s44, 1088
    s_add_u32 {s(sMA)}, {s(sMA)}, {4*PAN}
    s_add_u32 {s(sMX)}, {s(sMX)}, {8*1040}
    s_mov_b32 {s(sXo)}, 8192
    s_mov_b32 {s(sJ)}, 1
    s_mov_b32 {s(sC)}, -3
    s_mov_b32 {s(sStg)}, 0
    s_mov_b32 {s(sXs)}, {K1_X}
    s_mov_b32 {s(sOne)}, {hx(ONES)}
    s_lshl_b32 s69, {s(sStrH)}, 5
    s_lshl_b32 s47, s46, 9
    v_add_u32 v2, s47, v2
    v_add_u32 v3, s47, v3
    s_lshl_b32 s47, s46, 7
    s_lshl_b32 s61, s45, 9
    s_add_u32 s47, s47, s61
    v_add_u32 v4, s47, v4
    ''')
    CS, SUM, SQ = 16, 21, 22
    for i in range(16, 23): A(f'v_mov_b32 v{i}, 0')
    WF, XF = 24, 44
    A(f'''
L1_hloop:
    s_cmp_lt_i32 {s(sC)}, 0
    s_cbranch_scc1 L1_hissue
    s_waitcnt vmcnt(14)
    s_barrier
L1_hissue:
    s_mov_b32 m0, {s(sMH)}
    s_nop 0
    buffer_load_dwordx4 v12, {s(sH0,4)}, {s(sRowH)} offen lds
    s_add_u32 m0, {s(sMH)}, {PAN}
    s_nop 0
    buffer_load_dwordx4 v12, {s(sH1,4)}, {s(sRowH)} offen lds
    s_add_u32 m0, {s(sMH)}, {2*PAN-128}
    s_nop 0
    buffer_load_dwordx4 v12, {s(sH0,4)}, {s(sRowH)} offen offset:128 lds
    s_add_u32 m0, {s(sMH)}, {3*PAN-128}
    s_nop 0
    buffer_load_dwordx4 v12, {s(sH1,4)}, {s(sRowH)} offen offset:128 lds
    s_mov_b32 m0, {s(sMA)}
    s_add_u32 {s(sRowH)}, {s(sRowH)}, s69
    buffer_load_dwordx4 v11, {s(sA,4)}, {s(sRowA)} offen lds
    s_mov_b32 m0, {s(sMX)}
    s_add_u32 {s(sRowA)}, {s(sRowA)}, {32*3072}
    buffer_load_dwordx4 v13, {s(sX,4)}, {s(sXo)} offen lds
    s_add_u32 m0, {s(sMX)}, 16
    s_add_u32 {s(sMH)}, {s(sMH)}, {WST}
    buffer_load_dwordx4 v13, {s(sX,4)}, {s(sXo)} offen offset:1024 lds
    s_add_u32 {s(sMA)}, {s(sMA)}, {WST}
    s_cmp_ge_u32 {s(sMH)}, {4*WST}
    s_cselect_b32 s47, {4*WST}, 0
    s_sub_u32 {s(sMH)}, {s(sMH)}, s47
    s_sub_u32 {s(sMA)}, {s(sMA)}, s47
    s_add_u32 {s(sMX)}, {s(sMX)}, {8*1040}
    s_cmp_ge_u32 {s(sMX)}, {K1_X+3*XST}
    s_cselect_b32 s47, {3*XST}, 0
    s_sub_u32 {s(sMX)}, {s(sMX)}, s47
    s_add_u32 {s(sJ)}, {s(sJ)}, 1
    s_lshr_b32 s47, {s(sJ)}, 1
    s_lshl_b32 s47, s47, 7
    s_and_b32 s61, {s(sJ)}, 1
    s_lshl_b32 s61, s61, 13
    s_add_u32 {s(sXo)}, s47, s61
    s_cmp_ge_u32 {s(sJ)}, 16
    s_cselect_b32 {s(sXo)}, 0x400000, {s(sXo)}
    s_cmp_lt_i32 {s(sC)}, 0
    s_cbranch_scc1 L1_hnext
    v_add_u32 v8, {s(sStg)}, v2
    v_add_u32 v9, {s(sStg)}, v3
    v_add_u32 v10, {s(sXs)}, v4
    ds_read_b128 {v(XF,4)}, v10
    ds_read_b128 {v(XF+4,4)}, v10 offset:32
    ds_read_b64_tr_b16 {v(WF,2)}, v9
    ds_read_b64_tr_b16 {v(WF+2,2)}, v9 offset:128
    ''')
    for u in range(4):
        A(f'ds_read_b64_tr_b16 {v(WF+4+4*u,2)}, v8 offset:{u*32}')
        A(f'ds_read_b64_tr_b16 {v(WF+6+4*u,2)}, v8 offset:{u*32+128}')
    A(f'''
    s_add_u32 {s(sStg)}, {s(sStg)}, {WST}
    s_cmp_ge_u32 {s(sStg)}, {4*WST}
    s_cselect_b32 {s(sStg)}, 0, {s(sStg)}
    s_bitcmp1_b32 {s(sC)}, 0
    s_cselect_b32 s47, {XST-64}, 64
    s_add_u32 {s(sXs)}, {s(sXs)}, s47
    s_cmp_ge_u32 {s(sXs)}, {K1_X+3*XST}
    s_cselect_b32 {s(sXs)}, {K1_X}, {s(sXs)}
    s_waitcnt lgkmcnt(10)
    ''')
    for j in range(8):
        A(f'v_dot2c_f32_bf16 v{SUM}, {s(sOne)}, v{XF+j}')
        A(f'v_dot2c_f32_bf16 v{SQ}, v{XF+j}, v{XF+j}')
    A('s_waitcnt lgkmcnt(0)')
    for j in range(4):
        for i in range(5):
            A(f'v_dot2c_f32_bf16 v{CS+i}, {s(sOne)}, v{WF+4*i+j}')
    A(f'''
L1_hnext:
    s_add_u32 {s(sC)}, {s(sC)}, 1
    s_cmp_lt_i32 {s(sC)}, 16
    s_cbranch_scc1 L1_hloop
    s_barrier
    ''')
    A(f'''
    v_mov_b32 v24, v{SUM}
    v_mov_b32 v25, v{SQ}
    s_mul_i32 s47, s45, {5*512}
    s_lshl_b32 s61, s46, 2
    v_permlane32_swap_b32 v{SUM}, v24
    v_permlane32_swap_b32 v{SQ}, v25
    s_add_u32 s47, s47, s61
    s_add_u32 s47, s47, {K1_CS}
    v_lshl_add_u32 v8, v0, 3, s47
    v_add_f32 v{SUM}, v{SUM}, v24
    v_add_f32 v{SQ}, v{SQ}, v25
    v_mul_f32 v{SUM}, {hx(f2u(-1.0/512))}, v{SUM}
    v_mul_f32 v{SQ}, {hx(f2u(1.0/512))}, v{SQ}
    v_fma_f32 v{SQ}, -v{SUM}, v{SUM}, v{SQ}
    v_max_f32 v{SQ}, 0, v{SQ}
    v_cvt_pk_bf16_f32 v{SQ}, v{SQ}, v{SQ}
    v_and_b32 v{SQ}, 0xffff0000, v{SQ}
    v_add_f32 v{SQ}, {hx(f2u(1e-5))}, v{SQ}
    v_cvt_pk_bf16_f32 v{SQ}, v{SQ}, v{SQ}
    v_and_b32 v{SQ}, 0xffff0000, v{SQ}
    v_sqrt_f32 v{SQ}, v{SQ}
    v_cvt_pk_bf16_f32 v26, v{SUM}, v{SUM}
    v_cvt_pk_bf16_f32 v{SQ}, v{SQ}, v{SQ}
    v_and_b32 v27, 0xffff0000, v{SQ}
    s_lshl_b32 s47, s44, 9
    s_add_u32 s47, s47, {K1_RS}
    v_lshl_add_u32 v9, v0, 3, s47
    ds_write_b64 v9, v[26:27]
    ''')
    for i in range(5):
        A(f'''
        v_cvt_pk_bf16_f32 v28, v{CS+i}, v{CS+i}
        v_and_b32 v28, 0xffff0000, v28
        v_sub_f32 v29, v{CS+i}, v28
        v_cvt_pk_bf16_f32 v{30+i}, v28, v29
        ds_write_b32 v8, v{30+i} offset:{i*512}
        ''')
    A(f'''
    s_waitcnt vmcnt(0) lgkmcnt(0)
    s_barrier
    s_cmp_ge_u32 {s(sCG)}, 14
    s_cbranch_scc1 L1_end
    v_and_b32 v8, 1, v0
    v_bfe_u32 v9, v0, 1, 1
    v_lshl_add_u32 v8, v8, 1, v9
    v_lshlrev_b32 v8, 3, v8
    v_lshl_add_u32 v8, v5, 5, v8
    v_lshl_add_u32 v9, v7, 2, v6
    v_lshl_add_u32 v8, v9, 7, v8
    v_add_u32 v8, s68, v8
    ds_read_b64_tr_b16 v[24:25], v8
    ds_read_b64_tr_b16 v[26:27], v8 offset:1024
    ds_read_b64_tr_b16 v[28:29], v8 offset:64
    ds_read_b64_tr_b16 v[30:31], v8 offset:1088
    s_lshl_b32 s47, s67, 3
    s_lshl_b32 s61, s44, 1
    s_add_u32 s47, s47, s61
    s_mul_i32 s47, s47, 112
    s_add_u32 s47, s47, s66
    s_lshl_b32 s47, s47, 10
    s_add_u32 s47, s47, {hx(WDF)}
    s_add_u32 s61, s47, {112*1024}
    v_lshlrev_b32 v9, 4, v0
    s_waitcnt lgkmcnt(2)
    buffer_store_dwordx4 v[24:27], v9, {s(sWS,4)}, s47 offen
    s_waitcnt lgkmcnt(0)
    buffer_store_dwordx4 v[28:31], v9, {s(sWS,4)}, s61 offen
    s_endpgm
    ''')
    ACC = 96
    acc = lambda T, i: ACC + (T * 5 + i) * 16
    FB = lambda f: 8 + 28 * f
    Wf = lambda f, i: FB(f) + 4 * i
    Xf = lambda f, T: FB(f) + 20 + 4 * T
    sDW, sXs, sIt = 48, 49, 50
    A(f'''
L1_compute:
    s_lshl_b32 s47, s46, 9
    s_add_u32 s47, s47, {K1_X}
    v_add_u32 v4, s47, v4
    v_mov_b32 v1, v4
    v_mov_b32 v64, 0
    v_mov_b32 v65, 0
    v_mov_b32 v66, 0
    v_mov_b32 v67, 0
    s_mov_b32 {s(sDW)}, {2*WST}
    s_mov_b32 {s(sXs)}, 0
    s_mov_b32 {s(sIt)}, 0
    ''')
    for T in range(2):
        for i in range(5): A(mfma(acc(T, i), 64, 64, None))
    def reads(f, st, ks, ksx):
        r = []
        for T in range(2):
            r.append(f'ds_read_b128 {v(Xf(f,T),4)}, v1 offset:{T*128+ksx*32}')
        for rd in range(2):
            r.append(f'ds_read_b64_tr_b16 {v(Wf(f,0)+2*rd,2)}, v3 offset:{st*WST+(4*ks+rd)*128}')
        for u in range(4):
            for rd in range(2):
                r.append(f'ds_read_b64_tr_b16 {v(Wf(f,1+u)+2*rd,2)}, v2 offset:{st*WST+(4*ks+rd)*128+u*32}')
        return r
    A('s_barrier')
    for r in reads(0, 0, 0, 0): A(r)
    A('L1_cloop:')
    for q in range(4):
        f = q & 1
        nq = (q + 1) & 3
        rr = reads(f ^ 1, nq >> 1, nq & 1, nq)
        A('s_waitcnt lgkmcnt(0)')
        if q & 1: A('s_barrier')
        if q == 3:
            A(f'''
            v_add_u32 v2, {s(sDW)}, v2
            v_add_u32 v3, {s(sDW)}, v3
            s_add_u32 {s(sXs)}, {s(sXs)}, {XST}
            s_cmp_ge_u32 {s(sXs)}, {3*XST}
            s_cselect_b32 {s(sXs)}, 0, {s(sXs)}
            s_sub_u32 {s(sDW)}, 0, {s(sDW)}
            v_add_u32 v1, {s(sXs)}, v4
            ''')
        ms = [mfma(acc(T, i), Wf(f, i), Xf(f, T), acc(T, i)) for i in range(5) for T in range(2)]
        k = 0
        for m in range(10):
            A(ms[m])
            n = 2 if m < 6 else 0
            for _ in range(n):
                A(rr[k]); k += 1
        assert k == 12
    A(f'''
    s_add_u32 {s(sIt)}, {s(sIt)}, 1
    s_cmp_lt_u32 {s(sIt)}, 8
    s_cbranch_scc1 L1_cloop
    s_waitcnt lgkmcnt(0)
    s_barrier
    ''')
    A(f'''
    s_mul_i32 s47, s45, {5*512}
    s_add_u32 s47, s47, {K1_CS}
    v_lshl_add_u32 v2, v0, 3, s47
    s_lshl_b32 s47, s46, 10
    s_add_u32 s47, s47, {K1_RS}
    v_lshl_add_u32 v3, v0, 3, s47
    ds_read_b64 v[68:69], v3
    ds_read_b64 v[70:71], v3 offset:512
    ''')
    for i in range(5):
        A(f'ds_read_b64 {v(Wf(0,i),2)}, v2 offset:{i*512}')
        A(f'v_mov_b32 v{Wf(0,i)+2}, 0\nv_mov_b32 v{Wf(0,i)+3}, 0')
    sSz, sAo, sHo, sSc = 51, 52, 56, 58
    A(f'''
    s_lshl_b32 s53, {s(sRB)}, 2
    s_lshl_b32 s47, s46, 1
    s_add_u32 s53, s53, s47
    s_and_b32 s47, {s(sCG)}, 7
    s_lshl_b32 s47, s47, 2
    s_lshl_b32 s61, s45, 1
    s_add_u32 s47, s47, s61
    s_lshl_b32 s47, s47, 6
    s_add_u32 s47, s47, s53
    s_cmp_lt_u32 {s(sCG)}, 8
    s_cselect_b32 {s(sSz)}, 10, 11
    s_cselect_b32 s61, {hx(QF)}, {hx(KV)}
    s_cselect_b32 {s(sSc)}, {hx(f2u(0.25*LOG2E))}, 1.0
    s_lshl_b32 s47, s47, {s(sSz)}
    s_add_u32 s62, s47, s61
    s_lshl_b32 s47, 1, {s(sSz)}
    s_add_u32 s64, s62, s47
    s_lshl_b32 s47, 64, {s(sSz)}
    s_add_u32 s63, s62, s47
    s_add_u32 s65, s64, s47
    s_mul_i32 s47, s53, 112
    s_lshl_b32 s61, {s(sCG)}, 3
    s_add_u32 s47, s47, s61
    s_lshl_b32 s61, s45, 2
    s_add_u32 s47, s47, s61
    s_lshl_b32 s47, s47, 10
    s_add_u32 {s(sHo)}, s47, {hx(HF)}
    s_add_u32 {s(sHo+1)}, {s(sHo)}, {112*1024}
    v_lshlrev_b32 v5, 4, v0
    s_waitcnt lgkmcnt(5)
    ''')
    K0 = -2.0 * math.sqrt(2.0 / math.pi) * LOG2E
    K1c = K0 * 0.044715
    for T in range(2):
        b = 72 + 8 * T
        A(f'''
        v_mov_b32 v{Xf(0,T)}, v{68+2*T}
        v_mov_b32 v{Xf(0,T)+1}, v{68+2*T}
        v_mov_b32 v{Xf(0,T)+2}, 0
        v_mov_b32 v{Xf(0,T)+3}, 0
        v_rcp_f32 v{b+4}, v{69+2*T}
        v_mul_f32 v{b+2}, v{69+2*T}, v{69+2*T}
        v_mul_f32 v{b+1}, {hx(f2u(K0))}, v{b+4}
        v_mul_f32 v{b+3}, {s(sSc)}, v{b+4}
        v_mul_f32 v{b}, v{b+4}, v{b+4}
        v_mul_f32 v{b}, v{b}, v{b+4}
        v_mul_f32 v{b}, {hx(f2u(K1c))}, v{b}
        ''')
    A('s_waitcnt lgkmcnt(0)')
    for i in range(5):
        for T in range(2):
            A(mfma(acc(T, i), Wf(0, i), Xf(0, T), acc(T, i)))
    A('s_nop 3')
    for T in range(2):
        b = 72 + 8 * T
        a = acc(T, 0)
        for p in range(8):
            A(f'v_pk_mul_f32 {v(a+2*p,2)}, {v(a+2*p,2)}, {v(b+2,2)} op_sel:[0,1] op_sel_hi:[1,1]')
        for p in range(8):
            A(f'v_cvt_pk_bf16_f32 v{40+8*T+p}, v{a+2*p}, v{a+2*p+1}')
        A(f'buffer_store_dwordx4 {v(40+8*T,4)}, v5, {s(sWS,4)}, s{62+2*T} offen')
        A(f'buffer_store_dwordx4 {v(44+8*T,4)}, v5, {s(sWS,4)}, s{63+2*T} offen')
    A(f'''
    s_cmp_ge_u32 {s(sCG)}, 14
    s_cbranch_scc1 L1_vpath
    ''')
    n = 0
    for T in range(2):
        b = 72 + 8 * T
        for u in range(4):
            a = acc(T, 1 + u)
            t = 8 + 16 * (n & 1)
            n += 1
            for p in range(4): A(f'v_pk_mul_f32 {v(t+2*p,2)}, {v(a+2*p,2)}, {v(a+2*p,2)}')
            for p in range(4): A(f'v_pk_fma_f32 {v(t+2*p,2)}, {v(t+2*p,2)}, {v(b,2)}, {v(b,2)} op_sel:[0,0,1] op_sel_hi:[1,0,1]')
            for p in range(4): A(f'v_pk_mul_f32 {v(t+2*p,2)}, {v(t+2*p,2)}, {v(a+2*p,2)}')
            for j in range(8): A(f'v_exp_f32 v{t+j}, v{t+j}')
            for p in range(4): A(f'v_pk_mul_f32 {v(a+2*p,2)}, {v(a+2*p,2)}, {v(a+8+2*p,2)}')
            for p in range(4): A(f'v_pk_fma_f32 {v(t+2*p,2)}, {v(t+2*p,2)}, {v(b+2,2)}, {v(b+2,2)} op_sel:[0,0,0] op_sel_hi:[1,0,0]')
            for j in range(8): A(f'v_rcp_f32 v{t+j}, v{t+j}')
            A('s_nop 0') if False else None
            for p in range(4): A(f'v_pk_mul_f32 {v(a+2*p,2)}, {v(a+2*p,2)}, {v(t+2*p,2)}')
            for p in range(4): A(f'v_cvt_pk_bf16_f32 v{t+8+p}, v{a+2*p}, v{a+2*p+1}')
            A(f'buffer_store_dwordx4 {v(t+8,4)}, v5, {s(sWS,4)}, {s(sHo+T)} offen offset:{u*1024}')
    A('s_endpgm')
    A(f'''
L1_vpath:
    s_lshl_b32 s47, s44, 14
    v_and_b32 v2, 31, v0
    v_lshlrev_b32 v2, 5, v2
    v_lshl_add_u32 v2, v7, 3, v2
    v_add_u32 v2, s47, v2
    v_bfe_u32 v3, v0, 4, 1
    v_lshlrev_b32 v3, 2, v3
    v_add_u32 v3, v3, v7
    v_lshl_add_u32 v3, v3, 2, v6
    v_lshlrev_b32 v3, 5, v3
    v_and_b32 v4, 3, v0
    v_lshl_add_u32 v3, v4, 3, v3
    v_add_u32 v3, s47, v3
    s_sub_u32 s47, {s(sCG)}, 14
    s_lshl_b32 s47, s47, 4
    s_lshl_b32 s61, s45, 2
    s_add_u32 s47, s47, s61
    s_lshl_b32 s47, s47, 6
    s_add_u32 s47, s47, s53
    s_lshl_b32 s47, s47, 11
    s_add_u32 s62, s47, {hx(KV)}
    ''')
    for T in range(2):
        b = 72 + 8 * T
        for u in range(4):
            a = acc(T, 1 + u)
            for p in range(8):
                A(f'v_pk_mul_f32 {v(a+2*p,2)}, {v(a+2*p,2)}, {v(b+4,2)} op_sel_hi:[1,0]')
            for p in range(8):
                A(f'v_cvt_pk_bf16_f32 v{a+p}, v{a+2*p}, v{a+2*p+1}')
            for hd in range(2):
                o = ((T * 4 + u) * 2 + hd) * 1024
                A(f'ds_write_b64 v2, {v(a+4*hd,2)} offset:{o}')
                A(f'ds_write_b64 v2, {v(a+4*hd+2,2)} offset:{o+16}')
    A('s_waitcnt lgkmcnt(0)')
    for T in range(2):
        for u in range(4):
            a = acc(T, 1 + u)
            for hd in range(2):
                o = ((T * 4 + u) * 2 + hd) * 1024
                A(f'ds_read_b64_tr_b16 {v(a+4*hd,2)}, v3 offset:{o}')
                A(f'ds_read_b64_tr_b16 {v(a+4*hd+2,2)}, v3 offset:{o+256}')
            A(f's_add_u32 s47, s62, {u*64*2048}')
            A(f's_add_u32 s61, s62, {(u+8)*64*2048}')
            A('s_waitcnt lgkmcnt(0)')
            A(f'buffer_store_dwordx4 {v(a,4)}, v5, {s(sWS,4)}, s47 offen offset:{1024+2048*T}')
            A(f'buffer_store_dwordx4 {v(a+4,4)}, v5, {s(sWS,4)}, s61 offen offset:{1024+2048*T}')
    A('L1_end:\ns_endpgm')

K2_CB = 131072
K2_LDS = K2_CB + 8 * 3072
BIAS = 84.0

def gen_k2(A):
    header(A, 'k2_kernel')
    sWS, sW = 8, 12
    A(f'''
    s_cmp_ge_u32 s2, 256
    s_cbranch_scc1 L2_end
    s_load_dwordx2 s[4:5], s[0:1], 72
    v_lshrrev_b32 v1, 6, v0
    v_and_b32 v0, 63, v0
    s_and_b32 s3, s2, 7
    v_readfirstlane_b32 {s(sW)}, v1
    s_lshr_b32 s13, s2, 3
    v_lshlrev_b32 v1, 4, v0
    s_waitcnt lgkmcnt(0)
    ''')
    srd(A, sWS, 's4', 's5', hx(WS_BYTES))
    A(f'''
    s_cmp_ge_u32 {s(sW)}, 8
    s_cbranch_scc1 L2_gemm
    ''')
    QA, QB, CA, CB, OA, OB, SA, SB, P, KF = 4, 8, 16, 32, 48, 64, 80, 96, 112, 120
    VF = lambda b, j: 124 + 8 * b + 4 * j
    sHead, sQt, sKh, sIt, sMask = 14, 15, 16, 17, 18
    A(f'''
    s_lshl_b32 {s(sHead)}, s3, 2
    s_lshr_b32 s20, s13, 3
    s_add_u32 {s(sHead)}, {s(sHead)}, s20
    s_and_b32 s20, s13, 7
    s_lshl_b32 {s(sQt)}, s20, 3
    s_and_b32 s21, {s(sW)}, 3
    s_lshl_b32 s20, s21, 1
    s_add_u32 {s(sQt)}, {s(sQt)}, s20
    s_lshr_b32 {s(sKh)}, {s(sW)}, 2
    s_lshl_b32 s20, {s(sHead)}, 6
    s_add_u32 s20, s20, {s(sQt)}
    s_lshl_b32 s20, s20, 10
    buffer_load_dwordx4 {v(QA,4)}, v1, {s(sWS,4)}, s20 offen
    buffer_load_dwordx4 {v(QB,4)}, v1, {s(sWS,4)}, s20 offen offset:1024
    s_lshl_b32 s22, {s(sKh)}, 16
    s_lshl_b32 s21, s21, 10
    s_add_u32 s21, s21, s22
    s_lshl_b32 s23, {s(sHead)}, 17
    s_add_u32 s23, s23, {hx(KV)}
    s_add_u32 s23, s23, s21
    s_mov_b32 m0, s21
    s_mov_b32 s20, 0
L2_dma:
    buffer_load_dwordx4 v1, {s(sWS,4)}, s23 offen lds
    s_add_u32 m0, m0, 4096
    s_add_u32 s23, s23, 4096
    s_add_u32 s20, s20, 1
    s_cmp_lt_u32 s20, 16
    s_cbranch_scc1 L2_dma
    v_add_u32 v2, s22, v1
    s_mov_b32 {s(sMask)}, 0xffff
    s_mov_b32 {s(sMask+1)}, 0xffff
    s_mov_b32 {s(sIt)}, 0
    ''')
    for b in range(2):
        for j in range(8): A(f'v_mov_b32 v{VF(b,0)+j}, {hx(ONES)}')
    for j in range(4): A(f'v_mov_b32 v{P+4+j}, 0')
    A(f'''
    s_waitcnt vmcnt(13)
    s_barrier
    ds_read_b128 {v(P,4)}, v1
    ds_read_b128 {v(KF,4)}, v1 offset:2048
    s_waitcnt lgkmcnt(1)
    ''')
    A(mfma(SA, P, QA, None)); A(mfma(SB, P, QB, None))
    A('s_waitcnt lgkmcnt(0)')
    A(mfma(OA, KF, QA, None)); A(mfma(OB, KF, QB, None))
    A(f'''
    ds_read_b128 {v(KF,4)}, v2
    s_mov_b64 exec, {s(sMask,2)}
    ds_read_b128 {v(VF(0,0),4)}, v2 offset:1024
    ds_read_b128 {v(VF(0,1),4)}, v2 offset:1280
    s_mov_b64 exec, -1
    s_nop 4
    ''')
    for (S, O, C) in ((SA, OA, CA), (SB, OB, CB)):
        A(f'v_max3_f32 v{C}, v{S}, v{S+1}, v{S+2}')
        for j in range(3, 15, 2): A(f'v_max3_f32 v{C}, v{C}, v{S+j}, v{S+j+1}')
        A(f'v_max3_f32 v{C}, v{C}, v{S+15}, v{O}')
        for j in range(1, 15, 2): A(f'v_max3_f32 v{C}, v{C}, v{O+j}, v{O+j+1}')
        A(f'v_max_f32 v{C}, v{C}, v{O+15}')
        A(f'v_mov_b32 v{C+1}, v{C}')
        A('s_nop 1')
        A(f'v_permlane32_swap_b32 v{C}, v{C+1}')
        A(f'v_max_f32 v{C}, v{C}, v{C+1}')
        A(f'v_sub_f32 v{C}, {hx(f2u(-BIAS))}, v{C}')
        for j in range(1, 16): A(f'v_mov_b32 v{C+j}, v{C}')
        for j in range(9): A(f'v_mov_b32 v{O+j}, 0')
    A('s_waitcnt lgkmcnt(0)')
    A(mfma(SA, KF, QA, CA))
    A('s_nop 10')
    E = lambda S, j: f'v_exp_f32 v{S+j}, v{S+j}'
    Cv = lambda S, p: f'v_cvt_pk_bf16_f32 v{P+p}, v{S+2*p}, v{S+2*p+1}'
    def phase(S, qk, pv1, pv0, after_pv1='', pre=''):
        A(pre)
        A(qk)
        for j in range(4): A(E(S, j))
        A(Cv(S, 0))
        A(pv1)
        A(after_pv1)
        A(E(S, 4)); A(E(S, 5)); A(Cv(S, 1)); A(E(S, 6)); A(E(S, 7)); A(Cv(S, 2)); A(E(S, 8)); A(Cv(S, 3)); A(E(S, 9)); A(E(S, 10))
        A(pv0)
        A(Cv(S, 4)); A(E(S, 11)); A(E(S, 12)); A(E(S, 13)); A(Cv(S, 5)); A(E(S, 14)); A(E(S, 15)); A(Cv(S, 6)); A(Cv(S, 7))
    A('L2_loop:')
    for t in range(4):
        cur, oth = t & 1, (t & 1) ^ 1
        o = (t + 1) * 2048
        loads = f'''
        ds_read_b128 {v(KF,4)}, v2 offset:{o}
        s_mov_b64 exec, {s(sMask,2)}
        ds_read_b128 {v(VF(oth,0),4)}, v2 offset:{o+1024}
        ds_read_b128 {v(VF(oth,1),4)}, v2 offset:{o+1280}
        s_mov_b64 exec, -1
        '''
        if t == 3: loads += 'v_add_u32 v2, 0x2000, v2\n'
        phase(SA, mfma(SB, KF, QB, CB), mfma(OB, VF(oth, 1), P + 4, OB), mfma(OA, VF(cur, 0), P, OA), after_pv1=loads)
        phase(SB, mfma(SA, KF, QA, CA), mfma(OA, VF(cur, 1), P + 4, OA), mfma(OB, VF(cur, 0), P, OB), pre='s_waitcnt lgkmcnt(0)')
    A(f'''
    s_add_u32 {s(sIt)}, {s(sIt)}, 1
    s_cmp_eq_u32 {s(sIt)}, 1
    s_cbranch_scc0 L2_nosync
    s_waitcnt vmcnt(0)
    s_barrier
L2_nosync:
    s_cmp_lt_u32 {s(sIt)}, 8
    s_cbranch_scc1 L2_loop
    ''')
    A(mfma(OB, VF(1, 1), P + 4, OB))
    A(f'''
    s_xor_b32 s20, {s(sW)}, 4
    s_mul_i32 s20, s20, 3072
    s_add_u32 s20, s20, {K2_CB}
    v_add_u32 v2, s20, v1
    s_mul_i32 s20, {s(sW)}, 3072
    s_add_u32 s20, s20, {K2_CB}
    v_add_u32 v3, s20, v1
    s_add_u32 {s(sQt)}, {s(sQt)}, {s(sKh)}
    s_lshl_b32 s21, {s(sQt)}, 5
    s_add_u32 s21, s21, {s(sHead)}
    s_lshl_b32 s21, s21, 10
    s_add_u32 s21, s21, {hx(OF)}
    s_cmp_eq_u32 {s(sKh)}, 0
    s_cbranch_scc0 L2_kh1
    ds_write_b128 v2, {v(OB,4)}
    ds_write_b128 v2, {v(OB+4,4)} offset:1024
    ds_write_b32 v2, v{OB+8} offset:2048
    s_branch L2_join
L2_kh1:
    ds_write_b128 v2, {v(OA,4)}
    ds_write_b128 v2, {v(OA+4,4)} offset:1024
    ds_write_b32 v2, v{OA+8} offset:2048
    s_waitcnt lgkmcnt(0)
    ''')
    for j in range(9): A(f'v_mov_b32 v{OA+j}, v{OB+j}')
    for j in range(4): A(f'v_mov_b32 v{QA+j}, v{QB+j}')
    A(f'''
L2_join:
    s_waitcnt lgkmcnt(0)
    s_barrier
    ds_read_b128 {v(SA,4)}, v3
    ds_read_b128 {v(SA+4,4)}, v3 offset:1024
    ds_read_b32 v{SA+8}, v3 offset:2048
    s_mov_b32 s24, {hx(f2u(2.0**126))}
    s_mov_b32 s25, {hx(f2u(2.0**-110))}
    s_mov_b32 s26, {hx(f2u(2.0**120))}
    s_waitcnt lgkmcnt(0)
    ''')
    for j in range(9): A(f'v_add_f32 v{OA+j}, v{OA+j}, v{SA+j}')
    A(f'v_add_f32 v{SA}, |v{OA}|, |v{OA+1}|')
    for j in range(2, 8): A(f'v_add_f32 v{SA}, v{SA}, |v{OA+j}|')
    A(f'''
    v_cmp_gt_f32 vcc, s24, v{SA}
    v_cmp_lt_f32 s[28:29], s25, v{SA}
    v_cmp_gt_f32 s[30:31], s26, v{OA+8}
    s_and_b64 vcc, vcc, s[28:29]
    s_and_b64 vcc, vcc, s[30:31]
    s_cmp_eq_u64 vcc, -1
    s_cbranch_scc0 L2_fallback
L2_norm:
    v_rcp_f32 v{OA+8}, v{OA+8}
    s_nop 0
    ''')
    for j in range(8): A(f'v_mul_f32 v{OA+j}, v{OA+j}, v{OA+8}')
    for p in range(4): A(f'v_cvt_pk_bf16_f32 v{P+p}, v{OA+2*p}, v{OA+2*p+1}')
    A(f'''
    buffer_store_dwordx4 {v(P,4)}, v1, {s(sWS,4)}, s21 offen
    s_endpgm
    ''')
    A(f'''
L2_fallback:
    v_mov_b32 v{CA}, 0xff800000
    v_mov_b32 v2, v1
    s_mov_b32 {s(sIt)}, 0
L2_fb1:
    ds_read_b128 {v(KF,4)}, v2
    v_add_u32 v2, 0x800, v2
    s_waitcnt lgkmcnt(0)
    ''')
    A(mfma(SA, KF, QA, None))
    A('s_nop 11')
    for j in range(0, 16, 2): A(f'v_max3_f32 v{CA}, v{CA}, v{SA+j}, v{SA+j+1}')
    A(f'''
    s_add_u32 {s(sIt)}, {s(sIt)}, 1
    s_cmp_lt_u32 {s(sIt)}, 64
    s_cbranch_scc1 L2_fb1
    v_mov_b32 v{CA+1}, v{CA}
    s_nop 1
    v_permlane32_swap_b32 v{CA}, v{CA+1}
    v_max_f32 v{CA}, v{CA}, v{CA+1}
    v_sub_f32 v{CA}, 0, v{CA}
    ''')
    for j in range(1, 16): A(f'v_mov_b32 v{CA+j}, v{CA}')
    for j in range(9): A(f'v_mov_b32 v{OA+j}, 0')
    A(f'''
    v_mov_b32 v2, v1
    s_mov_b32 {s(sIt)}, 0
L2_fb2:
    ds_read_b128 {v(KF,4)}, v2
    s_mov_b64 exec, {s(sMask,2)}
    ds_read_b128 {v(VF(0,0),4)}, v2 offset:1024
    ds_read_b128 {v(VF(0,1),4)}, v2 offset:1280
    s_mov_b64 exec, -1
    v_add_u32 v2, 0x800, v2
    s_waitcnt lgkmcnt(0)
    ''')
    A(mfma(SA, KF, QA, CA))
    A('s_nop 11')
    for j in range(16): A(E(SA, j))
    A('s_nop 0')
    for p in range(8): A(Cv(SA, p))
    A('s_nop 1')
    A(mfma(OA, VF(0, 0), P, OA)); A(mfma(OA, VF(0, 1), P + 4, OA))
    A(f'''
    s_add_u32 {s(sIt)}, {s(sIt)}, 1
    s_cmp_lt_u32 {s(sIt)}, 64
    s_cbranch_scc1 L2_fb2
    s_nop 11
    s_branch L2_norm
    ''')
    D = 4; FR = 20
    Af = lambda i: FR + 8 * i
    Bf = lambda i: FR + 8 * i + 4
    sAo, sBo = 14, 15
    A(f'''
L2_gemm:
    s_setprio 2
    s_lshl_b32 s16, s3, 3
    s_lshr_b32 s20, s13, 3
    s_lshl_b32 s20, s20, 1
    s_add_u32 s16, s16, s20
    s_and_b32 s20, {s(sW)}, 1
    s_add_u32 s16, s16, s20
    s_and_b32 s17, s13, 7
    s_lshl_b32 s17, s17, 1
    s_bfe_u32 s20, {s(sW)}, 0x10001
    s_add_u32 s17, s17, s20
    s_mul_i32 {s(sAo)}, s17, {112*1024}
    s_add_u32 {s(sAo)}, {s(sAo)}, {hx(WDF)}
    s_mul_i32 {s(sBo)}, s16, {112*1024}
    s_add_u32 {s(sBo)}, {s(sBo)}, {hx(HF)}
    ''')
    def ld(i):
        r = f'buffer_load_dwordx4 {v(Af(i),4)}, v1, {s(sWS,4)}, {s(sAo)} offen offset:{(i&3)*1024}\n'
        r += f'buffer_load_dwordx4 {v(Bf(i),4)}, v1, {s(sWS,4)}, {s(sBo)} offen offset:{(i&3)*1024}\n'
        if i & 3 == 3:
            r += f's_add_u32 {s(sAo)}, {s(sAo)}, 4096\ns_add_u32 {s(sBo)}, {s(sBo)}, 4096\n'
        return r
    A('s_barrier')
    for i in range(16): A(ld(i))
    for j in range(16): A(f'v_mov_b32 v{D+j}, 0')
    A('s_barrier\ns_mov_b32 s18, 0\nL2_gloop:')
    for i in range(16):
        A('s_waitcnt vmcnt(30)')
        A(mfma(D, Af(i), Bf(i), D))
        A(ld(i))
    A('''
    s_add_u32 s18, s18, 1
    s_cmp_lt_u32 s18, 6
    s_cbranch_scc1 L2_gloop
    ''')
    for i in range(16):
        A(f's_waitcnt vmcnt({30-2*i})')
        A(mfma(D, Af(i), Bf(i), D))
    A(f'''
    s_lshl_b32 s16, s16, 4
    s_add_u32 s16, s16, s17
    s_lshl_b32 s16, s16, 11
    s_add_u32 s16, s16, {hx(GG)}
    s_nop 7
    ''')
    for j in range(16): A(f'v_mul_f32 v{FR+j}, {hx(f2u(-LOG2E))}, v{D+j}')
    for j in range(16): A(f'v_exp_f32 v{FR+j}, v{FR+j}')
    for j in range(16): A(f'v_add_f32 v{FR+j}, 1.0, v{FR+j}')
    for j in range(16): A(f'v_rcp_f32 v{FR+j}, v{FR+j}')
    for j in range(16): A(f'v_mul_f32 v{D+j}, v{D+j}, v{FR+j}')
    for p in range(8): A(f'v_cvt_pk_bf16_f32 v{FR+16+p}, v{D+2*p}, v{D+2*p+1}')
    A(f'''
    buffer_store_dwordx4 {v(FR+16,4)}, v1, {s(sWS,4)}, s16 offen
    buffer_store_dwordx4 {v(FR+20,4)}, v1, {s(sWS,4)}, s16 offen offset:1024
L2_end:
    s_endpgm
    ''')

K3_O = 0
K3_W = 65536
K3_LDS = K3_W + 16 * APAN

def gen_k3(A):
    header(A, 'k3_kernel')
    sWS, sWO, sX, sOut, sW = 12, 16, 20, 24, 28
    A(f'''
    s_cmp_ge_u32 s2, 256
    s_cbranch_scc1 L3_end
    s_load_dwordx2 s[4:5], s[0:1], 72
    s_load_dwordx2 s[6:7], s[0:1], 16
    s_load_dwordx2 s[8:9], s[0:1], 0
    s_load_dwordx2 s[10:11], s[0:1], 56
    v_lshrrev_b32 v1, 6, v0
    v_and_b32 v0, 63, v0
    s_and_b32 s3, s2, 7
    v_readfirstlane_b32 {s(sW)}, v1
    s_lshr_b32 s29, s2, 3
    v_lshlrev_b32 v1, 4, v0
    s_lshl_b32 s30, s3, 3
    s_lshr_b32 s33, s29, 3
    s_lshl_b32 s33, s33, 1
    s_add_u32 s30, s30, s33
    s_and_b32 s31, s29, 7
    v_lshrrev_b32 v2, 3, v0
    v_lshl_add_u32 v2, v2, 2, {s(sW)}
    v_and_b32 v3, 7, v0
    v_lshlrev_b32 v3, 4, v3
    v_lshl_add_u32 v2, v2, 10, v3
    s_lshl_b32 s33, s31, 7
    v_add_u32 v2, s33, v2
    s_and_b32 s34, {s(sW)}, 1
    s_lshr_b32 s35, {s(sW)}, 1
    s_lshl_b32 s36, s34, 15
    s_lshl_b32 s33, s35, 11
    s_add_u32 s36, s36, s33
    s_lshl_b32 s37, s30, 15
    s_add_u32 s37, s37, {hx(OF)}
    s_add_u32 s37, s37, s36
    s_mul_i32 s38, {s(sW)}, 1088
    s_add_u32 s38, s38, {K3_W}
    s_mov_b32 s39, 0
    s_mov_b32 s40, 0
    s_waitcnt lgkmcnt(0)
    ''')
    srd(A, sWS, 's4', 's5', hx(WS_BYTES))
    srd(A, sWO, 's6', 's7', 524288)
    A(f'''
L3_dma:
    s_mov_b32 m0, s36
    s_nop 0
    buffer_load_dwordx4 v1, {s(sWS,4)}, s37 offen lds
    buffer_load_dwordx4 v1, {s(sWS,4)}, s37 offen offset:1024 lds
    s_mov_b32 m0, s38
    s_add_u32 s36, s36, 4096
    buffer_load_dwordx4 v2, {s(sWO,4)}, s39 offen lds
    s_add_u32 m0, s38, {APAN}
    s_add_u32 s39, s39, 32768
    buffer_load_dwordx4 v2, {s(sWO,4)}, s39 offen lds
    s_add_u32 s37, s37, 4096
    s_add_u32 s38, s38, {2*APAN}
    s_add_u32 s39, s39, 32768
    s_add_u32 s40, s40, 1
    s_cmp_lt_u32 s40, 8
    s_cbranch_scc1 L3_dma
    ''')
    srd(A, sX, 's8', 's9', 2097152)
    srd(A, sOut, 's10', 's11', 2097152)
    D, G, X, FR = 16, 32, 40, 48
    A(f'''
    s_add_u32 s30, s30, s34
    s_lshl_b32 s31, s31, 1
    s_add_u32 s31, s31, s35
    s_lshl_b32 s33, s30, 4
    s_add_u32 s33, s33, s31
    s_lshl_b32 s33, s33, 11
    s_add_u32 s33, s33, {hx(GG)}
    buffer_load_dwordx4 {v(G,4)}, v1, {s(sWS,4)}, s33 offen
    buffer_load_dwordx4 {v(G+4,4)}, v1, {s(sWS,4)}, s33 offen offset:1024
    v_and_b32 v4, 31, v0
    v_lshrrev_b32 v7, 5, v0
    v_lshlrev_b32 v4, 10, v4
    v_lshl_add_u32 v4, v7, 4, v4
    s_lshl_b32 s41, s30, 15
    s_lshl_b32 s33, s31, 6
    s_add_u32 s41, s41, s33
    buffer_load_dwordx4 {v(X,4)}, v4, {s(sX,4)}, s41 offen
    buffer_load_dwordx4 {v(X+4,4)}, v4, {s(sX,4)}, s41 offen offset:32
    s_lshl_b32 s33, s34, 15
    v_add_u32 v5, s33, v1
    v_bfe_u32 v8, v0, 2, 2
    v_mul_u32_u24 v6, 1088, v8
    v_lshl_add_u32 v6, v7, 7, v6
    v_bfe_u32 v8, v0, 4, 1
    v_lshl_add_u32 v6, v8, 5, v6
    v_and_b32 v8, 1, v0
    v_lshl_add_u32 v6, v8, 4, v6
    v_bfe_u32 v8, v0, 1, 1
    v_lshl_add_u32 v6, v8, 3, v6
    s_lshl_b32 s33, s35, 6
    s_add_u32 s33, s33, {K3_W}
    v_add_u32 v6, s33, v6
    ''')
    for j in range(16): A(f'v_mov_b32 v{D+j}, 0')
    for p in range(8):
        A(f's_waitcnt vmcnt({4*(7-p)+4})\ns_barrier')
        if p == 4: A(f'v_add_u32 v6, {8*APAN}, v6')
        fb = FR + 32 * (p & 1)
        for k in range(4):
            hd = 4 * p + k
            ch = (hd >> 1) & 7
            A(f'ds_read_b128 {v(fb+8*k+4,4)}, v5 offset:{hd*1024}')
            for rd in range(2):
                A(f'ds_read_b64_tr_b16 {v(fb+8*k+2*rd,2)}, v6 offset:{ch*APAN+(4*(hd&1)+2*rd)*128}')
        for k in range(4):
            A(f's_waitcnt lgkmcnt({9-3*k})')
            A(mfma(D, fb + 8 * k, fb + 8 * k + 4, D))
    A('s_waitcnt vmcnt(0)')
    U = FR
    for j in range(8):
        A(f'v_lshlrev_b32 v{U+2*j}, 16, v{G+j}\nv_and_b32 v{U+2*j+1}, 0xffff0000, v{G+j}')
    for j in range(8):
        A(f'v_lshlrev_b32 v{U+16+2*j}, 16, v{X+j}\nv_and_b32 v{U+16+2*j+1}, 0xffff0000, v{X+j}')
    for p in range(8):
        A(f'v_pk_fma_f32 {v(D+2*p,2)}, {v(D+2*p,2)}, {v(U+2*p,2)}, {v(U+16+2*p,2)}')
    for p in range(8):
        A(f'v_cvt_pk_bf16_f32 v{G+p}, v{D+2*p}, v{D+2*p+1}')
    A(f'''
    buffer_store_dwordx4 {v(G,4)}, v4, {s(sOut,4)}, s41 offen
    buffer_store_dwordx4 {v(G+4,4)}, v4, {s(sOut,4)}, s41 offen offset:32
L3_end:
    s_endpgm
    ''')

def main(out):
    A = Asm()
    top = f'''; LayerNorm -> (32-head attention @ wo) * silu(GEGLU FFN) + x, three launches (generated by gen/gen.py)
; @launch kernel=k1_kernel grid=(256,1,1) block=(512,1,1) lds={K1_LDS}
; @launch kernel=k2_kernel grid=(256,1,1) block=(768,1,1) lds={K2_LDS}
; @launch kernel=k3_kernel grid=(256,1,1) block=(256,1,1) lds={K3_LDS}
.amdgcn_target "amdgcn-amd-amdhsa--gfx950"
.text
'''
    gen_k1(A); gen_k2(A); gen_k3(A)
    tail = '.section .rodata,"a"\n' + descriptor('k1_kernel', 256) + descriptor('k2_kernel', 168) + descriptor('k3_kernel', 112)
    open(out, 'w').write(top + A.text() + tail)

if __name__ == '__main__':
    main(sys.argv[1] if len(sys.argv) > 1 else 'cdna_kernels/%s.s' % NAME)
```

```python
import struct, sys, math, os

NAME = 'recurrent_scan__mha_block__glu_gated_geglu__prompt'
def f2u(x): return struct.unpack('<I', struct.pack('<f', x))[0]
def hx(x): return '0x%x' % (x & 0xffffffff)
class Asm:
    def __init__(self): self.l = []
    def __call__(self, s):
        for line in s.split('\n'):
            line = line.strip()
            if not line: continue
            self.l.append(line if line.endswith(':') or line.startswith('.') else '    ' + line)
    def text(self): return '\n'.join(self.l) + '\n'
def v(a, n=1): return 'v%d' % a if n == 1 else 'v[%d:%d]' % (a, a + n - 1)
def s(a, n=1): return 's%d' % a if n == 1 else 's[%d:%d]' % (a, a + n - 1)
def mfma(d, a, b, c):
    return 'v_mfma_f32_32x32x16_bf16 %s, %s, %s, %s' % (v(d, 16), v(a, 4), v(b, 4), '0' if c is None else v(c, 16))

QF  = 0x000000
KV  = 0x200000
HF  = 0x600000
OF  = 0xD00000
WDF = 0xF00000
WOF = 0x1100000
CSP = 0x1200000
RSP = 0x1280000
FL  = 0x13C0000
NW  = 0x13D0000
STB = 0x1400000
WS_BYTES = 0x1500000
LOG2E = 1.4426950408889634
ONES = 0x3f803f80
SPIN = 1 << 20

STAMP = bool(os.environ.get('STAMP'))
EXP = set(os.environ.get('EXP', '').split(','))
BIAS = float(os.environ.get('BIAS', '96'))
NFL = int(os.environ.get('NFL', '4'))

def stamp(A, idx, real=False):
    if not STAMP: return
    A('%s s[78:79]\ns_waitcnt lgkmcnt(0)\ns_mov_b32 s%d, s78' % ('s_memrealtime' if real else 's_memtime', 80 + idx))
def stamp_begin(A):
    if not STAMP: return
    for i in range(16): A('s_mov_b32 s%d, 0' % (80 + i))
    stamp(A, 14, True); stamp(A, 0)
def stamp_end(A, sWS, sW, vt=3, tr=None):
    if not STAMP: return
    A('s_waitcnt vmcnt(0)')
    stamp(A, 13); stamp(A, 15, True)
    A('s_nop 4')
    if tr is not None: A('v_mov_b32 v%d, v%d' % (vt, tr))
    for i in range(16): A('v_writelane_b32 v%d, s%d, %d' % (vt, 80 + i, i))
    A('''s_lshl_b32 s78, s2, 3
    s_add_u32 s78, s78, s%d
    s_lshl_b32 s78, s78, 7
    s_add_u32 s78, s78, %s
    v_lshlrev_b32 v%d, 2, v0
    s_mov_b64 exec, 0xffffffff
    buffer_store_dword v%d, v%d, s[%d:%d], s78 offen''' % (sW, hx(STB), vt + 1, vt, vt + 1, sWS, sWS + 3))

PAN, APAN = 4224, 4352
WST = 4 * PAN + APAN
XST = 16 * 1040
L_X = 4 * WST
L_PP = WST
L_VT = 65536
L_ONES = 131072
L_CS = L_ONES + 7 * 2048 + 1536
L_RS = L_CS + 10 * 256
L_FLAG = L_RS + 4 * 512
L_EX = L_CS
LDS_BYTES = L_EX + 16384 + 64
L_FLAG = L_EX + 16384
L_NON = L_FLAG + 4
assert LDS_BYTES <= 163840
NT = 8

sX, sA, sH0, sH1, sWS, sPK, sDBG = 16, 20, 24, 28, 32, 36, 12
sG0, sG1 = 36, 12
sRB, sCG, sW, sHead, sQB = 40, 41, 42, 74, 75

def flag_store(A, soff, vt):
    A(f'''
    s_mov_b64 exec, 1
    buffer_store_dword v{vt}, off, {s(sWS,4)}, {soff} sc1
    s_mov_b64 exec, -1
    ''')

def gen(A):
    K = NAME + '_kernel'
    A(f'.globl {K}\n.p2align 8\n.type {K},@function\n{K}:')
    A('''
    s_cmp_ge_u32 s2, 256
    s_cbranch_scc1 L_end
    ''')
    stamp_begin(A)
    A(f'''
    s_load_dwordx2 {s(sX,2)}, s[0:1], 0
    s_load_dwordx2 {s(sA,2)}, s[0:1], 8
    s_load_dwordx4 s[8:11], s[0:1], 32
    s_load_dwordx2 {s(sWS,2)}, s[0:1], 72
    v_lshrrev_b32 v1, 6, v0
    v_and_b32 v0, 63, v0
    s_and_b32 s3, s2, 7
    v_readfirstlane_b32 {s(sW)}, v1
    s_lshr_b32 s43, s2, 3
    s_lshr_b32 {s(sRB)}, s3, 2
    s_lshl_b32 {s(sRB)}, {s(sRB)}, 3
    s_and_b32 s70, s43, 7
    s_add_u32 {s(sRB)}, {s(sRB)}, s70
    s_and_b32 {s(sCG)}, s3, 3
    s_lshl_b32 {s(sCG)}, {s(sCG)}, 2
    s_lshr_b32 s71, s43, 3
    s_add_u32 {s(sCG)}, {s(sCG)}, s71
    s_and_b32 s44, {s(sW)}, 3
    s_lshr_b32 s45, s44, 1
    s_and_b32 s46, s44, 1
    s_mov_b32 {s(sWS+2)}, {hx(WS_BYTES)}
    s_mov_b32 {s(sWS+3)}, 0x20000
    s_lshl_b32 {s(sHead)}, s3, 2
    s_add_u32 {s(sHead)}, {s(sHead)}, s71
    s_mov_b32 {s(sQB)}, s70
    ''')
    patterns = f'''
    v_bfe_u32 v5, v0, 4, 1
    v_bfe_u32 v6, v0, 2, 2
    v_lshrrev_b32 v7, 5, v0
    v_and_b32 v1, 3, v0
    v_lshlrev_b32 v1, 3, v1
    v_lshl_add_u32 v1, v7, 8, v1
    v_mul_u32_u24 v2, {PAN}, v5
    v_mul_u32_u24 v8, 1056, v6
    v_add3_u32 v2, v2, v8, v1
    v_mul_u32_u24 v8, 1088, v6
    v_lshl_add_u32 v3, v5, 5, v8
    v_add_u32 v3, v3, v1
    v_and_b32 v8, 15, v0
    v_mul_u32_u24 v8, 1040, v8
    v_lshl_add_u32 v4, v5, 8, v8
    v_lshl_add_u32 v4, v7, 4, v4
    s_mul_i32 s47, s45, {2*PAN}
    v_add_u32 v2, s47, v2
    s_lshl_b32 s47, s45, 6
    s_add_u32 s47, s47, {4*PAN}
    v_add_u32 v3, s47, v3
    '''
    A(f'''
    s_cmp_lt_u32 {s(sW)}, 4
    s_cbranch_scc1 L_C
    ''')
    gen_H(A, patterns)
    gen_C(A, patterns)
    A('L_end:\ns_endpgm\nL_code_end:')

def gen_H(A, patterns):
    sStrH, sColH = 48, 49
    sRowA, sRowH, sMH, sMA, sMX, sXo, sRot, sG = 50, 51, 52, 53, 54, 55, 59, 60
    ROTM = int(os.environ.get('ROTM', '7'))
    packsetup = f"""
    s_lshl_b32 s47, {s(sCG)}, 4
    s_add_u32 s47, s47, {s(sRB)}
    s_lshr_b32 s66, s47, 1
    s_and_b32 s67, s47, 1
    s_sub_u32 s47, s47, 224
    s_cmp_lt_u32 {s(sCG)}, 14
    s_cselect_b64 {s(sPK,2)}, s[4:5], s[6:7]
    s_mov_b32 {s(sPK+2)}, 524288
    s_cmov_b32 {s(sPK+2)}, 1835008
    s_mov_b32 {s(sPK+3)}, 0x20000
    s_cselect_b32 s66, s66, s47
    s_cselect_b32 s67, s67, 0
    s_movk_i32 s64, 512
    s_cmov_b32 s64, 0x2000000
    s_movk_i32 s65, 32
    s_cmovk_i32 s65, 112
    s_mov_b32 s63, {hx(WOF)}
    s_cmov_b32 s63, {hx(WDF)}
    s_lshl_b32 s72, s66, 14
    s_lshl_b32 s61, s67, 9
    s_add_u32 s72, s72, s61
    s_lshl_b32 s61, s44, 7
    s_add_u32 s72, s72, s61
    s_lshl_b32 s68, s44, 12
    s_add_u32 s68, s68, {L_PP}
    v_lshrrev_b32 v8, 3, v0
    v_and_b32 v9, 7, v0
    v_lshlrev_b32 v9, 4, v9
    v_lshl_add_u32 v14, v8, 10, v9
    """
    A(f"""
    s_mov_b32 {s(sX+2)}, 2097152
    s_mov_b32 {s(sX+3)}, 0x20000
    s_mov_b32 {s(sA+2)}, 1572864
    s_mov_b32 {s(sA+3)}, 0x20000
    s_cmp_ge_u32 {s(sW)}, 6
    s_cbranch_scc1 L_M
    s_and_b32 s64, s3, 3
    s_mul_i32 s65, s64, 7
    s_lshl_b32 s47, s71, 1
    s_add_u32 s65, s65, s47
    s_lshl_b32 s65, s65, 7
    s_add_u32 s66, s65, 128
    s_lshl_b32 s64, s64, 8
    s_add_u32 s64, s64, 2048
    s_cmp_lt_u32 s71, 3
    s_mov_b32 {s(sH0+2)}, 1572864
    s_cmov_b32 {s(sH0+2)}, 1835008
    s_mov_b32 {s(sH1+2)}, {1572864-128}
    s_cmov_b32 {s(sH1+2)}, 1835008
    s_mov_b32 {s(sH0+3)}, 0x20000
    s_mov_b32 {s(sH1+3)}, 0x20000
    s_mov_b32 {s(sG0+2)}, 1835008
    s_mov_b32 {s(sG1+2)}, 1835008
    s_mov_b32 {s(sG0+3)}, 0x20000
    s_mov_b32 {s(sG1+3)}, 0x20000
    s_movk_i32 {s(sStrH)}, 3072
    s_cmovk_i32 {s(sStrH)}, 3584
    s_cselect_b32 {s(sColH)}, s66, s64
    v_lshrrev_b32 v8, 3, v0
    v_and_b32 v9, 7, v0
    v_lshlrev_b32 v9, 4, v9
    s_lshl_b32 s47, s46, 1
    v_lshl_add_u32 v10, v8, 2, s47
    v_mul_u32_u24 v11, 3072, v10
    s_lshl_b32 s47, {s(sCG)}, 7
    v_add3_u32 v11, v11, v9, s47
    v_mul_u32_u24 v16, 3584, v10
    v_add3_u32 v16, v16, v9, s65
    v_add_u32 v17, 3584, v16
    v_mul_lo_u32 v12, v10, {s(sStrH)}
    v_add3_u32 v12, v12, v9, {s(sColH)}
    v_add_u32 v10, {s(sStrH)}, v12
    v_and_b32 v13, 4, v8
    v_bfe_u32 v14, v8, 1, 1
    v_and_b32 v15, 1, v8
    v_lshl_add_u32 v14, v15, 1, v14
    v_add_u32 v13, v13, v14
    v_lshl_add_u32 v13, v13, 14, v9
    s_lshl_b32 s47, {s(sRB)}, 17
    s_lshl_b32 s61, s46, 12
    s_add_u32 s47, s47, s61
    v_add_u32 v13, s47, v13
    s_lshl_b32 s47, s71, 1
    s_add_u32 {s(sRot)}, s70, s47
    s_and_b32 s47, s3, 1
    s_add_u32 {s(sRot)}, {s(sRot)}, s47
    s_and_b32 {s(sRot)}, {s(sRot)}, {ROTM}
    s_lshl_b32 {s(sXo)}, {s(sRot)}, 7
    s_lshl_b32 {s(sRot)}, {s(sRot)}, 1
    s_lshl_b32 s69, {s(sStrH)}, 5
    s_mul_i32 {s(sRowA)}, {s(sRot)}, {32*3072}
    s_mul_i32 {s(sRowH)}, {s(sRot)}, s69
    s_mul_i32 s56, {s(sRot)}, {32*3584}
    s_mul_i32 {s(sMX)}, s46, 4160
    s_add_u32 {s(sMX)}, {s(sMX)}, {L_X}
    s_mul_i32 {s(sMH)}, s46, 2112
    s_mul_i32 {s(sMA)}, s46, 2176
    s_add_u32 {s(sMA)}, {s(sMA)}, {4*PAN}
    s_mov_b32 {s(sG)}, 0
    s_mov_b32 m0, {s(sMX)}
    s_waitcnt lgkmcnt(0)
    buffer_load_dwordx4 v13, {s(sX,4)}, {s(sXo)} offen lds
    s_add_u32 m0, {s(sMX)}, 16
    s_add_u32 s62, {s(sA)}, 128
    buffer_load_dwordx4 v13, {s(sX,4)}, {s(sXo)} offen offset:1024 lds
    s_addc_u32 s63, {s(sA+1)}, 0
    s_mov_b64 {s(sG0,2)}, s[8:9]
    s_mov_b64 {s(sG1,2)}, s[10:11]
    s_add_u32 m0, {s(sMX)}, 32
    s_cmp_lt_u32 s71, 3
    buffer_load_dwordx4 v13, {s(sX,4)}, {s(sXo)} offen offset:2048 lds
    s_cselect_b64 {s(sH0,2)}, s[8:9], {s(sA,2)}
    s_cselect_b64 {s(sH1,2)}, s[10:11], s[62:63]
    s_add_u32 m0, {s(sMX)}, 48
    s_add_u32 {s(sMX)}, {s(sMX)}, {8*1040}
    buffer_load_dwordx4 v13, {s(sX,4)}, {s(sXo)} offen offset:3072 lds
    s_add_u32 {s(sXo)}, {s(sXo)}, 8192
    s_load_dwordx2 s[4:5], s[0:1], 48
    s_load_dwordx2 s[6:7], s[0:1], 16
    s_branch LL_issue
LL_loop:
    s_waitcnt vmcnt(28)
    s_barrier
LL_issue:
    """)
    fill = [f's_add_u32 {s(sG)}, {s(sG)}, 1', f's_add_u32 s47, {s(sG)}, {s(sRot)}', 's_add_u32 s61, s47, 1', 's_and_b32 s47, s47, 15',
            f's_bfe_u32 {s(sXo)}, s61, 0x30001', f's_lshl_b32 {s(sXo)}, {s(sXo)}, 7', 's_and_b32 s61, s61, 1', 's_lshl_b32 s61, s61, 13',
            f's_add_u32 {s(sXo)}, {s(sXo)}, s61', f's_add_u32 {s(sMX)}, {s(sMX)}, {8*1040}', 's_nop 0', 's_nop 0', 's_nop 0', 's_nop 0']
    lds = []
    for i in range(4):
        lds.append((sMX, 16 * i, f'v13, {s(sX,4)}, {s(sXo)} offen offset:{1024*i}'))
    for cc in range(2):
        for hf in range(2):
            for bb in range(2):
                if cc == 0: src = f'v{16+bb}, {s(sG0 if hf == 0 else sG1,4)}, s56 offen'
                else: src = f'v{12 if bb == 0 else 10}, {s(sH0 if hf == 0 else sH1,4)}, {s(sRowH)} offen'
                lds.append((sMH, (2 * cc + hf) * PAN + 1056 * bb, src))
    lds.append((sMA, 0, f'v11, {s(sA,4)}, {s(sRowA)} offen'))
    lds.append((sMA, 1088 - 3072, f'v11, {s(sA,4)}, {s(sRowA)} offen offset:3072'))
    for (base, off, ins), f in zip(lds, fill):
        A(f's_add_u32 m0, {s(base)}, {hx(off)}\n{f}\nbuffer_load_dwordx4 {ins} lds')
    A(f"""
    s_cmp_ge_u32 {s(sG)}, 15
    s_cselect_b32 {s(sXo)}, 0x400000, {s(sXo)}
    s_mul_i32 {s(sRowA)}, s47, {32*3072}
    s_mul_i32 {s(sRowH)}, s47, s69
    s_mul_i32 s56, s47, {32*3584}
    s_add_u32 {s(sMH)}, {s(sMH)}, {WST}
    s_add_u32 {s(sMA)}, {s(sMA)}, {WST}
    s_cmp_ge_u32 {s(sMH)}, {4*WST}
    s_cselect_b32 s47, {4*WST}, 0
    s_sub_u32 {s(sMH)}, {s(sMH)}, s47
    s_sub_u32 {s(sMA)}, {s(sMA)}, s47
    s_cmp_ge_u32 {s(sMX)}, {L_X+3*XST}
    s_cselect_b32 s47, {3*XST}, 0
    s_sub_u32 {s(sMX)}, {s(sMX)}, s47
    s_cmp_ge_u32 {s(sG)}, 16
    s_cbranch_scc1 LL_tail
    s_cmp_ge_u32 {s(sG)}, 4
    s_cbranch_scc1 LL_loop
    s_cmp_lg_u32 {s(sG)}, 2
    s_cbranch_scc1 LL_issue
    s_waitcnt vmcnt(14)
    s_barrier
    s_branch LL_issue
LL_tail:
    s_waitcnt lgkmcnt(0)
    """)
    A(patterns)
    A(packsetup)
    A(f"""
    s_waitcnt vmcnt(28)
    s_barrier
    s_waitcnt vmcnt(14)
    s_branch LH_join
    """)
    CS, RS = 16, 24
    WF, XF = 32, 52
    sOne = 73
    A(f"""
L_M:
    s_load_dwordx2 {s(sDBG,2)}, s[0:1], 64
    s_load_dwordx2 s[4:5], s[0:1], 48
    s_load_dwordx2 s[6:7], s[0:1], 16
    s_mov_b32 s45, s46
    """)
    A(patterns)
    A(f"""
    s_mov_b32 s45, 1
    s_mov_b32 {s(sDBG+2)}, 256
    s_mov_b32 {s(sDBG+3)}, 0x20000
    s_mov_b32 {s(sOne)}, {hx(ONES)}
    s_lshl_b32 s47, s46, 9
    s_add_u32 s47, s47, {L_X}
    v_add_u32 v4, s47, v4
    v_lshlrev_b32 v1, 4, v0
    s_mov_b32 s50, 0
    """)
    for i in range(16, 28, 2): A(f'v_mov_b64 {v(i,2)}, 0')
    A('s_waitcnt lgkmcnt(0)')
    A(packsetup)
    A(f"""
LM_stat:
    s_bitcmp1_b32 s50, 0
    s_cbranch_scc1 LM_nobar
    s_barrier
    buffer_load_dwordx2 v[30:31], off, {s(sDBG,4)}, 0 sc1
LM_nobar:
    ds_read_b128 {v(XF,4)}, v4
    ds_read_b128 {v(XF+4,4)}, v4 offset:128
    ds_read_b64_tr_b16 {v(WF,2)}, v3
    ds_read_b64_tr_b16 {v(WF+2,2)}, v3 offset:128
    """)
    for u in range(4):
        A(f'ds_read_b64_tr_b16 {v(WF+4+4*u,2)}, v2 offset:{u*32}')
        A(f'ds_read_b64_tr_b16 {v(WF+6+4*u,2)}, v2 offset:{u*32+128}')
    A(f"""
    s_movk_i32 s47, 512
    s_cmovk_i32 s47, {WST-512}
    v_add_u32 v2, s47, v2
    v_add_u32 v3, s47, v3
    v_add_u32 v4, 32, v4
    s_add_u32 s50, s50, 1
    s_waitcnt lgkmcnt(10)
    """)
    for j in range(4):
        for T in range(2):
            A(f'v_dot2c_f32_bf16 v{RS+2*T}, {s(sOne)}, v{XF+4*T+j}')
            A(f'v_dot2c_f32_bf16 v{RS+2*T+1}, v{XF+4*T+j}, v{XF+4*T+j}')
    A('s_waitcnt lgkmcnt(0)')
    for j in range(4):
        for i in range(5):
            A(f'v_dot2c_f32_bf16 v{CS+i}, {s(sOne)}, v{WF+4*i+j}')
    A(f"""
    s_cmp_lt_u32 s50, 4
    s_cbranch_scc1 LM_stat
    s_barrier
    s_lshl_b32 s50, {s(sCG)}, 4
    s_add_u32 s50, s50, {s(sRB)}
    s_lshl_b32 s50, s50, 1
    s_add_u32 s50, s50, s46
    s_lshl_b32 s50, s50, 10
    s_add_u32 s50, s50, {hx(CSP)}
    s_lshl_b32 s51, {s(sRB)}, 4
    s_add_u32 s51, s51, {s(sCG)}
    s_lshl_b32 s51, s51, 1
    s_add_u32 s51, s51, s46
    s_lshl_b32 s51, s51, 10
    s_add_u32 s51, s51, {hx(RSP)}
    s_mov_b32 s47, 0
LM_non:
    s_waitcnt vmcnt(0)
    v_cmp_eq_u32 vcc, 1, v31
    s_cbranch_vccnz LM_nonok
    s_sleep 2
    buffer_load_dwordx2 v[30:31], off, {s(sDBG,4)}, 0 sc1
    s_add_u32 s47, s47, 1
    s_cmp_lt_u32 s47, {SPIN}
    s_cbranch_scc1 LM_non
LM_nonok:
    """)
    for i in range(5): A(f'v_mov_b32 v{WF+i}, v{CS+i}')
    for i in range(4): A(f'v_mov_b32 v{WF+8+i}, v{RS+i}')
    A('v_cmp_gt_u32 vcc, 32, v0')
    for i in range(5): A(f'v_permlane32_swap_b32 v{CS+i}, v{WF+i}')
    for i in range(4): A(f'v_permlane32_swap_b32 v{RS+i}, v{WF+8+i}')
    for i in range(5): A(f'v_add_f32 v{CS+i}, v{CS+i}, v{WF+i}')
    for i in range(4): A(f'v_add_f32 v{RS+i}, v{RS+i}, v{WF+8+i}')
    A(f"""
    v_cndmask_b32 v{CS}, v{CS+3}, v{CS}, vcc
    v_cndmask_b32 v{CS+1}, v{CS+4}, v{CS+1}, vcc
    v_mov_b32 v{CS+3}, v30
    v_cndmask_b32 v{RS}, v{RS+2}, v{RS}, vcc
    v_cndmask_b32 v{RS+1}, v{RS+3}, v{RS+1}, vcc
    v_mov_b32 v{RS+3}, v30
    buffer_store_dwordx4 {v(CS,4)}, v1, {s(sWS,4)}, s50 offen sc1
    buffer_store_dwordx4 {v(RS,4)}, v1, {s(sWS,4)}, s51 offen sc1
    s_and_b32 s50, s50, {hx(~0x3800)}
    s_and_b32 s51, s51, {hx(~0x3800)}
    v_lshlrev_b32 v8, 2, v0
    v_mov_b32 v9, {L_NON}
    ds_write_b32 v9, v30
    s_mov_b32 s52, 0
    """)
    B_GAT, B_RED = [int(t) for t in os.environ.get('MSCHED', '8,12').split(',')]
    nb = 2
    def bars(upto):
        nonlocal nb
        while nb < upto:
            A('s_barrier'); nb += 1
    bars(B_GAT)
    GC, GR = 32, 64
    A('s_mov_b32 s53, 0\nLM_gat:\ns_mov_b32 s47, s50\ns_mov_b32 s61, s51')
    for i in range(8):
        A(f'buffer_load_dwordx4 {v(GR+4*i,4)}, v1, {s(sWS,4)}, s61 offen offset:{2048*(i&1)} sc1')
        A(f'buffer_load_dwordx4 {v(GC+4*i,4)}, v1, {s(sWS,4)}, s47 offen offset:{2048*(i&1)} sc1')
        if i & 1 and i < 7: A('s_add_u32 s47, s47, 4096\ns_add_u32 s61, s61, 4096')
    A('s_cmp_lg_u32 s53, 0\ns_cbranch_scc1 LM_chk')
    bars(B_RED - 1)
    A('LM_chk:\ns_add_u32 s53, s53, 1\ns_waitcnt vmcnt(0)')
    A(f'v_xor_b32 v10, v30, v{GC+3}')
    for i in range(1, 16):
        A(f'v_xor_b32 v11, v30, v{GC+4*i+3}\nv_or_b32 v10, v10, v11')
    A(f"""
    v_cmp_ne_u32 vcc, 0, v10
    s_cbranch_vccz LM_red
    s_cmp_lt_u32 s53, {SPIN}
    s_cbranch_scc1 LM_gat
LM_red:
    """)
    if STAMP: A('s_add_u32 s92, s53, s80')
    stamp(A, 1)
    for i in range(1, 8):
        for t in range(3):
            if t < 2: A(f'v_add_f32 v{GR+t}, v{GR+t}, v{GR+4*i+t}')
            A(f'v_add_f32 v{GC+t}, v{GC+t}, v{GC+4*i+t}')
    SUM, SQ = GR, GR + 1
    A(f"""
    s_mul_i32 s47, s46, {5*256}
    s_add_u32 s47, s47, {L_CS}
    v_add_u32 v10, s47, v8
    s_lshl_b32 s47, s46, 9
    s_add_u32 s47, s47, {L_RS}
    v_lshl_add_u32 v9, v0, 3, s47
    v_cmp_gt_u32 vcc, 32, v0
    v_mul_f32 v{SUM}, {hx(f2u(-1.0/512))}, v{SUM}
    v_mul_f32 v{SQ}, {hx(f2u(1.0/512))}, v{SQ}
    v_fma_f32 v{SQ}, -v{SUM}, v{SUM}, v{SQ}
    v_max_f32 v{SQ}, 0, v{SQ}
    v_cvt_pk_bf16_f32 v{SQ}, v{SQ}, v{SQ}
    v_and_b32 v{SQ}, 0xffff0000, v{SQ}
    v_add_f32 v{SQ}, {hx(f2u(1e-5))}, v{SQ}
    v_cvt_pk_bf16_f32 v{SQ}, v{SQ}, v{SQ}
    v_and_b32 v{SQ}, 0xffff0000, v{SQ}
    v_sqrt_f32 v{SQ}, v{SQ}
    v_cvt_pk_bf16_f32 v{SUM}, v{SUM}, v{SUM}
    v_cvt_pk_bf16_f32 v{SQ}, v{SQ}, v{SQ}
    v_and_b32 v{SQ}, 0xffff0000, v{SQ}
    ds_write_b64 v9, {v(SUM,2)}
    """)
    for t in range(3):
        A(f"""
        v_cvt_pk_bf16_f32 v28, v{GC+t}, v{GC+t}
        v_and_b32 v28, 0xffff0000, v28
        v_sub_f32 v29, v{GC+t}, v28
        v_cvt_pk_bf16_f32 v28, v28, v29
        v_cndmask_b32 v{16+t}, 0, v28, vcc
        ds_write_b32 v10, v{16+t} offset:{t*256}
        """)
        if t < 2:
            A(f'v_sub_u32 v{20+t}, v28, v{16+t}\nds_write_b32 v10, v{20+t} offset:{(3+t)*256}')
    A('s_waitcnt lgkmcnt(0)')
    stamp(A, 2)
    bars(13)
    assert nb == 13
    A(f"""
LH_join:
    s_barrier
    v_mov_b32 v9, {L_NON}
    ds_read_b32 v3, v9
    v_lshlrev_b32 v1, 4, v0
    s_mov_b32 m0, s68
    s_add_u32 s47, s72, 8192
    buffer_load_dwordx4 v14, {s(sPK,4)}, s72 offen lds
    s_add_u32 m0, s68, 1024
    s_add_u32 s72, s72, s64
    buffer_load_dwordx4 v14, {s(sPK,4)}, s47 offen lds
    s_add_u32 m0, s68, 2048
    s_add_u32 s47, s47, s64
    buffer_load_dwordx4 v14, {s(sPK,4)}, s72 offen lds
    s_add_u32 m0, s68, 3072
    s_nop 0
    buffer_load_dwordx4 v14, {s(sPK,4)}, s47 offen lds
    s_waitcnt vmcnt(4)
    s_barrier
    s_barrier
    """)
    A(f'''
    v_and_b32 v8, 1, v0
    v_bfe_u32 v9, v0, 1, 1
    v_lshl_add_u32 v8, v8, 1, v9
    v_lshlrev_b32 v8, 3, v8
    v_lshl_add_u32 v8, v5, 5, v8
    v_lshl_add_u32 v9, v7, 2, v6
    v_lshl_add_u32 v8, v9, 7, v8
    v_add_u32 v8, s68, v8
    s_lshl_b32 s47, s67, 3
    s_lshl_b32 s61, s44, 1
    s_add_u32 s47, s47, s61
    s_mul_i32 s47, s47, s65
    s_add_u32 s47, s47, s66
    s_lshl_b32 s47, s47, 10
    s_add_u32 s47, s47, s63
    s_lshl_b32 s65, s65, 10
    s_add_u32 s61, s47, s65
    s_lshl_b32 s64, s64, 9
    s_cmp_lt_u32 {s(sCG)}, 14
    s_cmov_b32 s64, 0x2000000
    s_waitcnt vmcnt(0)
    ''')
    for j in range(2):
        for a in range(2):
            for rd in range(2):
                A(f'ds_read_b64_tr_b16 {v(32+8*j+4*a+2*rd,2)}, v8 offset:{j*2048+rd*1024+a*64}')
    A(f'''
    s_mov_b32 s66, s47
    s_mov_b32 s67, s61
    s_lshl_b32 s77, {s(sHead)}, 17
    s_add_u32 s77, s77, {hx(KV)}
    s_cmp_lg_u32 s44, 0
    s_cbranch_scc1 LH_b1
    ''')
    A(f'''
    v_and_b32 v8, 15, v0
    v_and_b32 v9, 1, v0
    s_lshl_b32 s47, {s(sQB)}, 1
    v_add_u32 v9, s47, v9
    v_cmp_gt_u32 vcc, 32, v0
    s_lshr_b32 s47, {s(sHead)}, 2
    s_add_u32 s61, s47, 8
    v_cndmask_b32 v8, v9, v8, vcc
    s_lshr_b32 s62, {s(sHead)}, 3
    s_lshl_b32 s62, s62, 2
    s_add_u32 s62, s62, 3
    v_mov_b32 v9, s47
    v_mov_b32 v10, s62
    v_cndmask_b32 v9, v9, v10, vcc
    v_cmp_gt_u32 vcc, 16, v0
    v_mov_b32 v10, s61
    v_lshrrev_b32 v11, 3, v8
    v_cndmask_b32 v9, v9, v10, vcc
    v_and_b32 v8, 7, v8
    v_lshlrev_b32 v8, 3, v8
    v_lshl_add_u32 v8, v11, 2, v8
    v_lshrrev_b32 v11, 2, v9
    v_add_u32 v8, v8, v11
    v_and_b32 v9, 3, v9
    v_lshl_add_u32 v8, v9, 6, v8
    v_lshlrev_b32 v8, 7, v8
    v_mov_b32 v10, {L_FLAG}
    v_mov_b32 v12, 0
    ds_write_b32 v10, v12
    s_mov_b32 s63, 0
    s_mov_b32 s47, {hx(FL)}
    s_waitcnt lgkmcnt(0)
    s_sleep {os.environ.get('SL1', '24')}
LH_f1:
    buffer_load_dwordx4 v[12:15], v8, {s(sWS,4)}, s47 offen sc1
    s_add_u32 s63, s63, 1
    s_waitcnt vmcnt(0)
    v_xor_b32 v12, v3, v12
    v_xor_b32 v13, v3, v13
    v_xor_b32 v14, v3, v14
    v_xor_b32 v15, v3, v15
    v_or_b32 v12, v12, v13
    v_or3_b32 v12, v12, v14, v15
    v_cmp_ne_u32 vcc, 0, v12
    s_cbranch_vccz LH_f1done
    s_sleep 2
    s_cmp_lt_u32 s63, {SPIN}
    s_cbranch_scc1 LH_f1
LH_f1done:
    ''')
    stamp(A, 3)
    A(f'''
    s_lshl_b32 s47, {s(sHead)}, 3
    s_add_u32 s47, s47, {s(sQB)}
    s_lshl_b32 s47, s47, 13
    s_mov_b32 m0, 0
    s_mov_b32 s61, {L_ONES+512}
    buffer_load_dwordx4 v1, {s(sWS,4)}, s77 offen sc1 lds
    buffer_load_dwordx4 v1, {s(sWS,4)}, s77 offen offset:2048 sc1 lds
LH_q:
    s_mov_b32 m0, s61
    s_add_u32 s61, s61, 2048
    buffer_load_dwordx4 v1, {s(sWS,4)}, s47 offen sc1 lds
    s_add_u32 s47, s47, 1024
    s_cmp_lt_u32 s61, {L_ONES+512+8*2048}
    s_cbranch_scc1 LH_q
    s_mov_b32 m0, 0
    s_mov_b32 s47, s77
    buffer_load_dwordx4 v1, {s(sWS,4)}, s77 offen offset:1024 sc1 lds
    buffer_load_dwordx4 v1, {s(sWS,4)}, s77 offen offset:3072 sc1 lds
LH_kv0:
    s_add_u32 m0, m0, 4096
    s_add_u32 s47, s47, 4096
    buffer_load_dwordx4 v1, {s(sWS,4)}, s47 offen sc1 lds
    buffer_load_dwordx4 v1, {s(sWS,4)}, s47 offen offset:1024 sc1 lds
    buffer_load_dwordx4 v1, {s(sWS,4)}, s47 offen offset:2048 sc1 lds
    buffer_load_dwordx4 v1, {s(sWS,4)}, s47 offen offset:3072 sc1 lds
    s_cmp_lt_u32 m0, 16384
    s_cbranch_scc1 LH_kv0
LH_b1:
    s_waitcnt vmcnt(0) lgkmcnt(0)
    ''')
    stamp(A, 4)
    A(f'''
    s_barrier
    buffer_store_dwordx4 v[32:35], v1, {s(sWS,4)}, s66 offen sc1
    buffer_store_dwordx4 v[36:39], v1, {s(sWS,4)}, s67 offen sc1
    s_add_u32 s66, s66, s64
    s_add_u32 s67, s67, s64
    buffer_store_dwordx4 v[40:43], v1, {s(sWS,4)}, s66 offen sc1
    buffer_store_dwordx4 v[44:47], v1, {s(sWS,4)}, s67 offen sc1
    s_lshl_b32 s47, s44, 10
    s_add_u32 s47, s47, 20480
    s_mov_b32 m0, s47
    s_add_u32 s47, s47, s77
    s_mov_b32 s48, {20480+12*4096}
LH_kv1:
    buffer_load_dwordx4 v1, {s(sWS,4)}, s47 offen sc1 lds
    s_add_u32 m0, m0, 4096
    s_add_u32 s47, s47, 4096
    s_cmp_lt_u32 m0, s48
    s_cbranch_scc1 LH_kv1
    s_cmp_eq_u32 s48, 131072
    s_cbranch_scc1 LH_kvdone
    s_mov_b32 s48, 131072
    s_waitcnt vmcnt(8)
    s_barrier
    s_cmp_lg_u32 s44, 0
    s_cbranch_scc1 LH_kv1
    s_lshl_b32 s61, s2, 7
    s_add_u32 s61, s61, {hx(FL+32)}
    ''')
    flag_store(A, 's61', 3)
    A(f'''
    s_branch LH_kv1
LH_kvdone:
    s_load_dwordx2 {s(sA,2)}, s[0:1], 56
    s_mov_b32 {s(sA+2)}, 2097152
    s_lshl_b32 s50, s3, 3
    s_lshl_b32 s47, s71, 1
    s_add_u32 s50, s50, s47
    s_add_u32 s50, s50, s46
    s_lshl_b32 s51, s70, 1
    s_add_u32 s51, s51, s45
    s_mul_i32 s47, s45, {56*1024}
    s_mul_i32 s56, s51, {112*1024}
    s_add_u32 s56, s56, s47
    s_add_u32 s56, s56, {hx(WDF)}
    s_xor_b32 s57, s51, 1
    s_mul_i32 s57, s57, {112*1024}
    s_add_u32 s57, s57, s47
    s_add_u32 s57, s57, {hx(WDF)}
    s_mul_i32 s58, s50, {112*1024}
    s_add_u32 s58, s58, s47
    s_add_u32 s58, s58, {hx(HF)}
    s_lshl_b32 s59, s70, 1
    s_mul_i32 s47, s71, 3
    s_add_u32 s59, s59, s47
    s_cmp_ge_u32 s59, 14
    s_cselect_b32 s47, 14, 0
    s_sub_u32 s59, s59, s47
    s_lshl_b32 s59, s59, 12
    v_mov_b32 v10, {L_FLAG}
    s_mov_b32 s63, 0
    s_waitcnt vmcnt(0) lgkmcnt(0)
    s_barrier
    ''')
    stamp(A, 5)
    A(f'''
    s_cmp_lg_u32 s44, 0
    s_cbranch_scc1 LH_f2l
    s_mov_b32 s47, {hx(FL+32)}
    v_lshlrev_b32 v8, 9, v0
LH_f2:
    buffer_load_dword v12, v8, {s(sWS,4)}, s47 offen sc1
    buffer_load_dword v13, v8, {s(sWS,4)}, s47 offen offset:128 sc1
    buffer_load_dword v14, v8, {s(sWS,4)}, s47 offen offset:256 sc1
    buffer_load_dword v15, v8, {s(sWS,4)}, s47 offen offset:384 sc1
    s_add_u32 s63, s63, 1
    s_waitcnt vmcnt(0)
    v_xor_b32 v12, v3, v12
    v_xor_b32 v13, v3, v13
    v_xor_b32 v14, v3, v14
    v_xor_b32 v15, v3, v15
    v_or_b32 v12, v12, v13
    v_or3_b32 v12, v12, v14, v15
    v_cmp_ne_u32 vcc, 0, v12
    s_cbranch_vccz LH_f2ok
    s_sleep 8
    s_cmp_lt_u32 s63, {SPIN}
    s_cbranch_scc1 LH_f2
LH_f2ok:
    v_mov_b32 v12, 1
    ds_write_b32 v10, v12
    s_branch LH_gemm
LH_f2l:
    s_sleep 2
    ds_read_b32 v12, v10
    s_add_u32 s63, s63, 1
    s_waitcnt lgkmcnt(0)
    v_readfirstlane_b32 s47, v12
    s_cmp_eq_u32 s47, 1
    s_cbranch_scc1 LH_gemm
    s_cmp_lt_u32 s63, {SPIN * 16}
    s_cbranch_scc1 LH_f2l
LH_gemm:
    s_setprio {0 if 'prio0' in EXP else 2}
    ''')
    stamp(A, 6)
    D, G, X, FR = 8, 40, 56, 64
    GL = os.environ.get('GL', 'sc1')
    if GL != 'sc1': A('buffer_inv sc1')
    adv = """
    s_add_u32 s52, s56, s59
    s_add_u32 s53, s57, s59
    s_add_u32 s55, s58, s59
    s_add_u32 s59, s59, 4096
    s_cmp_ge_u32 s59, %d
    s_cselect_b32 s59, 0, s59
    """ % (14 * 4096)
    def ld(i):
        return '\n'.join(f'buffer_load_dwordx4 {v(FR+12*i+4*k,4)}, v1, {s(sWS,4)}, s{(55,52,53)[k]} offen offset:{i*1024} {GL}' for k in range(3))
    A(adv)
    for i in range(4): A(ld(i))
    for j in range(0, 16, 2): A(f'v_mov_b64 {v(G+j,2)}, 0\nv_mov_b64 {v(D+16+j,2)}, 0')
    A('s_mov_b32 s63, 0\nLH_gloop:')
    A(adv)
    for i in range(4):
        A('s_waitcnt vmcnt(9)')
        A(mfma(G, FR + 12 * i + 4, FR + 12 * i, G))
        A(mfma(D + 16, FR + 12 * i + 8, FR + 12 * i, D + 16))
        A(ld(i))
    A(f"""
    s_add_u32 s63, s63, 1
    s_cmp_lt_u32 s63, 13
    s_cbranch_scc1 LH_gloop
    """)
    WO = 128
    A(f"""
    s_lshl_b32 s52, s51, 5
    s_lshl_b32 s47, s45, 4
    s_add_u32 s52, s52, s47
    s_lshl_b32 s52, s52, 10
    s_add_u32 s52, s52, {hx(WOF)}
    s_xor_b32 s53, s52, 0x8000
    """)
    for i in range(4):
        A(f's_waitcnt vmcnt({9+5*i})')
        A(mfma(G, FR + 12 * i + 4, FR + 12 * i, G))
        A(mfma(D + 16, FR + 12 * i + 8, FR + 12 * i, D + 16))
        for k in range(4 * i, 4 * i + 4):
            A(f'buffer_load_dwordx4 {v(WO+8*k,4)}, v1, {s(sWS,4)}, s52 offen offset:{(k&3)*1024} {GL}')
            A(f'buffer_load_dwordx4 {v(WO+8*k+4,4)}, v1, {s(sWS,4)}, s53 offen offset:{(k&3)*1024} {GL}')
        A('s_add_u32 s52, s52, 4096\ns_add_u32 s53, s53, 4096')
    A(f'''
    v_and_b32 v4, 31, v0
    v_lshlrev_b32 v4, 10, v4
    v_lshl_add_u32 v4, v7, 4, v4
    s_lshl_b32 s54, s50, 15
    s_lshl_b32 s47, s51, 6
    s_add_u32 s54, s54, s47
    buffer_load_dwordx4 {v(X,4)}, v4, {s(sX,4)}, s54 offen
    buffer_load_dwordx4 {v(X+4,4)}, v4, {s(sX,4)}, s54 offen offset:32
    ''')
    A(f'''
    s_lshl_b32 s47, s3, 3
    s_lshl_b32 s61, s45, 2
    s_add_u32 s47, s47, s61
    s_lshl_b32 s47, s47, 7
    s_lshl_b32 s61, s71, 2
    s_add_u32 s47, s47, s61
    s_add_u32 s47, s47, {hx(FL+16)}
    v_and_b32 v2, 3, v0
    v_bfe_u32 v5, v0, 2, 2
    v_lshl_add_u32 v2, v2, 6, v5
    v_lshlrev_b32 v2, 7, v2
    s_lshl_b32 s52, s50, 5
    s_lshl_b32 s61, s45, 4
    s_add_u32 s52, s52, s61
    s_lshl_b32 s52, s52, 10
    s_add_u32 s52, s52, {hx(OF)}
    s_xor_b32 s61, s44, 2
    s_lshl_b32 s61, s61, 12
    s_add_u32 s61, s61, {L_EX}
    v_add_u32 v5, s61, v1
    s_lshl_b32 s61, s44, 12
    s_add_u32 s61, s61, {L_EX}
    v_add_u32 v6, s61, v1
    s_mov_b32 s63, 0
    ''')
    for q in range(4): A(f'ds_write_b128 v5, {v(D+16+4*q,4)} offset:{q*1024}')
    A('s_waitcnt vmcnt(0) lgkmcnt(0)')
    stamp(A, 7)
    A('s_barrier')
    stamp(A, 8)
    A(f'buffer_load_dword v7, v2, {s(sWS,4)}, s47 offen sc1')
    for q in range(4): A(f'ds_read_b128 {v(D+4*q,4)}, v6 offset:{q*1024}')
    A(f'v_subrev_u32 v5, {L_EX}, v5\nv_subrev_u32 v6, {L_EX}, v6\ns_waitcnt lgkmcnt(0)')
    for j in range(16): A(f'v_add_f32 v{G+j}, v{G+j}, v{D+j}')
    for j in range(16): A(f'v_mul_f32 v{D+j}, {hx(f2u(-LOG2E))}, v{G+j}')
    for j in range(16): A(f'v_exp_f32 v{D+j}, v{D+j}')
    for j in range(16): A(f'v_add_f32 v{D+j}, 1.0, v{D+j}')
    for j in range(16): A(f'v_rcp_f32 v{D+j}, v{D+j}')
    for j in range(16): A(f'v_mul_f32 v{G+j}, v{D+j}, v{G+j}')
    A(f'''
LH_f3:
    s_waitcnt vmcnt(0)
    v_cmp_ne_u32 vcc, v3, v7
    s_cbranch_vccz LH_f3done
    buffer_load_dword v7, v2, {s(sWS,4)}, s47 offen sc1
    s_add_u32 s63, s63, 1
    s_cmp_lt_u32 s63, {SPIN}
    s_cbranch_scc1 LH_f3
LH_f3done:
    ''')
    stamp(A, 9)
    for k in range(16):
        A(f'buffer_load_dwordx4 {v(FR+4*k,4)}, v1, {s(sWS,4)}, s52 offen offset:{(k&3)*1024} sc1')
        if k & 3 == 3 and k < 15: A('s_add_u32 s52, s52, 4096')
    for k in range(16):
        A(f's_waitcnt vmcnt({15-k})')
        A(mfma(D + 16, WO + 8 * k + 4, FR + 4 * k, None if k == 0 else D + 16))
        A(mfma(D, WO + 8 * k, FR + 4 * k, None if k == 0 else D))
    stamp(A, 10)
    U = WO
    for j in range(8):
        A(f'v_lshlrev_b32 v{U+2*j}, 16, v{X+j}\nv_and_b32 v{U+2*j+1}, 0xffff0000, v{X+j}')
    for q in range(4): A(f'ds_write_b128 v5, {v(D+16+4*q,4)} offset:{q*1024}')
    A('s_waitcnt lgkmcnt(0)\ns_barrier')
    for q in range(4): A(f'ds_read_b128 {v(D+16+4*q,4)}, v6 offset:{q*1024}')
    for q in range(4):
        A(f's_waitcnt lgkmcnt({3-q})')
        for p in (2 * q, 2 * q + 1):
            A(f'v_pk_add_f32 {v(D+2*p,2)}, {v(D+2*p,2)}, {v(D+16+2*p,2)}')
            A(f'v_pk_fma_f32 {v(D+2*p,2)}, {v(D+2*p,2)}, {v(G+2*p,2)}, {v(U+2*p,2)}')
            A(f'v_cvt_pk_bf16_f32 v{X+p}, v{D+2*p}, v{D+2*p+1}')
        if q & 1: A(f'buffer_store_dwordx4 {v(X+4*(q>>1),4)}, v4, {s(sA,4)}, s54 offen offset:{32*(q>>1)}')
    stamp(A, 11)
    stamp_end(A, sWS, sW, 2)
    A('s_endpgm')

def gen_C(A, patterns):
    ACC = 96
    acc = lambda T, i: ACC + (T * 5 + i) * 16
    FB = lambda f: 8 + 28 * f
    Wf = lambda f, i: FB(f) + 4 * i
    Xf = lambda f, T: FB(f) + 20 + 4 * T
    sDW, sXs, sIt, sF1, sF3 = 48, 49, 50, 72, 73
    A(f'''
L_C:
    s_getpc_b64 s[4:5]
L_pc:
    s_lshl_b32 s47, s43, 2
    s_add_u32 s47, s47, s44
    s_mul_i32 s47, s47, 192
    s_sub_u32 s4, s4, L_pc-{NAME}_kernel
    s_subb_u32 s5, s5, 0
    s_min_u32 s47, s47, L_code_end-{NAME}_kernel-4
    s_load_dword s6, s[4:5], s47
    s_add_u32 s47, s47, 64
    s_min_u32 s47, s47, L_code_end-{NAME}_kernel-4
    s_load_dword s7, s[4:5], s47
    s_add_u32 s47, s47, 64
    s_min_u32 s47, s47, L_code_end-{NAME}_kernel-4
    s_load_dword s48, s[4:5], s47
    s_lshl_b32 s61, s2, 7
    s_add_u32 s61, s61, {hx(FL)}
    s_lshl_b32 {s(sF1)}, s44, 2
    s_add_u32 {s(sF1)}, {s(sF1)}, s61
    s_add_u32 {s(sF3)}, {s(sF1)}, 16
    v_mov_b64 v[64:65], 0
    v_mov_b64 v[66:67], 0
    ''')
    A(patterns)
    A(f'''
    s_waitcnt lgkmcnt(0)
    s_or_b32 s47, s44, s2
    s_cbranch_scc1 LC_nonon
    s_load_dwordx2 {s(sDBG,2)}, s[0:1], 64
    s_mov_b32 s47, {hx(NW)}
    buffer_load_dword v8, off, {s(sWS,4)}, s47 sc1
    s_mov_b32 {s(sDBG+2)}, 256
    s_mov_b32 {s(sDBG+3)}, 0x20000
    s_mov_b32 s61, 1664525
    v_mov_b32 v9, 1
    s_waitcnt vmcnt(0) lgkmcnt(0)
    v_mul_lo_u32 v8, v8, s61
    v_add_u32 v8, 1013904223, v8
    s_mov_b64 exec, 1
    buffer_store_dwordx2 v[8:9], off, {s(sDBG,4)}, 0 sc1
    buffer_store_dword v8, off, {s(sWS,4)}, s47 sc1
    s_mov_b64 exec, -1
LC_nonon:
    s_lshl_b32 s47, s46, 9
    s_add_u32 s47, s47, {L_X}
    v_add_u32 v4, s47, v4
    v_mov_b32 v1, v4
    s_mov_b32 {s(sDW)}, {2*WST}
    s_mov_b32 {s(sXs)}, 0
    s_mov_b32 {s(sIt)}, 0
    ''')
    for T in range(2):
        for i in range(5): A(mfma(acc(T, i), 64, 64, None))
    def reads(f, st, ks, ksx):
        r = []
        for T in range(2):
            r.append(f'ds_read_b128 {v(Xf(f,T),4)}, v1 offset:{T*128+ksx*32}')
        for rd in range(2):
            r.append(f'ds_read_b64_tr_b16 {v(Wf(f,0)+2*rd,2)}, v3 offset:{st*WST+(4*ks+rd)*128}')
        for u in range(4):
            for rd in range(2):
                r.append(f'ds_read_b64_tr_b16 {v(Wf(f,1+u)+2*rd,2)}, v2 offset:{st*WST+(4*ks+rd)*128+u*32}')
        return r
    stamp(A, 1)
    A('s_barrier')
    stamp(A, 2)
    for r in reads(0, 0, 0, 0): A(r)
    A('LC_loop:')
    for q in range(4):
        f = q & 1
        nq = (q + 1) & 3
        rr = reads(f ^ 1, nq >> 1, nq & 1, nq)
        A('s_waitcnt lgkmcnt(0)')
        if q & 1: A('s_barrier')
        if q == 3:
            A(f'''
            v_add_u32 v2, {s(sDW)}, v2
            v_add_u32 v3, {s(sDW)}, v3
            s_add_u32 {s(sXs)}, {s(sXs)}, {XST}
            s_cmp_ge_u32 {s(sXs)}, {3*XST}
            s_cselect_b32 {s(sXs)}, 0, {s(sXs)}
            s_sub_u32 {s(sDW)}, 0, {s(sDW)}
            v_add_u32 v1, {s(sXs)}, v4
            ''')
        ms = [mfma(acc(T, i), Wf(f, i), Xf(f, T), acc(T, i)) for i in range(5) for T in range(2)]
        k = 0
        for m in range(10):
            A(ms[m])
            for _ in range(2 if m < 6 else 0):
                A(rr[k]); k += 1
    if STAMP:
        A(f's_memtime s[78:79]\ns_add_u32 m0, {s(sIt)}, 16\ns_waitcnt lgkmcnt(0)\nv_writelane_b32 v95, s78, m0')
    A(f'''
    s_add_u32 {s(sIt)}, {s(sIt)}, 1
    s_cmp_lt_u32 {s(sIt)}, 8
    s_cbranch_scc1 LC_loop
    s_mul_i32 s47, s45, {5*256}
    s_add_u32 s47, s47, {L_CS}
    v_lshl_add_u32 v2, v0, 2, s47
    s_lshl_b32 s47, s46, 9
    s_add_u32 s47, s47, {L_RS}
    v_and_b32 v3, 31, v0
    v_lshl_add_u32 v3, v3, 3, s47
    v_mov_b32 v4, {L_NON}
    ''')
    sSz, sHo, sSc = 51, 56, 58
    A(f'''
    s_lshl_b32 s53, {s(sRB)}, 2
    s_lshl_b32 s47, s46, 1
    s_add_u32 s53, s53, s47
    s_and_b32 s47, {s(sCG)}, 7
    s_lshl_b32 s47, s47, 2
    s_lshl_b32 s61, s45, 1
    s_add_u32 s47, s47, s61
    s_lshl_b32 s47, s47, 6
    s_add_u32 s47, s47, s53
    s_cmp_lt_u32 {s(sCG)}, 8
    s_cselect_b32 {s(sSz)}, 10, 11
    s_cselect_b32 s61, {hx(QF)}, {hx(KV)}
    s_cselect_b32 {s(sSc)}, {hx(f2u(0.25*LOG2E))}, 1.0
    s_lshl_b32 s47, s47, {s(sSz)}
    s_add_u32 s62, s47, s61
    s_lshl_b32 s47, 1, {s(sSz)}
    s_add_u32 s64, s62, s47
    s_lshl_b32 s47, 64, {s(sSz)}
    s_add_u32 s63, s62, s47
    s_add_u32 s65, s64, s47
    s_mul_i32 s47, s53, 112
    s_and_b32 s61, s3, 3
    s_mul_i32 s61, s61, 28
    s_add_u32 s47, s47, s61
    s_lshl_b32 s61, s71, 3
    s_add_u32 s47, s47, s61
    s_lshl_b32 s61, s45, 2
    s_add_u32 s47, s47, s61
    s_lshl_b32 s47, s47, 10
    s_add_u32 {s(sHo)}, s47, {hx(HF)}
    s_add_u32 {s(sHo+1)}, {s(sHo)}, {112*1024}
    v_lshlrev_b32 v1, 4, v0
    s_waitcnt lgkmcnt(0)
    ds_read_b64 v[68:69], v3
    ds_read_b64 v[70:71], v3 offset:256
    ds_read_b32 v94, v4
    ''')
    for i in range(5): A(f'ds_read_b32 v{Wf(0,i)}, v2 offset:{i*256}')
    for i in range(5): A(f'v_mov_b32 v{Wf(0,i)+1}, 0\nv_mov_b64 {v(Wf(0,i)+2,2)}, 0')
    K0 = -2.0 * math.sqrt(2.0 / math.pi) * LOG2E
    K1c = K0 * 0.044715
    A('s_waitcnt lgkmcnt(0)')
    for T in range(2):
        A(f'''
        v_mov_b32 v{Xf(0,T)}, v{68+2*T}
        v_mov_b32 v{Xf(0,T)+1}, 0
        v_mov_b64 {v(Xf(0,T)+2,2)}, 0
        ''')
    stamp(A, 3)
    A('s_nop 0')
    for i in range(5):
        for T in range(2):
            A(mfma(acc(T, i), Wf(0, i), Xf(0, T), acc(T, i)))
    for T in range(2):
        b = 72 + 8 * T
        A(f'''
        v_rcp_f32 v{b+4}, v{69+2*T}
        v_mul_f32 v{b+2}, v{69+2*T}, v{69+2*T}
        v_mul_f32 v{b+1}, {hx(f2u(K0))}, v{b+4}
        v_mul_f32 v{b+3}, {s(sSc)}, v{b+4}
        v_mul_f32 v{b}, v{b+4}, v{b+4}
        v_mul_f32 v{b}, v{b}, v{b+4}
        v_mul_f32 v{b}, {hx(f2u(K1c))}, v{b}
        ''')
    for T in range(2):
        b = 72 + 8 * T
        a = acc(T, 0)
        for p in range(8):
            A(f'v_pk_mul_f32 {v(a+2*p,2)}, {v(a+2*p,2)}, {v(b+2,2)} op_sel:[0,1] op_sel_hi:[1,1]')
        for p in range(8):
            A(f'v_cvt_pk_bf16_f32 v{40+8*T+p}, v{a+2*p}, v{a+2*p+1}')
        A(f'buffer_store_dwordx4 {v(40+8*T,4)}, v1, {s(sWS,4)}, s{62+2*T} offen sc1')
        A(f'buffer_store_dwordx4 {v(44+8*T,4)}, v1, {s(sWS,4)}, s{63+2*T} offen sc1')
    A(f'''
    s_add_u32 s47, s71, s45
    s_cmp_eq_u32 s47, 4
    s_cbranch_scc1 LC_vpath
    ''')
    n = 0
    HP = lambda T, u: (176 if T == 0 else 144) + 4 * u
    for T in range(2):
        b = 72 + 8 * T
        for u in range(4):
            a = acc(T, 1 + u)
            t = 8 + 16 * (n & 1)
            for p in range(4): A(f'v_pk_mul_f32 {v(t+2*p,2)}, {v(a+2*p,2)}, {v(a+2*p,2)}')
            for p in range(4): A(f'v_pk_fma_f32 {v(t+2*p,2)}, {v(t+2*p,2)}, {v(b,2)}, {v(b,2)} op_sel:[0,0,1] op_sel_hi:[1,0,1]')
            for p in range(4): A(f'v_pk_mul_f32 {v(t+2*p,2)}, {v(t+2*p,2)}, {v(a+2*p,2)}')
            for j in range(8): A(f'v_exp_f32 v{t+j}, v{t+j}')
            for p in range(4): A(f'v_pk_mul_f32 {v(a+2*p,2)}, {v(a+2*p,2)}, {v(a+8+2*p,2)}')
            for p in range(4): A(f'v_pk_fma_f32 {v(t+2*p,2)}, {v(t+2*p,2)}, {v(b+2,2)}, {v(b+2,2)} op_sel:[0,0,0] op_sel_hi:[1,0,0]')
            for j in range(8): A(f'v_rcp_f32 v{t+j}, v{t+j}')
            for p in range(4): A(f'v_pk_mul_f32 {v(a+2*p,2)}, {v(a+2*p,2)}, {v(t+2*p,2)}')
            for p in range(4): A(f'v_cvt_pk_bf16_f32 v{HP(T,u)+p}, v{a+2*p}, v{a+2*p+1}')
            if n == NFL:
                A('s_waitcnt vmcnt(0)')
                stamp(A, 4)
                flag_store(A, s(sF1), 94)
            n += 1
    QA, QB, CA, CB, OA, OB, SA, SB, PA, PB = 8, 12, 16, 32, 48, 64, 80, 96, 112, 120
    KF = lambda b: 128 + 4 * b
    VF = lambda j: 136 + 4 * j
    A('LC_att:')
    if STAMP: A('v_mov_b32 v200, v95')
    A('v_mov_b32 v201, v94')
    stamp(A, 5)
    A(f'''
    v_and_b32 v5, 15, v0
    v_and_b32 v6, 11, v0
    v_cmp_eq_u32 vcc, 0, v6
    v_mov_b32 v6, {hx(ONES)}
    v_lshlrev_b32 v5, 4, v5
    v_cndmask_b32 v{VF(0)}, 0, v6, vcc
    s_lshl_b32 s47, s44, 12
    s_add_u32 s47, s47, {L_ONES}
    v_mov_b32 v{VF(0)+1}, v{VF(0)}
    v_mov_b64 {v(VF(0)+2,2)}, {v(VF(0),2)}
    v_and_b32 v7, 0x1ff, v1
    v_add_u32 v7, s47, v7
    ds_write_b128 v7, {v(VF(0),4)}
    ds_write_b128 v7, {v(VF(0),4)} offset:2048
    v_add_u32 v7, s47, v1
    v_and_b32 v6, 16, v0
    v_cmp_eq_u32 vcc, 0, v6
    v_add_u32 v5, {L_ONES-1024}, v5
    v_mov_b32 v6, {NT*2048}
    v_mov_b32 v2, v1
    v_cndmask_b32 v3, v5, v1, vcc
    v_cndmask_b32 v4, 0, v6, vcc
    s_mov_b32 {s(sIt)}, 0
    s_mov_b32 s51, 1
    ''')
    for j in range(0, 4, 2): A(f'v_mov_b64 {v(VF(1)+j,2)}, 0')
    for j in range(0, 8, 2): A(f'v_mov_b64 {v(PB+j,2)}, 0')
    A('s_waitcnt lgkmcnt(0)')
    stamp(A, 6)
    A('s_barrier')
    stamp(A, 7)
    A(f'''
    ds_read_b128 {v(QA,4)}, v7 offset:512
    ds_read_b128 {v(KF(0),4)}, v1
    ds_read_b128 {v(QB,4)}, v7 offset:2560
    ds_read_b128 {v(KF(1),4)}, v1 offset:2048
    s_waitcnt lgkmcnt(2)
    ''')
    A(mfma(SA, KF(0), QA, None))
    A('s_waitcnt lgkmcnt(0)')
    A(mfma(OA, KF(1), QA, None))
    A(mfma(SB, KF(0), QB, None))
    A(mfma(OB, KF(1), QB, None))
    for T in range(2):
        for u in range(4):
            A(f'buffer_store_dwordx4 {v(HP(T,u),4)}, v1, {s(sWS,4)}, {s(sHo+T)} offen offset:{u*1024} sc1')
    for (S, O, C) in ((SA, OA, CA), (SB, OB, CB)):
        A(f'v_max3_f32 v{C}, v{S}, v{S+1}, v{S+2}')
        for j in range(3, 15, 2): A(f'v_max3_f32 v{C}, v{C}, v{S+j}, v{S+j+1}')
        A(f'v_max3_f32 v{C}, v{C}, v{S+15}, v{O}')
        for j in range(1, 15, 2): A(f'v_max3_f32 v{C}, v{C}, v{O+j}, v{O+j+1}')
        A(f'v_max_f32 v{C}, v{C}, v{O+15}')
        A(f'v_mov_b32 v{C+1}, v{C}')
        A(f'v_mov_b64 {v(O,2)}, 0\nv_mov_b64 {v(O+2,2)}, 0')
        A(f'v_permlane32_swap_b32 v{C}, v{C+1}')
        A(f'v_max_f32 v{C}, v{C}, v{C+1}')
        A(f'v_sub_f32 v{C}, {hx(f2u(-BIAS))}, v{C}')
        A(f'v_mov_b32 v{C+1}, v{C}')
        for j in range(2, 16, 2): A(f'v_mov_b64 {v(C+j,2)}, {v(C,2)}')
        for j in range(4, 16, 2): A(f'v_mov_b64 {v(O+j,2)}, 0')
        if S == SA: A(mfma(SA, KF(0), QA, CA))
    stamp(A, 8)
    E = lambda S, j: A(f'v_exp_f32 v{S+j}, v{S+j}')
    Cv = lambda S, P, p: A(f'v_cvt_pk_bf16_f32 v{P+p}, v{S+2*p}, v{S+2*p+1}')
    def phase(S, P, m1, m2, m3):
        A(m1)
        for j in range(5): E(S, j)
        Cv(S, P, 0); Cv(S, P, 1)
        A(m2)
        E(S, 5); E(S, 6); Cv(S, P, 2); E(S, 7); E(S, 8); Cv(S, P, 3); E(S, 9); E(S, 10); Cv(S, P, 4)
        A(m3)
        E(S, 11); E(S, 12); Cv(S, P, 5); E(S, 13); E(S, 14); E(S, 15); Cv(S, P, 6); Cv(S, P, 7)
    A('s_nop 0\n.p2align 3\nLA_loop:')
    for t in range(NT):
        kb = t & 1
        o = t * 2048
        phase(SA, PA,
              mfma(SB, KF(kb), QB, CB) + f'\nds_read_b128 {v(KF(kb),4)}, v2 offset:{o+4096}',
              mfma(OB, VF(0), PB, OB) + f'\nds_read_b128 {v(VF(0),4)}, v3 offset:{o+1024}',
              mfma(OB, VF(1), PB + 4, OB) + f'\nds_read_b128 {v(VF(1),4)}, v3 offset:{o+1280}')
        tail = ''
        if t == NT - 2: tail = f'\ns_add_u32 {s(sIt)}, {s(sIt)}, 1'
        if t == NT - 1: tail = f'\ns_cmp_lt_u32 {s(sIt)}, s51\nv_add_u32 v2, {NT*2048}, v2\nv_add_u32 v3, v4, v3'
        phase(SB, PB,
              mfma(SA, KF(kb ^ 1), QA, CA) + '\ns_waitcnt lgkmcnt(1)',
              mfma(OA, VF(0), PA, OA) + '\ns_waitcnt lgkmcnt(0)',
              mfma(OA, VF(1), PA + 4, OA) + tail)
    A(f'''
    s_cbranch_scc1 LA_loop
    s_cmp_eq_u32 s51, {64//NT}
    s_cbranch_scc1 LA_fini
    s_cmp_eq_u32 s51, 1
    s_cselect_b32 s51, 2, {64//NT}
    ''')
    A('s_waitcnt vmcnt(0)')
    stamp(A, 9)
    A('s_barrier')
    stamp(A, 10)
    A('s_branch LA_loop\nLA_fini:')
    A(mfma(OB, VF(0), PB, OB)); A(mfma(OB, VF(1), PB + 4, OB))
    stamp(A, 11)
    A(f'''
    s_lshl_b32 s52, {s(sQB)}, 3
    s_lshl_b32 s47, s44, 1
    s_add_u32 s52, s52, s47
    s_lshl_b32 s52, s52, 5
    s_add_u32 s52, s52, {s(sHead)}
    s_lshl_b32 s52, s52, 10
    s_add_u32 s52, s52, {hx(OF)}
    s_mov_b32 s54, {hx(f2u(2.0**126))}
    s_mov_b32 s55, {hx(f2u(2.0**-112))}
    s_mov_b32 s56, {hx(f2u(2.0**120))}
    s_mov_b32 s57, 0
LA_fin:
    ''')
    A(f'v_add_f32 v{SA}, |v{OA}|, |v{OA+1}|')
    for j in range(2, 8): A(f'v_add_f32 v{SA}, v{SA}, |v{OA+j}|')
    A(f'''
    v_cmp_gt_f32 vcc, s54, v{SA}
    v_cmp_lt_f32 s[58:59], s55, v{SA}
    v_cmp_gt_f32 s[60:61], s56, v{OA+8}
    s_and_b64 vcc, vcc, s[58:59]
    s_and_b64 vcc, vcc, s[60:61]
    s_cmp_eq_u64 vcc, -1
    s_cbranch_scc0 LA_fallback
LA_norm:
    v_rcp_f32 v{OA+8}, v{OA+8}
    s_nop 0
    ''')
    for j in range(8): A(f'v_mul_f32 v{OA+j}, v{OA+j}, v{OA+8}')
    for p in range(4): A(f'v_cvt_pk_bf16_f32 v{PA+p}, v{OA+2*p}, v{OA+2*p+1}')
    A(f'''
    buffer_store_dwordx4 {v(PA,4)}, v1, {s(sWS,4)}, s52 offen sc1
    s_cmp_eq_u32 s57, 1
    s_cbranch_scc1 LA_done
    s_mov_b32 s57, 1
    s_add_u32 s52, s52, 0x8000
    ''')
    for j in range(0, 10, 2): A(f'v_mov_b64 {v(OA+j,2)}, {v(OB+j,2)}')
    for j in range(0, 4, 2): A(f'v_mov_b64 {v(QA+j,2)}, {v(QB+j,2)}')
    A('s_branch LA_fin\nLA_done:\ns_waitcnt vmcnt(0)')
    stamp(A, 12)
    flag_store(A, s(sF3), 201)
    stamp_end(A, sWS, sW, tr=200)
    A('s_endpgm')
    A(f'''
LA_fallback:
    v_mov_b32 v{CA}, 0xff800000
    v_mov_b32 v2, v1
    s_mov_b32 {s(sIt)}, 0
LA_fb1:
    ds_read_b128 {v(KF(0),4)}, v2
    v_add_u32 v2, 0x800, v2
    s_waitcnt lgkmcnt(0)
    ''')
    A(mfma(SA, KF(0), QA, None))
    A('s_nop 11')
    for j in range(0, 16, 2): A(f'v_max3_f32 v{CA}, v{CA}, v{SA+j}, v{SA+j+1}')
    A(f'''
    s_add_u32 {s(sIt)}, {s(sIt)}, 1
    s_cmp_lt_u32 {s(sIt)}, 64
    s_cbranch_scc1 LA_fb1
    v_mov_b32 v{CA+1}, v{CA}
    v_cmp_eq_u32 vcc, 0, v4
    v_lshrrev_b32 v6, {NT.bit_length()-1}, v4
    v_permlane32_swap_b32 v{CA}, v{CA+1}
    v_max_f32 v{CA}, v{CA}, v{CA+1}
    v_sub_f32 v{CA}, 0, v{CA}
    v_cndmask_b32 v3, v1, v3, vcc
    ''')
    for j in range(1, 16): A(f'v_mov_b32 v{CA+j}, v{CA}')
    for j in range(0, 16, 2): A(f'v_mov_b64 {v(OA+j,2)}, 0')
    A(f'''
    v_mov_b32 v2, v1
    s_mov_b32 {s(sIt)}, 0
LA_fb2:
    ds_read_b128 {v(KF(0),4)}, v2
    ds_read_b128 {v(VF(0),4)}, v3 offset:1024
    ds_read_b128 {v(VF(1),4)}, v3 offset:1280
    v_add_u32 v2, 0x800, v2
    v_add_u32 v3, v6, v3
    s_waitcnt lgkmcnt(0)
    ''')
    A(mfma(SA, KF(0), QA, CA))
    A('s_nop 11')
    for j in range(16): E(SA, j)
    A('s_nop 0')
    for p in range(8): Cv(SA, PA, p)
    A('s_nop 1')
    A(mfma(OA, VF(0), PA, OA)); A(mfma(OA, VF(1), PA + 4, OA))
    A(f'''
    s_add_u32 {s(sIt)}, {s(sIt)}, 1
    s_cmp_lt_u32 {s(sIt)}, 64
    s_cbranch_scc1 LA_fb2
    s_nop 11
    s_branch LA_norm
    ''')
    A(f'''
LC_vpath:
    s_lshl_b32 s47, s44, 14
    s_add_u32 s47, s47, {L_VT}
    v_and_b32 v2, 31, v0
    v_lshlrev_b32 v2, 5, v2
    v_lshl_add_u32 v2, v7, 3, v2
    v_add_u32 v2, s47, v2
    v_lshlrev_b32 v3, 2, v5
    v_add_u32 v3, v3, v7
    v_lshl_add_u32 v3, v3, 2, v6
    v_lshlrev_b32 v3, 5, v3
    v_and_b32 v4, 3, v0
    v_lshl_add_u32 v3, v4, 3, v3
    v_add_u32 v3, s47, v3
    s_and_b32 s47, s3, 3
    s_lshl_b32 s47, s47, 9
    s_add_u32 s47, s47, s53
    s_lshl_b32 s47, s47, 11
    s_add_u32 s62, s47, {hx(KV)}
    s_mov_b32 {s(sHo)}, 0x2000000
    s_mov_b32 {s(sHo+1)}, 0x2000000
    ''')
    def vstore(T, u):
        a = acc(T, 1 + u)
        A(f's_add_u32 s47, s62, {u*64*2048}')
        A(f's_add_u32 s61, s62, {(u+4)*64*2048}')
        A(f'buffer_store_dwordx4 {v(a+8,4)}, v1, {s(sWS,4)}, s47 offen offset:{1024+2048*T} sc1')
        A(f'buffer_store_dwordx4 {v(a+12,4)}, v1, {s(sWS,4)}, s61 offen offset:{1024+2048*T} sc1')
    prev = None
    for T in range(2):
        b = 72 + 8 * T
        for u in range(4):
            a = acc(T, 1 + u)
            for p in range(8):
                A(f'v_pk_mul_f32 {v(a+2*p,2)}, {v(a+2*p,2)}, {v(b+4,2)} op_sel_hi:[1,0]')
            for p in range(8):
                A(f'v_cvt_pk_bf16_f32 v{a+p}, v{a+2*p}, v{a+2*p+1}')
            if prev is not None:
                A('s_waitcnt lgkmcnt(0)')
                vstore(*prev)
            for hd in range(2):
                o = ((T * 4 + u) * 2 + hd) * 1024
                A(f'ds_write_b64 v2, {v(a+4*hd,2)} offset:{o}')
                A(f'ds_write_b64 v2, {v(a+4*hd+2,2)} offset:{o+16}')
            for hd in range(2):
                o = ((T * 4 + u) * 2 + hd) * 1024
                A(f'ds_read_b64_tr_b16 {v(a+8+4*hd,2)}, v3 offset:{o}')
                A(f'ds_read_b64_tr_b16 {v(a+8+4*hd+2,2)}, v3 offset:{o+256}')
            prev = (T, u)
    A('s_waitcnt lgkmcnt(0)')
    vstore(*prev)
    A('s_waitcnt vmcnt(0)')
    stamp(A, 4)
    flag_store(A, s(sF1), 94)
    A('s_branch LC_att')

def main(out):
    A = Asm()
    top = f'''; out = x + (MHA(LN x) @ wo) * silu(GEGLU-FFN(LN x)); one persistent launch, 256 workgroups (generated by gen/gen2.py)
; @launch grid=(256,1,1) block=(512,1,1) lds={LDS_BYTES}
.amdgcn_target "amdgcn-amd-amdhsa--gfx950"
.text
'''
    gen(A)
    tail = f'''.section .rodata,"a"
.p2align 6
.amdhsa_kernel {NAME}_kernel
  .amdhsa_next_free_vgpr 256
  .amdhsa_next_free_sgpr 100
  .amdhsa_accum_offset 256
  .amdhsa_group_segment_fixed_size 0
  .amdhsa_kernarg_size 80
  .amdhsa_user_sgpr_count 2
  .amdhsa_user_sgpr_kernarg_segment_ptr 1
  .amdhsa_system_sgpr_workgroup_id_x 1
.end_amdhsa_kernel
'''
    open(out, 'w').write(top + A.text() + tail)

if __name__ == '__main__':
    main(sys.argv[1] if len(sys.argv) > 1 else 'cdna_kernels/%s.s' % NAME)
```

```python
import struct, sys, math, os

NAME = 'recurrent_scan__mha_block__glu_gated_geglu__prompt'
def f2u(x): return struct.unpack('<I', struct.pack('<f', x))[0]
def hx(x): return '0x%x' % (x & 0xffffffff)
class Asm:
    def __init__(self): self.l = []
    def __call__(self, s):
        for line in s.split('\n'):
            line = line.strip()
            if not line: continue
            self.l.append(line if line.endswith(':') or line.startswith('.') else '    ' + line)
    def text(self): return '\n'.join(self.l) + '\n'
def v(a, n=1): return 'v%d' % a if n == 1 else 'v[%d:%d]' % (a, a + n - 1)
def s(a, n=1): return 's%d' % a if n == 1 else 's[%d:%d]' % (a, a + n - 1)
def mfma(d, a, b, c):
    return 'v_mfma_f32_32x32x16_bf16 %s, %s, %s, %s' % (v(d, 16), v(a, 4), v(b, 4), '0' if c is None else v(c, 16))

QF  = 0x000000
KV  = 0x200000
HF  = 0x600000
OF  = 0xD00000
WDF = 0xF00000
WOF = 0x1100000
CSP = 0x1200000
RSP = 0x1280000
FL  = 0x13C0000
NW  = 0x13D0000
STB = 0x1400000
WS_BYTES = 0x1500000
LOG2E = 1.4426950408889634
ONES = 0x3f803f80
SPIN = 1 << 20

STAMP = bool(os.environ.get('STAMP'))
EXP = set(os.environ.get('EXP', '').split(','))
BIAS = float(os.environ.get('BIAS', '96'))
NFL = int(os.environ.get('NFL', '4'))

def stamp(A, idx, real=False):
    if not STAMP: return
    A('%s s[78:79]\ns_waitcnt lgkmcnt(0)\ns_mov_b32 s%d, s78' % ('s_memrealtime' if real else 's_memtime', 80 + idx))
def stamp_begin(A):
    if not STAMP: return
    for i in range(16): A('s_mov_b32 s%d, 0' % (80 + i))
    stamp(A, 14, True); stamp(A, 0)
def stamp_end(A, sWS, sW, vt=3, tr=None):
    if not STAMP: return
    A('s_waitcnt vmcnt(0)')
    stamp(A, 13); stamp(A, 15, True)
    A('s_nop 4')
    if tr is not None: A('v_mov_b32 v%d, v%d' % (vt, tr))
    for i in range(16): A('v_writelane_b32 v%d, s%d, %d' % (vt, 80 + i, i))
    A('''s_lshl_b32 s78, s2, 3
    s_add_u32 s78, s78, s%d
    s_lshl_b32 s78, s78, 7
    s_add_u32 s78, s78, %s
    v_lshlrev_b32 v%d, 2, v0
    s_mov_b64 exec, 0xffffffff
    buffer_store_dword v%d, v%d, s[%d:%d], s78 offen''' % (sW, hx(STB), vt + 1, vt, vt + 1, sWS, sWS + 3))

PAN, APAN = 4224, 4352
WST = 4 * PAN + APAN
XST = 16 * 1040
L_X = 4 * WST
L_PP = WST
L_VT = 65536
L_ONES = 131072
L_CS = L_ONES + 7 * 2048 + 1536
L_RS = L_CS + 10 * 256
L_FLAG = L_RS + 4 * 512
L_EX = L_CS
LDS_BYTES = L_EX + 16384 + 64
L_FLAG = L_EX + 16384
L_NON = L_FLAG + 4
assert LDS_BYTES <= 163840
NT = 8

sX, sA, sH0, sH1, sWS, sPK, sDBG = 16, 20, 24, 28, 32, 36, 12
sG0, sG1 = 36, 12
sRB, sCG, sW, sHead, sQB = 40, 41, 42, 74, 75

def flag_store(A, soff, vt):
    A(f'''
    s_mov_b64 exec, 1
    buffer_store_dword v{vt}, off, {s(sWS,4)}, {soff} sc1
    s_mov_b64 exec, -1
    ''')

def gen(A):
    K = NAME + '_kernel'
    A(f'.globl {K}\n.p2align 8\n.type {K},@function\n{K}:')
    A('''
    s_cmp_ge_u32 s2, 256
    s_cbranch_scc1 L_end
    ''')
    stamp_begin(A)
    A(f'''
    s_load_dwordx2 {s(sX,2)}, s[0:1], 0
    s_load_dwordx2 {s(sA,2)}, s[0:1], 8
    s_load_dwordx4 s[8:11], s[0:1], 32
    s_load_dwordx2 {s(sWS,2)}, s[0:1], 72
    v_lshrrev_b32 v1, 6, v0
    v_and_b32 v0, 63, v0
    s_and_b32 s3, s2, 7
    v_readfirstlane_b32 {s(sW)}, v1
    s_lshr_b32 s43, s2, 3
    s_lshr_b32 {s(sRB)}, s3, 2
    s_lshl_b32 {s(sRB)}, {s(sRB)}, 3
    s_and_b32 s70, s43, 7
    s_add_u32 {s(sRB)}, {s(sRB)}, s70
    s_and_b32 {s(sCG)}, s3, 3
    s_lshl_b32 {s(sCG)}, {s(sCG)}, 2
    s_lshr_b32 s71, s43, 3
    s_add_u32 {s(sCG)}, {s(sCG)}, s71
    s_and_b32 s44, {s(sW)}, 3
    s_lshr_b32 s45, s44, 1
    s_and_b32 s46, s44, 1
    s_mov_b32 {s(sWS+2)}, {hx(WS_BYTES)}
    s_mov_b32 {s(sWS+3)}, 0x20000
    s_lshl_b32 {s(sHead)}, s3, 2
    s_add_u32 {s(sHead)}, {s(sHead)}, s71
    s_mov_b32 {s(sQB)}, s70
    ''')
    patterns = f'''
    v_bfe_u32 v5, v0, 4, 1
    v_bfe_u32 v6, v0, 2, 2
    v_lshrrev_b32 v7, 5, v0
    v_and_b32 v1, 3, v0
    v_lshlrev_b32 v1, 3, v1
    v_lshl_add_u32 v1, v7, 8, v1
    v_mul_u32_u24 v2, {PAN}, v5
    v_mul_u32_u24 v8, 1056, v6
    v_add3_u32 v2, v2, v8, v1
    v_mul_u32_u24 v8, 1088, v6
    v_lshl_add_u32 v3, v5, 5, v8
    v_add_u32 v3, v3, v1
    v_and_b32 v8, 15, v0
    v_mul_u32_u24 v8, 1040, v8
    v_lshl_add_u32 v4, v5, 8, v8
    v_lshl_add_u32 v4, v7, 4, v4
    s_mul_i32 s47, s45, {2*PAN}
    v_add_u32 v2, s47, v2
    s_lshl_b32 s47, s45, 6
    s_add_u32 s47, s47, {4*PAN}
    v_add_u32 v3, s47, v3
    '''
    A(f'''
    s_cmp_lt_u32 {s(sW)}, 4
    s_cbranch_scc1 L_C
    ''')
    gen_H(A, patterns)
    gen_C(A, patterns)
    A('L_end:\ns_endpgm\nL_code_end:')

def gen_H(A, patterns):
    sStrH, sColH = 48, 49
    sRowA, sRowH, sMH, sMA, sMX, sXo, sRot, sG = 50, 51, 52, 53, 54, 55, 59, 60
    ROTM = int(os.environ.get('ROTM', '7'))
    packsetup = f"""
    s_lshl_b32 s47, {s(sCG)}, 4
    s_add_u32 s47, s47, {s(sRB)}
    s_lshr_b32 s66, s47, 1
    s_and_b32 s67, s47, 1
    s_sub_u32 s47, s47, 224
    s_cmp_lt_u32 {s(sCG)}, 14
    s_cselect_b64 {s(sPK,2)}, s[4:5], s[6:7]
    s_mov_b32 {s(sPK+2)}, 524288
    s_cmov_b32 {s(sPK+2)}, 1835008
    s_mov_b32 {s(sPK+3)}, 0x20000
    s_cselect_b32 s66, s66, s47
    s_cselect_b32 s67, s67, 0
    s_movk_i32 s64, 512
    s_cmov_b32 s64, 0x2000000
    s_movk_i32 s65, 32
    s_cmovk_i32 s65, 112
    s_mov_b32 s63, {hx(WOF)}
    s_cmov_b32 s63, {hx(WDF)}
    s_lshl_b32 s72, s66, 14
    s_lshl_b32 s61, s67, 9
    s_add_u32 s72, s72, s61
    s_lshl_b32 s61, s44, 7
    s_add_u32 s72, s72, s61
    s_lshl_b32 s68, s44, 12
    s_add_u32 s68, s68, {L_PP}
    v_lshrrev_b32 v8, 3, v0
    v_and_b32 v9, 7, v0
    v_lshlrev_b32 v9, 4, v9
    v_lshl_add_u32 v14, v8, 10, v9
    """
    A(f"""
    s_mov_b32 {s(sX+2)}, 2097152
    s_mov_b32 {s(sX+3)}, 0x20000
    s_mov_b32 {s(sA+2)}, 1572864
    s_mov_b32 {s(sA+3)}, 0x20000
    s_cmp_ge_u32 {s(sW)}, 6
    s_cbranch_scc1 L_M
    s_and_b32 s64, s3, 3
    s_mul_i32 s65, s64, 7
    s_lshl_b32 s47, s71, 1
    s_add_u32 s65, s65, s47
    s_lshl_b32 s65, s65, 7
    s_add_u32 s66, s65, 128
    s_lshl_b32 s64, s64, 8
    s_add_u32 s64, s64, 2048
    s_cmp_lt_u32 s71, 3
    s_mov_b32 {s(sH0+2)}, 1572864
    s_cmov_b32 {s(sH0+2)}, 1835008
    s_mov_b32 {s(sH1+2)}, {1572864-128}
    s_cmov_b32 {s(sH1+2)}, 1835008
    s_mov_b32 {s(sH0+3)}, 0x20000
    s_mov_b32 {s(sH1+3)}, 0x20000
    s_mov_b32 {s(sG0+2)}, 1835008
    s_mov_b32 {s(sG1+2)}, 1835008
    s_mov_b32 {s(sG0+3)}, 0x20000
    s_mov_b32 {s(sG1+3)}, 0x20000
    s_movk_i32 {s(sStrH)}, 3072
    s_cmovk_i32 {s(sStrH)}, 3584
    s_cselect_b32 {s(sColH)}, s66, s64
    v_lshrrev_b32 v8, 3, v0
    v_and_b32 v9, 7, v0
    v_lshlrev_b32 v9, 4, v9
    s_lshl_b32 s47, s46, 1
    v_lshl_add_u32 v10, v8, 2, s47
    v_mul_u32_u24 v11, 3072, v10
    s_lshl_b32 s47, {s(sCG)}, 7
    v_add3_u32 v11, v11, v9, s47
    v_mul_u32_u24 v16, 3584, v10
    v_add3_u32 v16, v16, v9, s65
    v_add_u32 v17, 3584, v16
    v_mul_lo_u32 v12, v10, {s(sStrH)}
    v_add3_u32 v12, v12, v9, {s(sColH)}
    v_add_u32 v10, {s(sStrH)}, v12
    v_and_b32 v13, 4, v8
    v_bfe_u32 v14, v8, 1, 1
    v_and_b32 v15, 1, v8
    v_lshl_add_u32 v14, v15, 1, v14
    v_add_u32 v13, v13, v14
    v_lshl_add_u32 v13, v13, 14, v9
    s_lshl_b32 s47, {s(sRB)}, 17
    s_lshl_b32 s61, s46, 12
    s_add_u32 s47, s47, s61
    v_add_u32 v13, s47, v13
    s_lshl_b32 s47, s71, 1
    s_add_u32 {s(sRot)}, s70, s47
    s_and_b32 s47, s3, 1
    s_add_u32 {s(sRot)}, {s(sRot)}, s47
    s_and_b32 {s(sRot)}, {s(sRot)}, {ROTM}
    s_lshl_b32 {s(sXo)}, {s(sRot)}, 7
    s_lshl_b32 {s(sRot)}, {s(sRot)}, 1
    s_lshl_b32 s69, {s(sStrH)}, 5
    s_mul_i32 {s(sRowA)}, {s(sRot)}, {32*3072}
    s_mul_i32 {s(sRowH)}, {s(sRot)}, s69
    s_mul_i32 s56, {s(sRot)}, {32*3584}
    s_mul_i32 {s(sMX)}, s46, 4160
    s_add_u32 {s(sMX)}, {s(sMX)}, {L_X}
    s_mul_i32 {s(sMH)}, s46, 2112
    s_mul_i32 {s(sMA)}, s46, 2176
    s_add_u32 {s(sMA)}, {s(sMA)}, {4*PAN}
    s_mov_b32 {s(sG)}, 0
    s_mov_b32 m0, {s(sMX)}
    s_waitcnt lgkmcnt(0)
    buffer_load_dwordx4 v13, {s(sX,4)}, {s(sXo)} offen lds
    s_add_u32 m0, {s(sMX)}, 16
    s_add_u32 s62, {s(sA)}, 128
    buffer_load_dwordx4 v13, {s(sX,4)}, {s(sXo)} offen offset:1024 lds
    s_addc_u32 s63, {s(sA+1)}, 0
    s_mov_b64 {s(sG0,2)}, s[8:9]
    s_mov_b64 {s(sG1,2)}, s[10:11]
    s_add_u32 m0, {s(sMX)}, 32
    s_cmp_lt_u32 s71, 3
    buffer_load_dwordx4 v13, {s(sX,4)}, {s(sXo)} offen offset:2048 lds
    s_cselect_b64 {s(sH0,2)}, s[8:9], {s(sA,2)}
    s_cselect_b64 {s(sH1,2)}, s[10:11], s[62:63]
    s_add_u32 m0, {s(sMX)}, 48
    s_add_u32 {s(sMX)}, {s(sMX)}, {8*1040}
    buffer_load_dwordx4 v13, {s(sX,4)}, {s(sXo)} offen offset:3072 lds
    s_add_u32 {s(sXo)}, {s(sXo)}, 8192
    s_load_dwordx2 s[4:5], s[0:1], 48
    s_load_dwordx2 s[6:7], s[0:1], 16
    s_branch LL_issue
LL_loop:
    s_waitcnt vmcnt(28)
    s_barrier
LL_issue:
    """)
    fill = [f's_add_u32 {s(sG)}, {s(sG)}, 1', f's_add_u32 s47, {s(sG)}, {s(sRot)}', 's_add_u32 s61, s47, 1', 's_and_b32 s47, s47, 15',
            f's_bfe_u32 {s(sXo)}, s61, 0x30001', f's_lshl_b32 {s(sXo)}, {s(sXo)}, 7', 's_and_b32 s61, s61, 1', 's_lshl_b32 s61, s61, 13',
            f's_add_u32 {s(sXo)}, {s(sXo)}, s61', f's_add_u32 {s(sMX)}, {s(sMX)}, {8*1040}', 's_nop 0', 's_nop 0', 's_nop 0', 's_nop 0']
    lds = []
    for i in range(4):
        lds.append((sMX, 16 * i, f'v13, {s(sX,4)}, {s(sXo)} offen offset:{1024*i}'))
    for cc in range(2):
        for hf in range(2):
            for bb in range(2):
                if cc == 0: src = f'v{16+bb}, {s(sG0 if hf == 0 else sG1,4)}, s56 offen'
                else: src = f'v{12 if bb == 0 else 10}, {s(sH0 if hf == 0 else sH1,4)}, {s(sRowH)} offen'
                lds.append((sMH, (2 * cc + hf) * PAN + 1056 * bb, src))
    lds.append((sMA, 0, f'v11, {s(sA,4)}, {s(sRowA)} offen'))
    lds.append((sMA, 1088 - 3072, f'v11, {s(sA,4)}, {s(sRowA)} offen offset:3072'))
    for (base, off, ins), f in zip(lds, fill):
        A(f's_add_u32 m0, {s(base)}, {hx(off)}\n{f}\nbuffer_load_dwordx4 {ins} lds')
    A(f"""
    s_cmp_ge_u32 {s(sG)}, 15
    s_cselect_b32 {s(sXo)}, 0x400000, {s(sXo)}
    s_mul_i32 {s(sRowA)}, s47, {32*3072}
    s_mul_i32 {s(sRowH)}, s47, s69
    s_mul_i32 s56, s47, {32*3584}
    s_add_u32 {s(sMH)}, {s(sMH)}, {WST}
    s_add_u32 {s(sMA)}, {s(sMA)}, {WST}
    s_cmp_ge_u32 {s(sMH)}, {4*WST}
    s_cselect_b32 s47, {4*WST}, 0
    s_sub_u32 {s(sMH)}, {s(sMH)}, s47
    s_sub_u32 {s(sMA)}, {s(sMA)}, s47
    s_cmp_ge_u32 {s(sMX)}, {L_X+3*XST}
    s_cselect_b32 s47, {3*XST}, 0
    s_sub_u32 {s(sMX)}, {s(sMX)}, s47
    s_cmp_ge_u32 {s(sG)}, 16
    s_cbranch_scc1 LL_tail
    s_cmp_ge_u32 {s(sG)}, 4
    s_cbranch_scc1 LL_loop
    s_cmp_lg_u32 {s(sG)}, 2
    s_cbranch_scc1 LL_issue
    s_waitcnt vmcnt(14)
    s_barrier
    s_branch LL_issue
LL_tail:
    s_waitcnt lgkmcnt(0)
    """)
    A(patterns)
    A(packsetup)
    A(f"""
    s_waitcnt vmcnt(28)
    s_barrier
    s_waitcnt vmcnt(14)
    s_branch LH_join
    """)
    CS, RS = 16, 24
    WF, XF = 32, 52
    sOne = 73
    A(f"""
L_M:
    s_load_dwordx2 {s(sDBG,2)}, s[0:1], 64
    s_load_dwordx2 s[4:5], s[0:1], 48
    s_load_dwordx2 s[6:7], s[0:1], 16
    s_mov_b32 s45, s46
    """)
    A(patterns)
    A(f"""
    s_mov_b32 s45, 1
    s_mov_b32 {s(sDBG+2)}, 256
    s_mov_b32 {s(sDBG+3)}, 0x20000
    s_mov_b32 {s(sOne)}, {hx(ONES)}
    s_lshl_b32 s47, s46, 9
    s_add_u32 s47, s47, {L_X}
    v_add_u32 v4, s47, v4
    v_lshlrev_b32 v1, 4, v0
    s_mov_b32 s50, 0
    """)
    for i in range(16, 28, 2): A(f'v_mov_b64 {v(i,2)}, 0')
    A('s_waitcnt lgkmcnt(0)')
    A(packsetup)
    A(f"""
LM_stat:
    s_bitcmp1_b32 s50, 0
    s_cbranch_scc1 LM_nobar
    s_barrier
    buffer_load_dwordx2 v[30:31], off, {s(sDBG,4)}, 0 sc1
LM_nobar:
    ds_read_b128 {v(XF,4)}, v4
    ds_read_b128 {v(XF+4,4)}, v4 offset:128
    ds_read_b64_tr_b16 {v(WF,2)}, v3
    ds_read_b64_tr_b16 {v(WF+2,2)}, v3 offset:128
    """)
    for u in range(4):
        A(f'ds_read_b64_tr_b16 {v(WF+4+4*u,2)}, v2 offset:{u*32}')
        A(f'ds_read_b64_tr_b16 {v(WF+6+4*u,2)}, v2 offset:{u*32+128}')
    A(f"""
    s_movk_i32 s47, 512
    s_cmovk_i32 s47, {WST-512}
    v_add_u32 v2, s47, v2
    v_add_u32 v3, s47, v3
    v_add_u32 v4, 32, v4
    s_add_u32 s50, s50, 1
    s_waitcnt lgkmcnt(10)
    """)
    for j in range(4):
        for T in range(2):
            A(f'v_dot2c_f32_bf16 v{RS+2*T}, {s(sOne)}, v{XF+4*T+j}')
            A(f'v_dot2c_f32_bf16 v{RS+2*T+1}, v{XF+4*T+j}, v{XF+4*T+j}')
    A('s_waitcnt lgkmcnt(0)')
    for j in range(4):
        for i in range(5):
            A(f'v_dot2c_f32_bf16 v{CS+i}, {s(sOne)}, v{WF+4*i+j}')
    A(f"""
    s_cmp_lt_u32 s50, 4
    s_cbranch_scc1 LM_stat
    s_barrier
    s_lshl_b32 s50, {s(sCG)}, 4
    s_add_u32 s50, s50, {s(sRB)}
    s_lshl_b32 s50, s50, 1
    s_add_u32 s50, s50, s46
    s_lshl_b32 s50, s50, 10
    s_add_u32 s50, s50, {hx(CSP)}
    s_lshl_b32 s51, {s(sRB)}, 4
    s_add_u32 s51, s51, {s(sCG)}
    s_lshl_b32 s51, s51, 1
    s_add_u32 s51, s51, s46
    s_lshl_b32 s51, s51, 10
    s_add_u32 s51, s51, {hx(RSP)}
    s_mov_b32 s47, 0
LM_non:
    s_waitcnt vmcnt(0)
    v_cmp_eq_u32 vcc, 1, v31
    s_cbranch_vccnz LM_nonok
    s_sleep 2
    buffer_load_dwordx2 v[30:31], off, {s(sDBG,4)}, 0 sc1
    s_add_u32 s47, s47, 1
    s_cmp_lt_u32 s47, {SPIN}
    s_cbranch_scc1 LM_non
LM_nonok:
    """)
    for i in range(5): A(f'v_mov_b32 v{WF+i}, v{CS+i}')
    for i in range(4): A(f'v_mov_b32 v{WF+8+i}, v{RS+i}')
    A('v_cmp_gt_u32 vcc, 32, v0')
    for i in range(5): A(f'v_permlane32_swap_b32 v{CS+i}, v{WF+i}')
    for i in range(4): A(f'v_permlane32_swap_b32 v{RS+i}, v{WF+8+i}')
    for i in range(5): A(f'v_add_f32 v{CS+i}, v{CS+i}, v{WF+i}')
    for i in range(4): A(f'v_add_f32 v{RS+i}, v{RS+i}, v{WF+8+i}')
    A(f"""
    v_cndmask_b32 v{CS}, v{CS+3}, v{CS}, vcc
    v_cndmask_b32 v{CS+1}, v{CS+4}, v{CS+1}, vcc
    v_mov_b32 v{CS+3}, v30
    v_cndmask_b32 v{RS}, v{RS+2}, v{RS}, vcc
    v_cndmask_b32 v{RS+1}, v{RS+3}, v{RS+1}, vcc
    v_mov_b32 v{RS+3}, v30
    buffer_store_dwordx4 {v(CS,4)}, v1, {s(sWS,4)}, s50 offen sc1
    buffer_store_dwordx4 {v(RS,4)}, v1, {s(sWS,4)}, s51 offen sc1
    s_and_b32 s50, s50, {hx(~0x3800)}
    s_and_b32 s51, s51, {hx(~0x3800)}
    v_lshlrev_b32 v8, 2, v0
    v_mov_b32 v9, {L_NON}
    ds_write_b32 v9, v30
    s_mov_b32 s52, 0
    """)
    B_GAT, B_RED = [int(t) for t in os.environ.get('MSCHED', '8,12').split(',')]
    nb = 2
    def bars(upto):
        nonlocal nb
        while nb < upto:
            A('s_barrier'); nb += 1
    bars(B_GAT)
    GC, GR = 32, 64
    A('s_mov_b32 s53, 0\nLM_gat:\ns_mov_b32 s47, s50\ns_mov_b32 s61, s51')
    for i in range(8):
        A(f'buffer_load_dwordx4 {v(GR+4*i,4)}, v1, {s(sWS,4)}, s61 offen offset:{2048*(i&1)} sc1')
        A(f'buffer_load_dwordx4 {v(GC+4*i,4)}, v1, {s(sWS,4)}, s47 offen offset:{2048*(i&1)} sc1')
        if i & 1 and i < 7: A('s_add_u32 s47, s47, 4096\ns_add_u32 s61, s61, 4096')
    A('s_cmp_lg_u32 s53, 0\ns_cbranch_scc1 LM_chk')
    bars(B_RED - 1)
    A('LM_chk:\ns_add_u32 s53, s53, 1\ns_waitcnt vmcnt(0)')
    A(f'v_xor_b32 v10, v30, v{GC+3}')
    for i in range(1, 16):
        A(f'v_xor_b32 v11, v30, v{GC+4*i+3}\nv_or_b32 v10, v10, v11')
    A(f"""
    v_cmp_ne_u32 vcc, 0, v10
    s_cbranch_vccz LM_red
    s_cmp_lt_u32 s53, {SPIN}
    s_cbranch_scc1 LM_gat
LM_red:
    """)
    if STAMP: A('s_add_u32 s92, s53, s80')
    stamp(A, 1)
    for i in range(1, 8):
        for t in range(3):
            if t < 2: A(f'v_add_f32 v{GR+t}, v{GR+t}, v{GR+4*i+t}')
            A(f'v_add_f32 v{GC+t}, v{GC+t}, v{GC+4*i+t}')
    SUM, SQ = GR, GR + 1
    A(f"""
    s_mul_i32 s47, s46, {5*256}
    s_add_u32 s47, s47, {L_CS}
    v_add_u32 v10, s47, v8
    s_lshl_b32 s47, s46, 9
    s_add_u32 s47, s47, {L_RS}
    v_lshl_add_u32 v9, v0, 3, s47
    v_cmp_gt_u32 vcc, 32, v0
    v_mul_f32 v{SUM}, {hx(f2u(-1.0/512))}, v{SUM}
    v_mul_f32 v{SQ}, {hx(f2u(1.0/512))}, v{SQ}
    v_fma_f32 v{SQ}, -v{SUM}, v{SUM}, v{SQ}
    v_max_f32 v{SQ}, 0, v{SQ}
    v_cvt_pk_bf16_f32 v{SQ}, v{SQ}, v{SQ}
    v_and_b32 v{SQ}, 0xffff0000, v{SQ}
    v_add_f32 v{SQ}, {hx(f2u(1e-5))}, v{SQ}
    v_cvt_pk_bf16_f32 v{SQ}, v{SQ}, v{SQ}
    v_and_b32 v{SQ}, 0xffff0000, v{SQ}
    v_sqrt_f32 v{SQ}, v{SQ}
    v_cvt_pk_bf16_f32 v{SUM}, v{SUM}, v{SUM}
    v_cvt_pk_bf16_f32 v{SQ}, v{SQ}, v{SQ}
    v_and_b32 v{SQ}, 0xffff0000, v{SQ}
    ds_write_b64 v9, {v(SUM,2)}
    """)
    for t in range(3):
        A(f"""
        v_cvt_pk_bf16_f32 v28, v{GC+t}, v{GC+t}
        v_and_b32 v28, 0xffff0000, v28
        v_sub_f32 v29, v{GC+t}, v28
        v_cvt_pk_bf16_f32 v28, v28, v29
        v_cndmask_b32 v{16+t}, 0, v28, vcc
        ds_write_b32 v10, v{16+t} offset:{t*256}
        """)
        if t < 2:
            A(f'v_sub_u32 v{20+t}, v28, v{16+t}\nds_write_b32 v10, v{20+t} offset:{(3+t)*256}')
    A('s_waitcnt lgkmcnt(0)')
    stamp(A, 2)
    bars(13)
    assert nb == 13
    A(f"""
LH_join:
    s_barrier
    v_mov_b32 v9, {L_NON}
    ds_read_b32 v3, v9
    v_lshlrev_b32 v1, 4, v0
    s_mov_b32 m0, s68
    s_add_u32 s47, s72, 8192
    buffer_load_dwordx4 v14, {s(sPK,4)}, s72 offen lds
    s_add_u32 m0, s68, 1024
    s_add_u32 s72, s72, s64
    buffer_load_dwordx4 v14, {s(sPK,4)}, s47 offen lds
    s_add_u32 m0, s68, 2048
    s_add_u32 s47, s47, s64
    buffer_load_dwordx4 v14, {s(sPK,4)}, s72 offen lds
    s_add_u32 m0, s68, 3072
    s_nop 0
    buffer_load_dwordx4 v14, {s(sPK,4)}, s47 offen lds
    s_waitcnt vmcnt(4)
    s_barrier
    s_barrier
    """)
    A(f'''
    v_and_b32 v8, 1, v0
    v_bfe_u32 v9, v0, 1, 1
    v_lshl_add_u32 v8, v8, 1, v9
    v_lshlrev_b32 v8, 3, v8
    v_lshl_add_u32 v8, v5, 5, v8
    v_lshl_add_u32 v9, v7, 2, v6
    v_lshl_add_u32 v8, v9, 7, v8
    v_add_u32 v8, s68, v8
    s_lshl_b32 s47, s67, 3
    s_lshl_b32 s61, s44, 1
    s_add_u32 s47, s47, s61
    s_mul_i32 s47, s47, s65
    s_add_u32 s47, s47, s66
    s_lshl_b32 s47, s47, 10
    s_add_u32 s47, s47, s63
    s_lshl_b32 s65, s65, 10
    s_add_u32 s61, s47, s65
    s_lshl_b32 s64, s64, 9
    s_cmp_lt_u32 {s(sCG)}, 14
    s_cmov_b32 s64, 0x2000000
    s_waitcnt vmcnt(0)
    ''')
    for j in range(2):
        for a in range(2):
            for rd in range(2):
                A(f'ds_read_b64_tr_b16 {v(32+8*j+4*a+2*rd,2)}, v8 offset:{j*2048+rd*1024+a*64}')
    A(f'''
    s_mov_b32 s66, s47
    s_mov_b32 s67, s61
    s_lshl_b32 s77, {s(sHead)}, 17
    s_add_u32 s77, s77, {hx(KV)}
    s_cmp_lg_u32 s44, 0
    s_cbranch_scc1 LH_b1
    ''')
    A(f'''
    v_and_b32 v8, 15, v0
    v_and_b32 v9, 1, v0
    s_lshl_b32 s47, {s(sQB)}, 1
    v_add_u32 v9, s47, v9
    v_cmp_gt_u32 vcc, 32, v0
    s_lshr_b32 s47, {s(sHead)}, 2
    s_add_u32 s61, s47, 8
    v_cndmask_b32 v8, v9, v8, vcc
    s_lshr_b32 s62, {s(sHead)}, 3
    s_lshl_b32 s62, s62, 2
    s_add_u32 s62, s62, 3
    v_mov_b32 v9, s47
    v_mov_b32 v10, s62
    v_cndmask_b32 v9, v9, v10, vcc
    v_cmp_gt_u32 vcc, 16, v0
    v_mov_b32 v10, s61
    v_lshrrev_b32 v11, 3, v8
    v_cndmask_b32 v9, v9, v10, vcc
    v_and_b32 v8, 7, v8
    v_lshlrev_b32 v8, 3, v8
    v_lshl_add_u32 v8, v11, 2, v8
    v_lshrrev_b32 v11, 2, v9
    v_add_u32 v8, v8, v11
    v_and_b32 v9, 3, v9
    v_lshl_add_u32 v8, v9, 6, v8
    v_lshlrev_b32 v8, 7, v8
    v_mov_b32 v10, {L_FLAG}
    v_mov_b32 v12, 0
    ds_write_b32 v10, v12
    s_mov_b32 s63, 0
    s_mov_b32 s47, {hx(FL)}
    s_waitcnt lgkmcnt(0)
    s_sleep {os.environ.get('SL1', '24')}
LH_f1:
    buffer_load_dwordx4 v[12:15], v8, {s(sWS,4)}, s47 offen sc1
    s_add_u32 s63, s63, 1
    s_waitcnt vmcnt(0)
    v_xor_b32 v12, v3, v12
    v_xor_b32 v13, v3, v13
    v_xor_b32 v14, v3, v14
    v_xor_b32 v15, v3, v15
    v_or_b32 v12, v12, v13
    v_or3_b32 v12, v12, v14, v15
    v_cmp_ne_u32 vcc, 0, v12
    s_cbranch_vccz LH_f1done
    s_sleep 2
    s_cmp_lt_u32 s63, {SPIN}
    s_cbranch_scc1 LH_f1
LH_f1done:
    ''')
    stamp(A, 3)
    A(f'''
    s_lshl_b32 s47, {s(sHead)}, 3
    s_add_u32 s47, s47, {s(sQB)}
    s_lshl_b32 s47, s47, 13
    s_mov_b32 m0, 0
    s_mov_b32 s61, {L_ONES+512}
    buffer_load_dwordx4 v1, {s(sWS,4)}, s77 offen sc1 lds
    buffer_load_dwordx4 v1, {s(sWS,4)}, s77 offen offset:2048 sc1 lds
LH_q:
    s_mov_b32 m0, s61
    s_add_u32 s61, s61, 2048
    buffer_load_dwordx4 v1, {s(sWS,4)}, s47 offen sc1 lds
    s_add_u32 s47, s47, 1024
    s_cmp_lt_u32 s61, {L_ONES+512+8*2048}
    s_cbranch_scc1 LH_q
    s_mov_b32 m0, 0
    s_mov_b32 s47, s77
    buffer_load_dwordx4 v1, {s(sWS,4)}, s77 offen offset:1024 sc1 lds
    buffer_load_dwordx4 v1, {s(sWS,4)}, s77 offen offset:3072 sc1 lds
LH_kv0:
    s_add_u32 m0, m0, 4096
    s_add_u32 s47, s47, 4096
    buffer_load_dwordx4 v1, {s(sWS,4)}, s47 offen sc1 lds
    buffer_load_dwordx4 v1, {s(sWS,4)}, s47 offen offset:1024 sc1 lds
    buffer_load_dwordx4 v1, {s(sWS,4)}, s47 offen offset:2048 sc1 lds
    buffer_load_dwordx4 v1, {s(sWS,4)}, s47 offen offset:3072 sc1 lds
    s_cmp_lt_u32 m0, 16384
    s_cbranch_scc1 LH_kv0
LH_b1:
    s_waitcnt vmcnt(0) lgkmcnt(0)
    ''')
    stamp(A, 4)
    A(f'''
    s_barrier
    buffer_store_dwordx4 v[32:35], v1, {s(sWS,4)}, s66 offen sc1
    buffer_store_dwordx4 v[36:39], v1, {s(sWS,4)}, s67 offen sc1
    s_add_u32 s66, s66, s64
    s_add_u32 s67, s67, s64
    buffer_store_dwordx4 v[40:43], v1, {s(sWS,4)}, s66 offen sc1
    buffer_store_dwordx4 v[44:47], v1, {s(sWS,4)}, s67 offen sc1
    s_lshl_b32 s47, s44, 10
    s_add_u32 s47, s47, 20480
    s_mov_b32 m0, s47
    s_add_u32 s47, s47, s77
    s_mov_b32 s48, {20480+12*4096}
LH_kv1:
    buffer_load_dwordx4 v1, {s(sWS,4)}, s47 offen sc1 lds
    s_add_u32 m0, m0, 4096
    s_add_u32 s47, s47, 4096
    s_cmp_lt_u32 m0, s48
    s_cbranch_scc1 LH_kv1
    s_cmp_eq_u32 s48, 131072
    s_cbranch_scc1 LH_kvdone
    s_mov_b32 s48, 131072
    s_waitcnt vmcnt(8)
    s_barrier
    s_cmp_lg_u32 s44, 0
    s_cbranch_scc1 LH_kv1
    s_lshl_b32 s61, s2, 7
    s_add_u32 s61, s61, {hx(FL+32)}
    ''')
    flag_store(A, 's61', 3)
    A(f'''
    s_branch LH_kv1
LH_kvdone:
    s_load_dwordx2 {s(sA,2)}, s[0:1], 56
    s_mov_b32 {s(sA+2)}, 2097152
    s_lshl_b32 s50, s3, 3
    s_lshl_b32 s47, s71, 1
    s_add_u32 s50, s50, s47
    s_add_u32 s50, s50, s46
    s_lshl_b32 s51, s70, 1
    s_add_u32 s51, s51, s45
    s_mul_i32 s47, s45, {56*1024}
    s_mul_i32 s56, s51, {112*1024}
    s_add_u32 s56, s56, s47
    s_add_u32 s56, s56, {hx(WDF)}
    s_xor_b32 s57, s51, 1
    s_mul_i32 s57, s57, {112*1024}
    s_add_u32 s57, s57, s47
    s_add_u32 s57, s57, {hx(WDF)}
    s_mul_i32 s58, s50, {112*1024}
    s_add_u32 s58, s58, s47
    s_add_u32 s58, s58, {hx(HF)}
    s_lshl_b32 s59, s70, 1
    s_mul_i32 s47, s71, 3
    s_add_u32 s59, s59, s47
    s_cmp_ge_u32 s59, 14
    s_cselect_b32 s47, 14, 0
    s_sub_u32 s59, s59, s47
    s_lshl_b32 s59, s59, 12
    v_mov_b32 v10, {L_FLAG}
    s_mov_b32 s63, 0
    s_waitcnt vmcnt(0) lgkmcnt(0)
    s_barrier
    ''')
    stamp(A, 5)
    A(f'''
    s_cmp_lg_u32 s44, 0
    s_cbranch_scc1 LH_f2l
    s_mov_b32 s47, {hx(FL+32)}
    v_lshlrev_b32 v8, 9, v0
LH_f2:
    buffer_load_dword v12, v8, {s(sWS,4)}, s47 offen sc1
    buffer_load_dword v13, v8, {s(sWS,4)}, s47 offen offset:128 sc1
    buffer_load_dword v14, v8, {s(sWS,4)}, s47 offen offset:256 sc1
    buffer_load_dword v15, v8, {s(sWS,4)}, s47 offen offset:384 sc1
    s_add_u32 s63, s63, 1
    s_waitcnt vmcnt(0)
    v_xor_b32 v12, v3, v12
    v_xor_b32 v13, v3, v13
    v_xor_b32 v14, v3, v14
    v_xor_b32 v15, v3, v15
    v_or_b32 v12, v12, v13
    v_or3_b32 v12, v12, v14, v15
    v_cmp_ne_u32 vcc, 0, v12
    s_cbranch_vccz LH_f2ok
    s_sleep 8
    s_cmp_lt_u32 s63, {SPIN}
    s_cbranch_scc1 LH_f2
LH_f2ok:
    v_mov_b32 v12, 1
    ds_write_b32 v10, v12
    s_branch LH_gemm
LH_f2l:
    s_sleep 2
    ds_read_b32 v12, v10
    s_add_u32 s63, s63, 1
    s_waitcnt lgkmcnt(0)
    v_readfirstlane_b32 s47, v12
    s_cmp_eq_u32 s47, 1
    s_cbranch_scc1 LH_gemm
    s_cmp_lt_u32 s63, {SPIN * 16}
    s_cbranch_scc1 LH_f2l
LH_gemm:
    s_setprio {0 if 'prio0' in EXP else 2}
    ''')
    stamp(A, 6)
    D, G, X, FR = 8, 40, 56, 64
    GL = os.environ.get('GL', 'sc1')
    if GL != 'sc1': A('buffer_inv sc1')
    adv = """
    s_add_u32 s52, s56, s59
    s_add_u32 s53, s57, s59
    s_add_u32 s55, s58, s59
    s_add_u32 s59, s59, 4096
    s_cmp_ge_u32 s59, %d
    s_cselect_b32 s59, 0, s59
    """ % (14 * 4096)
    def ld(i):
        return '\n'.join(f'buffer_load_dwordx4 {v(FR+12*i+4*k,4)}, v1, {s(sWS,4)}, s{(55,52,53)[k]} offen offset:{i*1024} {GL}' for k in range(3))
    A(adv)
    for i in range(4): A(ld(i))
    for j in range(0, 16, 2): A(f'v_mov_b64 {v(G+j,2)}, 0\nv_mov_b64 {v(D+16+j,2)}, 0')
    A('s_mov_b32 s63, 0\nLH_gloop:')
    A(adv)
    for i in range(4):
        A('s_waitcnt vmcnt(9)')
        A(mfma(G, FR + 12 * i + 4, FR + 12 * i, G))
        A(mfma(D + 16, FR + 12 * i + 8, FR + 12 * i, D + 16))
        A(ld(i))
    A(f"""
    s_add_u32 s63, s63, 1
    s_cmp_lt_u32 s63, 13
    s_cbranch_scc1 LH_gloop
    """)
    WO = 128
    A(f"""
    s_lshl_b32 s52, s51, 5
    s_lshl_b32 s47, s45, 4
    s_add_u32 s52, s52, s47
    s_lshl_b32 s52, s52, 10
    s_add_u32 s52, s52, {hx(WOF)}
    s_xor_b32 s53, s52, 0x8000
    """)
    for i in range(4):
        A(f's_waitcnt vmcnt({9+5*i})')
        A(mfma(G, FR + 12 * i + 4, FR + 12 * i, G))
        A(mfma(D + 16, FR + 12 * i + 8, FR + 12 * i, D + 16))
        for k in range(4 * i, 4 * i + 4):
            A(f'buffer_load_dwordx4 {v(WO+8*k,4)}, v1, {s(sWS,4)}, s52 offen offset:{(k&3)*1024} {GL}')
            A(f'buffer_load_dwordx4 {v(WO+8*k+4,4)}, v1, {s(sWS,4)}, s53 offen offset:{(k&3)*1024} {GL}')
        A('s_add_u32 s52, s52, 4096\ns_add_u32 s53, s53, 4096')
    A(f'''
    v_and_b32 v4, 31, v0
    v_lshlrev_b32 v4, 10, v4
    v_lshl_add_u32 v4, v7, 4, v4
    s_lshl_b32 s54, s50, 15
    s_lshl_b32 s47, s51, 6
    s_add_u32 s54, s54, s47
    buffer_load_dwordx4 {v(X,4)}, v4, {s(sX,4)}, s54 offen
    buffer_load_dwordx4 {v(X+4,4)}, v4, {s(sX,4)}, s54 offen offset:32
    ''')
    A(f'''
    s_lshl_b32 s47, s3, 3
    s_lshl_b32 s61, s45, 2
    s_add_u32 s47, s47, s61
    s_lshl_b32 s47, s47, 7
    s_lshl_b32 s61, s71, 2
    s_add_u32 s47, s47, s61
    s_add_u32 s47, s47, {hx(FL+16)}
    v_and_b32 v2, 3, v0
    v_bfe_u32 v5, v0, 2, 2
    v_lshl_add_u32 v2, v2, 6, v5
    v_lshlrev_b32 v2, 7, v2
    s_lshl_b32 s52, s50, 5
    s_lshl_b32 s61, s45, 4
    s_add_u32 s52, s52, s61
    s_lshl_b32 s52, s52, 10
    s_add_u32 s52, s52, {hx(OF)}
    s_xor_b32 s61, s44, 2
    s_lshl_b32 s61, s61, 12
    s_add_u32 s61, s61, {L_EX}
    v_add_u32 v5, s61, v1
    s_lshl_b32 s61, s44, 12
    s_add_u32 s61, s61, {L_EX}
    v_add_u32 v6, s61, v1
    s_mov_b32 s63, 0
    ''')
    for q in range(4): A(f'ds_write_b128 v5, {v(D+16+4*q,4)} offset:{q*1024}')
    A('s_waitcnt vmcnt(0) lgkmcnt(0)')
    stamp(A, 7)
    A('s_barrier')
    stamp(A, 8)
    A(f'buffer_load_dword v7, v2, {s(sWS,4)}, s47 offen sc1')
    for q in range(4): A(f'ds_read_b128 {v(D+4*q,4)}, v6 offset:{q*1024}')
    A(f'v_subrev_u32 v5, {L_EX}, v5\nv_subrev_u32 v6, {L_EX}, v6\ns_waitcnt lgkmcnt(0)')
    for j in range(16): A(f'v_add_f32 v{G+j}, v{G+j}, v{D+j}')
    for j in range(16): A(f'v_mul_f32 v{D+j}, {hx(f2u(-LOG2E))}, v{G+j}')
    for j in range(16): A(f'v_exp_f32 v{D+j}, v{D+j}')
    for j in range(16): A(f'v_add_f32 v{D+j}, 1.0, v{D+j}')
    for j in range(16): A(f'v_rcp_f32 v{D+j}, v{D+j}')
    for j in range(16): A(f'v_mul_f32 v{G+j}, v{D+j}, v{G+j}')
    A(f'''
LH_f3:
    s_waitcnt vmcnt(0)
    v_cmp_ne_u32 vcc, v3, v7
    s_cbranch_vccz LH_f3done
    buffer_load_dword v7, v2, {s(sWS,4)}, s47 offen sc1
    s_add_u32 s63, s63, 1
    s_cmp_lt_u32 s63, {SPIN}
    s_cbranch_scc1 LH_f3
LH_f3done:
    ''')
    stamp(A, 9)
    for k in range(16):
        A(f'buffer_load_dwordx4 {v(FR+4*k,4)}, v1, {s(sWS,4)}, s52 offen offset:{(k&3)*1024} sc1')
        if k & 3 == 3 and k < 15: A('s_add_u32 s52, s52, 4096')
    for k in range(16):
        A(f's_waitcnt vmcnt({15-k})')
        A(mfma(D + 16, WO + 8 * k + 4, FR + 4 * k, None if k == 0 else D + 16))
        A(mfma(D, WO + 8 * k, FR + 4 * k, None if k == 0 else D))
    stamp(A, 10)
    U = WO
    for j in range(8):
        A(f'v_lshlrev_b32 v{U+2*j}, 16, v{X+j}\nv_and_b32 v{U+2*j+1}, 0xffff0000, v{X+j}')
    for q in range(4): A(f'ds_write_b128 v5, {v(D+16+4*q,4)} offset:{q*1024}')
    A('s_waitcnt lgkmcnt(0)\ns_barrier')
    for q in range(4): A(f'ds_read_b128 {v(D+16+4*q,4)}, v6 offset:{q*1024}')
    for q in range(4):
        A(f's_waitcnt lgkmcnt({3-q})')
        for p in (2 * q, 2 * q + 1):
            A(f'v_pk_add_f32 {v(D+2*p,2)}, {v(D+2*p,2)}, {v(D+16+2*p,2)}')
            A(f'v_pk_fma_f32 {v(D+2*p,2)}, {v(D+2*p,2)}, {v(G+2*p,2)}, {v(U+2*p,2)}')
            A(f'v_cvt_pk_bf16_f32 v{X+p}, v{D+2*p}, v{D+2*p+1}')
        if q & 1: A(f'buffer_store_dwordx4 {v(X+4*(q>>1),4)}, v4, {s(sA,4)}, s54 offen offset:{32*(q>>1)}')
    stamp(A, 11)
    stamp_end(A, sWS, sW, 2)
    if STAMP and 'dbg' in EXP:
        A(f'''
        s_cmp_lg_u32 s44, 0
        s_cbranch_scc1 L_end
        s_load_dwordx2 {s(sDBG,2)}, s[0:1], 64
        s_mov_b32 {s(sDBG+2)}, 256
        s_mov_b32 {s(sDBG+3)}, 0x20000
        s_sub_u32 s78, 0, s94
        v_mov_b32 v8, s78
        v_mov_b32 v9, s94
        v_mov_b32 v10, s95
        s_mov_b64 exec, 1
        s_waitcnt lgkmcnt(0)
        buffer_atomic_umax v8, off, {s(sDBG,4)}, 0 offset:8 sc1
        buffer_atomic_umax v9, off, {s(sDBG,4)}, 0 offset:12 sc1
        buffer_atomic_umax v10, off, {s(sDBG,4)}, 0 offset:16 sc1
        s_cmp_lg_u32 s2, 5
        s_cbranch_scc1 L_end
        ''')
        for k, i in enumerate((3, 4, 5, 6, 7, 8, 9, 10, 13)):
            A(f's_sub_u32 s78, s{80+i}, s80\nv_mov_b32 v8, s78\nbuffer_store_dword v8, off, {s(sDBG,4)}, 0 offset:{20+4*k} sc1')
        A(f's_sub_u32 s78, s95, s94\nv_mov_b32 v8, s78\nbuffer_store_dword v8, off, {s(sDBG,4)}, 0 offset:56 sc1')
    A('s_endpgm')

def gen_C(A, patterns):
    ACC = 96
    acc = lambda T, i: ACC + (T * 5 + i) * 16
    FB = lambda f: 8 + 28 * f
    Wf = lambda f, i: FB(f) + 4 * i
    Xf = lambda f, T: FB(f) + 20 + 4 * T
    sDW, sXs, sIt, sF1, sF3 = 48, 49, 50, 72, 73
    A(f'''
L_C:
    s_getpc_b64 s[4:5]
L_pc:
    s_lshl_b32 s47, s43, 2
    s_add_u32 s47, s47, s44
    s_mul_i32 s47, s47, 192
    s_sub_u32 s4, s4, L_pc-{NAME}_kernel
    s_subb_u32 s5, s5, 0
    s_min_u32 s47, s47, L_code_end-{NAME}_kernel-4
    s_load_dword s6, s[4:5], s47
    s_add_u32 s47, s47, 64
    s_min_u32 s47, s47, L_code_end-{NAME}_kernel-4
    s_load_dword s7, s[4:5], s47
    s_add_u32 s47, s47, 64
    s_min_u32 s47, s47, L_code_end-{NAME}_kernel-4
    s_load_dword s48, s[4:5], s47
    s_lshl_b32 s61, s2, 7
    s_add_u32 s61, s61, {hx(FL)}
    s_lshl_b32 {s(sF1)}, s44, 2
    s_add_u32 {s(sF1)}, {s(sF1)}, s61
    s_add_u32 {s(sF3)}, {s(sF1)}, 16
    v_mov_b64 v[64:65], 0
    v_mov_b64 v[66:67], 0
    ''')
    A(patterns)
    A(f'''
    s_waitcnt lgkmcnt(0)
    s_or_b32 s47, s44, s2
    s_cbranch_scc1 LC_nonon
    s_load_dwordx2 {s(sDBG,2)}, s[0:1], 64
    s_mov_b32 s47, {hx(NW)}
    buffer_load_dword v8, off, {s(sWS,4)}, s47 sc1
    s_mov_b32 {s(sDBG+2)}, 256
    s_mov_b32 {s(sDBG+3)}, 0x20000
    s_mov_b32 s61, 1664525
    v_mov_b32 v9, 1
    s_waitcnt vmcnt(0) lgkmcnt(0)
    v_mul_lo_u32 v8, v8, s61
    v_add_u32 v8, 1013904223, v8
    s_mov_b64 exec, 1
    buffer_store_dwordx2 v[8:9], off, {s(sDBG,4)}, 0 sc1
    buffer_store_dword v8, off, {s(sWS,4)}, s47 sc1
    s_mov_b64 exec, -1
LC_nonon:
    s_lshl_b32 s47, s46, 9
    s_add_u32 s47, s47, {L_X}
    v_add_u32 v4, s47, v4
    v_mov_b32 v1, v4
    s_mov_b32 {s(sDW)}, {2*WST}
    s_mov_b32 {s(sXs)}, 0
    s_mov_b32 {s(sIt)}, 0
    ''')
    for T in range(2):
        for i in range(5): A(mfma(acc(T, i), 64, 64, None))
    def reads(f, st, ks, ksx):
        r = []
        for T in range(2):
            r.append(f'ds_read_b128 {v(Xf(f,T),4)}, v1 offset:{T*128+ksx*32}')
        for rd in range(2):
            r.append(f'ds_read_b64_tr_b16 {v(Wf(f,0)+2*rd,2)}, v3 offset:{st*WST+(4*ks+rd)*128}')
        for u in range(4):
            for rd in range(2):
                r.append(f'ds_read_b64_tr_b16 {v(Wf(f,1+u)+2*rd,2)}, v2 offset:{st*WST+(4*ks+rd)*128+u*32}')
        return r
    stamp(A, 1)
    A('s_barrier')
    stamp(A, 2)
    for r in reads(0, 0, 0, 0): A(r)
    A('LC_loop:')
    for q in range(4):
        f = q & 1
        nq = (q + 1) & 3
        rr = reads(f ^ 1, nq >> 1, nq & 1, nq)
        A('s_waitcnt lgkmcnt(0)')
        if q & 1: A('s_barrier')
        if q == 3:
            A(f'''
            v_add_u32 v2, {s(sDW)}, v2
            v_add_u32 v3, {s(sDW)}, v3
            s_add_u32 {s(sXs)}, {s(sXs)}, {XST}
            s_cmp_ge_u32 {s(sXs)}, {3*XST}
            s_cselect_b32 {s(sXs)}, 0, {s(sXs)}
            s_sub_u32 {s(sDW)}, 0, {s(sDW)}
            v_add_u32 v1, {s(sXs)}, v4
            ''')
        ms = [mfma(acc(T, i), Wf(f, i), Xf(f, T), acc(T, i)) for i in range(5) for T in range(2)]
        k = 0
        for m in range(10):
            A(ms[m])
            for _ in range(2 if m < 6 else 0):
                A(rr[k]); k += 1
    if STAMP:
        A(f's_memtime s[78:79]\ns_add_u32 m0, {s(sIt)}, 16\ns_waitcnt lgkmcnt(0)\nv_writelane_b32 v95, s78, m0')
    A(f'''
    s_add_u32 {s(sIt)}, {s(sIt)}, 1
    s_cmp_lt_u32 {s(sIt)}, 8
    s_cbranch_scc1 LC_loop
    s_mul_i32 s47, s45, {5*256}
    s_add_u32 s47, s47, {L_CS}
    v_lshl_add_u32 v2, v0, 2, s47
    s_lshl_b32 s47, s46, 9
    s_add_u32 s47, s47, {L_RS}
    v_and_b32 v3, 31, v0
    v_lshl_add_u32 v3, v3, 3, s47
    v_mov_b32 v4, {L_NON}
    ''')
    sSz, sHo, sSc = 51, 56, 58
    A(f'''
    s_lshl_b32 s53, {s(sRB)}, 2
    s_lshl_b32 s47, s46, 1
    s_add_u32 s53, s53, s47
    s_and_b32 s47, {s(sCG)}, 7
    s_lshl_b32 s47, s47, 2
    s_lshl_b32 s61, s45, 1
    s_add_u32 s47, s47, s61
    s_lshl_b32 s47, s47, 6
    s_add_u32 s47, s47, s53
    s_cmp_lt_u32 {s(sCG)}, 8
    s_cselect_b32 {s(sSz)}, 10, 11
    s_cselect_b32 s61, {hx(QF)}, {hx(KV)}
    s_cselect_b32 {s(sSc)}, {hx(f2u(0.25*LOG2E))}, 1.0
    s_lshl_b32 s47, s47, {s(sSz)}
    s_add_u32 s62, s47, s61
    s_lshl_b32 s47, 1, {s(sSz)}
    s_add_u32 s64, s62, s47
    s_lshl_b32 s47, 64, {s(sSz)}
    s_add_u32 s63, s62, s47
    s_add_u32 s65, s64, s47
    s_mul_i32 s47, s53, 112
    s_and_b32 s61, s3, 3
    s_mul_i32 s61, s61, 28
    s_add_u32 s47, s47, s61
    s_lshl_b32 s61, s71, 3
    s_add_u32 s47, s47, s61
    s_lshl_b32 s61, s45, 2
    s_add_u32 s47, s47, s61
    s_lshl_b32 s47, s47, 10
    s_add_u32 {s(sHo)}, s47, {hx(HF)}
    s_add_u32 {s(sHo+1)}, {s(sHo)}, {112*1024}
    v_lshlrev_b32 v1, 4, v0
    s_waitcnt lgkmcnt(0)
    ds_read_b64 v[68:69], v3
    ds_read_b64 v[70:71], v3 offset:256
    ds_read_b32 v94, v4
    ''')
    for i in range(5): A(f'ds_read_b32 v{Wf(0,i)}, v2 offset:{i*256}')
    for i in range(5): A(f'v_mov_b32 v{Wf(0,i)+1}, 0\nv_mov_b64 {v(Wf(0,i)+2,2)}, 0')
    K0 = -2.0 * math.sqrt(2.0 / math.pi) * LOG2E
    K1c = K0 * 0.044715
    A('s_waitcnt lgkmcnt(0)')
    for T in range(2):
        A(f'''
        v_mov_b32 v{Xf(0,T)}, v{68+2*T}
        v_mov_b32 v{Xf(0,T)+1}, 0
        v_mov_b64 {v(Xf(0,T)+2,2)}, 0
        ''')
    stamp(A, 3)
    A('s_nop 0')
    for i in range(5):
        for T in range(2):
            A(mfma(acc(T, i), Wf(0, i), Xf(0, T), acc(T, i)))
    for T in range(2):
        b = 72 + 8 * T
        A(f'''
        v_rcp_f32 v{b+4}, v{69+2*T}
        v_mul_f32 v{b+2}, v{69+2*T}, v{69+2*T}
        v_mul_f32 v{b+1}, {hx(f2u(K0))}, v{b+4}
        v_mul_f32 v{b+3}, {s(sSc)}, v{b+4}
        v_mul_f32 v{b}, v{b+4}, v{b+4}
        v_mul_f32 v{b}, v{b}, v{b+4}
        v_mul_f32 v{b}, {hx(f2u(K1c))}, v{b}
        ''')
    for T in range(2):
        b = 72 + 8 * T
        a = acc(T, 0)
        for p in range(8):
            A(f'v_pk_mul_f32 {v(a+2*p,2)}, {v(a+2*p,2)}, {v(b+2,2)} op_sel:[0,1] op_sel_hi:[1,1]')
        for p in range(8):
            A(f'v_cvt_pk_bf16_f32 v{40+8*T+p}, v{a+2*p}, v{a+2*p+1}')
        A(f'buffer_store_dwordx4 {v(40+8*T,4)}, v1, {s(sWS,4)}, s{62+2*T} offen sc1')
        A(f'buffer_store_dwordx4 {v(44+8*T,4)}, v1, {s(sWS,4)}, s{63+2*T} offen sc1')
    A(f'''
    s_add_u32 s47, s71, s45
    s_cmp_eq_u32 s47, 4
    s_cbranch_scc1 LC_vpath
    ''')
    n = 0
    HP = lambda T, u: (176 if T == 0 else 144) + 4 * u
    for T in range(2):
        b = 72 + 8 * T
        for u in range(4):
            a = acc(T, 1 + u)
            t = 8 + 16 * (n & 1)
            for p in range(4): A(f'v_pk_mul_f32 {v(t+2*p,2)}, {v(a+2*p,2)}, {v(a+2*p,2)}')
            for p in range(4): A(f'v_pk_fma_f32 {v(t+2*p,2)}, {v(t+2*p,2)}, {v(b,2)}, {v(b,2)} op_sel:[0,0,1] op_sel_hi:[1,0,1]')
            for p in range(4): A(f'v_pk_mul_f32 {v(t+2*p,2)}, {v(t+2*p,2)}, {v(a+2*p,2)}')
            for j in range(8): A(f'v_exp_f32 v{t+j}, v{t+j}')
            for p in range(4): A(f'v_pk_mul_f32 {v(a+2*p,2)}, {v(a+2*p,2)}, {v(a+8+2*p,2)}')
            for p in range(4): A(f'v_pk_fma_f32 {v(t+2*p,2)}, {v(t+2*p,2)}, {v(b+2,2)}, {v(b+2,2)} op_sel:[0,0,0] op_sel_hi:[1,0,0]')
            for j in range(8): A(f'v_rcp_f32 v{t+j}, v{t+j}')
            for p in range(4): A(f'v_pk_mul_f32 {v(a+2*p,2)}, {v(a+2*p,2)}, {v(t+2*p,2)}')
            for p in range(4): A(f'v_cvt_pk_bf16_f32 v{HP(T,u)+p}, v{a+2*p}, v{a+2*p+1}')
            if n == NFL:
                A('s_waitcnt vmcnt(0)')
                stamp(A, 4)
                flag_store(A, s(sF1), 94)
            n += 1
    QA, QB, CA, CB, OA, OB, SA, SB, PA, PB = 8, 12, 16, 32, 48, 64, 80, 96, 112, 120
    KF = lambda b: 128 + 4 * b
    VF = lambda j: 136 + 4 * j
    A('LC_att:')
    if STAMP: A('v_mov_b32 v200, v95')
    A('v_mov_b32 v201, v94')
    stamp(A, 5)
    A(f'''
    v_and_b32 v5, 15, v0
    v_and_b32 v6, 11, v0
    v_cmp_eq_u32 vcc, 0, v6
    v_mov_b32 v6, {hx(ONES)}
    v_lshlrev_b32 v5, 4, v5
    v_cndmask_b32 v{VF(0)}, 0, v6, vcc
    s_lshl_b32 s47, s44, 12
    s_add_u32 s47, s47, {L_ONES}
    v_mov_b32 v{VF(0)+1}, v{VF(0)}
    v_mov_b64 {v(VF(0)+2,2)}, {v(VF(0),2)}
    v_and_b32 v7, 0x1ff, v1
    v_add_u32 v7, s47, v7
    ds_write_b128 v7, {v(VF(0),4)}
    ds_write_b128 v7, {v(VF(0),4)} offset:2048
    v_add_u32 v7, s47, v1
    v_and_b32 v6, 16, v0
    v_cmp_eq_u32 vcc, 0, v6
    v_add_u32 v5, {L_ONES-1024}, v5
    v_mov_b32 v6, {NT*2048}
    v_mov_b32 v2, v1
    v_cndmask_b32 v3, v5, v1, vcc
    v_cndmask_b32 v4, 0, v6, vcc
    s_mov_b32 {s(sIt)}, 0
    s_mov_b32 s51, 1
    ''')
    for j in range(0, 4, 2): A(f'v_mov_b64 {v(VF(1)+j,2)}, 0')
    for j in range(0, 8, 2): A(f'v_mov_b64 {v(PB+j,2)}, 0')
    A('s_waitcnt lgkmcnt(0)')
    stamp(A, 6)
    A('s_barrier')
    stamp(A, 7)
    A(f'''
    ds_read_b128 {v(QA,4)}, v7 offset:512
    ds_read_b128 {v(KF(0),4)}, v1
    ds_read_b128 {v(QB,4)}, v7 offset:2560
    ds_read_b128 {v(KF(1),4)}, v1 offset:2048
    s_waitcnt lgkmcnt(2)
    ''')
    A(mfma(SA, KF(0), QA, None))
    A('s_waitcnt lgkmcnt(0)')
    A(mfma(OA, KF(1), QA, None))
    A(mfma(SB, KF(0), QB, None))
    A(mfma(OB, KF(1), QB, None))
    for T in range(2):
        for u in range(4):
            A(f'buffer_store_dwordx4 {v(HP(T,u),4)}, v1, {s(sWS,4)}, {s(sHo+T)} offen offset:{u*1024} sc1')
    for (S, O, C) in ((SA, OA, CA), (SB, OB, CB)):
        A(f'v_max3_f32 v{C}, v{S}, v{S+1}, v{S+2}')
        for j in range(3, 15, 2): A(f'v_max3_f32 v{C}, v{C}, v{S+j}, v{S+j+1}')
        A(f'v_max3_f32 v{C}, v{C}, v{S+15}, v{O}')
        for j in range(1, 15, 2): A(f'v_max3_f32 v{C}, v{C}, v{O+j}, v{O+j+1}')
        A(f'v_max_f32 v{C}, v{C}, v{O+15}')
        A(f'v_mov_b32 v{C+1}, v{C}')
        A(f'v_mov_b64 {v(O,2)}, 0\nv_mov_b64 {v(O+2,2)}, 0')
        A(f'v_permlane32_swap_b32 v{C}, v{C+1}')
        A(f'v_max_f32 v{C}, v{C}, v{C+1}')
        A(f'v_sub_f32 v{C}, {hx(f2u(-BIAS))}, v{C}')
        A(f'v_mov_b32 v{C+1}, v{C}')
        for j in range(2, 16, 2): A(f'v_mov_b64 {v(C+j,2)}, {v(C,2)}')
        for j in range(4, 16, 2): A(f'v_mov_b64 {v(O+j,2)}, 0')
        if S == SA: A(mfma(SA, KF(0), QA, CA))
    stamp(A, 8)
    E = lambda S, j: A(f'v_exp_f32 v{S+j}, v{S+j}')
    Cv = lambda S, P, p: A(f'v_cvt_pk_bf16_f32 v{P+p}, v{S+2*p}, v{S+2*p+1}')
    def phase(S, P, m1, m2, m3):
        A(m1)
        for j in range(5): E(S, j)
        Cv(S, P, 0); Cv(S, P, 1)
        A(m2)
        E(S, 5); E(S, 6); Cv(S, P, 2); E(S, 7); E(S, 8); Cv(S, P, 3); E(S, 9); E(S, 10); Cv(S, P, 4)
        A(m3)
        E(S, 11); E(S, 12); Cv(S, P, 5); E(S, 13); E(S, 14); E(S, 15); Cv(S, P, 6); Cv(S, P, 7)
    A('s_nop 0\n.p2align 3\nLA_loop:')
    for t in range(NT):
        kb = t & 1
        o = t * 2048
        phase(SA, PA,
              mfma(SB, KF(kb), QB, CB) + f'\nds_read_b128 {v(KF(kb),4)}, v2 offset:{o+4096}',
              mfma(OB, VF(0), PB, OB) + f'\nds_read_b128 {v(VF(0),4)}, v3 offset:{o+1024}',
              mfma(OB, VF(1), PB + 4, OB) + f'\nds_read_b128 {v(VF(1),4)}, v3 offset:{o+1280}')
        tail = ''
        if t == NT - 2: tail = f'\ns_add_u32 {s(sIt)}, {s(sIt)}, 1'
        if t == NT - 1: tail = f'\ns_cmp_lt_u32 {s(sIt)}, s51\nv_add_u32 v2, {NT*2048}, v2\nv_add_u32 v3, v4, v3'
        phase(SB, PB,
              mfma(SA, KF(kb ^ 1), QA, CA) + '\ns_waitcnt lgkmcnt(1)',
              mfma(OA, VF(0), PA, OA) + '\ns_waitcnt lgkmcnt(0)',
              mfma(OA, VF(1), PA + 4, OA) + tail)
    A(f'''
    s_cbranch_scc1 LA_loop
    s_cmp_eq_u32 s51, {64//NT}
    s_cbranch_scc1 LA_fini
    s_cmp_eq_u32 s51, 1
    s_cselect_b32 s51, 2, {64//NT}
    ''')
    A('s_waitcnt vmcnt(0)')
    stamp(A, 9)
    A('s_barrier')
    stamp(A, 10)
    A('s_branch LA_loop\nLA_fini:')
    A(mfma(OB, VF(0), PB, OB)); A(mfma(OB, VF(1), PB + 4, OB))
    stamp(A, 11)
    A(f'''
    s_lshl_b32 s52, {s(sQB)}, 3
    s_lshl_b32 s47, s44, 1
    s_add_u32 s52, s52, s47
    s_lshl_b32 s52, s52, 5
    s_add_u32 s52, s52, {s(sHead)}
    s_lshl_b32 s52, s52, 10
    s_add_u32 s52, s52, {hx(OF)}
    s_mov_b32 s54, {hx(f2u(2.0**126))}
    s_mov_b32 s55, {hx(f2u(2.0**-112))}
    s_mov_b32 s56, {hx(f2u(2.0**120))}
    s_mov_b32 s57, 0
LA_fin:
    ''')
    A(f'v_add_f32 v{SA}, |v{OA}|, |v{OA+1}|')
    for j in range(2, 8): A(f'v_add_f32 v{SA}, v{SA}, |v{OA+j}|')
    A(f'''
    v_cmp_gt_f32 vcc, s54, v{SA}
    v_cmp_lt_f32 s[58:59], s55, v{SA}
    v_cmp_gt_f32 s[60:61], s56, v{OA+8}
    s_and_b64 vcc, vcc, s[58:59]
    s_and_b64 vcc, vcc, s[60:61]
    s_cmp_eq_u64 vcc, -1
    s_cbranch_scc0 LA_fallback
LA_norm:
    v_rcp_f32 v{OA+8}, v{OA+8}
    s_nop 0
    ''')
    for j in range(8): A(f'v_mul_f32 v{OA+j}, v{OA+j}, v{OA+8}')
    for p in range(4): A(f'v_cvt_pk_bf16_f32 v{PA+p}, v{OA+2*p}, v{OA+2*p+1}')
    A(f'''
    buffer_store_dwordx4 {v(PA,4)}, v1, {s(sWS,4)}, s52 offen sc1
    s_cmp_eq_u32 s57, 1
    s_cbranch_scc1 LA_done
    s_mov_b32 s57, 1
    s_add_u32 s52, s52, 0x8000
    ''')
    for j in range(0, 10, 2): A(f'v_mov_b64 {v(OA+j,2)}, {v(OB+j,2)}')
    for j in range(0, 4, 2): A(f'v_mov_b64 {v(QA+j,2)}, {v(QB+j,2)}')
    A('s_branch LA_fin\nLA_done:\ns_waitcnt vmcnt(0)')
    stamp(A, 12)
    flag_store(A, s(sF3), 201)
    stamp_end(A, sWS, sW, tr=200)
    A('s_endpgm')
    A(f'''
LA_fallback:
    v_mov_b32 v{CA}, 0xff800000
    v_mov_b32 v2, v1
    s_mov_b32 {s(sIt)}, 0
LA_fb1:
    ds_read_b128 {v(KF(0),4)}, v2
    v_add_u32 v2, 0x800, v2
    s_waitcnt lgkmcnt(0)
    ''')
    A(mfma(SA, KF(0), QA, None))
    A('s_nop 11')
    for j in range(0, 16, 2): A(f'v_max3_f32 v{CA}, v{CA}, v{SA+j}, v{SA+j+1}')
    A(f'''
    s_add_u32 {s(sIt)}, {s(sIt)}, 1
    s_cmp_lt_u32 {s(sIt)}, 64
    s_cbranch_scc1 LA_fb1
    v_mov_b32 v{CA+1}, v{CA}
    v_cmp_eq_u32 vcc, 0, v4
    v_lshrrev_b32 v6, {NT.bit_length()-1}, v4
    v_permlane32_swap_b32 v{CA}, v{CA+1}
    v_max_f32 v{CA}, v{CA}, v{CA+1}
    v_sub_f32 v{CA}, 0, v{CA}
    v_cndmask_b32 v3, v1, v3, vcc
    ''')
    for j in range(1, 16): A(f'v_mov_b32 v{CA+j}, v{CA}')
    for j in range(0, 16, 2): A(f'v_mov_b64 {v(OA+j,2)}, 0')
    A(f'''
    v_mov_b32 v2, v1
    s_mov_b32 {s(sIt)}, 0
LA_fb2:
    ds_read_b128 {v(KF(0),4)}, v2
    ds_read_b128 {v(VF(0),4)}, v3 offset:1024
    ds_read_b128 {v(VF(1),4)}, v3 offset:1280
    v_add_u32 v2, 0x800, v2
    v_add_u32 v3, v6, v3
    s_waitcnt lgkmcnt(0)
    ''')
    A(mfma(SA, KF(0), QA, CA))
    A('s_nop 11')
    for j in range(16): E(SA, j)
    A('s_nop 0')
    for p in range(8): Cv(SA, PA, p)
    A('s_nop 1')
    A(mfma(OA, VF(0), PA, OA)); A(mfma(OA, VF(1), PA + 4, OA))
    A(f'''
    s_add_u32 {s(sIt)}, {s(sIt)}, 1
    s_cmp_lt_u32 {s(sIt)}, 64
    s_cbranch_scc1 LA_fb2
    s_nop 11
    s_branch LA_norm
    ''')
    A(f'''
LC_vpath:
    s_lshl_b32 s47, s44, 14
    s_add_u32 s47, s47, {L_VT}
    v_and_b32 v2, 31, v0
    v_lshlrev_b32 v2, 5, v2
    v_lshl_add_u32 v2, v7, 3, v2
    v_add_u32 v2, s47, v2
    v_lshlrev_b32 v3, 2, v5
    v_add_u32 v3, v3, v7
    v_lshl_add_u32 v3, v3, 2, v6
    v_lshlrev_b32 v3, 5, v3
    v_and_b32 v4, 3, v0
    v_lshl_add_u32 v3, v4, 3, v3
    v_add_u32 v3, s47, v3
    s_and_b32 s47, s3, 3
    s_lshl_b32 s47, s47, 9
    s_add_u32 s47, s47, s53
    s_lshl_b32 s47, s47, 11
    s_add_u32 s62, s47, {hx(KV)}
    s_mov_b32 {s(sHo)}, 0x2000000
    s_mov_b32 {s(sHo+1)}, 0x2000000
    ''')
    def vstore(T, u):
        a = acc(T, 1 + u)
        A(f's_add_u32 s47, s62, {u*64*2048}')
        A(f's_add_u32 s61, s62, {(u+4)*64*2048}')
        A(f'buffer_store_dwordx4 {v(a+8,4)}, v1, {s(sWS,4)}, s47 offen offset:{1024+2048*T} sc1')
        A(f'buffer_store_dwordx4 {v(a+12,4)}, v1, {s(sWS,4)}, s61 offen offset:{1024+2048*T} sc1')
    prev = None
    for T in range(2):
        b = 72 + 8 * T
        for u in range(4):
            a = acc(T, 1 + u)
            for p in range(8):
                A(f'v_pk_mul_f32 {v(a+2*p,2)}, {v(a+2*p,2)}, {v(b+4,2)} op_sel_hi:[1,0]')
            for p in range(8):
                A(f'v_cvt_pk_bf16_f32 v{a+p}, v{a+2*p}, v{a+2*p+1}')
            if prev is not None:
                A('s_waitcnt lgkmcnt(0)')
                vstore(*prev)
            for hd in range(2):
                o = ((T * 4 + u) * 2 + hd) * 1024
                A(f'ds_write_b64 v2, {v(a+4*hd,2)} offset:{o}')
                A(f'ds_write_b64 v2, {v(a+4*hd+2,2)} offset:{o+16}')
            for hd in range(2):
                o = ((T * 4 + u) * 2 + hd) * 1024
                A(f'ds_read_b64_tr_b16 {v(a+8+4*hd,2)}, v3 offset:{o}')
                A(f'ds_read_b64_tr_b16 {v(a+8+4*hd+2,2)}, v3 offset:{o+256}')
            prev = (T, u)
    A('s_waitcnt lgkmcnt(0)')
    vstore(*prev)
    A('s_waitcnt vmcnt(0)')
    stamp(A, 4)
    flag_store(A, s(sF1), 94)
    A('s_branch LC_att')

def main(out):
    A = Asm()
    top = f'''; out = x + (MHA(LN x) @ wo) * silu(GEGLU-FFN(LN x)); one persistent launch, 256 workgroups (generated by gen/gen2.py)
; @launch grid=(256,1,1) block=(512,1,1) lds={LDS_BYTES}
.amdgcn_target "amdgcn-amd-amdhsa--gfx950"
.text
'''
    gen(A)
    tail = f'''.section .rodata,"a"
.p2align 6
.amdhsa_kernel {NAME}_kernel
  .amdhsa_next_free_vgpr 256
  .amdhsa_next_free_sgpr 100
  .amdhsa_accum_offset 256
  .amdhsa_group_segment_fixed_size 0
  .amdhsa_kernarg_size 80
  .amdhsa_user_sgpr_count 2
  .amdhsa_user_sgpr_kernarg_segment_ptr 1
  .amdhsa_system_sgpr_workgroup_id_x 1
.end_amdhsa_kernel
'''
    open(out, 'w').write(top + A.text() + tail)

if __name__ == '__main__':
    main(sys.argv[1] if len(sys.argv) > 1 else 'cdna_kernels/%s.s' % NAME)
```

```python
import struct, sys, math, os

NAME = 'recurrent_scan__mha_block__glu_gated_geglu__prompt'
def f2u(x): return struct.unpack('<I', struct.pack('<f', x))[0]
def hx(x): return '0x%x' % (x & 0xffffffff)
class Asm:
    def __init__(self): self.l = []
    def __call__(self, s):
        for line in s.split('\n'):
            line = line.strip()
            if not line: continue
            self.l.append(line if line.endswith(':') or line.startswith('.') else '    ' + line)
    def text(self): return '\n'.join(self.l) + '\n'
def v(a, n=1): return 'v%d' % a if n == 1 else 'v[%d:%d]' % (a, a + n - 1)
def s(a, n=1): return 's%d' % a if n == 1 else 's[%d:%d]' % (a, a + n - 1)
def mfma(d, a, b, c):
    return 'v_mfma_f32_32x32x16_bf16 %s, %s, %s, %s' % (v(d, 16), v(a, 4), v(b, 4), '0' if c is None else v(c, 16))

QF  = 0x000000
KV  = 0x200000
HF  = 0x600000
OF  = 0xD00000
WDF = 0xF00000
WOF = 0x1100000
CSP = 0x1200000
RSP = 0x1280000
FL  = 0x13C0000
FP  = 0x13E0000
FH  = 0x13C8000
NW  = 0x13D0000
STB = 0x1400000
WS_BYTES = 0x1500000
LOG2E = 1.4426950408889634
ONES = 0x3f803f80
SPIN = 1 << 20

LIGHT = os.environ.get('STAMP') == '2'
STAMP = os.environ.get('STAMP') == '1'
EXP = set(os.environ.get('EXP', '').split(','))
BIAS = float(os.environ.get('BIAS', '96'))
NFL = int(os.environ.get('NFL', '4'))

TM = 's_memrealtime' if os.environ.get('RT') else 's_memtime'
_seen = set()
def stamp(A, idx, real=False):
    if not STAMP and not (LIGHT and idx in (0, 13, 14, 15)): return
    if 'e1' in EXP and A.l and any('L_C:' == x for x in A.l):
        if idx in _seen: return
        _seen.add(idx)
    A('%s s[78:79]\ns_waitcnt lgkmcnt(0)\ns_mov_b32 s%d, s78' % ('s_memrealtime' if real or os.environ.get('RT') else 's_memtime', 80 + idx))
def stamp_begin(A):
    if not STAMP and not LIGHT: return
    for i in range(16): A('s_mov_b32 s%d, 0' % (80 + i))
    stamp(A, 14, True); stamp(A, 0)
def stamp_end(A, sWS, sW, vt=3, tr=None):
    if not STAMP and not (LIGHT and tr is None): return
    A('s_waitcnt vmcnt(0)')
    stamp(A, 13); stamp(A, 15, True)
    A('s_nop 4')
    if tr is not None: A('v_mov_b32 v%d, v%d' % (vt, tr))
    for i in range(16): A('v_writelane_b32 v%d, s%d, %d' % (vt, 80 + i, i))
    A('''s_lshl_b32 s78, s2, 3
    s_add_u32 s78, s78, s%d
    s_lshl_b32 s78, s78, 7
    s_add_u32 s78, s78, %s
    v_lshlrev_b32 v%d, 2, v0
    s_mov_b64 exec, 0xffffffff
    buffer_store_dword v%d, v%d, s[%d:%d], s78 offen''' % (sW, hx(STB), vt + 1, vt, vt + 1, sWS, sWS + 3))

PAN, APAN = 4224, 4352
WST = 2 * PAN + APAN
XST = 16 * 1040
L_X = 6 * WST
L_CS = L_X + 4 * XST
L_RS = L_CS + 10 * 256
L_ONES = 131072
L_EX = L_ONES + 7 * 2048 + 1536
assert L_RS + 1024 <= L_EX
L_PP = L_EX
L_H = 98304
L_FLAG = L_EX + 16384
L_NON = L_FLAG + 4
LDS_BYTES = L_FLAG + 64
assert LDS_BYTES <= 163840
NT = 8
F1A, F1B = [int(t) for t in os.environ.get('F1IT', '2,5').split(',')]
NK1 = int(os.environ.get('NK1', '13'))

sX, sA, sH0, sH1, sWS, sPK, sDBG = 16, 20, 24, 28, 32, 36, 12
sP0, sP1 = 36, 12
sRB, sCG, sW, sHead, sQB = 40, 41, 42, 74, 75

def flag_store(A, soff, vt):
    A(f'''
    s_mov_b64 exec, 1
    buffer_store_dword v{vt}, off, {s(sWS,4)}, {soff} sc1
    s_mov_b64 exec, -1
    ''')

def gen(A):
    K = NAME + '_kernel'
    A(f'.globl {K}\n.p2align 8\n.type {K},@function\n{K}:')
    A('''
    s_cmp_ge_u32 s2, 256
    s_cbranch_scc1 L_end
    ''')
    stamp_begin(A)
    A(f'''
    s_load_dwordx2 {s(sX,2)}, s[0:1], 0
    s_load_dwordx2 {s(sA,2)}, s[0:1], 8
    s_load_dwordx2 {s(sH0,2)}, s[0:1], 32
    s_load_dwordx2 {s(sH1,2)}, s[0:1], 40
    s_load_dwordx2 {s(sWS,2)}, s[0:1], 72
    v_lshrrev_b32 v1, 6, v0
    v_and_b32 v0, 63, v0
    s_and_b32 s3, s2, 7
    v_readfirstlane_b32 {s(sW)}, v1
    s_lshr_b32 s43, s2, 3
    s_lshr_b32 {s(sRB)}, s3, 2
    s_lshl_b32 {s(sRB)}, {s(sRB)}, 3
    s_and_b32 s70, s43, 7
    s_add_u32 {s(sRB)}, {s(sRB)}, s70
    s_and_b32 {s(sCG)}, s3, 3
    s_lshl_b32 {s(sCG)}, {s(sCG)}, 2
    s_lshr_b32 s71, s43, 3
    s_add_u32 {s(sCG)}, {s(sCG)}, s71
    s_and_b32 s44, {s(sW)}, 3
    s_lshr_b32 s45, s44, 1
    s_and_b32 s46, s44, 1
    s_mov_b32 {s(sWS+2)}, {hx(WS_BYTES)}
    s_mov_b32 {s(sWS+3)}, 0x20000
    s_lshl_b32 {s(sHead)}, s3, 2
    s_add_u32 {s(sHead)}, {s(sHead)}, s71
    s_mov_b32 {s(sQB)}, s70
    ''')
    patterns = f'''
    v_bfe_u32 v5, v0, 4, 1
    v_bfe_u32 v6, v0, 2, 2
    v_lshrrev_b32 v7, 5, v0
    v_and_b32 v1, 3, v0
    v_lshlrev_b32 v1, 3, v1
    v_lshl_add_u32 v1, v7, 8, v1
    v_mul_u32_u24 v2, {PAN}, v5
    v_mul_u32_u24 v8, 1056, v6
    v_add3_u32 v2, v2, v8, v1
    v_mul_u32_u24 v8, 1088, v6
    v_lshl_add_u32 v3, v5, 5, v8
    v_add_u32 v3, v3, v1
    v_and_b32 v8, 15, v0
    v_mul_u32_u24 v8, 1040, v8
    v_lshl_add_u32 v4, v5, 8, v8
    v_lshl_add_u32 v4, v7, 4, v4
    s_lshl_b32 s47, s45, 6
    v_add_u32 v2, s47, v2
    s_add_u32 s47, s47, {2*PAN}
    v_add_u32 v3, s47, v3
    '''
    A(f'''
    s_cmp_lt_u32 {s(sW)}, 4
    s_cbranch_scc1 L_C
    ''')
    gen_H(A, patterns)
    gen_C(A, patterns)
    A('L_end:\ns_endpgm\nL_code_end:')

def gen_H(A, patterns):
    sStrH, sColH = 48, 49
    sRowA, sRowH, sMH, sMA, sMX, sXo, sRot, sG = 50, 51, 52, 53, 54, 55, 59, 60
    ROTM = int(os.environ.get('ROTM', '7'))
    packsetup = f"""
    s_lshl_b32 s47, {s(sCG)}, 4
    s_add_u32 s47, s47, {s(sRB)}
    s_lshr_b32 s66, s47, 1
    s_and_b32 s67, s47, 1
    s_sub_u32 s47, s47, 224
    s_cmp_lt_u32 {s(sCG)}, 14
    s_cselect_b64 {s(sPK,2)}, s[4:5], s[6:7]
    s_mov_b32 {s(sPK+2)}, 524288
    s_cmov_b32 {s(sPK+2)}, 1835008
    s_mov_b32 {s(sPK+3)}, 0x20000
    s_cselect_b32 s66, s66, s47
    s_cselect_b32 s67, s67, 0
    s_movk_i32 s64, 512
    s_cmov_b32 s64, 0x2000000
    s_movk_i32 s65, 32
    s_cmovk_i32 s65, 112
    s_mov_b32 s63, {hx(WOF)}
    s_cmov_b32 s63, {hx(WDF)}
    s_lshl_b32 s72, s66, 14
    s_lshl_b32 s61, s67, 9
    s_add_u32 s72, s72, s61
    s_lshl_b32 s61, s46, 8
    s_add_u32 s72, s72, s61
    s_lshl_b32 s68, s46, 13
    s_add_u32 s68, s68, {L_PP}
    v_lshrrev_b32 v8, 3, v0
    v_and_b32 v9, 7, v0
    v_lshlrev_b32 v9, 4, v9
    v_lshl_add_u32 v14, v8, 10, v9
    """
    sStr, sRowP, sRowA, sRowB, sMA, sMB, sMX, sXo, sRot, sGA, sGB, sJ = 48, 49, 50, 51, 52, 53, 54, 55, 59, 60, 56, 57
    A(f"""
    s_mov_b32 {s(sX+2)}, 2097152
    s_mov_b32 {s(sX+3)}, 0x20000
    s_mov_b32 {s(sA+2)}, 1572864
    s_mov_b32 {s(sA+3)}, 0x20000
    s_cmp_ge_u32 {s(sW)}, 6
    s_cbranch_scc1 L_M
    v_lshrrev_b32 v8, 3, v0
    v_and_b32 v9, 7, v0
    v_lshlrev_b32 v9, 4, v9
    v_and_b32 v13, 4, v8
    v_bfe_u32 v14, v8, 1, 1
    v_and_b32 v15, 1, v8
    v_lshl_add_u32 v14, v15, 1, v14
    v_add_u32 v13, v13, v14
    v_lshl_add_u32 v13, v13, 14, v9
    s_lshl_b32 s47, {s(sRB)}, 17
    s_lshl_b32 s61, s46, 12
    s_add_u32 s47, s47, s61
    v_add_u32 v13, s47, v13
    s_lshl_b32 s62, s71, 1
    s_add_u32 {s(sRot)}, s70, s62
    s_and_b32 s47, s3, 1
    s_add_u32 {s(sRot)}, {s(sRot)}, s47
    s_and_b32 {s(sRot)}, {s(sRot)}, 7
    s_lshl_b32 {s(sXo)}, {s(sRot)}, 7
    s_lshl_b32 {s(sRot)}, {s(sRot)}, 1
    s_mul_i32 s58, s46, 4160
    s_add_u32 s58, s58, {L_X}
    s_mov_b32 {s(sMX)}, s58
    s_mov_b32 {s(sJ)}, 0
    s_and_b32 s64, s3, 3
    s_mul_i32 s65, s64, 7
    s_add_u32 s65, s65, s62
    s_lshl_b32 s65, s65, 7
    s_add_u32 s66, s65, 128
    s_lshl_b32 s64, s64, 8
    s_add_u32 s64, s64, 2048
    s_cmp_lt_u32 s71, 3
    s_mov_b32 {s(sP0+2)}, 1572864
    s_cmov_b32 {s(sP0+2)}, 1835008
    s_mov_b32 {s(sP1+2)}, {1572864-128}
    s_cmov_b32 {s(sP1+2)}, 1835008
    s_mov_b32 {s(sP0+3)}, 0x20000
    s_mov_b32 {s(sP1+3)}, 0x20000
    s_movk_i32 {s(sStr)}, 3072
    s_cmovk_i32 {s(sStr)}, 3584
    s_cselect_b32 s64, s65, s64
    s_cselect_b32 s65, s66, s65
    s_lshl_b32 s47, s46, 1
    v_lshl_add_u32 v10, v8, 2, s47
    v_mul_u32_u24 v11, 3072, v10
    s_lshl_b32 s47, {s(sCG)}, 7
    v_add3_u32 v11, v11, v9, s47
    v_mul_lo_u32 v18, v10, {s(sStr)}
    v_add3_u32 v18, v18, v9, s64
    v_add_u32 v19, {s(sStr)}, v18
    s_lshl_b32 {s(sStr)}, {s(sStr)}, 5
    s_mul_i32 {s(sRowA)}, {s(sRot)}, {32*3072}
    s_mul_i32 {s(sRowP)}, {s(sRot)}, {s(sStr)}
    s_mul_i32 {s(sMA)}, s46, 2112
    s_lshl_b32 s69, s46, 6
    s_mov_b32 {s(sGA)}, 0
    s_waitcnt lgkmcnt(0)
    """)
    sel = f"""
    s_add_u32 s62, {s(sA)}, 128
    s_addc_u32 s63, {s(sA+1)}, 0
    s_cmp_lt_u32 s71, 3
    s_cselect_b64 {s(sP0,2)}, {s(sH0,2)}, {s(sA,2)}
    s_cselect_b64 {s(sP1,2)}, {s(sH1,2)}, s[62:63]
    """
    setup2 = f"""
    s_mov_b32 {s(sH0+2)}, 1835008
    s_mov_b32 {s(sH1+2)}, 1835008
    s_mov_b32 {s(sH0+3)}, 0x20000
    s_mov_b32 {s(sH1+3)}, 0x20000
    v_mul_u32_u24 v16, 3584, v10
    v_add3_u32 v16, v16, v9, s65
    v_add_u32 v17, 3584, v16
    s_add_u32 s47, {s(sRot)}, 14
    s_and_b32 s47, s47, 15
    s_mul_i32 {s(sRowB)}, s47, {32*3584}
    s_mul_i32 {s(sMB)}, s46, 2112
    s_add_u32 {s(sMB)}, {s(sMB)}, {4*WST}
    s_mov_b32 {s(sGB)}, 0
    """
    ops = []
    def call(tag):
        name = {'X': 'LL_X', 'A': 'LL_A', 'B': 'LL_B', 'p': 'LH_pp'}[tag[0]]
        A(f's_call_b64 s[8:9], {name}')
        ops.extend([tag] * {'LL_X': 4, 'LL_A': 6, 'LL_B': 4, 'LH_pp': 4}[name])
    def bar(*need):
        if need:
            assert all(t in ops for t in need), need
            last = max(i for i, t in enumerate(ops) if t in need)
            if len(ops) - 1 - last < 64: A(f's_waitcnt vmcnt({len(ops) - 1 - last})')
        A('s_barrier')
    def bodyX():
        ld = [(f's_add_u32 m0, {s(sMX)}, {16*i}', f'buffer_load_dwordx4 v13, {s(sX,4)}, {s(sXo)} offen offset:{1024*i} lds') for i in range(4)]
        pre = [f's_add_u32 {s(sJ)}, {s(sJ)}, 1', f's_lshr_b32 s67, {s(sJ)}, 1', 's_sub_u32 s68, 11, s67',
               f's_cmp_lt_u32 {s(sJ)}, 16\ns_cselect_b32 s67, s67, s68']
        post = ['s_and_b32 s68, s67, 3\ns_lshl_b32 s68, s68, 1', f's_and_b32 s62, {s(sJ)}, 1\ns_add_u32 s68, s68, s62',
                f's_mul_i32 s68, s68, {XST//2}\ns_add_u32 {s(sMX)}, s68, s58\ns_lshl_b32 s67, s67, 1',
                f's_add_u32 s67, s67, {s(sRot)}\ns_and_b32 s67, s67, 15\ns_lshl_b32 s67, s67, 6\ns_lshl_b32 s62, s62, 13\ns_add_u32 {s(sXo)}, s67, s62']
        return ld, pre, post
    def bodyA():
        ld = [(f's_add_u32 m0, {s(sMA)}, {hf*PAN+1056*bb}', f'buffer_load_dwordx4 v{18+bb}, {s(sP0 if hf == 0 else sP1,4)}, {s(sRowP)} offen lds')
              for hf in range(2) for bb in range(2)]
        ld += [(f's_add_u32 m0, s61, {2*PAN+(1088-3072)*bb}', f'buffer_load_dwordx4 v11, {s(sA,4)}, {s(sRowA)} offen offset:{3072*bb} lds') for bb in range(2)]
        pre = [f's_add_u32 {s(sGA)}, {s(sGA)}, 1', f's_add_u32 s47, {s(sGA)}, {s(sRot)}', 's_and_b32 s47, s47, 15', f's_add_u32 s61, {s(sMA)}, s69',
               f's_mul_i32 {s(sRowP)}, s47, {s(sStr)}\ns_add_u32 {s(sMA)}, {s(sMA)}, {WST}',
               f's_cmp_ge_u32 {s(sMA)}, {4*WST}\ns_cselect_b32 s63, {4*WST}, 0\ns_sub_u32 {s(sMA)}, {s(sMA)}, s63']
        post = [f's_mul_i32 {s(sRowA)}, s47, {32*3072}']
        return ld, pre, post
    def bodyB():
        ld = [(f's_add_u32 m0, {s(sMB)}, {hf*PAN+1056*bb}', f'buffer_load_dwordx4 v{16+bb}, {s(sH0 if hf == 0 else sH1,4)}, {s(sRowB)} offen lds')
              for hf in range(2) for bb in range(2)]
        pre = [f's_add_u32 {s(sGB)}, {s(sGB)}, 1', f's_xor_b32 s47, {s(sGB)}, 14', f's_add_u32 s47, s47, {s(sRot)}\ns_and_b32 s47, s47, 15',
               f's_add_u32 {s(sMB)}, {s(sMB)}, {WST}\ns_cmp_ge_u32 {s(sMB)}, {6*WST}\ns_cselect_b32 s63, {6*WST}, 0\ns_sub_u32 {s(sMB)}, {s(sMB)}, s63']
        post = [f's_mul_i32 {s(sRowB)}, s47, {32*3584}']
        return ld, pre, post
    def emit(*bodies):
        carry = []
        for ld, pre, post in bodies:
            for i, (m, l) in enumerate(ld):
                A(m); A(pre[i])
                if carry: A(carry.pop(0))
                A(l)
            for t in carry: A(t)
            carry = list(post)
        for t in carry: A(t)
    call('X0'); A(sel); call('X1'); call('A0'); call('A1')
    A('s_branch LL_go\nLL_X:')
    emit(bodyX())
    A('s_setpc_b64 s[8:9]\nLL_A:')
    emit(bodyA())
    A('s_setpc_b64 s[8:9]\nLL_go:')
    A(setup2)
    def need(c):
        n = [f'A{c}' if c < 16 else f'B{c-16}']
        if c % 2 == 0 and c < 16: n += [f'X{c}', f'X{c+1}']
        if c % 2 == 0 and c >= 24: n += [f'X{c-8}', f'X{c-7}']
        if c == 2: n += ['B0', 'B1']
        return n
    def dist(c):
        return len(ops) - 1 - max(i for i, t in enumerate(ops) if t in need(c))
    def loop(label, c0, c1, second, cnt, lim):
        A(f's_waitcnt vmcnt({dist(c0)})\n{label}:\ns_barrier')
        emit(bodyX(), second())
        w = 63
        for c in range(c0, c1 + 1):
            ops.extend([f'X{c+4 if c < 16 else c-2}'] * 4 + ([f'A{c+3}'] * 6 if c < 16 else [f'B{c-11}'] * 4))
            if c < c1: w = min(w, dist(c + 1))
        A(f's_cmp_lt_u32 {cnt}, {lim}\ns_waitcnt vmcnt({w})\ns_cbranch_scc1 {label}')
    sched = {0: 'X2,X3,B0,B1', 1: 'A2,A3,X4,X5,A4', 12: 'A15', 13: 'B2', 14: 'B3', 15: 'B4', 16: 'B5', 17: 'B6', 26: 'B15'}
    if os.environ.get('LS0'): sched[0], sched[1] = os.environ['LS0'].split('/')
    c = 0
    while c < 32:
        if c == 2:
            loop('LL_loopA', 2, 11, bodyA, s(sGA), 15); c = 12; continue
        if c == 18:
            loop('LL_loopB', 18, 25, bodyB, s(sGB), 15); c = 26; continue
        bar(*need(c))
        if c == 27:
            A(f"""
    v_mov_b32 v9, {L_NON}
    ds_read_b32 v3, v9
    v_lshlrev_b32 v1, 4, v0
    v_lshrrev_b32 v7, 5, v0
    v_cmp_gt_u32 vcc, 32, v0
    v_and_b32 v12, 15, v0
    v_and_b32 v13, 1, v0
    s_lshl_b32 s47, {s(sQB)}, 1
    v_add_u32 v13, s47, v13
    s_add_u32 s61, s3, 8
    s_lshr_b32 s62, s3, 1
    s_lshl_b32 s62, s62, 2
    s_add_u32 s62, s62, 3
    v_cndmask_b32 v12, v13, v12, vcc
    v_mov_b32 v13, s3
    v_mov_b32 v15, s62
    v_cndmask_b32 v13, v13, v15, vcc
    v_cmp_gt_u32 vcc, 16, v0
    v_mov_b32 v15, s61
    v_lshrrev_b32 v11, 3, v12
    v_cndmask_b32 v13, v13, v15, vcc
    v_and_b32 v12, 7, v12
    v_lshlrev_b32 v12, 3, v12
    v_lshl_add_u32 v12, v11, 2, v12
    v_lshrrev_b32 v11, 2, v13
    v_add_u32 v12, v12, v11
    v_and_b32 v13, 3, v13
    v_lshl_add_u32 v12, v13, 6, v12
    v_lshlrev_b32 v12, 7, v12
    s_mov_b32 s52, {hx(FL)}
    s_lshl_b32 s61, {s(sHead)}, 3
    s_add_u32 s61, s61, {s(sQB)}
    s_lshl_b32 s61, s61, 13
    s_lshl_b32 s47, {s(sHead)}, 17
    s_add_u32 s47, s47, {hx(KV)}
    s_mov_b32 s53, 0
    """)
        for t in sched.get(c, '').split(','):
            if t: call(t)
        c += 1
    A(f"""
    s_setprio 2
    s_barrier
    s_waitcnt lgkmcnt(0)
    s_cmp_lg_u32 s46, 0
    s_cbranch_scc1 LH_join
    s_sleep {os.environ.get('SL1', '8')}
LL_f1:
    buffer_load_dword v32, v12, {s(sWS,4)}, s52 offen sc1
    s_add_u32 s53, s53, 1
    s_waitcnt vmcnt(0)
    v_cmp_ne_u32 vcc, v3, v32
    s_cbranch_vccz LL_f1ok
    s_sleep 4
    s_cmp_lt_u32 s53, {SPIN}
    s_cbranch_scc1 LL_f1
LL_f1ok:
    """)
    stamp(A, 1)
    if STAMP: A('s_add_u32 s82, s53, s80')
    for i in range(8):
        A(f's_mov_b32 m0, {L_ONES+512+2048*i-1024*(i&3)}\n' + ('s_add_u32 s61, s61, 4096' if i == 4 else 's_nop 0') + f'\nbuffer_load_dwordx4 v1, {s(sWS,4)}, s61 offen offset:{1024*(i&3)} sc1 lds')
    A(f"""
    s_mov_b32 m0, 0
    s_nop 0
LL_kv:
    buffer_load_dwordx4 v1, {s(sWS,4)}, s47 offen sc1 lds
    buffer_load_dwordx4 v1, {s(sWS,4)}, s47 offen offset:1024 sc1 lds
    buffer_load_dwordx4 v1, {s(sWS,4)}, s47 offen offset:2048 sc1 lds
    buffer_load_dwordx4 v1, {s(sWS,4)}, s47 offen offset:3072 sc1 lds
    s_add_u32 m0, m0, 4096
    s_add_u32 s47, s47, 4096
    s_cmp_lt_u32 m0, 20480
    s_cbranch_scc1 LL_kv
    s_branch LH_join
LL_B:
    """)
    emit(bodyB())
    A(f"""
    s_setpc_b64 s[8:9]
    """)
    CS, RS = 16, 24
    WF, XF = 32, 52
    sOne = 73
    A(f"""
L_M:
    s_setprio {os.environ.get('MPRIO', '0')}
    s_load_dwordx2 {s(sDBG,2)}, s[0:1], 64
    s_load_dwordx2 s[4:5], s[0:1], 48
    s_load_dwordx2 s[6:7], s[0:1], 16
    s_mov_b32 s45, s46
    """)
    A(patterns)
    A(f"""
    s_mov_b32 s45, 1
    s_mov_b32 {s(sDBG+2)}, 256
    s_mov_b32 {s(sDBG+3)}, 0x20000
    s_mov_b32 {s(sOne)}, {hx(ONES)}
    s_lshl_b32 s47, s46, 9
    s_add_u32 s47, s47, {L_X}
    v_add_u32 v4, s47, v4
    v_lshlrev_b32 v1, 4, v0
    s_mov_b32 s50, 0
    """)
    for i in range(16, 28, 2): A(f'v_mov_b64 {v(i,2)}, 0')
    A('s_waitcnt lgkmcnt(0)')
    nb = -1
    def bars(upto):
        nonlocal nb
        while nb < upto:
            A('s_barrier'); nb += 1
    XF = 44
    A(f"""
    v_add_u32 v10, {4*WST}, v2
LM_stat:
    s_bitcmp1_b32 s50, 0
    s_cbranch_scc1 LM_nobar
    s_barrier
    buffer_load_dwordx2 v[30:31], off, {s(sDBG,4)}, 0 sc1
LM_nobar:
    ds_read_b128 {v(XF,4)}, v4
    ds_read_b128 {v(XF+4,4)}, v4 offset:128
    ds_read_b64_tr_b16 {v(WF,2)}, v3
    ds_read_b64_tr_b16 {v(WF+2,2)}, v3 offset:128
    """)
    for u in range(2):
        A(f'ds_read_b64_tr_b16 {v(WF+4+4*u,2)}, v2 offset:{u*32}')
        A(f'ds_read_b64_tr_b16 {v(WF+6+4*u,2)}, v2 offset:{u*32+128}')
    A(f"""
    s_movk_i32 s47, 512
    s_cmovk_i32 s47, {WST-512}
    v_add_u32 v2, s47, v2
    v_add_u32 v3, s47, v3
    v_add_u32 v4, 32, v4
    s_add_u32 s50, s50, 1
    s_waitcnt lgkmcnt(6)
    """)
    for j in range(4):
        for T in range(2):
            A(f'v_dot2c_f32_bf16 v{RS+2*T}, {s(sOne)}, v{XF+4*T+j}')
            A(f'v_dot2c_f32_bf16 v{RS+2*T+1}, v{XF+4*T+j}, v{XF+4*T+j}')
    A('s_waitcnt lgkmcnt(0)')
    for j in range(4):
        for i in range(3):
            A(f'v_dot2c_f32_bf16 v{CS+i}, {s(sOne)}, v{WF+4*i+j}')
    A(f"""
    s_cmp_lt_u32 s50, 4
    s_cbranch_scc1 LM_stat
    s_barrier
    """)
    nb = 2
    for q in range(4):
        for u in range(2):
            for rd in range(2):
                A(f'ds_read_b64_tr_b16 {v(WF+8*q+4*u+2*rd,2)}, v10 offset:{(q>>1)*WST+(4*(q&1)+rd)*128+u*32}')
        if q == 2: A('s_waitcnt lgkmcnt(4)')
    A(f"""
    s_lshl_b32 s50, {s(sCG)}, 4
    s_add_u32 s50, s50, {s(sRB)}
    s_lshl_b32 s50, s50, 1
    s_add_u32 s50, s50, s46
    s_lshl_b32 s50, s50, 10
    s_add_u32 s50, s50, {hx(CSP)}
    s_lshl_b32 s51, {s(sRB)}, 4
    s_add_u32 s51, s51, {s(sCG)}
    s_lshl_b32 s51, s51, 1
    s_add_u32 s51, s51, s46
    s_lshl_b32 s51, s51, 10
    s_add_u32 s51, s51, {hx(RSP)}
    s_waitcnt lgkmcnt(0)
    """)
    for hh in range(2):
        for q in (2 * hh, 2 * hh + 1):
            for j in range(4):
                for u in range(2):
                    r = WF + 8 * q + 4 * u + j
                    A(f'v_lshlrev_b32 v28, 16, v{r}\nv_and_b32 v29, 0xffff0000, v{r}\nv_add_f32 v{CS+3+u}, v{CS+3+u}, v28\nv_add_f32 v{CS+5+u}, v{CS+5+u}, v29')
        bars(nb + 1)
    A(f"""
    v_add_f32 v{CS+3}, v{CS+3}, v{CS+5}
    v_add_f32 v{CS+4}, v{CS+4}, v{CS+6}
    s_mov_b32 s47, 0
LM_non:
    s_waitcnt vmcnt(0)
    v_cmp_eq_u32 vcc, 1, v31
    s_cbranch_vccnz LM_nonok
    s_sleep 2
    buffer_load_dwordx2 v[30:31], off, {s(sDBG,4)}, 0 sc1
    s_add_u32 s47, s47, 1
    s_cmp_lt_u32 s47, {SPIN}
    s_cbranch_scc1 LM_non
LM_nonok:
    """)
    for i in range(5): A(f'v_mov_b32 v{WF+i}, v{CS+i}')
    for i in range(4): A(f'v_mov_b32 v{WF+8+i}, v{RS+i}')
    A('v_cmp_gt_u32 vcc, 32, v0')
    for i in range(5): A(f'v_permlane32_swap_b32 v{CS+i}, v{WF+i}')
    for i in range(4): A(f'v_permlane32_swap_b32 v{RS+i}, v{WF+8+i}')
    for i in range(5): A(f'v_add_f32 v{CS+i}, v{CS+i}, v{WF+i}')
    for i in range(4): A(f'v_add_f32 v{RS+i}, v{RS+i}, v{WF+8+i}')
    A(f"""
    v_cndmask_b32 v{CS}, v{CS+3}, v{CS}, vcc
    v_cndmask_b32 v{CS+1}, v{CS+4}, v{CS+1}, vcc
    v_mov_b32 v{CS+3}, v30
    v_cndmask_b32 v{RS}, v{RS+2}, v{RS}, vcc
    v_cndmask_b32 v{RS+1}, v{RS+3}, v{RS+1}, vcc
    v_mov_b32 v{RS+3}, v30
    buffer_store_dwordx4 {v(CS,4)}, v1, {s(sWS,4)}, s50 offen sc1
    buffer_store_dwordx4 {v(RS,4)}, v1, {s(sWS,4)}, s51 offen sc1
    """)
    bars(nb + 1)
    A(f"""
    s_and_b32 s50, s50, {hx(~0x3800)}
    s_and_b32 s51, s51, {hx(~0x3800)}
    v_lshlrev_b32 v8, 2, v0
    v_mov_b32 v9, {L_FLAG}
    v_mov_b32 v29, 0
    ds_write_b32 v9, v29
    ds_write_b32 v9, v30 offset:4
    ds_write_b32 v9, v29 offset:8
    ds_write_b32 v9, v29 offset:12
    """)
    B_GAT, B_RED = [int(t) for t in os.environ.get('MSCHED', '11,15').split(',')]
    bars(B_GAT)
    GC, GR = 32, 64
    A('s_mov_b32 s53, 0\nLM_gat:\ns_mov_b32 s47, s50\ns_mov_b32 s61, s51')
    for i in range(8):
        A(f'buffer_load_dwordx4 {v(GR+4*i,4)}, v1, {s(sWS,4)}, s61 offen offset:{2048*(i&1)} sc1')
        A(f'buffer_load_dwordx4 {v(GC+4*i,4)}, v1, {s(sWS,4)}, s47 offen offset:{2048*(i&1)} sc1')
        if i & 1 and i < 7: A('s_add_u32 s47, s47, 4096\ns_add_u32 s61, s61, 4096')
    A('s_cmp_lg_u32 s53, 0\ns_cbranch_scc1 LM_chk')
    bars(B_RED - 1)
    A('LM_chk:\ns_waitcnt vmcnt(0)\ns_add_u32 s53, s53, 1')
    A(f'v_xor_b32 v10, v30, v{GC+3}')
    for r in [GC + 4 * i + 3 for i in range(1, 16)]:
        A(f'v_xor_b32 v11, v30, v{r}\nv_or_b32 v10, v10, v11')
    A(f"""
    v_cmp_ne_u32 vcc, 0, v10
    s_cbranch_vccz LM_red
    s_cmp_lt_u32 s53, {SPIN}
    s_cbranch_scc1 LM_gat
LM_red:
    """)
    stamp(A, 1)
    for i in range(1, 8):
        for t in range(3):
            if t < 2: A(f'v_add_f32 v{GR+t}, v{GR+t}, v{GR+4*i+t}')
            A(f'v_add_f32 v{GC+t}, v{GC+t}, v{GC+4*i+t}')
    bars(B_RED)
    SUM, SQ = GR, GR + 1
    A(f"""
    s_mul_i32 s47, s46, {5*256}
    s_add_u32 s47, s47, {L_CS}
    v_add_u32 v10, s47, v8
    s_lshl_b32 s47, s46, 9
    s_add_u32 s47, s47, {L_RS}
    v_lshl_add_u32 v9, v0, 3, s47
    v_cmp_gt_u32 vcc, 32, v0
    v_mul_f32 v{SUM}, {hx(f2u(-1.0/512))}, v{SUM}
    v_mul_f32 v{SQ}, {hx(f2u(1.0/512))}, v{SQ}
    v_fma_f32 v{SQ}, -v{SUM}, v{SUM}, v{SQ}
    v_max_f32 v{SQ}, 0, v{SQ}
    v_cvt_pk_bf16_f32 v{SQ}, v{SQ}, v{SQ}
    v_and_b32 v{SQ}, 0xffff0000, v{SQ}
    v_add_f32 v{SQ}, {hx(f2u(1e-5))}, v{SQ}
    v_cvt_pk_bf16_f32 v{SQ}, v{SQ}, v{SQ}
    v_and_b32 v{SQ}, 0xffff0000, v{SQ}
    v_sqrt_f32 v{SQ}, v{SQ}
    v_cvt_pk_bf16_f32 v{SUM}, v{SUM}, v{SUM}
    v_cvt_pk_bf16_f32 v{SQ}, v{SQ}, v{SQ}
    v_and_b32 v{SQ}, 0xffff0000, v{SQ}
    ds_write_b64 v9, {v(SUM,2)}
    """)
    for t in range(3):
        A(f"""
        v_cvt_pk_bf16_f32 v28, v{GC+t}, v{GC+t}
        v_and_b32 v28, 0xffff0000, v28
        v_sub_f32 v29, v{GC+t}, v28
        v_cvt_pk_bf16_f32 v28, v28, v29
        v_cndmask_b32 v{16+t}, 0, v28, vcc
        ds_write_b32 v10, v{16+t} offset:{t*256}
        """)
        if t < 2: A(f'v_sub_u32 v{20+t}, v28, v{16+t}\nds_write_b32 v10, v{20+t} offset:{(3+t)*256}')
    A('s_waitcnt lgkmcnt(0)')
    stamp(A, 2)
    assert nb <= 15
    B_PP, B_PK = [int(t) for t in os.environ.get('PSCHED', '16,30').split(',')]
    bars(16)
    A(packsetup)
    A(f"""
    v_mov_b32 v3, v30
    v_mov_b64 v[48:49], -1
    v_mov_b64 v[50:51], -1
    s_lshl_b32 s61, {s(sQB)}, 3
    s_lshl_b32 s62, s46, 2
    s_add_u32 s61, s61, s62
    s_lshl_b32 s61, s61, 5
    s_add_u32 s61, s61, {s(sHead)}
    s_lshl_b32 s61, s61, 10
    s_add_u32 s50, s61, {hx(OF)}
    v_and_b32 v8, 1, v0
    v_bfe_u32 v9, v0, 1, 1
    v_lshl_add_u32 v8, v8, 1, v9
    v_lshlrev_b32 v8, 3, v8
    v_lshl_add_u32 v8, v5, 5, v8
    v_lshl_add_u32 v9, v7, 2, v6
    v_lshl_add_u32 v8, v9, 7, v8
    v_add_u32 v8, s68, v8
    s_lshl_b32 s47, s67, 3
    s_lshl_b32 s61, s46, 2
    s_add_u32 s47, s47, s61
    s_mul_i32 s47, s47, s65
    s_add_u32 s47, s47, s66
    s_lshl_b32 s47, s47, 10
    s_add_u32 s66, s47, s63
    s_lshl_b32 s65, s65, 10
    """)
    bars(B_PP)
    for j in range(2):
        A('s_add_u32 s47, s72, 8192')
        for e in range(2):
            for r in range(2):
                A(f's_add_u32 m0, s68, {(j*2+e)*2048+r*1024-128*e}\ns_nop 0\nbuffer_load_dwordx4 v14, {s(sPK,4)}, {("s72","s47")[r]} offen offset:{128*e} lds')
        if j == 0: A('s_add_u32 s72, s72, s64')
    A(f's_lshl_b32 s64, s64, 9\ns_cmp_lt_u32 {s(sCG)}, 14\ns_cmov_b32 s64, 0x2000000\ns_add_u32 s67, s66, s64')
    A(f"""
    s_lshl_b32 s51, s2, 7
    s_add_u32 s51, s51, {hx(FL)}
    s_cmp_lg_u32 s46, 0
    s_cmov_b32 s51, 0x2000000
    s_mov_b32 s52, 0x2000000
    s_cmp_eq_u32 s71, 3
    s_cselect_b32 s53, s51, s52
    s_cselect_b32 s51, s52, s51
    """)
    bars(16 + 2 * F1A + 1)
    flag_store(A, 's51', 3)
    bars(16 + 2 * F1B + 1)
    flag_store(A, 's53', 3)
    bars(B_PK)
    A('s_waitcnt vmcnt(2)')
    for q in range(4):
        for a in range(2):
            for rd in range(2):
                A(f'ds_read_b64_tr_b16 {v(64+8*q+4*a+2*rd,2)}, v8 offset:{q*2048+rd*1024+a*64}')
        if q & 1: A('s_waitcnt lgkmcnt(0)')
    A('s_mov_b32 s56, s66\ns_mov_b32 s57, s67\ns_mov_b32 s58, s65')
    bars(32)
    A(f"""
    s_setprio 2
LH_join:
    s_lshl_b32 s63, s44, 10
    s_lshl_b32 s47, {s(sHead)}, 17
    s_add_u32 s47, s47, {hx(KV+20480)}
    s_add_u32 s47, s47, s63
    s_add_u32 m0, s63, 20480
    s_mov_b32 s48, {NK1*4096}
    s_add_u32 s63, s63, {L_H}
    v_add_u32 v8, s63, v1
    s_lshl_b32 s61, {s(sRB)}, 2
    s_lshl_b32 s62, s46, 1
    s_add_u32 s61, s61, s62
    s_mul_i32 s61, s61, 112
    s_and_b32 s62, s3, 3
    s_mul_i32 s62, s62, 28
    s_add_u32 s61, s61, s62
    s_lshl_b32 s62, s71, 3
    s_add_u32 s61, s61, s62
    s_lshl_b32 s62, s45, 1
    s_add_u32 s61, s61, s62
    s_lshl_b32 s61, s61, 10
    s_add_u32 s64, s61, {hx(HF)}
    s_add_u32 s66, s64, 4096
    s_cmp_eq_u32 s71, 3
    s_cselect_b32 s66, s64, s66
    s_cmov_b32 s64, 0x2000000
    s_add_u32 s65, s64, {112*1024}
    s_add_u32 s67, s66, {112*1024}
    s_lshl_b32 s63, s2, 7
    s_lshl_b32 s62, s44, 2
    s_add_u32 s61, s63, s62
    s_add_u32 s63, s61, {hx(FP-8)}
    s_add_u32 s61, s61, {hx(FH)}
    v_mov_b32 v10, {L_FLAG}
    v_mov_b32 v11, 1
    s_cmp_ge_u32 {s(sW)}, 6
    s_cbranch_scc1 LH_b1
    s_mov_b32 s63, 0x2000000
    s_waitcnt vmcnt(0)
LH_b1:
    """)
    stamp(A, 3)
    A('s_barrier')
    for n in range(8): A(f'ds_read_b128 {v(96+4*n,4)}, v8 offset:{n*4096}')
    A(f"""
LH_kv:
    buffer_load_dwordx4 v1, {s(sWS,4)}, s47 offen sc1 lds
    s_add_u32 m0, m0, 4096
    s_add_u32 s47, s47, 4096
    s_cmp_lt_u32 m0, s48
    s_cbranch_scc1 LH_kv
    s_cmp_eq_u32 s48, 131072
    s_cbranch_scc1 LH_kvdone
    s_mov_b32 s48, 131072
    """)
    for n in range(8):
        A(f's_waitcnt lgkmcnt({7-n})\nbuffer_store_dwordx4 {v(96+4*n,4)}, v1, {s(sWS,4)}, s{64+(n>>1)} offen offset:{(n&1)*1024} sc1')
    A(f's_waitcnt vmcnt(8)\ns_mov_b64 exec, 1\nds_add_u32 v10, v11 offset:12\ns_mov_b64 exec, -1\ns_cmp_ge_u32 {s(sW)}, 6\ns_cbranch_scc0 LH_ack')
    for n in range(4):
        A(f'buffer_store_dwordx4 {v(64+4*n,4)}, v1, {s(sWS,4)}, s56 offen sc1\nbuffer_store_dwordx4 {v(80+4*n,4)}, v1, {s(sWS,4)}, s57 offen sc1')
        A(f'buffer_store_dwordx4 v[48:51], v1, {s(sWS,4)}, s50 offen sc1')
        A('s_add_u32 s56, s56, s58\ns_add_u32 s57, s57, s58\ns_add_u32 s50, s50, 0x8000')
    A('LH_ack:\ns_waitcnt vmcnt(0)')
    stamp(A, 4)
    A(f"""
    s_mov_b64 exec, 1
    buffer_store_dword v3, off, {s(sWS,4)}, s61 sc1
    buffer_store_dword v3, off, {s(sWS,4)}, s63 sc1
    s_mov_b64 exec, -1
    s_branch LH_kv
LH_kvdone:
    """)
    A(f'''
    s_load_dwordx2 {s(sA,2)}, s[0:1], 56
    s_mov_b32 {s(sA+2)}, 2097152
    s_lshl_b32 s50, s3, 3
    s_lshl_b32 s47, s71, 1
    s_add_u32 s50, s50, s47
    s_add_u32 s50, s50, s46
    s_lshl_b32 s51, s70, 1
    s_add_u32 s51, s51, s45
    s_mul_i32 s47, s45, {56*1024}
    s_mul_i32 s56, s51, {112*1024}
    s_add_u32 s56, s56, s47
    s_add_u32 s56, s56, {hx(WDF)}
    s_xor_b32 s57, s51, 1
    s_mul_i32 s57, s57, {112*1024}
    s_add_u32 s57, s57, s47
    s_add_u32 s57, s57, {hx(WDF)}
    s_mul_i32 s58, s50, {112*1024}
    s_add_u32 s58, s58, s47
    s_add_u32 s58, s58, {hx(HF)}
    s_lshl_b32 s59, s70, 1
    s_mul_i32 s47, s71, 3
    s_add_u32 s59, s59, s47
    s_cmp_ge_u32 s59, 14
    s_cselect_b32 s47, 14, 0
    s_sub_u32 s59, s59, s47
    s_lshl_b32 s59, s59, 12
    v_lshlrev_b32 v8, 7, v0
    s_lshl_b32 s47, s44, 13
    s_add_u32 s47, s47, {hx(FP)}
    v_and_b32 v9, 3, v0
    v_bfe_u32 v12, v0, 2, 2
    v_lshl_add_u32 v9, v12, 6, v9
    v_lshlrev_b32 v9, 7, v9
    s_lshr_b32 s62, s50, 2
    s_and_b32 s60, s62, 7
    s_lshl_b32 s60, s60, 3
    s_lshr_b32 s62, s62, 3
    s_lshl_b32 s62, s62, 2
    s_add_u32 s62, s62, s60
    s_lshl_b32 s62, s62, 7
    s_add_u32 s62, s62, {hx(FH)}
    s_mov_b32 s63, 0
    buffer_load_dwordx2 v[12:13], v8, {s(sWS,4)}, s47 offen sc1
    s_waitcnt vmcnt(1) lgkmcnt(0)
    s_mov_b64 exec, 1
    ds_add_u32 v10, v11 offset:8
    s_mov_b64 exec, -1
    ''')
    stamp(A, 5)
    A(f'''
LH_f2:
    s_add_u32 s63, s63, 1
    s_waitcnt vmcnt(0)
    v_xor_b32 v12, v3, v12
    v_xor_b32 v13, v3, v13
    v_or_b32 v12, v12, v13
    v_cmp_ne_u32 vcc, 0, v12
    s_cbranch_vccz LH_fh
    s_sleep 16
    buffer_load_dwordx2 v[12:13], v8, {s(sWS,4)}, s47 offen sc1
    s_cmp_lt_u32 s63, {SPIN}
    s_cbranch_scc1 LH_f2
LH_fh:
    buffer_load_dwordx4 v[12:15], v9, {s(sWS,4)}, s62 offen sc1
    s_add_u32 s63, s63, 1
    s_waitcnt vmcnt(0)
    v_xor_b32 v12, v3, v12
    v_xor_b32 v13, v3, v13
    v_xor_b32 v14, v3, v14
    v_xor_b32 v15, v3, v15
    v_or_b32 v12, v12, v13
    v_or3_b32 v12, v12, v14, v15
    v_cmp_ne_u32 vcc, 0, v12
    s_cbranch_vccz LH_f2ok
    s_sleep 8
    s_cmp_lt_u32 s63, {SPIN}
    s_cbranch_scc1 LH_fh
LH_f2ok:
    ''')
    if STAMP: A('s_add_u32 s92, s63, s80')
    A(f'''
    s_mov_b64 exec, 1
    ds_add_u32 v10, v11
    s_mov_b64 exec, -1
    s_mov_b32 s63, 0
LH_f2l:
    ds_read_b32 v12, v10
    s_add_u32 s63, s63, 1
    s_waitcnt lgkmcnt(0)
    v_cmp_ne_u32 vcc, 4, v12
    s_cbranch_vccz LH_gemm
    s_sleep 2
    s_cmp_lt_u32 s63, {SPIN * 16}
    s_cbranch_scc1 LH_f2l
LH_gemm:
    s_setprio {os.environ.get('GPRIO', '0')}
    ''')
    stamp(A, 6)
    D, G, X, FR = 8, 40, 56, 64
    GL = os.environ.get('GL', 'sc1')
    if GL != 'sc1': A('buffer_inv sc1')
    adv = """
    s_add_u32 s52, s56, s59
    s_add_u32 s53, s57, s59
    s_add_u32 s55, s58, s59
    s_add_u32 s59, s59, 4096
    s_cmp_ge_u32 s59, %d
    s_cselect_b32 s59, 0, s59
    """ % (14 * 4096)
    def ld(i):
        return '\n'.join(f'buffer_load_dwordx4 {v(FR+12*i+4*k,4)}, v1, {s(sWS,4)}, s{(55,52,53)[k]} offen offset:{i*1024} {GL}' for k in range(3))
    A(adv)
    for i in range(4): A(ld(i))
    for j in range(0, 16, 2): A(f'v_mov_b64 {v(G+j,2)}, 0\nv_mov_b64 {v(D+16+j,2)}, 0')
    A('s_mov_b32 s63, 0\nLH_gloop:')
    A(adv)
    for i in range(4):
        A('s_waitcnt vmcnt(9)')
        if 'gnomfma' not in EXP:
            A(mfma(G, FR + 12 * i + 4, FR + 12 * i, G))
            A(mfma(D + 16, FR + 12 * i + 8, FR + 12 * i, D + 16))
        else: A('s_sleep 4')
        if 'gnold' not in EXP: A(ld(i))
    A(f"""
    s_add_u32 s63, s63, 1
    s_cmp_lt_u32 s63, 13
    s_cbranch_scc1 LH_gloop
    """)
    WO = 128
    A(f"""
    s_lshl_b32 s52, s51, 5
    s_lshl_b32 s47, s45, 4
    s_add_u32 s52, s52, s47
    s_lshl_b32 s52, s52, 10
    s_add_u32 s52, s52, {hx(WOF)}
    s_xor_b32 s53, s52, 0x8000
    """)
    for i in range(4):
        A(f's_waitcnt vmcnt({9+5*i})')
        A(mfma(G, FR + 12 * i + 4, FR + 12 * i, G))
        A(mfma(D + 16, FR + 12 * i + 8, FR + 12 * i, D + 16))
        for k in range(4 * i, 4 * i + 4):
            A(f'buffer_load_dwordx4 {v(WO+8*k,4)}, v1, {s(sWS,4)}, s52 offen offset:{(k&3)*1024} {GL}')
            A(f'buffer_load_dwordx4 {v(WO+8*k+4,4)}, v1, {s(sWS,4)}, s53 offen offset:{(k&3)*1024} {GL}')
        A('s_add_u32 s52, s52, 4096\ns_add_u32 s53, s53, 4096')
    A(f'''
    v_and_b32 v4, 31, v0
    v_lshlrev_b32 v4, 10, v4
    v_lshl_add_u32 v4, v7, 4, v4
    s_lshl_b32 s54, s50, 15
    s_lshl_b32 s47, s51, 6
    s_add_u32 s54, s54, s47
    buffer_load_dwordx4 {v(X,4)}, v4, {s(sX,4)}, s54 offen
    buffer_load_dwordx4 {v(X+4,4)}, v4, {s(sX,4)}, s54 offen offset:32
    ''')
    A(f'''
    s_lshl_b32 s52, s50, 5
    s_lshl_b32 s61, s45, 4
    s_add_u32 s52, s52, s61
    s_lshl_b32 s52, s52, 10
    s_add_u32 s56, s52, {hx(OF)}
    s_add_u32 s57, s56, 4096
    s_add_u32 s58, s56, 8192
    s_add_u32 s59, s56, 12288
    s_mov_b32 s52, -1
    s_xor_b32 s61, s44, 2
    s_lshl_b32 s61, s61, 12
    s_add_u32 s61, s61, {L_EX}
    v_add_u32 v5, s61, v1
    s_lshl_b32 s61, s44, 12
    s_add_u32 s61, s61, {L_EX}
    v_add_u32 v6, s61, v1
    s_mov_b32 s63, 0
    ''')
    for q in range(4): A(f'ds_write_b128 v5, {v(D+16+4*q,4)} offset:{q*1024}')
    A('s_waitcnt vmcnt(0) lgkmcnt(0)')
    stamp(A, 7)
    A('s_barrier')
    stamp(A, 8)
    for g in range(4):
        A(f'LH_o{g}:')
        for k in range(4 * g, 4 * g + 4):
            A(f'buffer_load_dwordx4 {v(FR+4*k,4)}, v1, {s(sWS,4)}, s{56+g} offen offset:{(k&3)*1024} sc1')
    for g in range(4):
        A(f's_cmp_eq_u32 s52, {g}\ns_cbranch_scc1 LH_c{g}')
    for q in range(4): A(f'ds_read_b128 {v(D+4*q,4)}, v6 offset:{q*1024}')
    A(f'v_subrev_u32 v5, {L_EX}, v5\nv_subrev_u32 v6, {L_EX}, v6\ns_waitcnt lgkmcnt(0)')
    for j in range(16): A(f'v_add_f32 v{G+j}, v{G+j}, v{D+j}')
    for j in range(16): A(f'v_mul_f32 v{D+j}, {hx(f2u(-LOG2E))}, v{G+j}')
    for j in range(16): A(f'v_exp_f32 v{D+j}, v{D+j}')
    for j in range(16): A(f'v_add_f32 v{D+j}, 1.0, v{D+j}')
    for j in range(16): A(f'v_rcp_f32 v{D+j}, v{D+j}')
    for j in range(16): A(f'v_mul_f32 v{G+j}, v{D+j}, v{G+j}')
    for g in range(4):
        f0 = FR + 16 * g
        A(f"""
LH_c{g}:
        s_mov_b32 s52, {g}
        s_add_u32 s63, s63, 1
        s_waitcnt vmcnt({12-4*g})
        v_max3_u32 v7, v{f0}, v{f0+4}, v{f0+8}
        v_max_u32 v7, v7, v{f0+12}
        v_cmp_eq_u32 vcc, -1, v7
        s_cbranch_vccz LH_m{g}
        s_cmp_lt_u32 s63, {SPIN}
        s_cbranch_scc1 LH_o{g}
LH_m{g}:
        """)
        for k in range(4 * g, 4 * g + 4):
            A(mfma(D + 16, WO + 8 * k + 4, FR + 4 * k, None if k == 0 else D + 16))
            A(mfma(D, WO + 8 * k, FR + 4 * k, None if k == 0 else D))
    if STAMP: A('s_add_u32 s89, s63, s80')
    stamp(A, 10)
    U = WO
    for j in range(8):
        A(f'v_lshlrev_b32 v{U+2*j}, 16, v{X+j}\nv_and_b32 v{U+2*j+1}, 0xffff0000, v{X+j}')
    for q in range(4): A(f'ds_write_b128 v5, {v(D+16+4*q,4)} offset:{q*1024}')
    A('s_waitcnt lgkmcnt(0)\ns_barrier')
    for q in range(4): A(f'ds_read_b128 {v(D+16+4*q,4)}, v6 offset:{q*1024}')
    for q in range(4):
        A(f's_waitcnt lgkmcnt({3-q})')
        for p in (2 * q, 2 * q + 1):
            A(f'v_pk_add_f32 {v(D+2*p,2)}, {v(D+2*p,2)}, {v(D+16+2*p,2)}')
            A(f'v_pk_fma_f32 {v(D+2*p,2)}, {v(D+2*p,2)}, {v(G+2*p,2)}, {v(U+2*p,2)}')
            A(f'v_cvt_pk_bf16_f32 v{X+p}, v{D+2*p}, v{D+2*p+1}')
        if q & 1: A(f'buffer_store_dwordx4 {v(X+4*(q>>1),4)}, v4, {s(sA,4)}, s54 offen offset:{32*(q>>1)}')
    stamp(A, 11)
    stamp_end(A, sWS, sW, 2)
    if STAMP and 'dbg' in EXP:
        A(f'''
        s_cmp_lg_u32 s44, 0
        s_cbranch_scc1 L_end
        s_load_dwordx2 {s(sDBG,2)}, s[0:1], 64
        s_mov_b32 {s(sDBG+2)}, 256
        s_mov_b32 {s(sDBG+3)}, 0x20000
        s_sub_u32 s78, 0, s94
        v_mov_b32 v8, s78
        v_mov_b32 v9, s94
        v_mov_b32 v10, s95
        s_mov_b64 exec, 1
        s_waitcnt lgkmcnt(0)
        buffer_atomic_umax v8, off, {s(sDBG,4)}, 0 offset:8 sc1
        buffer_atomic_umax v9, off, {s(sDBG,4)}, 0 offset:12 sc1
        buffer_atomic_umax v10, off, {s(sDBG,4)}, 0 offset:16 sc1
        s_cmp_lg_u32 s2, 5
        s_cbranch_scc1 L_end
        ''')
        for k, i in enumerate((3, 4, 5, 6, 7, 8, 9, 10, 13)):
            A(f's_sub_u32 s78, s{80+i}, s80\nv_mov_b32 v8, s78\nbuffer_store_dword v8, off, {s(sDBG,4)}, 0 offset:{20+4*k} sc1')
        A(f's_sub_u32 s78, s95, s94\nv_mov_b32 v8, s78\nbuffer_store_dword v8, off, {s(sDBG,4)}, 0 offset:56 sc1')
    A('s_endpgm')

def gen_C(A, patterns):
    sDW, sXs, sIt, sF1, sF3, sOne = 48, 49, 50, 72, 73, 76
    A(f"""
L_C:
    s_getpc_b64 s[4:5]
L_pc:
    s_lshl_b32 s47, s43, 2
    s_add_u32 s47, s47, s44
    s_mul_i32 s47, s47, 192
    s_sub_u32 s4, s4, L_pc-{NAME}_kernel
    s_subb_u32 s5, s5, 0
    s_min_u32 s47, s47, L_code_end-{NAME}_kernel-4
    s_load_dword s6, s[4:5], s47
    s_add_u32 s47, s47, 64
    s_min_u32 s47, s47, L_code_end-{NAME}_kernel-4
    s_load_dword s7, s[4:5], s47
    s_add_u32 s47, s47, 64
    s_min_u32 s47, s47, L_code_end-{NAME}_kernel-4
    s_load_dword s8, s[4:5], s47
    v_mov_b64 v[64:65], 0
    v_mov_b64 v[66:67], 0
    """)
    A(patterns)
    A(f"""
    s_waitcnt lgkmcnt(0)
    s_or_b32 s47, s44, s2
    s_cbranch_scc1 LC_nonon
    s_load_dwordx2 {s(sDBG,2)}, s[0:1], 64
    s_mov_b32 s47, {hx(NW)}
    buffer_load_dword v8, off, {s(sWS,4)}, s47 sc1
    s_mov_b32 {s(sDBG+2)}, 256
    s_mov_b32 {s(sDBG+3)}, 0x20000
    s_mov_b32 s61, 1664525
    v_mov_b32 v9, 1
    s_waitcnt vmcnt(0) lgkmcnt(0)
    v_mul_lo_u32 v8, v8, s61
    v_add_u32 v8, 1013904223, v8
    s_mov_b64 exec, 1
    buffer_store_dwordx2 v[8:9], off, {s(sDBG,4)}, 0 sc1
    buffer_store_dword v8, off, {s(sWS,4)}, s47 sc1
    s_mov_b64 exec, -1
LC_nonon:
    s_lshl_b32 s47, s46, 9
    s_add_u32 s47, s47, {L_X}
    v_add_u32 v4, s47, v4
    v_mov_b32 v1, v4
    s_mov_b32 {s(sDW)}, {2*WST}
    s_mov_b32 {s(sXs)}, 0
    s_mov_b32 {s(sIt)}, 0
    s_lshl_b32 s53, {s(sRB)}, 2
    s_lshl_b32 s47, s46, 1
    s_add_u32 s53, s53, s47
    s_and_b32 s47, {s(sCG)}, 7
    s_lshl_b32 s47, s47, 2
    s_lshl_b32 s61, s45, 1
    s_add_u32 s47, s47, s61
    s_lshl_b32 s47, s47, 6
    s_add_u32 s47, s47, s53
    s_cmp_lt_u32 {s(sCG)}, 8
    s_cselect_b32 s52, 10, 11
    s_cselect_b32 s61, {hx(QF)}, {hx(KV)}
    s_cselect_b32 s58, {hx(f2u(0.25*LOG2E))}, 1.0
    s_lshl_b32 s47, s47, s52
    s_add_u32 s62, s47, s61
    s_lshl_b32 s47, 1, s52
    s_add_u32 s64, s62, s47
    s_lshl_b32 s47, 64, s52
    s_add_u32 s63, s62, s47
    s_add_u32 s65, s64, s47
    s_mul_i32 s47, s45, {5*256}
    s_add_u32 s47, s47, {L_CS}
    v_lshl_add_u32 v60, v0, 2, s47
    s_lshl_b32 s47, s46, 9
    s_add_u32 s47, s47, {L_RS}
    v_and_b32 v61, 31, v0
    v_lshl_add_u32 v61, v61, 3, s47
    v_lshlrev_b32 v63, 4, v0
    """)
    acc = lambda T, i: 96 + (i * 2 + T) * 16
    for i in range(5):
        for T in range(2): A(mfma(acc(T, i), 64, 64, None))
    FB = lambda f: 8 + 20 * f
    Wf = lambda f, i: FB(f) + 4 * i
    Xf = lambda f, T: FB(f) + 12 + 4 * T
    def reads(f, q, withA):
        st, ks = (q >> 1) & 1, q & 1
        r = [f'ds_read_b128 {v(Xf(f,T),4)}, v1 offset:{T*128+(q&3)*32}' for T in range(2)]
        for u in range(2):
            for rd in range(2):
                r.append(f'ds_read_b64_tr_b16 {v(Wf(f,1+u)+2*rd,2)}, v2 offset:{st*WST+(4*ks+rd)*128+u*32}')
        if withA:
            for rd in range(2):
                r.append(f'ds_read_b64_tr_b16 {v(Wf(f,0)+2*rd,2)}, v3 offset:{st*WST+(4*ks+rd)*128}')
        return r
    def kloop(label, withA, adv, lim, tr0):
        for r in reads(0, 0, withA): A(r)
        A(label + ':')
        for q in range(4):
            f = q & 1
            rr = reads(f ^ 1, q + 1, withA)
            A('s_waitcnt lgkmcnt(0)')
            if q & 1: A('s_barrier')
            tiles = [(1, 1), (2, 2), (0, 0)] if withA else [(1, 3), (2, 4)]
            ms = [mfma(acc(T, ai), Wf(f, wi), Xf(f, T), acc(T, ai)) for (wi, ai) in tiles for T in range(2)]
            k = 0
            for m in range(len(ms)):
                A(ms[m])
                for _ in range(3):
                    if k < len(rr): A(rr[k]); k += 1
                if q == 2 and m == len(ms) - 1: A(adv)
                if q == 3 and m == len(ms) - 2: A(f's_add_u32 {s(sIt)}, {s(sIt)}, 1')
                if q == 3 and m == len(ms) - 1 and not STAMP: A(f's_cmp_lt_u32 {s(sIt)}, {lim}')
            assert k == len(rr)
        if STAMP:
            A(f'{TM} s[78:79]\ns_add_u32 m0, {s(sIt)}, {tr0}\ns_waitcnt lgkmcnt(0)\nv_writelane_b32 v79, s78, m0\ns_cmp_lt_u32 {s(sIt)}, {lim}')
        A(f's_cbranch_scc1 {label}')
    def vstore(T, u):
        a = acc(T, 1 + u)
        for hd in range(2):
            A(f'buffer_store_dwordx4 {v(a+8+4*hd,4)}, v63, {s(sWS,4)}, s{62+2*u+hd} offen offset:{1024+2048*T} sc1')
    def vpath():
        A(f"""
        s_and_b32 s47, s44, 2
        s_add_u32 s47, s47, s44
        s_mul_i32 s47, s47, {WST}
        s_add_u32 s47, s47, {2*PAN}
        v_and_b32 v52, 31, v0
        v_lshlrev_b32 v52, 5, v52
        v_lshl_add_u32 v52, v7, 3, v52
        v_add_u32 v52, s47, v52
        v_lshlrev_b32 v53, 2, v5
        v_add_u32 v53, v53, v7
        v_lshl_add_u32 v53, v53, 2, v6
        v_lshlrev_b32 v53, 5, v53
        v_and_b32 v54, 3, v0
        v_lshl_add_u32 v53, v54, 3, v53
        v_add_u32 v53, s47, v53
        s_and_b32 s47, s3, 3
        s_lshl_b32 s47, s47, 2
        s_add_u32 s47, s47, s45
        s_lshl_b32 s47, s47, 7
        s_add_u32 s47, s47, s53
        s_lshl_b32 s47, s47, 11
        s_add_u32 s62, s47, {hx(KV)}
        s_add_u32 s63, s62, {4*64*2048}
        s_add_u32 s64, s62, {64*2048}
        s_add_u32 s65, s62, {5*64*2048}
        """)
        prev = None
        for T in range(2):
            for u in range(2):
                a = acc(T, 1 + u)
                for p in range(8):
                    A(f'v_pk_mul_f32 {v(a+2*p,2)}, {v(a+2*p,2)}, {v(84+8*T,2)} op_sel_hi:[1,0]')
                for p in range(8):
                    A(f'v_cvt_pk_bf16_f32 v{a+p}, v{a+2*p}, v{a+2*p+1}')
                if prev is not None and prev[0] == 0:
                    A('s_waitcnt lgkmcnt(0)')
                    vstore(*prev)
                for hd in range(2):
                    o = (u * 2 + hd) * 1024
                    A(f'ds_write_b64 v52, {v(a+4*hd,2)} offset:{o}')
                    A(f'ds_write_b64 v52, {v(a+4*hd+2,2)} offset:{o+16}')
                for hd in range(2):
                    o = (u * 2 + hd) * 1024
                    A(f'ds_read_b64_tr_b16 {v(a+8+4*hd,2)}, v53 offset:{o}')
                    A(f'ds_read_b64_tr_b16 {v(a+8+4*hd+2,2)}, v53 offset:{o+256}')
                prev = (T, u)
    stamp(A, 1)
    A('s_barrier')
    stamp(A, 2)
    kloop('LC_loopA', True, f"""
        v_add_u32 v2, {s(sDW)}, v2
        v_add_u32 v3, {s(sDW)}, v3
        s_add_u32 {s(sXs)}, {s(sXs)}, {XST}
        s_cmp_ge_u32 {s(sXs)}, {4*XST}
        s_cselect_b32 {s(sXs)}, 0, {s(sXs)}
        s_sub_u32 {s(sDW)}, 0, {s(sDW)}
        v_add_u32 v1, {s(sXs)}, v4
        """, '8', 15)
    A("""
    s_waitcnt lgkmcnt(0)
    ds_read_b64 v[68:69], v61
    ds_read_b64 v[70:71], v61 offset:256
    """)
    CO = lambda i: 8 + 4 * i
    for i in range(5): A(f'ds_read_b32 v{CO(i)}, v60 offset:{i*256}')
    for i in range(5): A(f'v_mov_b32 v{CO(i)+1}, 0\nv_mov_b64 {v(CO(i)+2,2)}, 0')
    A('v_mov_b32 v49, 0\nv_mov_b64 v[50:51], 0\ns_waitcnt lgkmcnt(5)\nv_mov_b32 v64, v68\nv_mov_b32 v48, v70')
    K0 = -2.0 * math.sqrt(2.0 / math.pi) * LOG2E
    K1c = K0 * 0.044715
    A('v_rcp_f32 v84, v69\nv_rcp_f32 v92, v71\ns_waitcnt lgkmcnt(0)')
    for i in range(5):
        for T in range(2): A(mfma(acc(T, i), CO(i), (64, 48)[T], acc(T, i)))
        if i == 0:
            for T in range(2):
                b = 80 + 8 * T
                A(f"""
                v_mul_f32 v{b+2}, v{69+2*T}, v{69+2*T}
                v_mul_f32 v{b+1}, {hx(f2u(K0))}, v{b+4}
                v_mul_f32 v{b+3}, s58, v{b+4}
                v_mul_f32 v{b}, v{b+4}, v{b+4}
                v_mul_f32 v{b}, v{b}, v{b+4}
                v_mul_f32 v{b}, {hx(f2u(K1c))}, v{b}
                """)
        if i in (1, 2, 3, 4):
            T, hd = divmod(i - 1, 2)
            a = acc(T, 0) + 8 * hd
            for j in range(8): A(f'v_mul_f32 v{a+j}, v{83+8*T}, v{a+j}')
            for p in range(4): A(f'v_cvt_pk_bf16_f32 v{a+p}, v{a+2*p}, v{a+2*p+1}')
            A(f'buffer_store_dwordx4 {v(a,4)}, v63, {s(sWS,4)}, s{62+2*T+hd} offen sc1')
    A(f"""
    s_cmp_eq_u32 s71, 3
    s_cbranch_scc0 LC_B
    """)
    vpath()
    A(f"""
LC_B:
    v_add_u32 v2, {4*WST}, v2
    v_add_u32 v1, {3*XST}, v4
    s_mov_b32 {s(sDW)}, {4*WST}
    s_mov_b32 {s(sXs)}, {3*XST}
    s_mov_b32 {s(sIt)}, 0
    s_mov_b32 s51, {F1A}
    v_subrev_u32 v3, {4*WST}, v2
    """)
    stamp(A, 3)
    kloop('LC_loopB', False, f"""
        s_add_u32 {s(sDW)}, {s(sDW)}, {2*WST}
        s_cmp_ge_u32 {s(sDW)}, {6*WST}
        s_cselect_b32 {s(sDW)}, 0, {s(sDW)}
        v_add_u32 v2, {s(sDW)}, v3
        s_sub_u32 {s(sXs)}, {s(sXs)}, {XST}
        s_cselect_b32 {s(sXs)}, {3*XST}, {s(sXs)}
        v_add_u32 v1, {s(sXs)}, v4
        """, 's51', 23)
    A(f"""
    s_cmp_eq_u32 s51, 8
    s_cbranch_scc1 LC_epi
    s_add_u32 s47, s51, s71
    s_cmp_eq_u32 s47, {F1A+3}
    s_cbranch_scc0 LC_flag
    s_mov_b32 s51, {F1B}
    """)
    vstore(1, 0); vstore(1, 1)
    A(f"""
    s_branch LC_loopB
LC_flag:
    s_mov_b32 s51, 8
    s_waitcnt vmcnt(0)
    s_branch LC_loopB
LC_epi:
    s_lshl_b32 s47, s44, 10
    s_add_u32 s47, s47, {L_H}
    v_add_u32 v4, s47, v63
    v_mov_b32 v1, v63
    s_cmp_eq_u32 s71, 3
    s_cbranch_scc1 LC_g4
    """)
    stamp(A, 4)
    n = 0
    for pr in range(2):
        if pr == 1: A('LC_g4:\ns_nop 4')
        for T in range(2):
            b = 80 + 8 * T
            for u in range(2):
                a = acc(T, 1 + 2 * pr + u)
                t = 52
                for p in range(4): A(f'v_pk_mul_f32 {v(t+2*p,2)}, {v(a+2*p,2)}, {v(a+2*p,2)}')
                for p in range(4): A(f'v_pk_fma_f32 {v(t+2*p,2)}, {v(t+2*p,2)}, {v(b,2)}, {v(b,2)} op_sel:[0,0,1] op_sel_hi:[1,0,1]')
                for p in range(4): A(f'v_pk_mul_f32 {v(t+2*p,2)}, {v(t+2*p,2)}, {v(a+2*p,2)}')
                for j in range(8): A(f'v_exp_f32 v{t+j}, v{t+j}')
                for p in range(4): A(f'v_pk_mul_f32 {v(a+2*p,2)}, {v(a+2*p,2)}, {v(a+8+2*p,2)}')
                for p in range(4): A(f'v_pk_fma_f32 {v(t+2*p,2)}, {v(t+2*p,2)}, {v(b+2,2)}, {v(b+2,2)} op_sel:[0,0,0] op_sel_hi:[1,0,0]')
                for j in range(8): A(f'v_rcp_f32 v{t+j}, v{t+j}')
                for p in range(4): A(f'v_pk_mul_f32 {v(a+2*p,2)}, {v(a+2*p,2)}, {v(t+2*p,2)}')
                for p in range(4): A(f'v_cvt_pk_bf16_f32 v{a+8+p}, v{a+2*p}, v{a+2*p+1}')
                A(f'ds_write_b128 v4, {v(a+8,4)} offset:{n*4096}')
                n += 1
    QA, QB, CA, CB, OA, OB, SA, SB, PA, PB = 8, 12, 16, 32, 48, 64, 80, 96, 112, 120
    KF = lambda b: 128 + 4 * b
    VF = lambda j: 136 + 4 * j
    A('LC_att:')
    if STAMP: A('v_mov_b32 v144, v79')
    stamp(A, 5)
    A(f'''
    v_and_b32 v5, 15, v0
    v_and_b32 v6, 11, v0
    v_cmp_eq_u32 vcc, 0, v6
    v_mov_b32 v6, {hx(ONES)}
    v_lshlrev_b32 v5, 4, v5
    v_cndmask_b32 v{VF(0)}, 0, v6, vcc
    s_lshl_b32 s47, s44, 12
    s_add_u32 s47, s47, {L_ONES}
    v_mov_b32 v{VF(0)+1}, v{VF(0)}
    v_mov_b64 {v(VF(0)+2,2)}, {v(VF(0),2)}
    v_and_b32 v7, 0x1ff, v1
    v_add_u32 v7, s47, v7
    ds_write_b128 v7, {v(VF(0),4)}
    ds_write_b128 v7, {v(VF(0),4)} offset:2048
    v_add_u32 v7, s47, v1
    v_and_b32 v6, 16, v0
    v_cmp_eq_u32 vcc, 0, v6
    v_add_u32 v5, {L_ONES-1024}, v5
    v_mov_b32 v6, {NT*2048}
    v_mov_b32 v2, v1
    v_cndmask_b32 v3, v5, v1, vcc
    v_cndmask_b32 v4, 0, v6, vcc
    s_mov_b32 {s(sIt)}, 0
    s_mov_b32 s51, 1
    ''')
    for j in range(0, 4, 2): A(f'v_mov_b64 {v(VF(1)+j,2)}, 0')
    for j in range(0, 8, 2): A(f'v_mov_b64 {v(PB+j,2)}, 0')
    A('s_waitcnt lgkmcnt(0)')
    stamp(A, 6)
    A('s_barrier')
    stamp(A, 7)
    A(f'''
    ds_read_b128 {v(QA,4)}, v7 offset:512
    ds_read_b128 {v(KF(0),4)}, v1
    ds_read_b128 {v(QB,4)}, v7 offset:2560
    ds_read_b128 {v(KF(1),4)}, v1 offset:2048
    s_waitcnt lgkmcnt(2)
    ''')
    A(mfma(SA, KF(0), QA, None))
    A('s_waitcnt lgkmcnt(0)')
    A(mfma(OA, KF(1), QA, None))
    A(mfma(SB, KF(0), QB, None))
    A(mfma(OB, KF(1), QB, None))
    A('s_nop 7')
    for (S, O, C) in ((SA, OA, CA), (SB, OB, CB)):
        A(f'v_max3_f32 v{C}, v{S}, v{S+1}, v{S+2}')
        for j in range(3, 15, 2): A(f'v_max3_f32 v{C}, v{C}, v{S+j}, v{S+j+1}')
        A(f'v_max3_f32 v{C}, v{C}, v{S+15}, v{O}')
        for j in range(1, 15, 2): A(f'v_max3_f32 v{C}, v{C}, v{O+j}, v{O+j+1}')
        A(f'v_max_f32 v{C}, v{C}, v{O+15}')
        A(f'v_mov_b32 v{C+1}, v{C}')
        A(f'v_mov_b64 {v(O,2)}, 0\nv_mov_b64 {v(O+2,2)}, 0')
        A(f'v_permlane32_swap_b32 v{C}, v{C+1}')
        A(f'v_max_f32 v{C}, v{C}, v{C+1}')
        A(f'v_sub_f32 v{C}, {hx(f2u(-BIAS))}, v{C}')
        A(f'v_mov_b32 v{C+1}, v{C}')
        for j in range(2, 16, 2): A(f'v_mov_b64 {v(C+j,2)}, {v(C,2)}')
        for j in range(4, 16, 2): A(f'v_mov_b64 {v(O+j,2)}, 0')
        if S == SA: A(mfma(SA, KF(0), QA, CA))
    stamp(A, 8)
    E = lambda S, j: A(f'v_exp_f32 v{S+j}, v{S+j}')
    Cv = lambda S, P, p: A(f'v_cvt_pk_bf16_f32 v{P+p}, v{S+2*p}, v{S+2*p+1}')
    ORD = {'even': 'm0 e0 e1 e2 e3 e4 c0 c1 m1 e5 e6 c2 e7 e8 c3 e9 e10 c4 m2 e11 e12 c5 e13 e14 e15 c6 c7',
           'tight': 'm0 e0 e1 e2 m1 e3 e4 e5 m2 c0 c1 c2 e6 e7 e8 c3 e9 e10 c4 e11 e12 c5 e13 e14 e15 c6 c7',
           'mid': 'm0 e0 e1 e2 c0 m1 e3 e4 e5 c1 m2 c2 e6 e7 e8 c3 e9 e10 c4 e11 e12 c5 e13 e14 e15 c6 c7',
           'two': 'm0 e0 e1 e2 m1 e3 e4 e5 c0 c1 e6 e7 c2 e8 e9 c3 m2 e10 c4 e11 e12 c5 e13 e14 e15 c6 c7'}[os.environ.get('ORD', 'tight')].split()
    def phase(S, P, *m):
        for t in ORD:
            if t[0] == 'm': A(m[int(t[1])])
            elif t[0] == 'e': E(S, int(t[1:]))
            else: Cv(S, P, int(t[1:]))
    if os.environ.get('CPRIO'): A('s_setprio ' + os.environ['CPRIO'])
    A('s_nop 0\n.p2align 3\nLA_loop:')
    for t in range(NT):
        kb = t & 1
        o = t * 2048
        phase(SA, PA,
              mfma(SB, KF(kb), QB, CB) + f'\nds_read_b128 {v(KF(kb),4)}, v2 offset:{o+4096}',
              mfma(OB, VF(0), PB, OB) + f'\nds_read_b128 {v(VF(0),4)}, v3 offset:{o+1024}',
              mfma(OB, VF(1), PB + 4, OB) + f'\nds_read_b128 {v(VF(1),4)}, v3 offset:{o+1280}')
        tail = ''
        if t == NT - 2: tail = f'\ns_add_u32 {s(sIt)}, {s(sIt)}, 1'
        if t == NT - 1: tail = f'\ns_cmp_lt_u32 {s(sIt)}, s51\nv_add_u32 v2, {NT*2048}, v2\nv_add_u32 v3, v4, v3'
        phase(SB, PB,
              mfma(SA, KF(kb ^ 1), QA, CA) + '\ns_waitcnt lgkmcnt(1)',
              mfma(OA, VF(0), PA, OA) + '\ns_waitcnt lgkmcnt(0)',
              mfma(OA, VF(1), PA + 4, OA) + tail)
    A(f'''
    s_cbranch_scc1 LA_loop
    s_cmp_eq_u32 s51, {64//NT}
    s_cbranch_scc1 LA_fini
    s_cmp_eq_u32 s51, 1
    s_cselect_b32 s51, {(2*NK1-2)//NT}, {64//NT}
    s_cselect_b32 s47, 4, 0
    s_add_u32 s47, s47, {L_FLAG+8}
    v_mov_b32 v5, s47
    s_mov_b32 s47, 0
LA_kvw:
    ds_read_b32 v6, v5
    s_add_u32 s47, s47, 1
    s_waitcnt lgkmcnt(0)
    v_cmp_ne_u32 vcc, 4, v6
    s_cbranch_vccz LA_loop
    s_cmp_lt_u32 s47, {SPIN * 16}
    s_cbranch_scc1 LA_kvw
    s_branch LA_loop
LA_fini:''')
    A(mfma(OB, VF(0), PB, OB)); A(mfma(OB, VF(1), PB + 4, OB))
    stamp(A, 11)
    A(f'''
    s_lshl_b32 s52, {s(sQB)}, 3
    s_lshl_b32 s47, s44, 1
    s_add_u32 s52, s52, s47
    s_lshl_b32 s52, s52, 5
    s_add_u32 s52, s52, {s(sHead)}
    s_lshl_b32 s52, s52, 10
    s_add_u32 s52, s52, {hx(OF)}
    s_mov_b32 s54, {hx(f2u(2.0**126))}
    s_mov_b32 s55, {hx(f2u(2.0**-112))}
    s_mov_b32 s56, {hx(f2u(2.0**120))}
    s_mov_b32 s57, 0
LA_fin:
    ''')
    A(f'v_add_f32 v{SA}, |v{OA}|, |v{OA+1}|')
    for j in range(2, 8): A(f'v_add_f32 v{SA}, v{SA}, |v{OA+j}|')
    A(f'''
    v_cmp_gt_f32 vcc, s54, v{SA}
    v_cmp_lt_f32 s[58:59], s55, v{SA}
    v_cmp_gt_f32 s[60:61], s56, v{OA+8}
    s_and_b64 vcc, vcc, s[58:59]
    s_and_b64 vcc, vcc, s[60:61]
    s_cmp_eq_u64 vcc, -1
    s_cbranch_scc0 LA_fallback
LA_norm:
    v_rcp_f32 v{OA+8}, v{OA+8}
    s_nop 0
    ''')
    for j in range(8): A(f'v_mul_f32 v{OA+j}, v{OA+j}, v{OA+8}')
    for p in range(4): A(f'v_cvt_pk_bf16_f32 v{PA+p}, v{OA+2*p}, v{OA+2*p+1}')
    A(f'''
    v_min_u32 v{PA}, -2, v{PA}
    buffer_store_dwordx4 {v(PA,4)}, v1, {s(sWS,4)}, s52 offen sc1
    s_cmp_eq_u32 s57, 1
    s_cbranch_scc1 LA_done
    s_mov_b32 s57, 1
    s_add_u32 s52, s52, 0x8000
    ''')
    for j in range(0, 10, 2): A(f'v_mov_b64 {v(OA+j,2)}, {v(OB+j,2)}')
    for j in range(0, 4, 2): A(f'v_mov_b64 {v(QA+j,2)}, {v(QB+j,2)}')
    A('s_branch LA_fin\nLA_done:')
    stamp(A, 12)
    stamp_end(A, sWS, sW, tr=144)
    A('s_endpgm')
    A(f'''
LA_fallback:
    v_mov_b32 v{CA}, 0xff800000
    v_mov_b32 v2, v1
    s_mov_b32 {s(sIt)}, 0
LA_fb1:
    ds_read_b128 {v(KF(0),4)}, v2
    v_add_u32 v2, 0x800, v2
    s_waitcnt lgkmcnt(0)
    ''')
    A(mfma(SA, KF(0), QA, None))
    A('s_nop 11')
    for j in range(0, 16, 2): A(f'v_max3_f32 v{CA}, v{CA}, v{SA+j}, v{SA+j+1}')
    A(f'''
    s_add_u32 {s(sIt)}, {s(sIt)}, 1
    s_cmp_lt_u32 {s(sIt)}, 64
    s_cbranch_scc1 LA_fb1
    v_mov_b32 v{CA+1}, v{CA}
    v_cmp_eq_u32 vcc, 0, v4
    v_lshrrev_b32 v6, {NT.bit_length()-1}, v4
    v_permlane32_swap_b32 v{CA}, v{CA+1}
    v_max_f32 v{CA}, v{CA}, v{CA+1}
    v_sub_f32 v{CA}, 0, v{CA}
    v_cndmask_b32 v3, v1, v3, vcc
    ''')
    for j in range(1, 16): A(f'v_mov_b32 v{CA+j}, v{CA}')
    for j in range(0, 16, 2): A(f'v_mov_b64 {v(OA+j,2)}, 0')
    A(f'''
    v_mov_b32 v2, v1
    s_mov_b32 {s(sIt)}, 0
LA_fb2:
    ds_read_b128 {v(KF(0),4)}, v2
    ds_read_b128 {v(VF(0),4)}, v3 offset:1024
    ds_read_b128 {v(VF(1),4)}, v3 offset:1280
    v_add_u32 v2, 0x800, v2
    v_add_u32 v3, v6, v3
    s_waitcnt lgkmcnt(0)
    ''')
    A(mfma(SA, KF(0), QA, CA))
    A('s_nop 11')
    for j in range(16): E(SA, j)
    A('s_nop 0')
    for p in range(8): Cv(SA, PA, p)
    A('s_nop 1')
    A(mfma(OA, VF(0), PA, OA)); A(mfma(OA, VF(1), PA + 4, OA))
    A(f'''
    s_add_u32 {s(sIt)}, {s(sIt)}, 1
    s_cmp_lt_u32 {s(sIt)}, 64
    s_cbranch_scc1 LA_fb2
    s_nop 11
    s_branch LA_norm
    ''')

def main(out):
    A = Asm()
    top = f'''; out = x + (MHA(LN x) @ wo) * silu(GEGLU-FFN(LN x)); one persistent launch, 256 workgroups (generated by gen/gen4.py)
; @launch grid=(256,1,1) block=(512,1,1) lds={LDS_BYTES}
.amdgcn_target "amdgcn-amd-amdhsa--gfx950"
.text
'''
    gen(A)
    tail = f'''.section .rodata,"a"
.p2align 6
.amdhsa_kernel {NAME}_kernel
  .amdhsa_next_free_vgpr 256
  .amdhsa_next_free_sgpr 100
  .amdhsa_accum_offset 256
  .amdhsa_group_segment_fixed_size 0
  .amdhsa_kernarg_size 80
  .amdhsa_user_sgpr_count 2
  .amdhsa_user_sgpr_kernarg_segment_ptr 1
  .amdhsa_system_sgpr_workgroup_id_x 1
.end_amdhsa_kernel
'''
    open(out, 'w').write(top + A.text() + tail)

if __name__ == '__main__':
    main(sys.argv[1] if len(sys.argv) > 1 else 'cdna_kernels/%s.s' % NAME)
```

```python
import struct, sys, math, os

NAME = 'recurrent_scan__mha_block__glu_gated_geglu__prompt'
def f2u(x): return struct.unpack('<I', struct.pack('<f', x))[0]
def hx(x): return '0x%x' % (x & 0xffffffff)
class Asm:
    def __init__(self): self.l = []
    def __call__(self, s):
        for line in s.split('\n'):
            line = line.strip()
            if not line: continue
            self.l.append(line if line.endswith(':') or line.startswith('.') else '    ' + line)
    def text(self): return '\n'.join(self.l) + '\n'
def v(a, n=1): return 'v%d' % a if n == 1 else 'v[%d:%d]' % (a, a + n - 1)
def s(a, n=1): return 's%d' % a if n == 1 else 's[%d:%d]' % (a, a + n - 1)
def mfma(d, a, b, c):
    return 'v_mfma_f32_32x32x16_bf16 %s, %s, %s, %s' % (v(d, 16), v(a, 4), v(b, 4), '0' if c is None else v(c, 16))

QF  = 0x000000
KV  = 0x200000
HF  = 0x600000
OF  = 0xD00000
CSP = 0x1200000
RSP = 0x1280000
FL  = 0x13C0000
FH  = 0x13C8000
NW  = 0x13D0000
STB = 0x1400000
WS_BYTES = 0x1500000
LOG2E = 1.4426950408889634
ONES = 0x3f803f80
SPIN = 1 << 18

LIGHT = os.environ.get('STAMP') == '2'
STAMP = os.environ.get('STAMP') == '1'
EXP = set(os.environ.get('EXP', '').split(','))
BIAS = float(os.environ.get('BIAS', '100'))
NFL = int(os.environ.get('NFL', '4'))

TM = 's_memrealtime' if os.environ.get('RT') else 's_memtime'
_seen = set()
def stamp(A, idx, real=False):
    if 'frozen' in EXP and idx in (5, 6, 7, 8, 9, 10, 11, 12) and not any('L_C:' == x for x in A.l): return
    if not STAMP and not (LIGHT and idx in (0, 13, 14, 15)): return
    if 'e1' in EXP and A.l and any('L_C:' == x for x in A.l):
        if idx in _seen: return
        _seen.add(idx)
    A('%s s[78:79]\ns_waitcnt lgkmcnt(0)\ns_mov_b32 s%d, s78' % ('s_memrealtime' if real or os.environ.get('RT') else 's_memtime', 80 + idx))
def stamp_begin(A):
    if not STAMP and not LIGHT: return
    for i in range(16): A('s_mov_b32 s%d, 0' % (80 + i))
    stamp(A, 14, True); stamp(A, 0)
def stamp_end(A, sWS, sW, vt=3, tr=None):
    if not STAMP and not (LIGHT and tr is None): return
    A('s_waitcnt vmcnt(0)')
    stamp(A, 13); stamp(A, 15, True)
    A('s_nop 4')
    if tr is not None: A('v_mov_b32 v%d, v%d' % (vt, tr))
    for i in range(16): A('v_writelane_b32 v%d, s%d, %d' % (vt, 80 + i, i))
    A('''s_lshl_b32 s78, s2, 3
    s_add_u32 s78, s78, s%d
    s_lshl_b32 s78, s78, 7
    s_add_u32 s78, s78, %s
    v_lshlrev_b32 v%d, 2, v0
    s_mov_b64 exec, 0xffffffff
    buffer_store_dword v%d, v%d, s[%d:%d], s78 offen''' % (sW, hx(STB), vt + 1, vt, vt + 1, sWS, sWS + 3))

PAN, APAN = 4224, 4352
WST = 2 * PAN + APAN
XST = 16 * 1040
L_X = 6 * WST
L_CS = L_X + 4 * XST
L_RS = L_CS + 10 * 256
L_ONES = 131072
L_EX = L_ONES + 7 * 2048 + 1536
assert L_RS + 1024 <= L_EX
L_H = 98304
L_FLAG = L_EX + 16384
L_NON = L_FLAG + 4
LDS_BYTES = L_FLAG + 64
assert LDS_BYTES <= 163840
NT = 8
F1N, F1A, F1B = [int(t) for t in os.environ.get('F1IT', '2,1,4').split(',')]
NK1 = int(os.environ.get('NK1', '13'))

sX, sA, sH0, sH1, sWS, sPK, sDBG = 16, 20, 24, 28, 32, 36, 12
sP0, sP1 = 36, 12
sRB, sCG, sW, sHead, sQB = 40, 41, 42, 74, 75

def flag_store(A, soff, vt):
    A(f'''
    s_mov_b64 exec, 1
    buffer_store_dword v{vt}, off, {s(sWS,4)}, {soff} sc1
    s_mov_b64 exec, -1
    ''')

def gen(A):
    K = NAME + '_kernel'
    A(f'.globl {K}\n.p2align 8\n.type {K},@function\n{K}:')
    A('''
    s_cmp_ge_u32 s2, 256
    s_cbranch_scc1 L_end
    ''')
    stamp_begin(A)
    A(f'''
    v_lshrrev_b32 v1, 6, v0
    s_getpc_b64 s[4:5]
L_pc:
    v_readfirstlane_b32 {s(sW)}, v1
    s_and_b32 s47, s2, 0xf8
    s_load_dwordx2 {s(sX,2)}, s[0:1], 0
    s_add_u32 s47, s47, {s(sW)}
    s_lshl_b32 s47, s47, 6
    s_load_dword s6, s[4:5], s47
    s_add_u32 s47, s47, 0x4000
    s_min_u32 s47, s47, L_code_end-L_pc-4
    s_load_dword s7, s[4:5], s47
    s_load_dwordx2 {s(sA,2)}, s[0:1], 8
    s_load_dwordx2 {s(sH0,2)}, s[0:1], 32
    s_load_dwordx2 {s(sH1,2)}, s[0:1], 40
    s_load_dwordx2 {s(sWS,2)}, s[0:1], 72
    v_and_b32 v0, 63, v0
    s_and_b32 s3, s2, 7
    s_lshr_b32 s43, s2, 3
    s_lshr_b32 {s(sRB)}, s3, 2
    s_lshl_b32 {s(sRB)}, {s(sRB)}, 3
    s_and_b32 s70, s43, 7
    s_add_u32 {s(sRB)}, {s(sRB)}, s70
    s_and_b32 {s(sCG)}, s3, 3
    s_lshl_b32 {s(sCG)}, {s(sCG)}, 2
    s_lshr_b32 s71, s43, 3
    s_add_u32 {s(sCG)}, {s(sCG)}, s71
    s_and_b32 s44, {s(sW)}, 3
    s_lshr_b32 s45, s44, 1
    s_and_b32 s46, s44, 1
    s_mov_b32 {s(sWS+2)}, {hx(WS_BYTES)}
    s_mov_b32 {s(sWS+3)}, 0x20000
    s_mov_b32 {s(sX+2)}, 2097152
    s_mov_b32 {s(sX+3)}, 0x20000
    s_mov_b32 {s(sA+2)}, 1572864
    s_mov_b32 {s(sA+3)}, 0x20000
    s_lshl_b32 {s(sHead)}, s3, 2
    s_add_u32 {s(sHead)}, {s(sHead)}, s71
    s_mov_b32 {s(sQB)}, s70
    ''')
    patterns = f'''
    v_bfe_u32 v5, v0, 4, 1
    v_bfe_u32 v6, v0, 2, 2
    v_lshrrev_b32 v7, 5, v0
    v_and_b32 v1, 3, v0
    v_lshlrev_b32 v1, 3, v1
    v_lshl_add_u32 v1, v7, 8, v1
    v_mul_u32_u24 v2, {PAN}, v5
    v_mul_u32_u24 v8, 1056, v6
    v_add3_u32 v2, v2, v8, v1
    v_mul_u32_u24 v8, 1088, v6
    v_lshl_add_u32 v3, v5, 5, v8
    v_add_u32 v3, v3, v1
    v_and_b32 v8, 15, v0
    v_mul_u32_u24 v8, 1040, v8
    v_lshl_add_u32 v4, v5, 8, v8
    v_lshl_add_u32 v4, v7, 4, v4
    s_lshl_b32 s47, s45, 6
    v_add_u32 v2, s47, v2
    s_add_u32 s47, s47, {2*PAN}
    v_add_u32 v3, s47, v3
    '''
    A(f'''
    s_and_b32 s47, {s(sW)}, 6
    s_cmp_eq_u32 s47, 4
    s_cbranch_scc1 L_L
    ''')
    if 'tlb' in EXP:
        A(f'''
        s_load_dwordx2 s[8:9], s[0:1], 16
        s_load_dwordx4 s[12:15], s[0:1], 48
        s_lshl_b32 s47, {s(sW)}, 21
        s_add_u32 s48, s47, {hx(0x400000)}
        s_waitcnt lgkmcnt(0)
        s_load_dword s6, {s(sA,2)}, 0
        s_load_dword s6, {s(sH0,2)}, 0
        s_load_dword s6, {s(sH1,2)}, 0
        s_load_dword s6, {s(sWS,2)}, s47
        s_load_dword s6, {s(sWS,2)}, s48
        s_load_dword s6, s[8:9], 0
        s_load_dword s6, s[12:13], 0
        s_load_dword s6, s[14:15], 0
        ''')
    A(f'''
    s_cmp_lt_u32 {s(sW)}, 4
    s_cbranch_scc1 L_C
    s_branch L_M
L_L:
    ''')
    gen_H(A, patterns)
    gen_C(A, patterns)
    A('L_end:\ns_endpgm\nL_code_end:')

def gen_H(A, patterns):
    sStrH, sColH = 48, 49
    sRowA, sRowH, sMH, sMA, sMX, sXo, sRot, sG = 50, 51, 52, 53, 54, 55, 59, 60
    ROTM = int(os.environ.get('ROTM', '7'))
    sStr, sRowP, sRowA, sRowB, sMA, sMB, sMX, sXo, sRot, sGA, sGB, sJ = 48, 49, 50, 51, 52, 53, 54, 55, 59, 60, 56, 57
    A(f"""
    v_lshrrev_b32 v8, 3, v0
    v_and_b32 v9, 7, v0
    v_lshlrev_b32 v9, 4, v9
    v_and_b32 v13, 4, v8
    v_bfe_u32 v14, v8, 1, 1
    v_and_b32 v15, 1, v8
    v_lshl_add_u32 v14, v15, 1, v14
    v_add_u32 v13, v13, v14
    v_lshl_add_u32 v13, v13, 14, v9
    s_lshl_b32 s47, {s(sRB)}, 17
    s_lshl_b32 s61, s46, 12
    s_add_u32 s47, s47, s61
    v_add_u32 v13, s47, v13
    s_lshl_b32 s62, s71, 1
    s_add_u32 {s(sRot)}, s70, s62
    s_and_b32 s47, s3, 1
    s_add_u32 {s(sRot)}, {s(sRot)}, s47
    s_and_b32 {s(sRot)}, {s(sRot)}, 7
    s_lshl_b32 {s(sXo)}, {s(sRot)}, 7
    s_lshl_b32 {s(sRot)}, {s(sRot)}, 1
    s_mul_i32 s58, s46, 4160
    s_add_u32 s58, s58, {L_X}
    s_mov_b32 {s(sMX)}, s58
    s_mov_b32 {s(sJ)}, 0
    s_and_b32 s64, s3, 3
    s_mul_i32 s65, s64, 7
    s_add_u32 s65, s65, s62
    s_lshl_b32 s65, s65, 7
    s_add_u32 s66, s65, 128
    s_lshl_b32 s64, s64, 8
    s_add_u32 s64, s64, 2048
    s_cmp_lt_u32 s71, 3
    s_mov_b32 {s(sP0+2)}, 1572864
    s_cmov_b32 {s(sP0+2)}, 1835008
    s_mov_b32 {s(sP1+2)}, {1572864-128}
    s_cmov_b32 {s(sP1+2)}, 1835008
    s_mov_b32 {s(sP0+3)}, 0x20000
    s_mov_b32 {s(sP1+3)}, 0x20000
    s_movk_i32 {s(sStr)}, 3072
    s_cmovk_i32 {s(sStr)}, 3584
    s_cselect_b32 s64, s65, s64
    s_cselect_b32 s65, s66, s65
    s_lshl_b32 s47, s46, 1
    v_lshl_add_u32 v10, v8, 2, s47
    v_mul_u32_u24 v11, 3072, v10
    s_lshl_b32 s47, {s(sCG)}, 7
    v_add3_u32 v11, v11, v9, s47
    v_mul_lo_u32 v18, v10, {s(sStr)}
    v_add3_u32 v18, v18, v9, s64
    v_add_u32 v19, {s(sStr)}, v18
    s_lshl_b32 {s(sStr)}, {s(sStr)}, 5
    s_mul_i32 {s(sRowA)}, {s(sRot)}, {32*3072}
    s_mul_i32 {s(sRowP)}, {s(sRot)}, {s(sStr)}
    s_mul_i32 {s(sMA)}, s46, 2112
    s_add_u32 {s(sMA)}, {s(sMA)}, {2*WST}
    s_lshl_b32 s69, s46, 6
    s_mov_b32 {s(sGA)}, 0
    s_waitcnt lgkmcnt(0)
    """)
    sel = f"""
    s_add_u32 s62, {s(sA)}, 128
    s_addc_u32 s63, {s(sA+1)}, 0
    s_cmp_lt_u32 s71, 3
    s_cselect_b64 {s(sP0,2)}, {s(sH0,2)}, {s(sA,2)}
    s_cselect_b64 {s(sP1,2)}, {s(sH1,2)}, s[62:63]
    """
    setup2 = f"""
    s_mov_b32 {s(sH0+2)}, 1835008
    s_mov_b32 {s(sH1+2)}, 1835008
    s_mov_b32 {s(sH0+3)}, 0x20000
    s_mov_b32 {s(sH1+3)}, 0x20000
    v_mul_u32_u24 v16, 3584, v10
    v_add3_u32 v16, v16, v9, s65
    v_add_u32 v17, 3584, v16
    s_add_u32 s47, {s(sRot)}, 14
    s_and_b32 s47, s47, 15
    s_mul_i32 {s(sRowB)}, s47, {32*3584}
    s_mul_i32 {s(sMB)}, s46, 2112
    s_add_u32 {s(sMB)}, {s(sMB)}, {4*WST}
    s_mov_b32 {s(sGB)}, 0
    """
    ops = []
    def call(tag):
        name = {'X': 'LL_X', 'A': 'LL_A', 'B': 'LL_B', 'p': 'LH_pp'}[tag[0]]
        A(f's_call_b64 s[8:9], {name}')
        ops.extend([tag] * {'LL_X': 4, 'LL_A': 6, 'LL_B': 4, 'LH_pp': 4}[name])
    def bar(*need):
        if need:
            assert all(t in ops for t in need), need
            last = max(i for i, t in enumerate(ops) if t in need)
            if len(ops) - 1 - last < 64: A(f's_waitcnt vmcnt({len(ops) - 1 - last})')
        A('s_barrier')
    def bodyX():
        ld = [(f's_add_u32 m0, {s(sMX)}, {16*i}', f'buffer_load_dwordx4 v13, {s(sX,4)}, {s(sXo)} offen offset:{1024*i} lds') for i in range(4)]
        pre = [f's_add_u32 {s(sJ)}, {s(sJ)}, 1', f's_lshr_b32 s67, {s(sJ)}, 1', 's_sub_u32 s68, 11, s67',
               f's_cmp_lt_u32 {s(sJ)}, 16\ns_cselect_b32 s67, s67, s68']
        post = ['s_and_b32 s68, s67, 3\ns_lshl_b32 s68, s68, 1', f's_and_b32 s62, {s(sJ)}, 1\ns_add_u32 s68, s68, s62',
                f's_mul_i32 s68, s68, {XST//2}\ns_add_u32 {s(sMX)}, s68, s58\ns_lshl_b32 s67, s67, 1',
                f's_add_u32 s67, s67, {s(sRot)}\ns_and_b32 s67, s67, 15\ns_lshl_b32 s67, s67, 6\ns_lshl_b32 s62, s62, 13\ns_add_u32 {s(sXo)}, s67, s62']
        return ld, pre, post
    def bodyA():
        ld = [(f's_add_u32 m0, {s(sMA)}, {hf*PAN+1056*bb}', f'buffer_load_dwordx4 v{18+bb}, {s(sP0 if hf == 0 else sP1,4)}, {s(sRowP)} offen lds')
              for hf in range(2) for bb in range(2)]
        ld += [(f's_add_u32 m0, s61, {2*PAN+(1088-3072)*bb}', f'buffer_load_dwordx4 v11, {s(sA,4)}, {s(sRowA)} offen offset:{3072*bb} lds') for bb in range(2)]
        pre = [f's_add_u32 {s(sGA)}, {s(sGA)}, 1', f's_add_u32 s47, {s(sGA)}, {s(sRot)}', 's_and_b32 s47, s47, 15', f's_add_u32 s61, {s(sMA)}, s69',
               f's_mul_i32 {s(sRowP)}, s47, {s(sStr)}\ns_add_u32 {s(sMA)}, {s(sMA)}, {WST}',
               f's_cmp_ge_u32 {s(sMA)}, {4*WST}\ns_cselect_b32 s63, {4*WST}, 0\ns_sub_u32 {s(sMA)}, {s(sMA)}, s63']
        post = [f's_mul_i32 {s(sRowA)}, s47, {32*3072}']
        return ld, pre, post
    def bodyB():
        ld = [(f's_add_u32 m0, {s(sMB)}, {hf*PAN+1056*bb}', f'buffer_load_dwordx4 v{16+bb}, {s(sH0 if hf == 0 else sH1,4)}, {s(sRowB)} offen lds')
              for hf in range(2) for bb in range(2)]
        pre = [f's_add_u32 {s(sGB)}, {s(sGB)}, 1', f's_xor_b32 s47, {s(sGB)}, 14', f's_add_u32 s47, s47, {s(sRot)}\ns_and_b32 s47, s47, 15',
               f's_bitcmp1_b32 {s(sGB)}, 0\ns_mov_b32 s63, {3*WST}\ns_cmov_b32 s63, {WST}\ns_add_u32 {s(sMB)}, {s(sMB)}, s63\ns_cmp_ge_u32 {s(sMB)}, {6*WST}\ns_cselect_b32 s63, {6*WST}, 0\ns_sub_u32 {s(sMB)}, {s(sMB)}, s63']
        post = [f's_mul_i32 {s(sRowB)}, s47, {32*3584}']
        return ld, pre, post
    def emit(*bodies):
        carry = []
        for ld, pre, post in bodies:
            for i, (m, l) in enumerate(ld):
                A(m); A(pre[i])
                if carry: A(carry.pop(0))
                A(l)
            for t in carry: A(t)
            carry = list(post)
        for t in carry: A(t)
    if 'st0' in EXP: stamp(A, 9)
    call('X0'); A(sel)
    if 'st0' in EXP: stamp(A, 10)
    call('X1')
    if 'st0' in EXP: stamp(A, 7)
    call('A0')
    if 'st0' in EXP: stamp(A, 6)
    call('A1')
    if 'st0' in EXP: stamp(A, 11)
    A('s_branch LL_go\nLL_X:')
    emit(bodyX())
    A('s_setpc_b64 s[8:9]\nLL_A:')
    emit(bodyA())
    A('s_setpc_b64 s[8:9]\nLL_go:')
    A(setup2)
    A('s_call_b64 s[8:9], LH_prep')
    if 'st0' in EXP:
        stamp(A, 12); A('s_waitcnt vmcnt(12)'); stamp(A, 8); A('s_waitcnt vmcnt(6)'); stamp(A, 5); EXP.add('frozen')
    def need(c):
        n = [f'A{c}' if c < 16 else f'B{c-16}']
        if c % 2 == 0 and c < 16: n += [f'X{c}', f'X{c+1}']
        if c % 2 == 0 and c >= 24: n += [f'X{c-8}', f'X{c-7}']
        if c == 2: n += ['B0', 'B1']
        return n
    def dist(c):
        return len(ops) - 1 - max(i for i, t in enumerate(ops) if t in need(c))
    def loop(label, c0, c1, second, cnt, lim):
        A(f's_waitcnt vmcnt({dist(c0)})\n{label}:\ns_barrier')
        emit(bodyX(), second())
        w = 63
        for c in range(c0, c1 + 1):
            ops.extend([f'X{c+4 if c < 16 else c-2}'] * 4 + ([f'A{c+3}'] * 6 if c < 16 else [f'B{c-11}'] * 4))
            if c < c1: w = min(w, dist(c + 1))
        A(f's_cmp_lt_u32 {cnt}, {lim}\ns_waitcnt vmcnt({w})\ns_cbranch_scc1 {label}')
    sched = {0: 'X2,X3,B0,B1', 1: 'A2,A3,X4,X5,A4', 12: 'A15', 13: 'B2', 14: 'B3', 15: 'B4', 16: 'B5', 17: 'B6', 26: 'B15'}
    if os.environ.get('LS0'): sched[0], sched[1] = os.environ['LS0'].split('/')
    c = 0
    while c < 32:
        if c == 2:
            loop('LL_loopA', 2, 11, bodyA, s(sGA), 15); c = 12; continue
        if c == 18:
            loop('LL_loopB', 18, 25, bodyB, s(sGB), 15); c = 26; continue
        bar(*need(c))
        if c == 27:
            A(f"""
    v_mov_b32 v9, {L_NON}
    ds_read_b32 v3, v9
    s_call_b64 s[8:9], LH_prep2
    s_mov_b32 s52, {hx(FL)}
    s_lshl_b32 s61, {s(sHead)}, 3
    s_add_u32 s61, s61, {s(sQB)}
    s_lshl_b32 s61, s61, 13
    s_lshl_b32 s47, s46, 12
    s_add_u32 s61, s61, s47
    s_lshl_b32 s62, s46, 13
    s_add_u32 s62, s62, {L_ONES+512}
    s_lshl_b32 s63, s46, 10
    s_lshl_b32 s47, {s(sHead)}, 17
    s_add_u32 s47, s47, {hx(KV)}
    s_add_u32 s47, s47, s63
    s_mov_b32 s53, 0
    """)
        if c == 30:
            A(f"""
    s_cmp_eq_u32 s71, {3 if 'noearly' not in EXP else 9}
    s_cselect_b32 s55, s52, 0x2000000
    buffer_load_dword v241, v251, {s(sWS,4)}, s55 offen sc1
    """)
            ops.append('poll')
        for t in sched.get(c, '').split(','):
            if t: call(t)
        c += 1
    A(f"""
    s_setprio 2
    s_barrier
    s_cmp_eq_u32 s55, s52
    s_cbranch_scc1 LL_f1c
    s_sleep {os.environ.get('SL1', '6')}
LL_f1:
    buffer_load_dword v241, v251, {s(sWS,4)}, s52 offen sc1
LL_f1c:
    s_add_u32 s53, s53, 1
    s_waitcnt vmcnt(0) lgkmcnt(0)
    v_cmp_ne_u32 vcc, v3, v241
    s_cbranch_vccz LL_f1ok
    s_sleep 4
    s_cmp_lt_u32 s53, {SPIN}
    s_cbranch_scc1 LL_f1
LL_f1ok:
    """)
    stamp(A, 1)
    if STAMP: A('s_add_u32 s82, s53, s80')
    A('s_call_b64 s[8:9], LL_qkv\ns_branch LH_join\nLL_qkv:')
    for i in range(4):
        A(f's_add_u32 m0, s62, {1024*i}\ns_nop 0\nbuffer_load_dwordx4 v1, {s(sWS,4)}, s61 offen offset:{1024*i} sc1 lds')
    A(f"""
    s_mov_b32 m0, s63
    s_nop 0
LL_kv:
    buffer_load_dwordx4 v1, {s(sWS,4)}, s47 offen sc1 lds
    buffer_load_dwordx4 v1, {s(sWS,4)}, s47 offen offset:2048 sc1 lds
    s_add_u32 m0, m0, 4096
    s_add_u32 s47, s47, 4096
    s_cmp_lt_u32 m0, 20480
    s_cbranch_scc1 LL_kv
    s_setpc_b64 s[8:9]
LL_B:
    """)
    emit(bodyB())
    A(f"""
    s_setpc_b64 s[8:9]
    """)
    CS, RS = 16, 24
    WF, XF = 32, 52
    sOne = 73
    A(f"""
L_M:
    s_setprio {os.environ.get('MPRIO', '0')}
    s_mov_b32 s45, s46
    """)
    A(patterns)
    A(f"""
    s_mov_b32 s45, 1
    s_mov_b32 {s(sOne)}, {hx(ONES)}
    s_lshl_b32 s47, s46, 9
    s_add_u32 s47, s47, {L_X}
    v_add_u32 v4, s47, v4
    v_lshlrev_b32 v1, 4, v0
    s_mov_b32 s50, 0
    """)
    for i in range(16, 28, 2): A(f'v_mov_b64 {v(i,2)}, 0')
    A(f's_mov_b32 s47, {hx(NW)}\ns_waitcnt lgkmcnt(0)\nbuffer_load_dword v30, off, {s(sWS,4)}, s47 sc1')
    nb = -1
    def bars(upto):
        nonlocal nb
        while nb < upto:
            A('s_barrier'); nb += 1
    A('s_call_b64 s[8:9], LH_prep')
    if 'st0' in EXP:
        EXP.discard('frozen'); stamp(A, 9); EXP.add('frozen')
    XF = 44
    A(f"""
    v_add_u32 v10, {4*WST}, v2
    v_add_u32 v2, {2*WST}, v2
    v_add_u32 v3, {2*WST}, v3
LM_stat:
    s_bitcmp1_b32 s50, 0
    s_cbranch_scc1 LM_nobar
    s_barrier
LM_nobar:
    ds_read_b128 {v(XF,4)}, v4
    ds_read_b128 {v(XF+4,4)}, v4 offset:128
    ds_read_b64_tr_b16 {v(WF,2)}, v3
    ds_read_b64_tr_b16 {v(WF+2,2)}, v3 offset:128
    """)
    for u in range(2):
        A(f'ds_read_b64_tr_b16 {v(WF+4+4*u,2)}, v2 offset:{u*32}')
        A(f'ds_read_b64_tr_b16 {v(WF+6+4*u,2)}, v2 offset:{u*32+128}')
    A(f"""
    s_movk_i32 s47, 512
    s_cmovk_i32 s47, {WST-512}
    v_add_u32 v2, s47, v2
    v_add_u32 v3, s47, v3
    v_add_u32 v4, 32, v4
    s_add_u32 s50, s50, 1
    s_waitcnt lgkmcnt(6)
    """)
    for j in range(4):
        for T in range(2):
            A(f'v_dot2c_f32_bf16 v{RS+2*T}, {s(sOne)}, v{XF+4*T+j}')
            A(f'v_dot2c_f32_bf16 v{RS+2*T+1}, v{XF+4*T+j}, v{XF+4*T+j}')
    A('s_waitcnt lgkmcnt(0)')
    for j in range(4):
        for i in range(3):
            A(f'v_dot2c_f32_bf16 v{CS+i}, {s(sOne)}, v{WF+4*i+j}')
    A(f"""
    s_cmp_lt_u32 s50, 4
    s_cbranch_scc1 LM_stat
    s_barrier
    """)
    nb = 2
    for q in range(4):
        for u in range(2):
            for rd in range(2):
                A(f'ds_read_b64_tr_b16 {v(WF+8*q+4*u+2*rd,2)}, v10 offset:{(q>>1)*WST+(4*(q&1)+rd)*128+u*32}')
        if q == 2: A('s_waitcnt lgkmcnt(4)')
    A(f"""
    s_lshl_b32 s50, {s(sCG)}, 4
    s_add_u32 s50, s50, {s(sRB)}
    s_lshl_b32 s50, s50, 1
    s_add_u32 s50, s50, s46
    s_lshl_b32 s50, s50, 10
    s_add_u32 s50, s50, {hx(CSP)}
    s_lshl_b32 s51, {s(sRB)}, 4
    s_add_u32 s51, s51, {s(sCG)}
    s_lshl_b32 s51, s51, 1
    s_add_u32 s51, s51, s46
    s_lshl_b32 s51, s51, 10
    s_add_u32 s51, s51, {hx(RSP)}
    s_waitcnt lgkmcnt(0)
    """)
    for hh in range(2):
        for q in (2 * hh, 2 * hh + 1):
            for j in range(4):
                for u in range(2):
                    r = WF + 8 * q + 4 * u + j
                    A(f'v_lshlrev_b32 v28, 16, v{r}\nv_and_b32 v29, 0xffff0000, v{r}\nv_add_f32 v{CS+3+u}, v{CS+3+u}, v28\nv_add_f32 v{CS+5+u}, v{CS+5+u}, v29')
        bars(nb + 1)
    A(f"""
    v_add_f32 v{CS+3}, v{CS+3}, v{CS+5}
    v_add_f32 v{CS+4}, v{CS+4}, v{CS+6}
    s_mov_b32 s47, 1664525
    s_waitcnt vmcnt(0)
    v_mul_lo_u32 v30, v30, s47
    v_add_u32 v30, 1013904223, v30
    """)
    for i in range(5): A(f'v_mov_b32 v{WF+i}, v{CS+i}')
    for i in range(4): A(f'v_mov_b32 v{WF+8+i}, v{RS+i}')
    A('v_cmp_gt_u32 vcc, 32, v0')
    for i in range(5): A(f'v_permlane32_swap_b32 v{CS+i}, v{WF+i}')
    for i in range(4): A(f'v_permlane32_swap_b32 v{RS+i}, v{WF+8+i}')
    for i in range(5): A(f'v_add_f32 v{CS+i}, v{CS+i}, v{WF+i}')
    for i in range(4): A(f'v_add_f32 v{RS+i}, v{RS+i}, v{WF+8+i}')
    A(f"""
    v_cndmask_b32 v{CS}, v{CS+3}, v{CS}, vcc
    v_cndmask_b32 v{CS+1}, v{CS+4}, v{CS+1}, vcc
    v_mov_b32 v{CS+3}, v30
    v_cndmask_b32 v{RS}, v{RS+2}, v{RS}, vcc
    v_cndmask_b32 v{RS+1}, v{RS+3}, v{RS+1}, vcc
    v_mov_b32 v{RS+3}, v30
    buffer_store_dwordx4 {v(CS,4)}, v1, {s(sWS,4)}, s50 offen sc1
    buffer_store_dwordx4 {v(RS,4)}, v1, {s(sWS,4)}, s51 offen sc1
    """)
    bars(nb + 1)
    A(f"""
    s_and_b32 s50, s50, {hx(~0x3800)}
    s_and_b32 s51, s51, {hx(~0x3800)}
    v_lshlrev_b32 v8, 2, v0
    v_mov_b32 v9, {L_FLAG}
    v_mov_b32 v29, 0
    ds_write_b32 v9, v29
    ds_write_b32 v9, v30 offset:4
    ds_write_b32 v9, v29 offset:8
    ds_write_b32 v9, v29 offset:12
    """)
    B_GAT, B_RED = [int(t) for t in os.environ.get('MSCHED', '11,15').split(',')]
    A('v_mov_b32 v3, v30')
    bars(B_GAT)
    GC, GR = 32, 64
    A('s_mov_b32 s53, 0\nLM_gat:\ns_mov_b32 s47, s50\ns_mov_b32 s61, s51')
    for i in range(8):
        A(f'buffer_load_dwordx4 {v(GR+4*i,4)}, v1, {s(sWS,4)}, s61 offen offset:{2048*(i&1)} sc1')
        A(f'buffer_load_dwordx4 {v(GC+4*i,4)}, v1, {s(sWS,4)}, s47 offen offset:{2048*(i&1)} sc1')
        if i & 1 and i < 7: A('s_add_u32 s47, s47, 4096\ns_add_u32 s61, s61, 4096')
    A('s_cmp_lg_u32 s53, 0\ns_cbranch_scc1 LM_chk')
    bars(B_RED - 1)
    A('LM_chk:\ns_waitcnt vmcnt(0)\ns_add_u32 s53, s53, 1')
    A(f'v_xor_b32 v10, v30, v{GC+3}')
    for r in [GC + 4 * i + 3 for i in range(1, 16)]:
        A(f'v_xor_b32 v11, v30, v{r}\nv_or_b32 v10, v10, v11')
    A(f"""
    v_cmp_ne_u32 vcc, 0, v10
    s_cbranch_vccz LM_red
    s_cmp_lt_u32 s53, {SPIN}
    s_cbranch_scc1 LM_gat
LM_red:
    """)
    stamp(A, 1)
    for i in range(1, 8):
        for t in range(3):
            if t < 2: A(f'v_add_f32 v{GR+t}, v{GR+t}, v{GR+4*i+t}')
            A(f'v_add_f32 v{GC+t}, v{GC+t}, v{GC+4*i+t}')
    bars(B_RED)
    SUM, SQ = GR, GR + 1
    A(f"""
    s_mul_i32 s47, s46, {5*256}
    s_add_u32 s47, s47, {L_CS}
    v_add_u32 v10, s47, v8
    s_lshl_b32 s47, s46, 9
    s_add_u32 s47, s47, {L_RS}
    v_lshl_add_u32 v9, v0, 3, s47
    v_cmp_gt_u32 vcc, 32, v0
    v_mul_f32 v{SUM}, {hx(f2u(-1.0/512))}, v{SUM}
    v_mul_f32 v{SQ}, {hx(f2u(1.0/512))}, v{SQ}
    v_fma_f32 v{SQ}, -v{SUM}, v{SUM}, v{SQ}
    v_max_f32 v{SQ}, 0, v{SQ}
    v_cvt_pk_bf16_f32 v{SQ}, v{SQ}, v{SQ}
    v_and_b32 v{SQ}, 0xffff0000, v{SQ}
    v_add_f32 v{SQ}, {hx(f2u(1e-5))}, v{SQ}
    v_cvt_pk_bf16_f32 v{SQ}, v{SQ}, v{SQ}
    v_and_b32 v{SQ}, 0xffff0000, v{SQ}
    v_sqrt_f32 v{SQ}, v{SQ}
    v_cvt_pk_bf16_f32 v{SUM}, v{SUM}, v{SUM}
    v_cvt_pk_bf16_f32 v{SQ}, v{SQ}, v{SQ}
    v_and_b32 v{SQ}, 0xffff0000, v{SQ}
    ds_write_b64 v9, {v(SUM,2)}
    """)
    for t in range(3):
        A(f"""
        v_cvt_pk_bf16_f32 v28, v{GC+t}, v{GC+t}
        v_and_b32 v28, 0xffff0000, v28
        v_sub_f32 v29, v{GC+t}, v28
        v_cvt_pk_bf16_f32 v28, v28, v29
        v_cndmask_b32 v{16+t}, 0, v28, vcc
        ds_write_b32 v10, v{16+t} offset:{t*256}
        """)
        if t < 2: A(f'v_sub_u32 v{20+t}, v28, v{16+t}\nds_write_b32 v10, v{20+t} offset:{(3+t)*256}')
    A('s_waitcnt lgkmcnt(0)')
    stamp(A, 2)
    assert nb <= 15
    A(f"""
    s_lshl_b32 s51, s2, 7
    s_add_u32 s51, s51, {hx(FL)}
    s_cmp_lg_u32 s46, 0
    s_cmov_b32 s51, 0x2000000
    s_mov_b32 s52, 0x2000000
    s_cmp_eq_u32 s71, 3
    s_cselect_b32 s53, s51, s52
    s_cselect_b32 s51, s52, s51
    """)
    bars(16 + 2 * F1N + 1)
    flag_store(A, 's51', 3)
    bars(16 + 2 * F1B + 1)
    flag_store(A, 's53', 3)
    bars(27)
    A('s_call_b64 s[8:9], LH_prep2')
    bars(32)
    A('s_setprio 2')
    A(f"""
LH_join:
    s_mov_b32 s48, {NK1*4096}
    s_lshl_b32 s61, {s(sRB)}, 2
    s_lshl_b32 s62, s46, 1
    s_add_u32 s61, s61, s62
    s_mul_i32 s61, s61, 112
    s_and_b32 s62, s3, 3
    s_mul_i32 s62, s62, 28
    s_add_u32 s61, s61, s62
    s_lshl_b32 s62, s71, 3
    s_add_u32 s61, s61, s62
    s_lshl_b32 s62, s45, 1
    s_add_u32 s61, s61, s62
    s_lshl_b32 s61, s61, 10
    s_add_u32 s64, s61, {hx(HF)}
    s_add_u32 s66, s64, 4096
    s_cmp_eq_u32 s71, 3
    s_cselect_b32 s66, s64, s66
    s_cmov_b32 s64, 0x2000000
    s_add_u32 s65, s64, {112*1024}
    s_add_u32 s67, s66, {112*1024}
    s_lshl_b32 s63, s2, 7
    s_lshl_b32 s62, s44, 2
    s_add_u32 s61, s63, s62
    s_add_u32 s61, s61, {hx(FH)}
    s_lshl_b32 s68, {s(sQB)}, 3
    s_lshl_b32 s62, s44, 1
    s_add_u32 s68, s68, s62
    s_lshl_b32 s68, s68, 5
    s_add_u32 s68, s68, {s(sHead)}
    s_lshl_b32 s68, s68, 10
    s_add_u32 s68, s68, {hx(OF)}
    s_add_u32 s69, s68, 0x8000
    s_lshl_b32 s50, s3, 3
    s_lshl_b32 s47, s71, 1
    s_add_u32 s50, s50, s47
    s_add_u32 s50, s50, s46
    s_lshl_b32 s51, s70, 1
    s_add_u32 s51, s51, s45
    s_mul_i32 s47, s44, {28*1024}
    s_add_u32 s47, s47, {hx(HF)}
    s_mul_i32 s56, s50, {112*1024}
    s_add_u32 s56, s56, s47
    s_xor_b32 s57, s50, 1
    s_mul_i32 s57, s57, {112*1024}
    s_add_u32 s57, s57, s47
    s_mul_i32 s58, s44, {28*16384}
    s_lshl_b32 s47, s71, 1
    s_add_u32 s59, s70, s47
    s_cmp_ge_u32 s59, 7
    s_cselect_b32 s47, 7, 0
    s_sub_u32 s59, s59, s47
    s_lshl_b32 s59, s59, 12
    s_lshr_b32 s49, s50, 2
    s_and_b32 s47, s49, 7
    s_lshl_b32 s47, s47, 3
    s_lshr_b32 s49, s49, 3
    s_lshl_b32 s49, s49, 2
    s_add_u32 s49, s49, s47
    s_lshl_b32 s49, s49, 7
    s_add_u32 s49, s49, {hx(FH)}
    s_lshl_b32 s54, s50, 15
    s_lshl_b32 s47, s51, 6
    s_add_u32 s54, s54, s47
    s_load_dwordx2 {s(sA,2)}, s[0:1], 56
    s_load_dwordx2 {s(sPK,2)}, s[0:1], 48
    s_load_dwordx2 {s(sH0,2)}, s[0:1], 16
    s_mov_b32 {s(sA+2)}, 2097152
    s_mov_b32 {s(sPK+2)}, 1835008
    s_mov_b32 {s(sPK+3)}, 0x20000
    s_mov_b32 {s(sH0+2)}, 524288
    s_mov_b32 {s(sH0+3)}, 0x20000
    s_waitcnt vmcnt(0) lgkmcnt(0)
    """)
    A(f"""
    s_lshl_b32 s63, s44, 10
    s_lshl_b32 s47, {s(sHead)}, 17
    s_add_u32 s47, s47, {hx(KV+20480)}
    s_add_u32 s47, s47, s63
    s_add_u32 m0, s63, 20480
    """)
    stamp(A, 3)
    A('s_barrier')
    for n in range(8): A(f'ds_read_b128 {v(96+4*n,4)}, v248 offset:{n*4096}')
    A(f"""
LH_kv:
    buffer_load_dwordx4 v1, {s(sWS,4)}, s47 offen sc1 lds
    s_add_u32 m0, m0, 4096
    s_add_u32 s47, s47, 4096
    s_cmp_lt_u32 m0, s48
    s_cbranch_scc1 LH_kv
    s_cmp_eq_u32 s48, 131072
    s_cbranch_scc1 LH_kvdone
    s_mov_b32 s48, 131072
    """)
    for n in range(8):
        A(f's_waitcnt lgkmcnt({7-n})\nbuffer_store_dwordx4 {v(96+4*n,4)}, v1, {s(sWS,4)}, s{64+(n>>1)} offen offset:{(n&1)*1024} sc1')
    A(f'buffer_store_dwordx4 v[236:239], v1, {s(sWS,4)}, s68 offen sc1\nbuffer_store_dwordx4 v[236:239], v1, {s(sWS,4)}, s69 offen sc1')
    A(f's_waitcnt vmcnt(10)\ns_mov_b64 exec, 1\nds_add_u32 v247, v240 offset:12\ns_mov_b64 exec, -1')
    A(f"""
    s_mov_b32 s62, m0
    s_add_u32 m0, s63, 65536
    s_lshl_b32 s55, s44, 17
LH_wo:
    buffer_load_dwordx4 v242, {s(sH0,4)}, s55 offen lds
    s_add_u32 m0, m0, 4096
    s_add_u32 s55, s55, 8192
    s_cmp_lt_u32 m0, 131072
    s_cbranch_scc1 LH_wo
    s_mov_b32 m0, s62
    s_sub_u32 s62, s63, s60
    s_add_u32 s62, s62, 65536
    v_add_u32 v72, s62, v244
    v_add_u32 v73, s62, v245
    s_waitcnt vmcnt(16)
    """)
    stamp(A, 4)
    A(f"""
    s_mov_b64 exec, 1
    buffer_store_dword v3, off, {s(sWS,4)}, s61 sc1
    s_mov_b64 exec, -1
    s_waitcnt vmcnt(1)
    """)
    for k in range(8):
        for b in range(2):
            for rd in range(2):
                A(f'ds_read_b64_tr_b16 {v(176+8*k+4*b+2*rd,2)}, v{72+b} offset:{(2*k+rd)*4096}')
        if k in (2, 5, 7): A('s_waitcnt lgkmcnt(0)')
    A(f"""
    s_branch LH_kv
LH_kvdone:
    """)
    A(f"""
    s_mov_b32 s63, 0
    s_mov_b32 m0, s60
    """)
    D, G, X, T0, FO, WO = 8, 72, 88, 96, 112, 176
    Dj = lambda a, b: D + 16 * (a + 2 * b)
    adv = f"""
    s_add_u32 s52, s56, s59
    s_add_u32 s53, s57, s59
    s_lshl_b32 s55, s59, 4
    s_add_u32 s55, s55, s58
    s_add_u32 s59, s59, 4096
    s_cmp_ge_u32 s59, {7*4096}
    s_cselect_b32 s59, 0, s59
    """
    def dma(srd, buf):
        A(f"""
        buffer_load_dwordx4 v242, {s(srd,4)}, s55 offen offset:{2048*buf} lds
        buffer_load_dwordx4 v243, {s(srd,4)}, s55 offen offset:{2048*buf+1024} lds
        s_add_u32 s55, s55, {16384+2048*(2*buf-1)}
        """)
    def grp(i):
        if i & 3 == 0: A(adv)
        for a in range(2):
            A(f'buffer_load_dwordx4 {v(FO+8*(i&3)+4*a,4)}, v1, {s(sWS,4)}, s{52+a} offen offset:{(i&3)*1024} sc1')
        dma(sPK, i & 1)
    def trd(dst, buf):
        for b in range(2):
            for rd in range(2):
                A(f'ds_read_b64_tr_b16 {v(dst+4*b+2*rd,2)}, v{244+b} offset:{2048*buf+1024*rd}')
    A(f"""
    buffer_load_dwordx4 {v(X,4)}, v249, {s(sX,4)}, s54 offen
    buffer_load_dwordx4 {v(X+4,4)}, v249, {s(sX,4)}, s54 offen offset:32
    buffer_load_dwordx4 v[76:79], v246, {s(sWS,4)}, s49 offen sc1
    s_waitcnt vmcnt(3)
    s_mov_b64 exec, 1
    ds_add_u32 v247, v240 offset:8
    s_mov_b64 exec, -1
    """)
    stamp(A, 5)
    A(f"""
LH_fh:
    s_add_u32 s63, s63, 1
    s_waitcnt vmcnt(0)
    v_cmp_ne_u64 vcc, v[2:3], v[76:77]
    v_cmp_ne_u64 s[4:5], v[2:3], v[78:79]
    s_or_b64 vcc, vcc, s[4:5]
    s_cbranch_scc0 LH_gemm
    s_sleep 8
    buffer_load_dwordx4 v[76:79], v246, {s(sWS,4)}, s49 offen sc1
    s_cmp_lt_u32 s63, {SPIN}
    s_cbranch_scc1 LH_fh
LH_gemm:
    """)
    stamp(A, 6)
    grp(0); grp(1)
    A('s_waitcnt vmcnt(4)')
    trd(G, 0)
    A('s_waitcnt lgkmcnt(0)')
    grp(2)
    A(f"s_setprio {os.environ.get('GPRIO', '0')}\ns_mov_b32 s63, {6 if 'nog' in EXP else 0}\nLH_gloop:")
    for i in range(4):
        A('s_waitcnt vmcnt(4)')
        trd(G + 8 * ((i + 1) & 1), (i + 1) & 1)
        for a in range(2): A(mfma(Dj(a, 0), G + 8 * (i & 1), FO + 8 * i + 4 * a, Dj(a, 0)))
        A('s_waitcnt lgkmcnt(0)')
        grp(i + 3)
        for a in range(2): A(mfma(Dj(a, 1), G + 8 * (i & 1) + 4, FO + 8 * i + 4 * a, Dj(a, 1)))
    A(f"""
    s_add_u32 s63, s63, 1
    s_cmp_lt_u32 s63, 7
    s_cbranch_scc1 LH_gloop
    s_setprio 2
    """)
    A(f"""
    s_lshl_b32 s47, s3, 3
    s_lshl_b32 s61, s44, 1
    s_add_u32 s47, s47, s61
    s_lshl_b32 s47, s47, 7
    s_lshl_b32 s61, s71, 2
    s_add_u32 s47, s47, s61
    s_add_u32 s47, s47, {hx(FH)}
    s_mov_b32 s63, 0
LH_fs:
    buffer_load_dword v241, v250, {s(sWS,4)}, s47 offen sc1
    s_add_u32 s63, s63, 1
    s_waitcnt vmcnt(0)
    v_cmp_ne_u32 vcc, v3, v241
    s_cbranch_vccz LH_fsok
    s_sleep 8
    s_cmp_lt_u32 s63, {SPIN}
    s_cbranch_scc1 LH_fs
LH_fsok:
    s_mov_b32 s62, 0
    """)
    for j in range(1, 4):
        A('s_call_b64 s[8:9], LH_meet')
        for q in range(4): A(f'ds_write_b128 v{4+j}, {v(D+16*j+4*q,4)} offset:{q*1024}')
        A('s_call_b64 s[8:9], LH_meet')
        for q in range(4): A(f'ds_read_b128 {v(D+16*j+4*q,4)}, v4 offset:{q*1024}')
    A(f"""
    s_lshl_b32 s52, s50, 5
    s_lshl_b32 s61, s44, 3
    s_add_u32 s52, s52, s61
    s_lshl_b32 s52, s52, 10
    s_add_u32 s58, s52, {hx(OF)}
    s_xor_b32 s56, s58, 0x8000
    s_add_u32 s57, s56, 4096
    s_add_u32 s59, s58, 4096
    s_mov_b32 s63, 0
    """)
    def send():
        for j in (2,):
            for q in range(4): A(f'ds_write_b128 v{252+j}, {v(D+16*j+4*q,4)} offset:{(j-1)*4096+q*1024}')
        A('s_waitcnt lgkmcnt(0)\ns_barrier')
        for j in range(1, 4):
            for q in range(4): A(f'ds_read_b128 {v(D+16*j+4*q,4)}, v252 offset:{(j-1)*4096+q*1024}')
    A(f"""
    s_or_b32 s61, s44, s2
    s_mov_b32 s61, {hx(NW)}
    s_cmov_b32 s61, 0x2000000
    s_mov_b32 s52, -1
    s_waitcnt lgkmcnt(0)
    """)
    stamp(A, 7)
    A('s_barrier')
    stamp(A, 8)
    for g in range(4):
        A(f'LH_o{g}:')
        for k in range(4 * g, 4 * g + 4):
            A(f'buffer_load_dwordx4 {v(FO+4*k,4)}, v1, {s(sWS,4)}, s{56+g} offen offset:{(k&3)*1024} sc1')
    for g in range(4):
        A(f's_cmp_eq_u32 s52, {g}\ns_cbranch_scc1 LH_c{g}')
    A(f's_mov_b32 s4, {hx(f2u(-LOG2E))}\ns_mov_b32 s5, 1.0')
    for j in range(1, 4):
        for p in range(8): A(f'v_pk_add_f32 {v((D if j < 3 else G)+2*p,2)}, {v(D+2*p,2)}, {v(D+16*j+2*p,2)}')
    for p in range(8): A(f'v_pk_mul_f32 {v(D+2*p,2)}, {v(G+2*p,2)}, s[4:5] op_sel_hi:[1,0]')
    for j in range(16): A(f'v_exp_f32 v{D+j}, v{D+j}')
    for p in range(8): A(f'v_pk_add_f32 {v(D+2*p,2)}, {v(D+2*p,2)}, s[4:5] op_sel:[0,1] op_sel_hi:[1,1]')
    for j in range(16): A(f'v_rcp_f32 v{D+j}, v{D+j}')
    for p in range(8): A(f'v_pk_mul_f32 {v(G+2*p,2)}, {v(D+2*p,2)}, {v(G+2*p,2)}')
    for g in range(4):
        f0 = FO + 16 * g
        a, hh = 1 - (g >> 1), g & 1
        A(f"""
LH_c{g}:
        s_mov_b32 s52, {g}
        s_add_u32 s63, s63, 1
        s_waitcnt vmcnt({12-4*g})
        v_max3_u32 v241, v{f0}, v{f0+4}, v{f0+8}
        v_max_u32 v241, v241, v{f0+12}
        v_cmp_eq_u32 vcc, -1, v241
        s_cbranch_vccz LH_m{g}
        s_cmp_lt_u32 s63, {SPIN}
        s_cbranch_scc1 LH_o{g}
LH_m{g}:
        """)
        n = 0
        for b in (1, 0):
            for k in range(4):
                A(mfma(Dj(a, b), WO + 8 * (4 * hh + k) + 4 * b, f0 + 4 * k, None if hh == 0 and k == 0 else Dj(a, b)))
                if g == 2:
                    j, q = (3, 1)[n >> 2], n & 3
                    A(f'ds_write_b128 v{252+j}, {v(D+16*j+4*q,4)} offset:{(j-1)*4096+q*1024}')
                if g == 3: A(f'v_lshlrev_b32 v{T0+2*n}, 16, v{X+n}\nv_and_b32 v{T0+2*n+1}, 0xffff0000, v{X+n}')
                n += 1
    if STAMP and 'st0' not in EXP: A('s_add_u32 s89, s63, s80')
    stamp(A, 10)
    send()
    for j in range(1, 3):
        A(f's_waitcnt lgkmcnt({12-4*j})')
        for p in range(8): A(f'v_pk_add_f32 {v(D+2*p,2)}, {v(D+2*p,2)}, {v(D+16*j+2*p,2)}')
    for q in range(4):
        A(f's_waitcnt lgkmcnt({3-q})')
        for p in (2 * q, 2 * q + 1):
            A(f'v_pk_add_f32 {v(D+2*p,2)}, {v(D+2*p,2)}, {v(D+48+2*p,2)}')
            A(f'v_pk_fma_f32 {v(D+2*p,2)}, {v(D+2*p,2)}, {v(G+2*p,2)}, {v(T0+2*p,2)}')
            A(f'v_cvt_pk_bf16_f32 v{X+p}, v{D+2*p}, v{D+2*p+1}')
        if q & 1: A(f'buffer_store_dwordx4 {v(X+4*(q>>1),4)}, v249, {s(sA,4)}, s54 offen offset:{32*(q>>1)} {os.environ.get("OST", "")}')
    flag_store(A, 's61', 3)
    stamp(A, 11)
    stamp_end(A, sWS, sW, 2)
    A(f"""
    s_endpgm
LH_meet:
    s_add_u32 s62, s62, 4
    s_mov_b32 s63, 0
    s_waitcnt lgkmcnt(0)
    s_mov_b64 exec, 1
    ds_add_u32 v247, v240
    s_mov_b64 exec, -1
LH_meetw:
    ds_read_b32 v241, v247
    s_add_u32 s63, s63, 1
    s_waitcnt lgkmcnt(0)
    v_cmp_gt_u32 vcc, s62, v241
    s_cbranch_vccz LH_meetok
    s_sleep 3
    s_cmp_lt_u32 s63, {SPIN * 16}
    s_cbranch_scc1 LH_meetw
LH_meetok:
    s_setpc_b64 s[8:9]
LH_prep:
    v_lshlrev_b32 v1, 4, v0
    v_cmp_gt_u32 vcc, 32, v0
    v_and_b32 v200, 15, v0
    v_and_b32 v201, 1, v0
    s_lshl_b32 s47, {s(sQB)}, 1
    v_add_u32 v201, s47, v201
    s_add_u32 s61, s3, 8
    s_lshr_b32 s62, s3, 1
    s_lshl_b32 s62, s62, 2
    s_add_u32 s62, s62, 3
    v_cndmask_b32 v200, v201, v200, vcc
    v_mov_b32 v201, s3
    v_mov_b32 v202, s62
    v_cndmask_b32 v201, v201, v202, vcc
    v_cmp_gt_u32 vcc, 16, v0
    v_mov_b32 v202, s61
    v_lshrrev_b32 v203, 3, v200
    v_cndmask_b32 v201, v201, v202, vcc
    v_and_b32 v200, 7, v200
    v_lshlrev_b32 v200, 3, v200
    v_lshl_add_u32 v200, v203, 2, v200
    v_lshrrev_b32 v203, 2, v201
    v_add_u32 v200, v200, v203
    v_and_b32 v201, 3, v201
    v_lshl_add_u32 v200, v201, 6, v200
    v_lshlrev_b32 v251, 7, v200
    s_lshl_b32 s61, s44, 12
    s_add_u32 s47, s61, {L_ONES}
    s_add_u32 s61, s61, {L_EX}
    v_and_b32 v204, 11, v0
    v_cmp_eq_u32 vcc, 0, v204
    v_mov_b32 v204, {hx(ONES)}
    v_and_b32 v205, 0x1ff, v1
    v_cndmask_b32 v232, 0, v204, vcc
    v_add_u32 v231, s47, v205
    v_mov_b32 v233, v232
    v_mov_b64 v[234:235], v[232:233]
    v_mov_b32 v240, 1
    v_mov_b32 v247, {L_FLAG}
    v_mov_b64 v[236:237], -1
    v_mov_b64 v[238:239], -1
    s_lshl_b32 s47, s44, 10
    s_add_u32 s47, s47, {L_H}
    v_add_u32 v248, s47, v1
    v_lshrrev_b32 v207, 5, v0
    v_lshrrev_b32 v204, 3, v0
    v_and_b32 v205, 7, v0
    v_and_b32 v206, 2, v204
    v_lshlrev_b32 v206, 1, v206
    v_xor_b32 v205, v205, v206
    v_lshlrev_b32 v205, 4, v205
    v_lshl_add_u32 v242, v204, 10, v205
    s_lshl_b32 s47, s70, 7
    v_add_u32 v242, s47, v242
    v_add_u32 v243, 7168, v242
    v_and_b32 v205, 1, v0
    v_bfe_u32 v204, v0, 1, 1
    v_lshl_add_u32 v205, v205, 1, v204
    v_lshlrev_b32 v205, 3, v205
    v_bfe_u32 v204, v0, 4, 1
    v_lshl_add_u32 v205, v204, 5, v205
    v_bfe_u32 v206, v0, 2, 2
    v_lshl_add_u32 v204, v207, 2, v206
    v_lshl_add_u32 v205, v204, 7, v205
    v_bfe_u32 v204, v0, 3, 1
    v_xor_b32 v204, s45, v204
    v_lshl_add_u32 v205, v204, 6, v205
    v_add_u32 v244, s61, v205
    v_xor_b32 v245, 64, v244
    v_and_b32 v205, 3, v0
    v_lshl_add_u32 v246, v206, 6, v205
    v_lshlrev_b32 v246, 7, v246
    v_bfe_u32 v204, v0, 2, 1
    v_lshl_add_u32 v250, v205, 6, v204
    v_lshlrev_b32 v250, 7, v250
    v_and_b32 v204, 31, v0
    v_lshlrev_b32 v204, 10, v204
    v_lshl_add_u32 v249, v207, 4, v204
    v_mov_b64 v[224:225], 0
    v_mov_b64 v[226:227], 0
    """)
    for j in range(4):
        A(f's_xor_b32 s47, s44, {j}\ns_lshl_b32 s47, s47, 14\nv_add_u32 v{252+j}, s47, v1')
    A(f"""
    s_setpc_b64 s[8:9]
LH_prep2:
    ds_write_b128 v231, v[232:235]
    ds_write_b128 v231, v[232:235] offset:2048
    s_lshl_b32 s60, s44, 12
    s_add_u32 s60, s60, {L_EX}
    """)
    for j in range(4):
        A(mfma(D + 16 * j, 224, 224, None))
        A(f's_xor_b32 s47, s44, {j}\ns_lshl_b32 s47, s47, 12\ns_add_u32 s47, s47, {L_EX}\nv_add_u32 v{4+j}, s47, v1')
    A('s_waitcnt lgkmcnt(0)\nv_mov_b32 v2, v3\ns_setpc_b64 s[8:9]')

def gen_C(A, patterns):
    sDW, sXs, sIt, sF1, sF3, sOne = 48, 49, 50, 72, 73, 76
    A(f"""
L_C:
    v_mov_b64 v[64:65], 0
    v_mov_b64 v[66:67], 0
    """)
    A(patterns)
    A(f"""
    s_waitcnt lgkmcnt(0)
    s_lshl_b32 s47, s46, 9
    s_add_u32 s47, s47, {L_X}
    v_add_u32 v4, s47, v4
    v_mov_b32 v1, v4
    v_add_u32 v2, {2*WST}, v2
    v_add_u32 v3, {2*WST}, v3
    s_mov_b32 {s(sDW)}, {hx(-2*WST)}
    s_mov_b32 {s(sXs)}, 0
    s_mov_b32 {s(sIt)}, 0
    s_lshl_b32 s53, {s(sRB)}, 2
    s_lshl_b32 s47, s46, 1
    s_add_u32 s53, s53, s47
    s_and_b32 s47, {s(sCG)}, 7
    s_lshl_b32 s47, s47, 2
    s_lshl_b32 s61, s45, 1
    s_add_u32 s47, s47, s61
    s_lshl_b32 s47, s47, 6
    s_add_u32 s47, s47, s53
    s_cmp_lt_u32 {s(sCG)}, 8
    s_cselect_b32 s52, 10, 11
    s_cselect_b32 s61, {hx(QF)}, {hx(KV)}
    s_cselect_b32 s58, {hx(f2u(0.25*LOG2E))}, 1.0
    s_lshl_b32 s47, s47, s52
    s_add_u32 s62, s47, s61
    s_lshl_b32 s47, 1, s52
    s_add_u32 s64, s62, s47
    s_lshl_b32 s47, 64, s52
    s_add_u32 s63, s62, s47
    s_add_u32 s65, s64, s47
    s_mul_i32 s47, s45, {5*256}
    s_add_u32 s47, s47, {L_CS}
    v_lshl_add_u32 v60, v0, 2, s47
    s_lshl_b32 s47, s46, 9
    s_add_u32 s47, s47, {L_RS}
    v_and_b32 v61, 31, v0
    v_lshl_add_u32 v61, v61, 3, s47
    v_lshlrev_b32 v63, 4, v0
    v_and_b32 v72, 15, v0
    v_and_b32 v73, 16, v0
    v_cmp_eq_u32 vcc, 0, v73
    v_lshlrev_b32 v72, 4, v72
    v_add_u32 v72, {L_ONES-1024}, v72
    v_mov_b32 v73, {NT*2048}
    v_cndmask_b32 v72, v72, v63, vcc
    v_cndmask_b32 v73, 0, v73, vcc
    s_lshl_b32 s47, s44, 12
    s_add_u32 s47, s47, {L_ONES}
    v_add_u32 v74, s47, v63
    s_lshl_b32 s66, {s(sQB)}, 3
    s_lshl_b32 s47, s44, 1
    s_add_u32 s66, s66, s47
    s_lshl_b32 s66, s66, 5
    s_add_u32 s66, s66, {s(sHead)}
    s_lshl_b32 s66, s66, 10
    s_add_u32 s66, s66, {hx(OF)}
    s_mov_b32 s54, {hx(f2u(2.0**126))}
    s_mov_b32 s55, {hx(f2u(2.0**-112))}
    s_mov_b32 s56, {hx(f2u(2.0**120))}
    s_mov_b32 s57, 0
    """)
    acc = lambda T, i: 96 + (i * 2 + T) * 16
    for i in range(5):
        for T in range(2): A(mfma(acc(T, i), 64, 64, None))
    FB = lambda f: 8 + 20 * f
    Wf = lambda f, i: FB(f) + 4 * i
    Xf = lambda f, T: FB(f) + 12 + 4 * T
    def reads(f, q, withA):
        st, ks = (q >> 1) & 1, q & 1
        r = [f'ds_read_b128 {v(Xf(f,T),4)}, v1 offset:{T*128+(q&3)*32}' for T in range(2)]
        for u in range(2):
            for rd in range(2):
                r.append(f'ds_read_b64_tr_b16 {v(Wf(f,1+u)+2*rd,2)}, v2 offset:{st*WST+(4*ks+rd)*128+u*32}')
        if withA:
            for rd in range(2):
                r.append(f'ds_read_b64_tr_b16 {v(Wf(f,0)+2*rd,2)}, v3 offset:{st*WST+(4*ks+rd)*128}')
        return r
    def kloop(label, withA, adv, lim, tr0):
        for r in reads(0, 0, withA): A(r)
        A(label + ':')
        for q in range(4):
            f = q & 1
            rr = reads(f ^ 1, q + 1, withA)
            A('s_waitcnt lgkmcnt(0)')
            if q & 1: A('s_barrier')
            tiles = [(1, 1), (2, 2), (0, 0)] if withA else [(1, 3), (2, 4)]
            ms = [mfma(acc(T, ai), Wf(f, wi), Xf(f, T), acc(T, ai)) for (wi, ai) in tiles for T in range(2)]
            k = 0
            for m in range(len(ms)):
                A(ms[m])
                for _ in range(3):
                    if k < len(rr): A(rr[k]); k += 1
                if q == 2 and m == len(ms) - 1: A(adv)
                if q == 3 and m == len(ms) - 2: A(f's_add_u32 {s(sIt)}, {s(sIt)}, 1')
                if q == 3 and m == len(ms) - 1 and not STAMP: A(f's_cmp_lt_u32 {s(sIt)}, {lim}')
            assert k == len(rr)
        if STAMP:
            A(f'{TM} s[78:79]\ns_add_u32 m0, {s(sIt)}, {tr0}\ns_waitcnt lgkmcnt(0)\nv_writelane_b32 v79, s78, m0\ns_cmp_lt_u32 {s(sIt)}, {lim}')
        A(f's_cbranch_scc1 {label}')
    def vstore(T, u):
        a = acc(T, 1 + u)
        for hd in range(2):
            A(f'buffer_store_dwordx4 {v(a+8+4*hd,4)}, v63, {s(sWS,4)}, s{62+2*u+hd} offen offset:{1024+2048*T} sc1')
    def vpath():
        A(f"""
        s_mul_i32 s47, s44, {WST}
        s_add_u32 s47, s47, {2*WST+2*PAN}
        v_and_b32 v52, 31, v0
        v_lshlrev_b32 v52, 5, v52
        v_lshl_add_u32 v52, v7, 3, v52
        v_add_u32 v52, s47, v52
        v_lshlrev_b32 v53, 2, v5
        v_add_u32 v53, v53, v7
        v_lshl_add_u32 v53, v53, 2, v6
        v_lshlrev_b32 v53, 5, v53
        v_and_b32 v54, 3, v0
        v_lshl_add_u32 v53, v54, 3, v53
        v_add_u32 v53, s47, v53
        s_and_b32 s47, s3, 3
        s_lshl_b32 s47, s47, 2
        s_add_u32 s47, s47, s45
        s_lshl_b32 s47, s47, 7
        s_add_u32 s47, s47, s53
        s_lshl_b32 s47, s47, 11
        s_add_u32 s62, s47, {hx(KV)}
        s_add_u32 s63, s62, {4*64*2048}
        s_add_u32 s64, s62, {64*2048}
        s_add_u32 s65, s62, {5*64*2048}
        """)
        prev = None
        for T in range(2):
            for u in range(2):
                a = acc(T, 1 + u)
                for p in range(8):
                    A(f'v_pk_mul_f32 {v(a+2*p,2)}, {v(a+2*p,2)}, {v(84+8*T,2)} op_sel_hi:[1,0]')
                for p in range(8):
                    A(f'v_cvt_pk_bf16_f32 v{a+p}, v{a+2*p}, v{a+2*p+1}')
                if prev is not None and prev[0] == 0:
                    A('s_waitcnt lgkmcnt(0)')
                    vstore(*prev)
                for hd in range(2):
                    o = (u * 2 + hd) * 1024
                    A(f'ds_write_b64 v52, {v(a+4*hd,2)} offset:{o}')
                    A(f'ds_write_b64 v52, {v(a+4*hd+2,2)} offset:{o+16}')
                for hd in range(2):
                    o = (u * 2 + hd) * 1024
                    A(f'ds_read_b64_tr_b16 {v(a+8+4*hd,2)}, v53 offset:{o}')
                    A(f'ds_read_b64_tr_b16 {v(a+8+4*hd+2,2)}, v53 offset:{o+256}')
                prev = (T, u)
    stamp(A, 1)
    A('s_barrier')
    stamp(A, 2)
    kloop('LC_loopA', True, f"""
        v_add_u32 v2, {s(sDW)}, v2
        v_add_u32 v3, {s(sDW)}, v3
        s_add_u32 {s(sXs)}, {s(sXs)}, {XST}
        s_cmp_ge_u32 {s(sXs)}, {4*XST}
        s_cselect_b32 {s(sXs)}, 0, {s(sXs)}
        s_sub_u32 {s(sDW)}, 0, {s(sDW)}
        v_add_u32 v1, {s(sXs)}, v4
        """, '8', 15)
    A("""
    s_waitcnt lgkmcnt(0)
    ds_read_b64 v[68:69], v61
    ds_read_b64 v[70:71], v61 offset:256
    """)
    CO = lambda i: 8 + 4 * i
    for i in range(5): A(f'ds_read_b32 v{CO(i)}, v60 offset:{i*256}')
    for i in range(5): A(f'v_mov_b32 v{CO(i)+1}, 0\nv_mov_b64 {v(CO(i)+2,2)}, 0')
    A('v_mov_b32 v49, 0\nv_mov_b64 v[50:51], 0\ns_waitcnt lgkmcnt(5)\nv_mov_b32 v64, v68\nv_mov_b32 v48, v70')
    K0 = -2.0 * math.sqrt(2.0 / math.pi) * LOG2E
    K1c = K0 * 0.044715
    A('v_rcp_f32 v84, v69\nv_rcp_f32 v92, v71\ns_waitcnt lgkmcnt(0)')
    for i in range(5):
        for T in range(2): A(mfma(acc(T, i), CO(i), (64, 48)[T], acc(T, i)))
        if i == 0:
            for T in range(2):
                b = 80 + 8 * T
                A(f"""
                v_mul_f32 v{b+2}, v{69+2*T}, v{69+2*T}
                v_mul_f32 v{b+1}, {hx(f2u(K0))}, v{b+4}
                v_mul_f32 v{b+3}, s58, v{b+4}
                v_mul_f32 v{b}, v{b+4}, v{b+4}
                v_mul_f32 v{b}, v{b}, v{b+4}
                v_mul_f32 v{b}, {hx(f2u(K1c))}, v{b}
                """)
        if i in (1, 2, 3, 4):
            T, hd = divmod(i - 1, 2)
            a = acc(T, 0) + 8 * hd
            for j in range(8): A(f'v_mul_f32 v{a+j}, v{83+8*T}, v{a+j}')
            for p in range(4): A(f'v_cvt_pk_bf16_f32 v{a+p}, v{a+2*p}, v{a+2*p+1}')
            A(f'buffer_store_dwordx4 {v(a,4)}, v63, {s(sWS,4)}, s{62+2*T+hd} offen sc1')
    A(f"""
    s_cmp_eq_u32 s71, 3
    s_cbranch_scc0 LC_B
    """)
    vpath()
    A(f"""
LC_B:
    v_add_u32 v2, {2*WST}, v2
    v_add_u32 v1, {3*XST}, v4
    s_mov_b32 {s(sDW)}, {4*WST}
    s_mov_b32 {s(sXs)}, {3*XST}
    s_mov_b32 {s(sIt)}, 0
    s_cmp_eq_u32 s71, 3
    s_cselect_b32 s51, {F1A}, {F1N}
    v_subrev_u32 v3, {4*WST}, v2
    """)
    stamp(A, 3)
    kloop('LC_loopB', False, f"""
        s_sub_u32 {s(sDW)}, {s(sDW)}, {2*WST}
        s_cselect_b32 {s(sDW)}, {4*WST}, {s(sDW)}
        v_add_u32 v2, {s(sDW)}, v3
        s_sub_u32 {s(sXs)}, {s(sXs)}, {XST}
        s_cselect_b32 {s(sXs)}, {3*XST}, {s(sXs)}
        v_add_u32 v1, {s(sXs)}, v4
        """, 's51', 23)
    A(f"""
    s_cmp_eq_u32 s51, 8
    s_cbranch_scc1 LC_epi
    s_lshl_b32 s47, s71, 4
    s_add_u32 s47, s47, s51
    s_cmp_eq_u32 s47, {F1A+48}
    s_cbranch_scc0 LC_flag
    s_mov_b32 s51, {F1B}
    """)
    vstore(1, 0); vstore(1, 1)
    A(f"""
    s_branch LC_loopB
LC_flag:
    s_mov_b32 s51, 8
    s_waitcnt vmcnt(0)
    s_branch LC_loopB
LC_epi:
    s_lshl_b32 s47, s44, 10
    s_add_u32 s47, s47, {L_H}
    v_add_u32 v4, s47, v63
    v_mov_b32 v1, v63
    s_cmp_eq_u32 s71, 3
    s_cbranch_scc1 LC_g4
    """)
    stamp(A, 4)
    n = 0
    for pr in range(2):
        if pr == 1: A('LC_g4:\ns_nop 4')
        for T in range(2):
            b = 80 + 8 * T
            for u in range(2):
                a = acc(T, 1 + 2 * pr + u)
                t = 52
                for p in range(4): A(f'v_pk_mul_f32 {v(t+2*p,2)}, {v(a+2*p,2)}, {v(a+2*p,2)}')
                for p in range(4): A(f'v_pk_fma_f32 {v(t+2*p,2)}, {v(t+2*p,2)}, {v(b,2)}, {v(b,2)} op_sel:[0,0,1] op_sel_hi:[1,0,1]')
                for p in range(4): A(f'v_pk_mul_f32 {v(t+2*p,2)}, {v(t+2*p,2)}, {v(a+2*p,2)}')
                for j in range(8): A(f'v_exp_f32 v{t+j}, v{t+j}')
                for p in range(4): A(f'v_pk_mul_f32 {v(a+2*p,2)}, {v(a+2*p,2)}, {v(a+8+2*p,2)}')
                for p in range(4): A(f'v_pk_fma_f32 {v(t+2*p,2)}, {v(t+2*p,2)}, {v(b+2,2)}, {v(b+2,2)} op_sel:[0,0,0] op_sel_hi:[1,0,0]')
                for j in range(8): A(f'v_rcp_f32 v{t+j}, v{t+j}')
                for p in range(4): A(f'v_pk_mul_f32 {v(a+2*p,2)}, {v(a+2*p,2)}, {v(t+2*p,2)}')
                for p in range(4): A(f'v_cvt_pk_bf16_f32 v{a+8+p}, v{a+2*p}, v{a+2*p+1}')
                A(f'ds_write_b128 v4, {v(a+8,4)} offset:{n*4096}')
                n += 1
    QA, QB, CA, CB, OA, OB, SA, SB, PA, PB = 8, 12, 16, 32, 48, 64, 80, 96, 112, 120
    KF = lambda b: 128 + 4 * b
    VF = lambda j: 136 + 4 * j
    A('LC_att:')
    if STAMP: A('v_mov_b32 v144, v79')
    stamp(A, 5)
    A('s_waitcnt lgkmcnt(0)')
    stamp(A, 6)
    A('s_barrier')
    stamp(A, 7)
    A(f"""
    ds_read_b128 {v(QA,4)}, v74 offset:512
    ds_read_b128 {v(KF(0),4)}, v1
    ds_read_b128 {v(KF(1),4)}, v1 offset:2048
    ds_read_b128 {v(QB,4)}, v74 offset:2560
    v_mov_b32 v2, v1
    v_mov_b32 v3, v72
    v_mov_b32 v4, v73
    s_mov_b32 {s(sIt)}, 0
    s_mov_b32 s51, 1
    """)
    for j in range(0, 8, 2): A(f'v_mov_b64 {v(VF(0)+j,2)}, 0')
    for j in range(0, 8, 2): A(f'v_mov_b64 {v(PB+j,2)}, 0')
    A('s_waitcnt lgkmcnt(2)')
    A(mfma(SA, KF(0), QA, None))
    A('s_waitcnt lgkmcnt(1)')
    A(mfma(OA, KF(1), QA, None))
    A('s_waitcnt lgkmcnt(0)')
    A(mfma(SB, KF(0), QB, None))
    A(mfma(OB, KF(1), QB, None))
    A('s_nop 6')
    for (S, O, C) in ((SA, OA, CA), (SB, OB, CB)):
        A(f'v_max3_f32 v{C}, v{S}, v{S+1}, v{S+2}')
        for j in range(3, 15, 2): A(f'v_max3_f32 v{C}, v{C}, v{S+j}, v{S+j+1}')
        A(f'v_max3_f32 v{C}, v{C}, v{S+15}, v{O}')
        for j in range(1, 15, 2): A(f'v_max3_f32 v{C}, v{C}, v{O+j}, v{O+j+1}')
        A(f'v_max_f32 v{C}, v{C}, v{O+15}')
        A(f'v_mov_b32 v{C+1}, v{C}')
        A(f'v_mov_b64 {v(O,2)}, 0\nv_mov_b64 {v(O+2,2)}, 0')
        A(f'v_permlane32_swap_b32 v{C}, v{C+1}')
        A(f'v_max_f32 v{C}, v{C}, v{C+1}')
        A(f'v_sub_f32 v{C}, {hx(f2u(-BIAS))}, v{C}')
        A(f'v_mov_b32 v{C+1}, v{C}')
        for j in range(2, 16, 2): A(f'v_mov_b64 {v(C+j,2)}, {v(C,2)}')
        for j in range(4, 10, 2): A(f'v_mov_b64 {v(O+j,2)}, 0')
        if S == SA: A(mfma(SA, KF(0), QA, CA))
    stamp(A, 8)
    if 'clk' in EXP: stamp(A, 9, True)
    E = lambda S, j: A(f'v_exp_f32 v{S+j}, v{S+j}')
    Cv = lambda S, P, p: A(f'v_cvt_pk_bf16_f32 v{P+p}, v{S+2*p}, v{S+2*p+1}')
    ORD = {'even': 'm0 e0 e1 e2 e3 e4 c0 c1 m1 e5 e6 c2 e7 e8 c3 e9 e10 c4 m2 e11 e12 c5 e13 e14 e15 c6 c7',
           'tight': 'm0 e0 e1 e2 m1 e3 e4 e5 m2 c0 c1 c2 e6 e7 e8 c3 e9 e10 c4 e11 e12 c5 e13 e14 e15 c6 c7',
           'mid': 'm0 e0 e1 e2 c0 m1 e3 e4 e5 c1 m2 c2 e6 e7 e8 c3 e9 e10 c4 e11 e12 c5 e13 e14 e15 c6 c7',
           'two': 'm0 e0 e1 e2 m1 e3 e4 e5 c0 c1 e6 e7 c2 e8 e9 c3 m2 e10 c4 e11 e12 c5 e13 e14 e15 c6 c7'}[os.environ.get('ORD', 'tight')].split()
    def phase(S, P, *m):
        for t in ORD:
            if t[0] == 'm':
                mm = m[int(t[1])]
                if ('nopv' in EXP and t[1] != '0') or ('noqk' in EXP and t[1] == '0'): mm = 's_nop 0\ns_nop 0\n' + '\n'.join(mm.split('\n')[1:])
                A(mm)
            elif t[0] == 'e' and 'noexp' in EXP: A('s_nop 1')
            elif t[0] == 'e': E(S, int(t[1:]))
            else: Cv(S, P, int(t[1:]))
    if os.environ.get('CPRIO'): A('s_setprio ' + os.environ['CPRIO'])
    A('s_nop 0\n.p2align 3\nLA_loop:')
    for t in range(NT):
        kb = t & 1
        o = t * 2048
        phase(SA, PA,
              mfma(SB, KF(kb), QB, CB) + f'\nds_read_b128 {v(KF(kb),4)}, v2 offset:{o+4096}',
              mfma(OB, VF(0), PB, OB) + f'\nds_read_b128 {v(VF(0),4)}, v3 offset:{o+1024}',
              mfma(OB, VF(1), PB + 4, OB) + f'\nds_read_b128 {v(VF(1),4)}, v3 offset:{o+1280}')
        tail = ''
        if t == NT - 2: tail = f'\ns_add_u32 {s(sIt)}, {s(sIt)}, 1'
        if t == NT - 1: tail = f'\ns_cmp_lt_u32 {s(sIt)}, s51\nv_add_u32 v2, {NT*2048}, v2\nv_add_u32 v3, v4, v3'
        phase(SB, PB,
              mfma(SA, KF(kb ^ 1), QA, CA) + '\ns_waitcnt lgkmcnt(1)',
              mfma(OA, VF(0), PA, OA) + '\ns_waitcnt lgkmcnt(0)',
              mfma(OA, VF(1), PA + 4, OA) + tail)
    if STAMP and 'atr' in EXP:
        A(f's_memtime s[78:79]\ns_add_u32 m0, {s(sIt)}, 15\ns_waitcnt lgkmcnt(0)\nv_writelane_b32 v144, s78, m0\ns_cmp_lt_u32 {s(sIt)}, s51')
    A(f'''
    s_cbranch_scc1 LA_loop
    s_cmp_eq_u32 s51, {64//NT}
    s_cbranch_scc1 LA_fini
    s_cmp_eq_u32 s51, 1
    s_cselect_b32 s51, {(2*NK1-2)//NT}, {64//NT}
    s_cselect_b32 s47, 4, 0
    s_add_u32 s47, s47, {L_FLAG+8}
    v_mov_b32 v5, s47
    s_mov_b32 s47, 0
LA_kvw:
    ds_read_b32 v6, v5
    s_add_u32 s47, s47, 1
    s_waitcnt lgkmcnt(0)
    v_cmp_ne_u32 vcc, 4, v6
    s_cbranch_vccz LA_loop
    s_cmp_lt_u32 s47, {SPIN * 16}
    s_cbranch_scc1 LA_kvw
    s_branch LA_loop
LA_fini:''')
    A(mfma(OB, VF(0), PB, OB)); A(mfma(OB, VF(1), PB + 4, OB))
    stamp(A, 11)
    if 'clk' in EXP:
        stamp(A, 10, True)
        A('s_sub_u32 s90, s90, s89\ns_add_u32 s90, s90, s80\ns_mov_b32 s89, 0')
    A('LA_fin:')
    A(f'v_add_f32 v{SA}, |v{OA}|, |v{OA+1}|')
    for j in range(2, 8): A(f'v_add_f32 v{SA}, v{SA}, |v{OA+j}|')
    A(f'''
    v_cmp_gt_f32 vcc, s54, v{SA}
    v_cmp_lt_f32 s[58:59], s55, v{SA}
    v_cmp_gt_f32 s[60:61], s56, v{OA+8}
    s_and_b64 vcc, vcc, s[58:59]
    s_and_b64 vcc, vcc, s[60:61]
    s_cmp_eq_u64 vcc, -1
    s_cbranch_scc0 LA_fallback
LA_norm:
    v_rcp_f32 v{OA+8}, v{OA+8}
    s_nop 0
    ''')
    for j in range(8): A(f'v_mul_f32 v{OA+j}, v{OA+j}, v{OA+8}')
    for p in range(4): A(f'v_cvt_pk_bf16_f32 v{PA+p}, v{OA+2*p}, v{OA+2*p+1}')
    A(f'''
    v_min_u32 v{PA}, -2, v{PA}
    buffer_store_dwordx4 {v(PA,4)}, v1, {s(sWS,4)}, s66 offen sc1
    s_cmp_eq_u32 s57, 1
    s_cbranch_scc1 LA_done
    s_mov_b32 s57, 1
    s_add_u32 s66, s66, 0x8000
    ''')
    for j in range(0, 10, 2): A(f'v_mov_b64 {v(OA+j,2)}, {v(OB+j,2)}')
    for j in range(0, 4, 2): A(f'v_mov_b64 {v(QA+j,2)}, {v(QB+j,2)}')
    A('s_branch LA_fin\nLA_done:')
    stamp(A, 12)
    stamp_end(A, sWS, sW, tr=144)
    A('s_endpgm')
    A(f'''
LA_fallback:
    v_mov_b32 v{CA}, 0xff800000
    v_mov_b32 v2, v1
    s_mov_b32 {s(sIt)}, 0
LA_fb1:
    ds_read_b128 {v(KF(0),4)}, v2
    v_add_u32 v2, 0x800, v2
    s_waitcnt lgkmcnt(0)
    ''')
    A(mfma(SA, KF(0), QA, None))
    A('s_nop 11')
    for j in range(0, 16, 2): A(f'v_max3_f32 v{CA}, v{CA}, v{SA+j}, v{SA+j+1}')
    A(f'''
    s_add_u32 {s(sIt)}, {s(sIt)}, 1
    s_cmp_lt_u32 {s(sIt)}, 64
    s_cbranch_scc1 LA_fb1
    v_mov_b32 v{CA+1}, v{CA}
    v_cmp_eq_u32 vcc, 0, v4
    v_lshrrev_b32 v6, {NT.bit_length()-1}, v4
    v_permlane32_swap_b32 v{CA}, v{CA+1}
    v_max_f32 v{CA}, v{CA}, v{CA+1}
    v_sub_f32 v{CA}, 0, v{CA}
    v_cndmask_b32 v3, v1, v3, vcc
    ''')
    for j in range(1, 16): A(f'v_mov_b32 v{CA+j}, v{CA}')
    for j in range(0, 16, 2): A(f'v_mov_b64 {v(OA+j,2)}, 0')
    A(f'''
    v_mov_b32 v2, v1
    s_mov_b32 {s(sIt)}, 0
LA_fb2:
    ds_read_b128 {v(KF(0),4)}, v2
    ds_read_b128 {v(VF(0),4)}, v3 offset:1024
    ds_read_b128 {v(VF(1),4)}, v3 offset:1280
    v_add_u32 v2, 0x800, v2
    v_add_u32 v3, v6, v3
    s_waitcnt lgkmcnt(0)
    ''')
    A(mfma(SA, KF(0), QA, CA))
    A('s_nop 11')
    for j in range(16): E(SA, j)
    A('s_nop 0')
    for p in range(8): Cv(SA, PA, p)
    A('s_nop 1')
    A(mfma(OA, VF(0), PA, OA)); A(mfma(OA, VF(1), PA + 4, OA))
    A(f'''
    s_add_u32 {s(sIt)}, {s(sIt)}, 1
    s_cmp_lt_u32 {s(sIt)}, 64
    s_cbranch_scc1 LA_fb2
    s_nop 11
    s_branch LA_norm
    ''')

def main(out):
    A = Asm()
    top = f'''; out = x + (MHA(LN x) @ wo) * silu(GEGLU-FFN(LN x)); one persistent launch, 256 workgroups (generated by gen/gen5.py)
; @launch grid=(256,1,1) block=(512,1,1) lds={LDS_BYTES}
.amdgcn_target "amdgcn-amd-amdhsa--gfx950"
.text
'''
    gen(A)
    tail = f'''.section .rodata,"a"
.p2align 6
.amdhsa_kernel {NAME}_kernel
  .amdhsa_next_free_vgpr 256
  .amdhsa_next_free_sgpr 100
  .amdhsa_accum_offset 256
  .amdhsa_group_segment_fixed_size 0
  .amdhsa_kernarg_size 80
  .amdhsa_user_sgpr_count 2
  .amdhsa_user_sgpr_kernarg_segment_ptr 1
  .amdhsa_system_sgpr_workgroup_id_x 1
.end_amdhsa_kernel
'''
    open(out, 'w').write(top + A.text() + tail)

if __name__ == '__main__':
    main(sys.argv[1] if len(sys.argv) > 1 else 'cdna_kernels/%s.s' % NAME)
```

```python
import struct, sys, math, os

NAME = 'recurrent_scan__mha_block__glu_gated_geglu__prompt'
def f2u(x): return struct.unpack('<I', struct.pack('<f', x))[0]
def hx(x): return '0x%x' % (x & 0xffffffff)
class Asm:
    def __init__(self): self.l = []
    def __call__(self, s):
        for line in s.split('\n'):
            line = line.strip()
            if not line: continue
            self.l.append(line if line.endswith(':') or line.startswith('.') else '    ' + line)
    def text(self): return '\n'.join(self.l) + '\n'
def v(a, n=1): return 'v%d' % a if n == 1 else 'v[%d:%d]' % (a, a + n - 1)
def s(a, n=1): return 's%d' % a if n == 1 else 's[%d:%d]' % (a, a + n - 1)
def mfma(d, a, b, c):
    return 'v_mfma_f32_32x32x16_bf16 %s, %s, %s, %s' % (v(d, 16), v(a, 4), v(b, 4), '0' if c is None else v(c, 16))

QF  = 0x000000
KV  = 0x200000
HF  = 0x600000
OF  = 0xD00000
CSP = 0x1200000
RSP = 0x1280000
FL  = 0x13C0000
FH  = 0x13C8000
NW  = 0x13D0000
STB = 0x1400000
WS_BYTES = 0x1500000
LOG2E = 1.4426950408889634
ONES = 0x3f803f80
SPIN = 1 << 18

LIGHT = os.environ.get('STAMP') == '2'
STAMP = os.environ.get('STAMP') == '1'
EXP = set(os.environ.get('EXP', '').split(','))
BIAS = float(os.environ.get('BIAS', '100'))
NFL = int(os.environ.get('NFL', '4'))

TM = 's_memrealtime' if os.environ.get('RT') else 's_memtime'
_seen = set()
def stamp(A, idx, real=False):
    if 'frozen' in EXP and idx in (5, 6, 7, 8, 9, 10, 11, 12) and not any('L_C:' == x for x in A.l): return
    if not STAMP and not (LIGHT and idx in (0, 13, 14, 15)): return
    if 'e1' in EXP and A.l and any('L_C:' == x for x in A.l):
        if idx in _seen: return
        _seen.add(idx)
    A('%s s[78:79]\ns_waitcnt lgkmcnt(0)\ns_mov_b32 s%d, s78' % ('s_memrealtime' if real or os.environ.get('RT') else 's_memtime', 80 + idx))
AMP = os.environ.get('AMP')
def amp(A, name):
    if AMP == name: A('s_memrealtime s[78:79]\ns_waitcnt lgkmcnt(0)\ns_mov_b32 s97, s78')
def stamp_begin(A):
    if AMP: A('s_memrealtime s[78:79]\ns_waitcnt lgkmcnt(0)\ns_mov_b32 s96, s78\ns_mov_b32 s97, s78')
    if not STAMP and not LIGHT: return
    for i in range(16): A('s_mov_b32 s%d, 0' % (80 + i))
    stamp(A, 14, True); stamp(A, 0)
def stamp_end(A, sWS, sW, vt=3, tr=None):
    if not STAMP and not (LIGHT and tr is None): return
    A('s_waitcnt vmcnt(0)')
    stamp(A, 13); stamp(A, 15, True)
    A('s_nop 4')
    if tr is not None: A('v_mov_b32 v%d, v%d' % (vt, tr))
    for i in range(16): A('v_writelane_b32 v%d, s%d, %d' % (vt, 80 + i, i))
    A('''s_lshl_b32 s78, s2, 3
    s_add_u32 s78, s78, s%d
    s_lshl_b32 s78, s78, 7
    s_add_u32 s78, s78, %s
    v_lshlrev_b32 v%d, 2, v0
    s_mov_b64 exec, 0xffffffff
    buffer_store_dword v%d, v%d, s[%d:%d], s78 offen''' % (sW, hx(STB), vt + 1, vt, vt + 1, sWS, sWS + 3))

PAN, APAN = 4224, 4352
WST = 2 * PAN + APAN
XST = 16 * 1040
L_X = 6 * WST
L_CS = L_X + 4 * XST
L_RS = L_CS + 10 * 256
L_ONES = 131072
L_EX = L_ONES + 7 * 2048 + 1536
assert L_RS + 1024 <= L_EX
L_H = 98304
L_FLAG = L_EX + 16384
L_NON = L_FLAG + 4
LDS_BYTES = L_FLAG + 64
assert LDS_BYTES <= 163840
NT = 8
F1N, F1A, F1B = [int(t) for t in os.environ.get('F1IT', '2,1,4').split(',')]
NK1 = int(os.environ.get('NK1', '13'))

sX, sA, sH0, sH1, sWS, sPK, sDBG = 16, 20, 24, 28, 32, 36, 12
sP0, sP1 = 36, 12
sRB, sCG, sW, sHead, sQB = 40, 41, 42, 74, 75

def flag_store(A, soff, vt):
    A(f'''
    s_mov_b64 exec, 1
    buffer_store_dword v{vt}, off, {s(sWS,4)}, {soff} sc1
    s_mov_b64 exec, -1
    ''')

def gen(A):
    K = NAME + '_kernel'
    A(f'.globl {K}\n.p2align 8\n.type {K},@function\n{K}:')
    A('''
    s_cmp_ge_u32 s2, 256
    s_cbranch_scc1 L_end
    ''')
    stamp_begin(A)
    A(f'''
    v_lshrrev_b32 v1, 6, v0
    s_getpc_b64 s[4:5]
L_pc:
    v_readfirstlane_b32 {s(sW)}, v1
    s_and_b32 s47, s2, 0xf8
    s_load_dwordx2 {s(sX,2)}, s[0:1], 0
    s_add_u32 s47, s47, {s(sW)}
    s_lshl_b32 s47, s47, 6
    s_load_dword s6, s[4:5], s47
    s_add_u32 s47, s47, 0x4000
    s_min_u32 s47, s47, L_code_end-L_pc-4
    s_load_dword s7, s[4:5], s47
    s_load_dwordx2 {s(sA,2)}, s[0:1], 8
    s_load_dwordx2 {s(sH0,2)}, s[0:1], 32
    s_load_dwordx2 {s(sH1,2)}, s[0:1], 40
    s_load_dwordx2 {s(sWS,2)}, s[0:1], 72
    v_and_b32 v0, 63, v0
    s_and_b32 s3, s2, 7
    s_lshr_b32 s43, s2, 3
    s_lshr_b32 {s(sRB)}, s3, 2
    s_lshl_b32 {s(sRB)}, {s(sRB)}, 3
    s_and_b32 s70, s43, 7
    s_add_u32 {s(sRB)}, {s(sRB)}, s70
    s_and_b32 {s(sCG)}, s3, 3
    s_lshl_b32 {s(sCG)}, {s(sCG)}, 2
    s_lshr_b32 s71, s43, 3
    s_add_u32 {s(sCG)}, {s(sCG)}, s71
    s_and_b32 s44, {s(sW)}, 3
    s_lshr_b32 s45, s44, 1
    s_and_b32 s46, s44, 1
    s_mov_b32 {s(sWS+2)}, {hx(WS_BYTES)}
    s_mov_b32 {s(sWS+3)}, 0x20000
    s_mov_b32 {s(sX+2)}, 2097152
    s_mov_b32 {s(sX+3)}, 0x20000
    s_mov_b32 {s(sA+2)}, 1572864
    s_mov_b32 {s(sA+3)}, 0x20000
    s_lshl_b32 {s(sHead)}, s3, 2
    s_add_u32 {s(sHead)}, {s(sHead)}, s71
    s_mov_b32 {s(sQB)}, s70
    ''')
    patterns = f'''
    v_bfe_u32 v5, v0, 4, 1
    v_bfe_u32 v6, v0, 2, 2
    v_lshrrev_b32 v7, 5, v0
    v_and_b32 v1, 3, v0
    v_lshlrev_b32 v1, 3, v1
    v_lshl_add_u32 v1, v7, 8, v1
    v_mul_u32_u24 v2, {PAN}, v5
    v_mul_u32_u24 v8, 1056, v6
    v_add3_u32 v2, v2, v8, v1
    v_mul_u32_u24 v8, 1088, v6
    v_lshl_add_u32 v3, v5, 5, v8
    v_add_u32 v3, v3, v1
    v_and_b32 v8, 15, v0
    v_mul_u32_u24 v8, 1040, v8
    v_lshl_add_u32 v4, v5, 8, v8
    v_lshl_add_u32 v4, v7, 4, v4
    s_lshl_b32 s47, s45, 6
    v_add_u32 v2, s47, v2
    s_add_u32 s47, s47, {2*PAN}
    v_add_u32 v3, s47, v3
    '''
    A(f'''
    s_and_b32 s47, {s(sW)}, 6
    s_cmp_eq_u32 s47, 4
    s_cbranch_scc1 L_L
    ''')
    if 'tlb' in EXP:
        A(f'''
        s_load_dwordx2 s[8:9], s[0:1], 16
        s_load_dwordx4 s[12:15], s[0:1], 48
        s_lshl_b32 s47, {s(sW)}, 21
        s_add_u32 s48, s47, {hx(0x400000)}
        s_waitcnt lgkmcnt(0)
        s_load_dword s6, {s(sA,2)}, 0
        s_load_dword s6, {s(sH0,2)}, 0
        s_load_dword s6, {s(sH1,2)}, 0
        s_load_dword s6, {s(sWS,2)}, s47
        s_load_dword s6, {s(sWS,2)}, s48
        s_load_dword s6, s[8:9], 0
        s_load_dword s6, s[12:13], 0
        s_load_dword s6, s[14:15], 0
        ''')
    A(f'''
    s_cmp_lt_u32 {s(sW)}, 4
    s_cbranch_scc1 L_C
    s_branch L_M
L_L:
    ''')
    gen_H(A, patterns)
    gen_C(A, patterns)
    A('L_end:\ns_endpgm\nL_code_end:')

def gen_H(A, patterns):
    sStrH, sColH = 48, 49
    sRowA, sRowH, sMH, sMA, sMX, sXo, sRot, sG = 50, 51, 52, 53, 54, 55, 59, 60
    ROTM = int(os.environ.get('ROTM', '7'))
    sStr, sRowP, sRowA, sRowB, sMA, sMB, sMX, sXo, sRot, sGA, sGB, sJ = 48, 49, 50, 51, 52, 53, 54, 55, 59, 60, 56, 57
    A(f"""
    v_lshrrev_b32 v8, 3, v0
    v_and_b32 v9, 7, v0
    v_lshlrev_b32 v9, 4, v9
    v_and_b32 v13, 4, v8
    v_bfe_u32 v14, v8, 1, 1
    v_and_b32 v15, 1, v8
    v_lshl_add_u32 v14, v15, 1, v14
    v_add_u32 v13, v13, v14
    v_lshl_add_u32 v13, v13, 14, v9
    s_lshl_b32 s47, {s(sRB)}, 17
    s_lshl_b32 s61, s46, 12
    s_add_u32 s47, s47, s61
    v_add_u32 v13, s47, v13
    s_lshl_b32 s62, s71, 1
    s_add_u32 {s(sRot)}, s70, s62
    s_and_b32 s47, s3, 1
    s_add_u32 {s(sRot)}, {s(sRot)}, s47
    s_and_b32 {s(sRot)}, {s(sRot)}, 7
    s_lshl_b32 {s(sXo)}, {s(sRot)}, 7
    s_lshl_b32 {s(sRot)}, {s(sRot)}, 1
    s_mul_i32 s58, s46, 4160
    s_add_u32 s58, s58, {L_X}
    s_mov_b32 {s(sMX)}, s58
    s_mov_b32 {s(sJ)}, 0
    s_and_b32 s64, s3, 3
    s_mul_i32 s65, s64, 7
    s_add_u32 s65, s65, s62
    s_lshl_b32 s65, s65, 7
    s_add_u32 s66, s65, 128
    s_lshl_b32 s64, s64, 8
    s_add_u32 s64, s64, 2048
    s_cmp_lt_u32 s71, 3
    s_mov_b32 {s(sP0+2)}, 1572864
    s_cmov_b32 {s(sP0+2)}, 1835008
    s_mov_b32 {s(sP1+2)}, {1572864-128}
    s_cmov_b32 {s(sP1+2)}, 1835008
    s_mov_b32 {s(sP0+3)}, 0x20000
    s_mov_b32 {s(sP1+3)}, 0x20000
    s_movk_i32 {s(sStr)}, 3072
    s_cmovk_i32 {s(sStr)}, 3584
    s_cselect_b32 s64, s65, s64
    s_cselect_b32 s65, s66, s65
    s_lshl_b32 s47, s46, 1
    v_lshl_add_u32 v10, v8, 2, s47
    v_mul_u32_u24 v11, 3072, v10
    s_lshl_b32 s47, {s(sCG)}, 7
    v_add3_u32 v11, v11, v9, s47
    v_mul_lo_u32 v18, v10, {s(sStr)}
    v_add3_u32 v18, v18, v9, s64
    v_add_u32 v19, {s(sStr)}, v18
    s_lshl_b32 {s(sStr)}, {s(sStr)}, 5
    s_mul_i32 {s(sRowA)}, {s(sRot)}, {32*3072}
    s_mul_i32 {s(sRowP)}, {s(sRot)}, {s(sStr)}
    s_mul_i32 {s(sMA)}, s46, 2112
    s_add_u32 {s(sMA)}, {s(sMA)}, {2*WST}
    s_lshl_b32 s69, s46, 6
    s_mov_b32 {s(sGA)}, 0
    s_waitcnt lgkmcnt(0)
    """)
    sel = f"""
    s_add_u32 s62, {s(sA)}, 128
    s_addc_u32 s63, {s(sA+1)}, 0
    s_cmp_lt_u32 s71, 3
    s_cselect_b64 {s(sP0,2)}, {s(sH0,2)}, {s(sA,2)}
    s_cselect_b64 {s(sP1,2)}, {s(sH1,2)}, s[62:63]
    """
    setup2 = f"""
    s_mov_b32 {s(sH0+2)}, 1835008
    s_mov_b32 {s(sH1+2)}, 1835008
    s_mov_b32 {s(sH0+3)}, 0x20000
    s_mov_b32 {s(sH1+3)}, 0x20000
    v_mul_u32_u24 v16, 3584, v10
    v_add3_u32 v16, v16, v9, s65
    v_add_u32 v17, 3584, v16
    s_add_u32 s47, {s(sRot)}, 14
    s_and_b32 s47, s47, 15
    s_mul_i32 {s(sRowB)}, s47, {32*3584}
    s_mul_i32 {s(sMB)}, s46, 2112
    s_add_u32 {s(sMB)}, {s(sMB)}, {4*WST}
    s_mov_b32 {s(sGB)}, 0
    """
    ops = []
    def call(tag):
        name = {'X': 'LL_X', 'A': 'LL_A', 'B': 'LL_B', 'p': 'LH_pp'}[tag[0]]
        A(f's_call_b64 s[8:9], {name}')
        ops.extend([tag] * {'LL_X': 4, 'LL_A': 6, 'LL_B': 4, 'LH_pp': 4}[name])
    def bar(*need):
        if need:
            assert all(t in ops for t in need), need
            last = max(i for i, t in enumerate(ops) if t in need)
            if len(ops) - 1 - last < 64: A(f's_waitcnt vmcnt({len(ops) - 1 - last})')
        A('s_barrier')
    def bodyX():
        ld = [(f's_add_u32 m0, {s(sMX)}, {16*i}', f'buffer_load_dwordx4 v13, {s(sX,4)}, {s(sXo)} offen offset:{1024*i} lds') for i in range(4)]
        pre = [f's_add_u32 {s(sJ)}, {s(sJ)}, 1', f's_lshr_b32 s67, {s(sJ)}, 1', 's_sub_u32 s68, 11, s67',
               f's_cmp_lt_u32 {s(sJ)}, 16\ns_cselect_b32 s67, s67, s68']
        post = ['s_and_b32 s68, s67, 3\ns_lshl_b32 s68, s68, 1', f's_and_b32 s62, {s(sJ)}, 1\ns_add_u32 s68, s68, s62',
                f's_mul_i32 s68, s68, {XST//2}\ns_add_u32 {s(sMX)}, s68, s58\ns_lshl_b32 s67, s67, 1',
                f's_add_u32 s67, s67, {s(sRot)}\ns_and_b32 s67, s67, 15\ns_lshl_b32 s67, s67, 6\ns_lshl_b32 s62, s62, 13\ns_add_u32 {s(sXo)}, s67, s62']
        return ld, pre, post
    def bodyA():
        ld = [(f's_add_u32 m0, {s(sMA)}, {hf*PAN+1056*bb}', f'buffer_load_dwordx4 v{18+bb}, {s(sP0 if hf == 0 else sP1,4)}, {s(sRowP)} offen lds')
              for hf in range(2) for bb in range(2)]
        ld += [(f's_add_u32 m0, s61, {2*PAN+(1088-3072)*bb}', f'buffer_load_dwordx4 v11, {s(sA,4)}, {s(sRowA)} offen offset:{3072*bb} lds') for bb in range(2)]
        pre = [f's_add_u32 {s(sGA)}, {s(sGA)}, 1', f's_add_u32 s47, {s(sGA)}, {s(sRot)}', 's_and_b32 s47, s47, 15', f's_add_u32 s61, {s(sMA)}, s69',
               f's_mul_i32 {s(sRowP)}, s47, {s(sStr)}\ns_add_u32 {s(sMA)}, {s(sMA)}, {WST}',
               f's_cmp_ge_u32 {s(sMA)}, {4*WST}\ns_cselect_b32 s63, {4*WST}, 0\ns_sub_u32 {s(sMA)}, {s(sMA)}, s63']
        post = [f's_mul_i32 {s(sRowA)}, s47, {32*3072}']
        return ld, pre, post
    def bodyB():
        ld = [(f's_add_u32 m0, {s(sMB)}, {hf*PAN+1056*bb}', f'buffer_load_dwordx4 v{16+bb}, {s(sH0 if hf == 0 else sH1,4)}, {s(sRowB)} offen lds')
              for hf in range(2) for bb in range(2)]
        pre = [f's_add_u32 {s(sGB)}, {s(sGB)}, 1', f's_xor_b32 s47, {s(sGB)}, 14', f's_add_u32 s47, s47, {s(sRot)}\ns_and_b32 s47, s47, 15',
               f's_bitcmp1_b32 {s(sGB)}, 0\ns_mov_b32 s63, {3*WST}\ns_cmov_b32 s63, {WST}\ns_add_u32 {s(sMB)}, {s(sMB)}, s63\ns_cmp_ge_u32 {s(sMB)}, {6*WST}\ns_cselect_b32 s63, {6*WST}, 0\ns_sub_u32 {s(sMB)}, {s(sMB)}, s63']
        post = [f's_mul_i32 {s(sRowB)}, s47, {32*3584}']
        return ld, pre, post
    def emit(*bodies):
        carry = []
        for ld, pre, post in bodies:
            for i, (m, l) in enumerate(ld):
                A(m); A(pre[i])
                if carry: A(carry.pop(0))
                A(l)
            for t in carry: A(t)
            carry = list(post)
        for t in carry: A(t)
    if 'st0' in EXP: stamp(A, 9)
    call('X0'); A(sel)
    if 'st0' in EXP: stamp(A, 10)
    call('X1')
    if 'st0' in EXP: stamp(A, 7)
    call('A0')
    if 'st0' in EXP: stamp(A, 6)
    call('A1')
    if 'st0' in EXP: stamp(A, 11)
    A('s_branch LL_go\nLL_X:')
    emit(bodyX())
    A('s_setpc_b64 s[8:9]\nLL_A:')
    emit(bodyA())
    A('s_setpc_b64 s[8:9]\nLL_go:')
    A(setup2)
    A('s_call_b64 s[8:9], LH_prep')
    if 'st0' in EXP:
        stamp(A, 12); A('s_waitcnt vmcnt(12)'); stamp(A, 8); A('s_waitcnt vmcnt(6)'); stamp(A, 5); EXP.add('frozen')
    def need(c):
        n = [f'A{c}' if c < 16 else f'B{c-16}']
        if c % 2 == 0 and c < 16: n += [f'X{c}', f'X{c+1}']
        if c % 2 == 0 and c >= 24: n += [f'X{c-8}', f'X{c-7}']
        if c == 2: n += ['B0', 'B1']
        return n
    def dist(c):
        return len(ops) - 1 - max(i for i, t in enumerate(ops) if t in need(c))
    def loop(label, c0, c1, second, cnt, lim):
        A(f's_waitcnt vmcnt({dist(c0)})\n{label}:\ns_barrier')
        emit(bodyX(), second())
        w = 63
        for c in range(c0, c1 + 1):
            ops.extend([f'X{c+4 if c < 16 else c-2}'] * 4 + ([f'A{c+3}'] * 6 if c < 16 else [f'B{c-11}'] * 4))
            if c < c1: w = min(w, dist(c + 1))
        A(f's_cmp_lt_u32 {cnt}, {lim}\ns_waitcnt vmcnt({w})\ns_cbranch_scc1 {label}')
    sched = {0: 'X2,X3,B0,B1', 1: 'A2,A3,X4,X5,A4', 12: 'A15', 13: 'B2', 14: 'B3', 15: 'B4', 16: 'B5', 17: 'B6', 26: 'B15'}
    if os.environ.get('LS0'): sched[0], sched[1] = os.environ['LS0'].split('/')
    c = 0
    while c < 32:
        if c == 2:
            loop('LL_loopA', 2, 11, bodyA, s(sGA), 15); c = 12; continue
        if c == 18:
            loop('LL_loopB', 18, 25, bodyB, s(sGB), 15); c = 26; continue
        bar(*need(c))
        amp(A, f'b{c}')
        if c == 27:
            A(f"""
    v_mov_b32 v9, {L_NON}
    ds_read_b32 v3, v9
    s_call_b64 s[8:9], LH_prep2
    s_mov_b32 s52, {hx(FL)}
    s_lshl_b32 s61, {s(sHead)}, 3
    s_add_u32 s61, s61, {s(sQB)}
    s_lshl_b32 s61, s61, 13
    s_lshl_b32 s47, s46, 12
    s_add_u32 s61, s61, s47
    s_lshl_b32 s62, s46, 13
    s_add_u32 s62, s62, {L_ONES+512}
    s_lshl_b32 s63, s46, 10
    s_lshl_b32 s47, {s(sHead)}, 17
    s_add_u32 s47, s47, {hx(KV)}
    s_add_u32 s47, s47, s63
    s_mov_b32 s53, 0
    """)
        if c == 30:
            A(f"""
    s_cmp_eq_u32 s71, {3 if 'noearly' not in EXP else 9}
    s_cselect_b32 s55, s52, 0x2000000
    buffer_load_dword v241, v251, {s(sWS,4)}, s55 offen sc1
    """)
            ops.append('poll')
        for t in sched.get(c, '').split(','):
            if t: call(t)
        c += 1
    A(f"""
    s_setprio 2
    s_barrier
    s_cmp_eq_u32 s55, s52
    s_cbranch_scc1 LL_f1c
    s_sleep {os.environ.get('SL1', '6')}
LL_f1:
    buffer_load_dword v241, v251, {s(sWS,4)}, s52 offen sc1
LL_f1c:
    s_add_u32 s53, s53, 1
    s_waitcnt vmcnt(0) lgkmcnt(0)
    v_cmp_ne_u32 vcc, v3, v241
    s_cbranch_vccz LL_f1ok
    s_sleep 4
    s_cmp_lt_u32 s53, {SPIN}
    s_cbranch_scc1 LL_f1
LL_f1ok:
    """)
    stamp(A, 1)
    if STAMP: A('s_add_u32 s82, s53, s80')
    A('s_call_b64 s[8:9], LL_qkv\ns_branch LH_join\nLL_qkv:')
    for i in range(4):
        A(f's_add_u32 m0, s62, {1024*i}\ns_nop 0\nbuffer_load_dwordx4 v1, {s(sWS,4)}, s61 offen offset:{1024*i} sc1 lds')
    A(f"""
    s_mov_b32 m0, s63
    s_nop 0
LL_kv:
    buffer_load_dwordx4 v1, {s(sWS,4)}, s47 offen sc1 lds
    buffer_load_dwordx4 v1, {s(sWS,4)}, s47 offen offset:2048 sc1 lds
    s_add_u32 m0, m0, 4096
    s_add_u32 s47, s47, 4096
    s_cmp_lt_u32 m0, 20480
    s_cbranch_scc1 LL_kv
    s_setpc_b64 s[8:9]
LL_B:
    """)
    emit(bodyB())
    A(f"""
    s_setpc_b64 s[8:9]
    """)
    CS, RS = 16, 24
    WF, XF = 32, 52
    sOne = 73
    A(f"""
L_M:
    s_setprio {os.environ.get('MPRIO', '0')}
    s_mov_b32 s45, s46
    """)
    A(patterns)
    A(f"""
    s_mov_b32 s45, 1
    s_mov_b32 {s(sOne)}, {hx(ONES)}
    s_lshl_b32 s47, s46, 9
    s_add_u32 s47, s47, {L_X}
    v_add_u32 v4, s47, v4
    v_lshlrev_b32 v1, 4, v0
    s_mov_b32 s50, 0
    """)
    for i in range(16, 28, 2): A(f'v_mov_b64 {v(i,2)}, 0')
    A(f's_mov_b32 s47, {hx(NW)}\ns_waitcnt lgkmcnt(0)\nbuffer_load_dword v30, off, {s(sWS,4)}, s47 sc1')
    nb = -1
    def bars(upto):
        nonlocal nb
        while nb < upto:
            A('s_barrier'); nb += 1
    A('s_call_b64 s[8:9], LH_prep')
    if 'st0' in EXP:
        EXP.discard('frozen'); stamp(A, 9); EXP.add('frozen')
    XF = 44
    A(f"""
    v_add_u32 v10, {4*WST}, v2
    v_add_u32 v2, {2*WST}, v2
    v_add_u32 v3, {2*WST}, v3
LM_stat:
    s_bitcmp1_b32 s50, 0
    s_cbranch_scc1 LM_nobar
    s_barrier
LM_nobar:
    ds_read_b128 {v(XF,4)}, v4
    ds_read_b128 {v(XF+4,4)}, v4 offset:128
    ds_read_b64_tr_b16 {v(WF,2)}, v3
    ds_read_b64_tr_b16 {v(WF+2,2)}, v3 offset:128
    """)
    for u in range(2):
        A(f'ds_read_b64_tr_b16 {v(WF+4+4*u,2)}, v2 offset:{u*32}')
        A(f'ds_read_b64_tr_b16 {v(WF+6+4*u,2)}, v2 offset:{u*32+128}')
    A(f"""
    s_movk_i32 s47, 512
    s_cmovk_i32 s47, {WST-512}
    v_add_u32 v2, s47, v2
    v_add_u32 v3, s47, v3
    v_add_u32 v4, 32, v4
    s_add_u32 s50, s50, 1
    s_waitcnt lgkmcnt(6)
    """)
    for j in range(4):
        for T in range(2):
            A(f'v_dot2c_f32_bf16 v{RS+2*T}, {s(sOne)}, v{XF+4*T+j}')
            A(f'v_dot2c_f32_bf16 v{RS+2*T+1}, v{XF+4*T+j}, v{XF+4*T+j}')
    A('s_waitcnt lgkmcnt(0)')
    for j in range(4):
        for i in range(3):
            A(f'v_dot2c_f32_bf16 v{CS+i}, {s(sOne)}, v{WF+4*i+j}')
    A(f"""
    s_cmp_lt_u32 s50, 4
    s_cbranch_scc1 LM_stat
    s_barrier
    """)
    nb = 2
    for q in range(4):
        for u in range(2):
            for rd in range(2):
                A(f'ds_read_b64_tr_b16 {v(WF+8*q+4*u+2*rd,2)}, v10 offset:{(q>>1)*WST+(4*(q&1)+rd)*128+u*32}')
        if q == 2: A('s_waitcnt lgkmcnt(4)')
    A(f"""
    s_lshl_b32 s50, {s(sCG)}, 4
    s_add_u32 s50, s50, {s(sRB)}
    s_lshl_b32 s50, s50, 1
    s_add_u32 s50, s50, s46
    s_lshl_b32 s50, s50, 10
    s_add_u32 s50, s50, {hx(CSP)}
    s_lshl_b32 s51, {s(sRB)}, 4
    s_add_u32 s51, s51, {s(sCG)}
    s_lshl_b32 s51, s51, 1
    s_add_u32 s51, s51, s46
    s_lshl_b32 s51, s51, 10
    s_add_u32 s51, s51, {hx(RSP)}
    s_waitcnt lgkmcnt(0)
    """)
    for hh in range(2):
        for q in (2 * hh, 2 * hh + 1):
            for j in range(4):
                for u in range(2):
                    r = WF + 8 * q + 4 * u + j
                    A(f'v_lshlrev_b32 v28, 16, v{r}\nv_and_b32 v29, 0xffff0000, v{r}\nv_add_f32 v{CS+3+u}, v{CS+3+u}, v28\nv_add_f32 v{CS+5+u}, v{CS+5+u}, v29')
        bars(nb + 1)
    A(f"""
    v_add_f32 v{CS+3}, v{CS+3}, v{CS+5}
    v_add_f32 v{CS+4}, v{CS+4}, v{CS+6}
    s_mov_b32 s47, 1664525
    s_waitcnt vmcnt(0)
    v_mul_lo_u32 v30, v30, s47
    v_add_u32 v30, 1013904223, v30
    """)
    for i in range(5): A(f'v_mov_b32 v{WF+i}, v{CS+i}')
    for i in range(4): A(f'v_mov_b32 v{WF+8+i}, v{RS+i}')
    A('v_cmp_gt_u32 vcc, 32, v0')
    for i in range(5): A(f'v_permlane32_swap_b32 v{CS+i}, v{WF+i}')
    for i in range(4): A(f'v_permlane32_swap_b32 v{RS+i}, v{WF+8+i}')
    for i in range(5): A(f'v_add_f32 v{CS+i}, v{CS+i}, v{WF+i}')
    for i in range(4): A(f'v_add_f32 v{RS+i}, v{RS+i}, v{WF+8+i}')
    A(f"""
    v_cndmask_b32 v{CS}, v{CS+3}, v{CS}, vcc
    v_cndmask_b32 v{CS+1}, v{CS+4}, v{CS+1}, vcc
    v_mov_b32 v{CS+3}, v30
    v_cndmask_b32 v{RS}, v{RS+2}, v{RS}, vcc
    v_cndmask_b32 v{RS+1}, v{RS+3}, v{RS+1}, vcc
    v_mov_b32 v{RS+3}, v30
    buffer_store_dwordx4 {v(CS,4)}, v1, {s(sWS,4)}, s50 offen sc1
    buffer_store_dwordx4 {v(RS,4)}, v1, {s(sWS,4)}, s51 offen sc1
    """)
    bars(nb + 1)
    A(f"""
    s_and_b32 s50, s50, {hx(~0x3800)}
    s_and_b32 s51, s51, {hx(~0x3800)}
    v_lshlrev_b32 v8, 2, v0
    v_mov_b32 v9, {L_FLAG}
    v_mov_b32 v29, 0
    ds_write_b32 v9, v29
    ds_write_b32 v9, v30 offset:4
    ds_write_b32 v9, v29 offset:8
    ds_write_b32 v9, v29 offset:12
    """)
    B_GAT, B_RED = [int(t) for t in os.environ.get('MSCHED', '11,15').split(',')]
    A('v_mov_b32 v3, v30')
    bars(B_GAT)
    GC, GR = 32, 64
    A('s_mov_b32 s53, 0\nLM_gat:\ns_mov_b32 s47, s50\ns_mov_b32 s61, s51')
    for i in range(8):
        A(f'buffer_load_dwordx4 {v(GR+4*i,4)}, v1, {s(sWS,4)}, s61 offen offset:{2048*(i&1)} sc1')
        A(f'buffer_load_dwordx4 {v(GC+4*i,4)}, v1, {s(sWS,4)}, s47 offen offset:{2048*(i&1)} sc1')
        if i & 1 and i < 7: A('s_add_u32 s47, s47, 4096\ns_add_u32 s61, s61, 4096')
    A('s_cmp_lg_u32 s53, 0\ns_cbranch_scc1 LM_chk')
    bars(B_RED - 1)
    A('LM_chk:\ns_waitcnt vmcnt(0)\ns_add_u32 s53, s53, 1')
    A(f'v_xor_b32 v10, v30, v{GC+3}')
    for r in [GC + 4 * i + 3 for i in range(1, 16)]:
        A(f'v_xor_b32 v11, v30, v{r}\nv_or_b32 v10, v10, v11')
    A(f"""
    v_cmp_ne_u32 vcc, 0, v10
    s_cbranch_vccz LM_red
    s_cmp_lt_u32 s53, {SPIN}
    s_cbranch_scc1 LM_gat
LM_red:
    """)
    stamp(A, 1)
    for i in range(1, 8):
        for t in range(3):
            if t < 2: A(f'v_add_f32 v{GR+t}, v{GR+t}, v{GR+4*i+t}')
            A(f'v_add_f32 v{GC+t}, v{GC+t}, v{GC+4*i+t}')
    bars(B_RED)
    SUM, SQ = GR, GR + 1
    A(f"""
    s_mul_i32 s47, s46, {5*256}
    s_add_u32 s47, s47, {L_CS}
    v_add_u32 v10, s47, v8
    s_lshl_b32 s47, s46, 9
    s_add_u32 s47, s47, {L_RS}
    v_lshl_add_u32 v9, v0, 3, s47
    v_cmp_gt_u32 vcc, 32, v0
    v_mul_f32 v{SUM}, {hx(f2u(-1.0/512))}, v{SUM}
    v_mul_f32 v{SQ}, {hx(f2u(1.0/512))}, v{SQ}
    v_fma_f32 v{SQ}, -v{SUM}, v{SUM}, v{SQ}
    v_max_f32 v{SQ}, 0, v{SQ}
    v_cvt_pk_bf16_f32 v{SQ}, v{SQ}, v{SQ}
    v_and_b32 v{SQ}, 0xffff0000, v{SQ}
    v_add_f32 v{SQ}, {hx(f2u(1e-5))}, v{SQ}
    v_cvt_pk_bf16_f32 v{SQ}, v{SQ}, v{SQ}
    v_and_b32 v{SQ}, 0xffff0000, v{SQ}
    v_sqrt_f32 v{SQ}, v{SQ}
    v_cvt_pk_bf16_f32 v{SUM}, v{SUM}, v{SUM}
    v_cvt_pk_bf16_f32 v{SQ}, v{SQ}, v{SQ}
    v_and_b32 v{SQ}, 0xffff0000, v{SQ}
    ds_write_b64 v9, {v(SUM,2)}
    """)
    for t in range(3):
        A(f"""
        v_cvt_pk_bf16_f32 v28, v{GC+t}, v{GC+t}
        v_and_b32 v28, 0xffff0000, v28
        v_sub_f32 v29, v{GC+t}, v28
        v_cvt_pk_bf16_f32 v28, v28, v29
        v_cndmask_b32 v{16+t}, 0, v28, vcc
        ds_write_b32 v10, v{16+t} offset:{t*256}
        """)
        if t < 2: A(f'v_sub_u32 v{20+t}, v28, v{16+t}\nds_write_b32 v10, v{20+t} offset:{(3+t)*256}')
    A('s_waitcnt lgkmcnt(0)')
    stamp(A, 2)
    assert nb <= 15
    A(f"""
    s_lshl_b32 s51, s2, 7
    s_add_u32 s51, s51, {hx(FL)}
    s_cmp_lg_u32 s46, 0
    s_cmov_b32 s51, 0x2000000
    s_mov_b32 s52, 0x2000000
    s_cmp_eq_u32 s71, 3
    s_cselect_b32 s53, s51, s52
    s_cselect_b32 s51, s52, s51
    """)
    bars(16 + 2 * F1N + 1)
    flag_store(A, 's51', 3)
    bars(16 + 2 * F1B + 1)
    flag_store(A, 's53', 3)
    bars(27)
    A('s_call_b64 s[8:9], LH_prep2')
    bars(32)
    A('s_setprio 2')
    A(f"""
LH_join:
    s_mov_b32 s48, {NK1*4096}
    s_lshl_b32 s61, {s(sRB)}, 2
    s_lshl_b32 s62, s46, 1
    s_add_u32 s61, s61, s62
    s_mul_i32 s61, s61, 112
    s_and_b32 s62, s3, 3
    s_mul_i32 s62, s62, 28
    s_add_u32 s61, s61, s62
    s_lshl_b32 s62, s71, 3
    s_add_u32 s61, s61, s62
    s_lshl_b32 s62, s45, 1
    s_add_u32 s61, s61, s62
    s_lshl_b32 s61, s61, 10
    s_add_u32 s64, s61, {hx(HF)}
    s_add_u32 s66, s64, 4096
    s_cmp_eq_u32 s71, 3
    s_cselect_b32 s66, s64, s66
    s_cmov_b32 s64, 0x2000000
    s_add_u32 s65, s64, {112*1024}
    s_add_u32 s67, s66, {112*1024}
    s_lshl_b32 s63, s2, 7
    s_lshl_b32 s62, s44, 2
    s_add_u32 s61, s63, s62
    s_add_u32 s61, s61, {hx(FH)}
    s_lshl_b32 s68, {s(sQB)}, 3
    s_lshl_b32 s62, s44, 1
    s_add_u32 s68, s68, s62
    s_lshl_b32 s68, s68, 5
    s_add_u32 s68, s68, {s(sHead)}
    s_lshl_b32 s68, s68, 10
    s_add_u32 s68, s68, {hx(OF)}
    s_add_u32 s69, s68, 0x8000
    s_lshl_b32 s50, s3, 3
    s_lshl_b32 s47, s71, 1
    s_add_u32 s50, s50, s47
    s_add_u32 s50, s50, s46
    s_lshl_b32 s51, s70, 1
    s_add_u32 s51, s51, s45
    s_mul_i32 s47, s44, {28*1024}
    s_add_u32 s47, s47, {hx(HF)}
    s_mul_i32 s56, s50, {112*1024}
    s_add_u32 s56, s56, s47
    s_xor_b32 s57, s50, 1
    s_mul_i32 s57, s57, {112*1024}
    s_add_u32 s57, s57, s47
    s_mul_i32 s58, s44, {28*16384}
    s_lshl_b32 s47, s71, 1
    s_add_u32 s59, s70, s47
    s_cmp_ge_u32 s59, 7
    s_cselect_b32 s47, 7, 0
    s_sub_u32 s59, s59, s47
    s_lshl_b32 s59, s59, 12
    s_lshr_b32 s49, s50, 2
    s_and_b32 s47, s49, 7
    s_lshl_b32 s47, s47, 3
    s_lshr_b32 s49, s49, 3
    s_lshl_b32 s49, s49, 2
    s_add_u32 s49, s49, s47
    s_lshl_b32 s49, s49, 7
    s_add_u32 s49, s49, {hx(FH)}
    s_lshl_b32 s54, s50, 15
    s_lshl_b32 s47, s51, 6
    s_add_u32 s54, s54, s47
    s_load_dwordx2 {s(sA,2)}, s[0:1], 56
    s_load_dwordx2 {s(sPK,2)}, s[0:1], 48
    s_load_dwordx2 {s(sH0,2)}, s[0:1], 16
    s_mov_b32 {s(sA+2)}, 2097152
    s_mov_b32 {s(sPK+2)}, 1835008
    s_mov_b32 {s(sPK+3)}, 0x20000
    s_mov_b32 {s(sH0+2)}, 524288
    s_mov_b32 {s(sH0+3)}, 0x20000
    s_waitcnt vmcnt(0) lgkmcnt(0)
    """)
    A(f"""
    s_lshl_b32 s63, s44, 10
    s_lshl_b32 s47, {s(sHead)}, 17
    s_add_u32 s47, s47, {hx(KV+20480)}
    s_add_u32 s47, s47, s63
    s_add_u32 m0, s63, 20480
    """)
    stamp(A, 3)
    A('s_barrier')
    amp(A, 'B1')
    for n in range(8): A(f'ds_read_b128 {v(96+4*n,4)}, v248 offset:{n*4096}')
    A(f"""
LH_kv:
    buffer_load_dwordx4 v1, {s(sWS,4)}, s47 offen sc1 lds
    s_add_u32 m0, m0, 4096
    s_add_u32 s47, s47, 4096
    s_cmp_lt_u32 m0, s48
    s_cbranch_scc1 LH_kv
    s_cmp_eq_u32 s48, 131072
    s_cbranch_scc1 LH_kvdone
    s_mov_b32 s48, 131072
    """)
    for n in range(8):
        A(f's_waitcnt lgkmcnt({7-n})\nbuffer_store_dwordx4 {v(96+4*n,4)}, v1, {s(sWS,4)}, s{64+(n>>1)} offen offset:{(n&1)*1024} sc1')
    A(f'buffer_store_dwordx4 v[236:239], v1, {s(sWS,4)}, s68 offen sc1\nbuffer_store_dwordx4 v[236:239], v1, {s(sWS,4)}, s69 offen sc1')
    A(f's_waitcnt vmcnt(10)\ns_mov_b64 exec, 1\nds_add_u32 v247, v240 offset:12\ns_mov_b64 exec, -1')
    A(f"""
    s_mov_b32 s62, m0
    s_add_u32 m0, s63, 65536
    s_lshl_b32 s55, s44, 17
LH_wo:
    buffer_load_dwordx4 v242, {s(sH0,4)}, s55 offen lds
    s_add_u32 m0, m0, 4096
    s_add_u32 s55, s55, 8192
    s_cmp_lt_u32 m0, 131072
    s_cbranch_scc1 LH_wo
    s_mov_b32 m0, s62
    s_sub_u32 s62, s63, s60
    s_add_u32 s62, s62, 65536
    v_add_u32 v72, s62, v244
    v_add_u32 v73, s62, v245
    s_waitcnt vmcnt(16)
    """)
    stamp(A, 4)
    A(f"""
    s_mov_b64 exec, 1
    buffer_store_dword v3, off, {s(sWS,4)}, s61 sc1
    s_mov_b64 exec, -1
    s_waitcnt vmcnt(1)
    """)
    for k in range(8):
        for b in range(2):
            for rd in range(2):
                A(f'ds_read_b64_tr_b16 {v(176+8*k+4*b+2*rd,2)}, v{72+b} offset:{(2*k+rd)*4096}')
        if k in (2, 5, 7): A('s_waitcnt lgkmcnt(0)')
    A(f"""
    s_branch LH_kv
LH_kvdone:
    """)
    A(f"""
    s_mov_b32 s63, 0
    s_mov_b32 m0, s60
    """)
    D, G, X, T0, FO, WO = 8, 72, 88, 96, 112, 176
    Dj = lambda a, b: D + 16 * (a + 2 * b)
    adv = f"""
    s_add_u32 s52, s56, s59
    s_add_u32 s53, s57, s59
    s_lshl_b32 s55, s59, 4
    s_add_u32 s55, s55, s58
    s_add_u32 s59, s59, 4096
    s_cmp_ge_u32 s59, {7*4096}
    s_cselect_b32 s59, 0, s59
    """
    def dma(srd, buf):
        A(f"""
        buffer_load_dwordx4 v242, {s(srd,4)}, s55 offen offset:{2048*buf} lds
        buffer_load_dwordx4 v243, {s(srd,4)}, s55 offen offset:{2048*buf+1024} lds
        s_add_u32 s55, s55, {16384+2048*(2*buf-1)}
        """)
    def grp(i):
        if i & 3 == 0: A(adv)
        for a in range(2):
            A(f'buffer_load_dwordx4 {v(FO+8*(i&3)+4*a,4)}, v1, {s(sWS,4)}, s{52+a} offen offset:{(i&3)*1024} sc1')
        dma(sPK, i & 1)
    def trd(dst, buf):
        for b in range(2):
            for rd in range(2):
                A(f'ds_read_b64_tr_b16 {v(dst+4*b+2*rd,2)}, v{244+b} offset:{2048*buf+1024*rd}')
    A(f"""
    buffer_load_dwordx4 {v(X,4)}, v249, {s(sX,4)}, s54 offen
    buffer_load_dwordx4 {v(X+4,4)}, v249, {s(sX,4)}, s54 offen offset:32
    buffer_load_dwordx4 v[76:79], v246, {s(sWS,4)}, s49 offen sc1
    s_waitcnt vmcnt(3)
    s_mov_b64 exec, 1
    ds_add_u32 v247, v240 offset:8
    s_mov_b64 exec, -1
    """)
    stamp(A, 5)
    A(f"""
LH_fh:
    s_add_u32 s63, s63, 1
    s_waitcnt vmcnt(0)
    v_cmp_ne_u64 vcc, v[2:3], v[76:77]
    v_cmp_ne_u64 s[4:5], v[2:3], v[78:79]
    s_or_b64 vcc, vcc, s[4:5]
    s_cbranch_scc0 LH_gemm
    s_sleep 8
    buffer_load_dwordx4 v[76:79], v246, {s(sWS,4)}, s49 offen sc1
    s_cmp_lt_u32 s63, {SPIN}
    s_cbranch_scc1 LH_fh
LH_gemm:
    """)
    stamp(A, 6)
    amp(A, 'gemm')
    grp(0); grp(1)
    A('s_waitcnt vmcnt(4)')
    trd(G, 0)
    A('s_waitcnt lgkmcnt(0)')
    grp(2)
    A(f"s_setprio {os.environ.get('GPRIO', '0')}\ns_mov_b32 s63, {6 if 'nog' in EXP else 0}\nLH_gloop:")
    for i in range(4):
        A('s_waitcnt vmcnt(4)')
        trd(G + 8 * ((i + 1) & 1), (i + 1) & 1)
        for a in range(2): A(mfma(Dj(a, 0), G + 8 * (i & 1), FO + 8 * i + 4 * a, Dj(a, 0)))
        A('s_waitcnt lgkmcnt(0)')
        grp(i + 3)
        for a in range(2): A(mfma(Dj(a, 1), G + 8 * (i & 1) + 4, FO + 8 * i + 4 * a, Dj(a, 1)))
    A(f"""
    s_add_u32 s63, s63, 1
    s_cmp_lt_u32 s63, 7
    s_cbranch_scc1 LH_gloop
    s_setprio 2
    """)
    A(f"""
    s_lshl_b32 s47, s3, 3
    s_lshl_b32 s61, s44, 1
    s_add_u32 s47, s47, s61
    s_lshl_b32 s47, s47, 7
    s_lshl_b32 s61, s71, 2
    s_add_u32 s47, s47, s61
    s_add_u32 s47, s47, {hx(FH)}
    s_mov_b32 s63, 0
LH_fs:
    buffer_load_dword v241, v250, {s(sWS,4)}, s47 offen sc1
    s_add_u32 s63, s63, 1
    s_waitcnt vmcnt(0)
    v_cmp_ne_u32 vcc, v3, v241
    s_cbranch_vccz LH_fsok
    s_sleep 8
    s_cmp_lt_u32 s63, {SPIN}
    s_cbranch_scc1 LH_fs
LH_fsok:
    s_mov_b32 s62, 0
    """)
    for j in range(1, 4):
        A('s_call_b64 s[8:9], LH_meet')
        for q in range(4): A(f'ds_write_b128 v{4+j}, {v(D+16*j+4*q,4)} offset:{q*1024}')
        A('s_call_b64 s[8:9], LH_meet')
        for q in range(4): A(f'ds_read_b128 {v(D+16*j+4*q,4)}, v4 offset:{q*1024}')
    A(f"""
    s_lshl_b32 s52, s50, 5
    s_lshl_b32 s61, s44, 3
    s_add_u32 s52, s52, s61
    s_lshl_b32 s52, s52, 10
    s_add_u32 s58, s52, {hx(OF)}
    s_xor_b32 s56, s58, 0x8000
    s_add_u32 s57, s56, 4096
    s_add_u32 s59, s58, 4096
    s_mov_b32 s63, 0
    """)
    def send():
        for j in (2,):
            for q in range(4): A(f'ds_write_b128 v{252+j}, {v(D+16*j+4*q,4)} offset:{(j-1)*4096+q*1024}')
        A('s_waitcnt lgkmcnt(0)\ns_barrier')
        for j in range(1, 4):
            for q in range(4): A(f'ds_read_b128 {v(D+16*j+4*q,4)}, v252 offset:{(j-1)*4096+q*1024}')
    A(f"""
    s_or_b32 s61, s44, s2
    s_mov_b32 s61, {hx(NW)}
    s_cmov_b32 s61, 0x2000000
    s_mov_b32 s52, -1
    s_waitcnt lgkmcnt(0)
    """)
    stamp(A, 7)
    amp(A, 'ready')
    A('s_barrier')
    amp(A, 'X')
    stamp(A, 8)
    for g in range(4):
        A(f'LH_o{g}:')
        for k in range(4 * g, 4 * g + 4):
            A(f'buffer_load_dwordx4 {v(FO+4*k,4)}, v1, {s(sWS,4)}, s{56+g} offen offset:{(k&3)*1024} sc1')
    for g in range(4):
        A(f's_cmp_eq_u32 s52, {g}\ns_cbranch_scc1 LH_c{g}')
    A(f's_mov_b32 s4, {hx(f2u(-LOG2E))}\ns_mov_b32 s5, 1.0')
    for j in range(1, 4):
        for p in range(8): A(f'v_pk_add_f32 {v((D if j < 3 else G)+2*p,2)}, {v(D+2*p,2)}, {v(D+16*j+2*p,2)}')
    for p in range(8): A(f'v_pk_mul_f32 {v(D+2*p,2)}, {v(G+2*p,2)}, s[4:5] op_sel_hi:[1,0]')
    for j in range(16): A(f'v_exp_f32 v{D+j}, v{D+j}')
    for p in range(8): A(f'v_pk_add_f32 {v(D+2*p,2)}, {v(D+2*p,2)}, s[4:5] op_sel:[0,1] op_sel_hi:[1,1]')
    for j in range(16): A(f'v_rcp_f32 v{D+j}, v{D+j}')
    for p in range(8): A(f'v_pk_mul_f32 {v(G+2*p,2)}, {v(D+2*p,2)}, {v(G+2*p,2)}')
    for g in range(4):
        f0 = FO + 16 * g
        a, hh = 1 - (g >> 1), g & 1
        A(f"""
LH_c{g}:
        s_mov_b32 s52, {g}
        s_add_u32 s63, s63, 1
        s_waitcnt vmcnt({12-4*g})
        v_max3_u32 v241, v{f0}, v{f0+4}, v{f0+8}
        v_max_u32 v241, v241, v{f0+12}
        v_cmp_eq_u32 vcc, -1, v241
        s_cbranch_vccz LH_m{g}
        s_cmp_lt_u32 s63, {SPIN}
        s_cbranch_scc1 LH_o{g}
LH_m{g}:
        """)
        n = 0
        for b in (1, 0):
            for k in range(4):
                A(mfma(Dj(a, b), WO + 8 * (4 * hh + k) + 4 * b, f0 + 4 * k, None if hh == 0 and k == 0 else Dj(a, b)))
                if g == 2:
                    j, q = (3, 1)[n >> 2], n & 3
                    A(f'ds_write_b128 v{252+j}, {v(D+16*j+4*q,4)} offset:{(j-1)*4096+q*1024}')
                if g == 3: A(f'v_lshlrev_b32 v{T0+2*n}, 16, v{X+n}\nv_and_b32 v{T0+2*n+1}, 0xffff0000, v{X+n}')
                n += 1
    if STAMP and 'st0' not in EXP: A('s_add_u32 s89, s63, s80')
    stamp(A, 10)
    send()
    for j in range(1, 3):
        A(f's_waitcnt lgkmcnt({12-4*j})')
        for p in range(8): A(f'v_pk_add_f32 {v(D+2*p,2)}, {v(D+2*p,2)}, {v(D+16*j+2*p,2)}')
    for q in range(4):
        A(f's_waitcnt lgkmcnt({3-q})')
        for p in (2 * q, 2 * q + 1):
            A(f'v_pk_add_f32 {v(D+2*p,2)}, {v(D+2*p,2)}, {v(D+48+2*p,2)}')
            A(f'v_pk_fma_f32 {v(D+2*p,2)}, {v(D+2*p,2)}, {v(G+2*p,2)}, {v(T0+2*p,2)}')
            A(f'v_cvt_pk_bf16_f32 v{X+p}, v{D+2*p}, v{D+2*p+1}')
        if q & 1: A(f'buffer_store_dwordx4 {v(X+4*(q>>1),4)}, v249, {s(sA,4)}, s54 offen offset:{32*(q>>1)} {os.environ.get("OST", "")}')
    flag_store(A, 's61', 3)
    stamp(A, 11)
    stamp_end(A, sWS, sW, 2)
    if AMP:
        amp(A, 'end')
        A(f'''
        s_cmp_lg_u32 {s(sW)}, 4
        s_cbranch_scc1 L_end
        s_memrealtime s[78:79]
        s_sub_u32 s97, s97, s96
        s_waitcnt lgkmcnt(0)
        s_mov_b32 s96, s78
LH_amp:
        s_memrealtime s[78:79]
        s_waitcnt lgkmcnt(0)
        s_sub_u32 s78, s78, s96
        s_cmp_lt_u32 s78, s97
        s_cbranch_scc1 LH_amp
        ''')
    A(f"""
    s_endpgm
LH_meet:
    s_add_u32 s62, s62, 4
    s_mov_b32 s63, 0
    s_waitcnt lgkmcnt(0)
    s_mov_b64 exec, 1
    ds_add_u32 v247, v240
    s_mov_b64 exec, -1
LH_meetw:
    ds_read_b32 v241, v247
    s_add_u32 s63, s63, 1
    s_waitcnt lgkmcnt(0)
    v_cmp_gt_u32 vcc, s62, v241
    s_cbranch_vccz LH_meetok
    s_sleep 3
    s_cmp_lt_u32 s63, {SPIN * 16}
    s_cbranch_scc1 LH_meetw
LH_meetok:
    s_setpc_b64 s[8:9]
LH_prep:
    v_lshlrev_b32 v1, 4, v0
    v_cmp_gt_u32 vcc, 32, v0
    v_and_b32 v200, 15, v0
    v_and_b32 v201, 1, v0
    s_lshl_b32 s47, {s(sQB)}, 1
    v_add_u32 v201, s47, v201
    s_add_u32 s61, s3, 8
    s_lshr_b32 s62, s3, 1
    s_lshl_b32 s62, s62, 2
    s_add_u32 s62, s62, 3
    v_cndmask_b32 v200, v201, v200, vcc
    v_mov_b32 v201, s3
    v_mov_b32 v202, s62
    v_cndmask_b32 v201, v201, v202, vcc
    v_cmp_gt_u32 vcc, 16, v0
    v_mov_b32 v202, s61
    v_lshrrev_b32 v203, 3, v200
    v_cndmask_b32 v201, v201, v202, vcc
    v_and_b32 v200, 7, v200
    v_lshlrev_b32 v200, 3, v200
    v_lshl_add_u32 v200, v203, 2, v200
    v_lshrrev_b32 v203, 2, v201
    v_add_u32 v200, v200, v203
    v_and_b32 v201, 3, v201
    v_lshl_add_u32 v200, v201, 6, v200
    v_lshlrev_b32 v251, 7, v200
    s_lshl_b32 s61, s44, 12
    s_add_u32 s47, s61, {L_ONES}
    s_add_u32 s61, s61, {L_EX}
    v_and_b32 v204, 11, v0
    v_cmp_eq_u32 vcc, 0, v204
    v_mov_b32 v204, {hx(ONES)}
    v_and_b32 v205, 0x1ff, v1
    v_cndmask_b32 v232, 0, v204, vcc
    v_add_u32 v231, s47, v205
    v_mov_b32 v233, v232
    v_mov_b64 v[234:235], v[232:233]
    v_mov_b32 v240, 1
    v_mov_b32 v247, {L_FLAG}
    v_mov_b64 v[236:237], -1
    v_mov_b64 v[238:239], -1
    s_lshl_b32 s47, s44, 10
    s_add_u32 s47, s47, {L_H}
    v_add_u32 v248, s47, v1
    v_lshrrev_b32 v207, 5, v0
    v_lshrrev_b32 v204, 3, v0
    v_and_b32 v205, 7, v0
    v_and_b32 v206, 2, v204
    v_lshlrev_b32 v206, 1, v206
    v_xor_b32 v205, v205, v206
    v_lshlrev_b32 v205, 4, v205
    v_lshl_add_u32 v242, v204, 10, v205
    s_lshl_b32 s47, s70, 7
    v_add_u32 v242, s47, v242
    v_add_u32 v243, 7168, v242
    v_and_b32 v205, 1, v0
    v_bfe_u32 v204, v0, 1, 1
    v_lshl_add_u32 v205, v205, 1, v204
    v_lshlrev_b32 v205, 3, v205
    v_bfe_u32 v204, v0, 4, 1
    v_lshl_add_u32 v205, v204, 5, v205
    v_bfe_u32 v206, v0, 2, 2
    v_lshl_add_u32 v204, v207, 2, v206
    v_lshl_add_u32 v205, v204, 7, v205
    v_bfe_u32 v204, v0, 3, 1
    v_xor_b32 v204, s45, v204
    v_lshl_add_u32 v205, v204, 6, v205
    v_add_u32 v244, s61, v205
    v_xor_b32 v245, 64, v244
    v_and_b32 v205, 3, v0
    v_lshl_add_u32 v246, v206, 6, v205
    v_lshlrev_b32 v246, 7, v246
    v_bfe_u32 v204, v0, 2, 1
    v_lshl_add_u32 v250, v205, 6, v204
    v_lshlrev_b32 v250, 7, v250
    v_and_b32 v204, 31, v0
    v_lshlrev_b32 v204, 10, v204
    v_lshl_add_u32 v249, v207, 4, v204
    v_mov_b64 v[224:225], 0
    v_mov_b64 v[226:227], 0
    """)
    for j in range(4):
        A(f's_xor_b32 s47, s44, {j}\ns_lshl_b32 s47, s47, 14\nv_add_u32 v{252+j}, s47, v1')
    A(f"""
    s_setpc_b64 s[8:9]
LH_prep2:
    ds_write_b128 v231, v[232:235]
    ds_write_b128 v231, v[232:235] offset:2048
    s_lshl_b32 s60, s44, 12
    s_add_u32 s60, s60, {L_EX}
    """)
    for j in range(4):
        A(mfma(D + 16 * j, 224, 224, None))
        A(f's_xor_b32 s47, s44, {j}\ns_lshl_b32 s47, s47, 12\ns_add_u32 s47, s47, {L_EX}\nv_add_u32 v{4+j}, s47, v1')
    A('s_waitcnt lgkmcnt(0)\nv_mov_b32 v2, v3\ns_setpc_b64 s[8:9]')

def gen_C(A, patterns):
    sDW, sXs, sIt, sF1, sF3, sOne = 48, 49, 50, 72, 73, 76
    A(f"""
L_C:
    v_mov_b64 v[64:65], 0
    v_mov_b64 v[66:67], 0
    """)
    A(patterns)
    A(f"""
    s_waitcnt lgkmcnt(0)
    s_lshl_b32 s47, s46, 9
    s_add_u32 s47, s47, {L_X}
    v_add_u32 v4, s47, v4
    v_mov_b32 v1, v4
    v_add_u32 v2, {2*WST}, v2
    v_add_u32 v3, {2*WST}, v3
    s_mov_b32 {s(sDW)}, {hx(-2*WST)}
    s_mov_b32 {s(sXs)}, 0
    s_mov_b32 {s(sIt)}, 0
    s_lshl_b32 s53, {s(sRB)}, 2
    s_lshl_b32 s47, s46, 1
    s_add_u32 s53, s53, s47
    s_and_b32 s47, {s(sCG)}, 7
    s_lshl_b32 s47, s47, 2
    s_lshl_b32 s61, s45, 1
    s_add_u32 s47, s47, s61
    s_lshl_b32 s47, s47, 6
    s_add_u32 s47, s47, s53
    s_cmp_lt_u32 {s(sCG)}, 8
    s_cselect_b32 s52, 10, 11
    s_cselect_b32 s61, {hx(QF)}, {hx(KV)}
    s_cselect_b32 s58, {hx(f2u(0.25*LOG2E))}, 1.0
    s_lshl_b32 s47, s47, s52
    s_add_u32 s62, s47, s61
    s_lshl_b32 s47, 1, s52
    s_add_u32 s64, s62, s47
    s_lshl_b32 s47, 64, s52
    s_add_u32 s63, s62, s47
    s_add_u32 s65, s64, s47
    s_mul_i32 s47, s45, {5*256}
    s_add_u32 s47, s47, {L_CS}
    v_lshl_add_u32 v60, v0, 2, s47
    s_lshl_b32 s47, s46, 9
    s_add_u32 s47, s47, {L_RS}
    v_and_b32 v61, 31, v0
    v_lshl_add_u32 v61, v61, 3, s47
    v_lshlrev_b32 v63, 4, v0
    v_and_b32 v72, 15, v0
    v_and_b32 v73, 16, v0
    v_cmp_eq_u32 vcc, 0, v73
    v_lshlrev_b32 v72, 4, v72
    v_add_u32 v72, {L_ONES-1024}, v72
    v_mov_b32 v73, {NT*2048}
    v_cndmask_b32 v72, v72, v63, vcc
    v_cndmask_b32 v73, 0, v73, vcc
    s_lshl_b32 s47, s44, 12
    s_add_u32 s47, s47, {L_ONES}
    v_add_u32 v74, s47, v63
    s_lshl_b32 s66, {s(sQB)}, 3
    s_lshl_b32 s47, s44, 1
    s_add_u32 s66, s66, s47
    s_lshl_b32 s66, s66, 5
    s_add_u32 s66, s66, {s(sHead)}
    s_lshl_b32 s66, s66, 10
    s_add_u32 s66, s66, {hx(OF)}
    s_mov_b32 s54, {hx(f2u(2.0**126))}
    s_mov_b32 s55, {hx(f2u(2.0**-112))}
    s_mov_b32 s56, {hx(f2u(2.0**120))}
    s_mov_b32 s57, 0
    """)
    acc = lambda T, i: 96 + (i * 2 + T) * 16
    for i in range(5):
        for T in range(2): A(mfma(acc(T, i), 64, 64, None))
    FB = lambda f: 8 + 20 * f
    Wf = lambda f, i: FB(f) + 4 * i
    Xf = lambda f, T: FB(f) + 12 + 4 * T
    def reads(f, q, withA):
        st, ks = (q >> 1) & 1, q & 1
        r = [f'ds_read_b128 {v(Xf(f,T),4)}, v1 offset:{T*128+(q&3)*32}' for T in range(2)]
        for u in range(2):
            for rd in range(2):
                r.append(f'ds_read_b64_tr_b16 {v(Wf(f,1+u)+2*rd,2)}, v2 offset:{st*WST+(4*ks+rd)*128+u*32}')
        if withA:
            for rd in range(2):
                r.append(f'ds_read_b64_tr_b16 {v(Wf(f,0)+2*rd,2)}, v3 offset:{st*WST+(4*ks+rd)*128}')
        return r
    def kloop(label, withA, adv, lim, tr0):
        for r in reads(0, 0, withA): A(r)
        A(label + ':')
        for q in range(4):
            f = q & 1
            rr = reads(f ^ 1, q + 1, withA)
            A('s_waitcnt lgkmcnt(0)')
            if q & 1: A('s_barrier')
            tiles = [(1, 1), (2, 2), (0, 0)] if withA else [(1, 3), (2, 4)]
            ms = [mfma(acc(T, ai), Wf(f, wi), Xf(f, T), acc(T, ai)) for (wi, ai) in tiles for T in range(2)]
            k = 0
            for m in range(len(ms)):
                A(ms[m])
                for _ in range(3):
                    if k < len(rr): A(rr[k]); k += 1
                if q == 2 and m == len(ms) - 1: A(adv)
                if q == 3 and m == len(ms) - 2: A(f's_add_u32 {s(sIt)}, {s(sIt)}, 1')
                if q == 3 and m == len(ms) - 1 and not STAMP: A(f's_cmp_lt_u32 {s(sIt)}, {lim}')
            assert k == len(rr)
        if STAMP:
            A(f'{TM} s[78:79]\ns_add_u32 m0, {s(sIt)}, {tr0}\ns_waitcnt lgkmcnt(0)\nv_writelane_b32 v79, s78, m0\ns_cmp_lt_u32 {s(sIt)}, {lim}')
        A(f's_cbranch_scc1 {label}')
    def vstore(T, u):
        a = acc(T, 1 + u)
        for hd in range(2):
            A(f'buffer_store_dwordx4 {v(a+8+4*hd,4)}, v63, {s(sWS,4)}, s{62+2*u+hd} offen offset:{1024+2048*T} sc1')
    def vpath():
        A(f"""
        s_mul_i32 s47, s44, {WST}
        s_add_u32 s47, s47, {2*WST+2*PAN}
        v_and_b32 v52, 31, v0
        v_lshlrev_b32 v52, 5, v52
        v_lshl_add_u32 v52, v7, 3, v52
        v_add_u32 v52, s47, v52
        v_lshlrev_b32 v53, 2, v5
        v_add_u32 v53, v53, v7
        v_lshl_add_u32 v53, v53, 2, v6
        v_lshlrev_b32 v53, 5, v53
        v_and_b32 v54, 3, v0
        v_lshl_add_u32 v53, v54, 3, v53
        v_add_u32 v53, s47, v53
        s_and_b32 s47, s3, 3
        s_lshl_b32 s47, s47, 2
        s_add_u32 s47, s47, s45
        s_lshl_b32 s47, s47, 7
        s_add_u32 s47, s47, s53
        s_lshl_b32 s47, s47, 11
        s_add_u32 s62, s47, {hx(KV)}
        s_add_u32 s63, s62, {4*64*2048}
        s_add_u32 s64, s62, {64*2048}
        s_add_u32 s65, s62, {5*64*2048}
        """)
        prev = None
        for T in range(2):
            for u in range(2):
                a = acc(T, 1 + u)
                for p in range(8):
                    A(f'v_pk_mul_f32 {v(a+2*p,2)}, {v(a+2*p,2)}, {v(84+8*T,2)} op_sel_hi:[1,0]')
                for p in range(8):
                    A(f'v_cvt_pk_bf16_f32 v{a+p}, v{a+2*p}, v{a+2*p+1}')
                if prev is not None and prev[0] == 0:
                    A('s_waitcnt lgkmcnt(0)')
                    vstore(*prev)
                for hd in range(2):
                    o = (u * 2 + hd) * 1024
                    A(f'ds_write_b64 v52, {v(a+4*hd,2)} offset:{o}')
                    A(f'ds_write_b64 v52, {v(a+4*hd+2,2)} offset:{o+16}')
                for hd in range(2):
                    o = (u * 2 + hd) * 1024
                    A(f'ds_read_b64_tr_b16 {v(a+8+4*hd,2)}, v53 offset:{o}')
                    A(f'ds_read_b64_tr_b16 {v(a+8+4*hd+2,2)}, v53 offset:{o+256}')
                prev = (T, u)
    stamp(A, 1)
    A('s_barrier')
    stamp(A, 2)
    kloop('LC_loopA', True, f"""
        v_add_u32 v2, {s(sDW)}, v2
        v_add_u32 v3, {s(sDW)}, v3
        s_add_u32 {s(sXs)}, {s(sXs)}, {XST}
        s_cmp_ge_u32 {s(sXs)}, {4*XST}
        s_cselect_b32 {s(sXs)}, 0, {s(sXs)}
        s_sub_u32 {s(sDW)}, 0, {s(sDW)}
        v_add_u32 v1, {s(sXs)}, v4
        """, '8', 15)
    A("""
    s_waitcnt lgkmcnt(0)
    ds_read_b64 v[68:69], v61
    ds_read_b64 v[70:71], v61 offset:256
    """)
    CO = lambda i: 8 + 4 * i
    for i in range(5): A(f'ds_read_b32 v{CO(i)}, v60 offset:{i*256}')
    for i in range(5): A(f'v_mov_b32 v{CO(i)+1}, 0\nv_mov_b64 {v(CO(i)+2,2)}, 0')
    A('v_mov_b32 v49, 0\nv_mov_b64 v[50:51], 0\ns_waitcnt lgkmcnt(5)\nv_mov_b32 v64, v68\nv_mov_b32 v48, v70')
    K0 = -2.0 * math.sqrt(2.0 / math.pi) * LOG2E
    K1c = K0 * 0.044715
    A('v_rcp_f32 v84, v69\nv_rcp_f32 v92, v71\ns_waitcnt lgkmcnt(0)')
    for i in range(5):
        for T in range(2): A(mfma(acc(T, i), CO(i), (64, 48)[T], acc(T, i)))
        if i == 0:
            for T in range(2):
                b = 80 + 8 * T
                A(f"""
                v_mul_f32 v{b+2}, v{69+2*T}, v{69+2*T}
                v_mul_f32 v{b+1}, {hx(f2u(K0))}, v{b+4}
                v_mul_f32 v{b+3}, s58, v{b+4}
                v_mul_f32 v{b}, v{b+4}, v{b+4}
                v_mul_f32 v{b}, v{b}, v{b+4}
                v_mul_f32 v{b}, {hx(f2u(K1c))}, v{b}
                """)
        if i in (1, 2, 3, 4):
            T, hd = divmod(i - 1, 2)
            a = acc(T, 0) + 8 * hd
            for j in range(8): A(f'v_mul_f32 v{a+j}, v{83+8*T}, v{a+j}')
            for p in range(4): A(f'v_cvt_pk_bf16_f32 v{a+p}, v{a+2*p}, v{a+2*p+1}')
            A(f'buffer_store_dwordx4 {v(a,4)}, v63, {s(sWS,4)}, s{62+2*T+hd} offen sc1')
    A(f"""
    s_cmp_eq_u32 s71, 3
    s_cbranch_scc0 LC_B
    """)
    vpath()
    A(f"""
LC_B:
    v_add_u32 v2, {2*WST}, v2
    v_add_u32 v1, {3*XST}, v4
    s_mov_b32 {s(sDW)}, {4*WST}
    s_mov_b32 {s(sXs)}, {3*XST}
    s_mov_b32 {s(sIt)}, 0
    s_cmp_eq_u32 s71, 3
    s_cselect_b32 s51, {F1A}, {F1N}
    v_subrev_u32 v3, {4*WST}, v2
    """)
    stamp(A, 3)
    kloop('LC_loopB', False, f"""
        s_sub_u32 {s(sDW)}, {s(sDW)}, {2*WST}
        s_cselect_b32 {s(sDW)}, {4*WST}, {s(sDW)}
        v_add_u32 v2, {s(sDW)}, v3
        s_sub_u32 {s(sXs)}, {s(sXs)}, {XST}
        s_cselect_b32 {s(sXs)}, {3*XST}, {s(sXs)}
        v_add_u32 v1, {s(sXs)}, v4
        """, 's51', 23)
    A(f"""
    s_cmp_eq_u32 s51, 8
    s_cbranch_scc1 LC_epi
    s_lshl_b32 s47, s71, 4
    s_add_u32 s47, s47, s51
    s_cmp_eq_u32 s47, {F1A+48}
    s_cbranch_scc0 LC_flag
    s_mov_b32 s51, {F1B}
    """)
    vstore(1, 0); vstore(1, 1)
    A(f"""
    s_branch LC_loopB
LC_flag:
    s_mov_b32 s51, 8
    s_waitcnt vmcnt(0)
    s_branch LC_loopB
LC_epi:
    s_lshl_b32 s47, s44, 10
    s_add_u32 s47, s47, {L_H}
    v_add_u32 v4, s47, v63
    v_mov_b32 v1, v63
    s_cmp_eq_u32 s71, 3
    s_cbranch_scc1 LC_g4
    """)
    stamp(A, 4)
    n = 0
    for pr in range(2):
        if pr == 1: A('LC_g4:\ns_nop 4')
        for T in range(2):
            b = 80 + 8 * T
            for u in range(2):
                a = acc(T, 1 + 2 * pr + u)
                t = 52
                for p in range(4): A(f'v_pk_mul_f32 {v(t+2*p,2)}, {v(a+2*p,2)}, {v(a+2*p,2)}')
                for p in range(4): A(f'v_pk_fma_f32 {v(t+2*p,2)}, {v(t+2*p,2)}, {v(b,2)}, {v(b,2)} op_sel:[0,0,1] op_sel_hi:[1,0,1]')
                for p in range(4): A(f'v_pk_mul_f32 {v(t+2*p,2)}, {v(t+2*p,2)}, {v(a+2*p,2)}')
                for j in range(8): A(f'v_exp_f32 v{t+j}, v{t+j}')
                for p in range(4): A(f'v_pk_mul_f32 {v(a+2*p,2)}, {v(a+2*p,2)}, {v(a+8+2*p,2)}')
                for p in range(4): A(f'v_pk_fma_f32 {v(t+2*p,2)}, {v(t+2*p,2)}, {v(b+2,2)}, {v(b+2,2)} op_sel:[0,0,0] op_sel_hi:[1,0,0]')
                for j in range(8): A(f'v_rcp_f32 v{t+j}, v{t+j}')
                for p in range(4): A(f'v_pk_mul_f32 {v(a+2*p,2)}, {v(a+2*p,2)}, {v(t+2*p,2)}')
                for p in range(4): A(f'v_cvt_pk_bf16_f32 v{a+8+p}, v{a+2*p}, v{a+2*p+1}')
                A(f'ds_write_b128 v4, {v(a+8,4)} offset:{n*4096}')
                n += 1
    QA, QB, CA, CB, OA, OB, SA, SB, PA, PB = 8, 12, 16, 32, 48, 64, 80, 96, 112, 120
    KF = lambda b: 128 + 4 * b
    VF = lambda j: 136 + 4 * j
    A('LC_att:')
    if STAMP: A('v_mov_b32 v144, v79')
    stamp(A, 5)
    A('s_waitcnt lgkmcnt(0)')
    stamp(A, 6)
    A('s_barrier')
    stamp(A, 7)
    A(f"""
    ds_read_b128 {v(QA,4)}, v74 offset:512
    ds_read_b128 {v(KF(0),4)}, v1
    ds_read_b128 {v(KF(1),4)}, v1 offset:2048
    ds_read_b128 {v(QB,4)}, v74 offset:2560
    v_mov_b32 v2, v1
    v_mov_b32 v3, v72
    v_mov_b32 v4, v73
    s_mov_b32 {s(sIt)}, 0
    s_mov_b32 s51, 1
    """)
    for j in range(0, 8, 2): A(f'v_mov_b64 {v(VF(0)+j,2)}, 0')
    for j in range(0, 8, 2): A(f'v_mov_b64 {v(PB+j,2)}, 0')
    A('s_waitcnt lgkmcnt(2)')
    A(mfma(SA, KF(0), QA, None))
    A('s_waitcnt lgkmcnt(1)')
    A(mfma(OA, KF(1), QA, None))
    A('s_waitcnt lgkmcnt(0)')
    A(mfma(SB, KF(0), QB, None))
    A(mfma(OB, KF(1), QB, None))
    A('s_nop 6')
    for (S, O, C) in ((SA, OA, CA), (SB, OB, CB)):
        A(f'v_max3_f32 v{C}, v{S}, v{S+1}, v{S+2}')
        for j in range(3, 15, 2): A(f'v_max3_f32 v{C}, v{C}, v{S+j}, v{S+j+1}')
        A(f'v_max3_f32 v{C}, v{C}, v{S+15}, v{O}')
        for j in range(1, 15, 2): A(f'v_max3_f32 v{C}, v{C}, v{O+j}, v{O+j+1}')
        A(f'v_max_f32 v{C}, v{C}, v{O+15}')
        A(f'v_mov_b32 v{C+1}, v{C}')
        A(f'v_mov_b64 {v(O,2)}, 0\nv_mov_b64 {v(O+2,2)}, 0')
        A(f'v_permlane32_swap_b32 v{C}, v{C+1}')
        A(f'v_max_f32 v{C}, v{C}, v{C+1}')
        A(f'v_sub_f32 v{C}, {hx(f2u(-BIAS))}, v{C}')
        A(f'v_mov_b32 v{C+1}, v{C}')
        for j in range(2, 16, 2): A(f'v_mov_b64 {v(C+j,2)}, {v(C,2)}')
        for j in range(4, 10, 2): A(f'v_mov_b64 {v(O+j,2)}, 0')
        if S == SA: A(mfma(SA, KF(0), QA, CA))
    stamp(A, 8)
    if 'clk' in EXP: stamp(A, 9, True)
    E = lambda S, j: A(f'v_exp_f32 v{S+j}, v{S+j}')
    Cv = lambda S, P, p: A(f'v_cvt_pk_bf16_f32 v{P+p}, v{S+2*p}, v{S+2*p+1}')
    ORD = {'even': 'm0 e0 e1 e2 e3 e4 c0 c1 m1 e5 e6 c2 e7 e8 c3 e9 e10 c4 m2 e11 e12 c5 e13 e14 e15 c6 c7',
           'tight': 'm0 e0 e1 e2 m1 e3 e4 e5 m2 c0 c1 c2 e6 e7 e8 c3 e9 e10 c4 e11 e12 c5 e13 e14 e15 c6 c7',
           'mid': 'm0 e0 e1 e2 c0 m1 e3 e4 e5 c1 m2 c2 e6 e7 e8 c3 e9 e10 c4 e11 e12 c5 e13 e14 e15 c6 c7',
           'two': 'm0 e0 e1 e2 m1 e3 e4 e5 c0 c1 e6 e7 c2 e8 e9 c3 m2 e10 c4 e11 e12 c5 e13 e14 e15 c6 c7'}[os.environ.get('ORD', 'tight')].split()
    def phase(S, P, *m):
        for t in ORD:
            if t[0] == 'm':
                mm = m[int(t[1])]
                if ('nopv' in EXP and t[1] != '0') or ('noqk' in EXP and t[1] == '0'): mm = 's_nop 0\ns_nop 0\n' + '\n'.join(mm.split('\n')[1:])
                A(mm)
            elif t[0] == 'e' and 'noexp' in EXP: A('s_nop 1')
            elif t[0] == 'e': E(S, int(t[1:]))
            else: Cv(S, P, int(t[1:]))
    if os.environ.get('CPRIO'): A('s_setprio ' + os.environ['CPRIO'])
    A('s_nop 0\n.p2align 3\nLA_loop:')
    for t in range(NT):
        kb = t & 1
        o = t * 2048
        phase(SA, PA,
              mfma(SB, KF(kb), QB, CB) + f'\nds_read_b128 {v(KF(kb),4)}, v2 offset:{o+4096}',
              mfma(OB, VF(0), PB, OB) + f'\nds_read_b128 {v(VF(0),4)}, v3 offset:{o+1024}',
              mfma(OB, VF(1), PB + 4, OB) + f'\nds_read_b128 {v(VF(1),4)}, v3 offset:{o+1280}')
        tail = ''
        if t == NT - 2: tail = f'\ns_add_u32 {s(sIt)}, {s(sIt)}, 1'
        if t == NT - 1: tail = f'\ns_cmp_lt_u32 {s(sIt)}, s51\nv_add_u32 v2, {NT*2048}, v2\nv_add_u32 v3, v4, v3'
        phase(SB, PB,
              mfma(SA, KF(kb ^ 1), QA, CA) + '\ns_waitcnt lgkmcnt(1)',
              mfma(OA, VF(0), PA, OA) + '\ns_waitcnt lgkmcnt(0)',
              mfma(OA, VF(1), PA + 4, OA) + tail)
    if STAMP and 'atr' in EXP:
        A(f's_memtime s[78:79]\ns_add_u32 m0, {s(sIt)}, 15\ns_waitcnt lgkmcnt(0)\nv_writelane_b32 v144, s78, m0\ns_cmp_lt_u32 {s(sIt)}, s51')
    A(f'''
    s_cbranch_scc1 LA_loop
    s_cmp_eq_u32 s51, {64//NT}
    s_cbranch_scc1 LA_fini
    s_cmp_eq_u32 s51, 1
    s_cselect_b32 s51, {(2*NK1-2)//NT}, {64//NT}
    s_cselect_b32 s47, 4, 0
    s_add_u32 s47, s47, {L_FLAG+8}
    v_mov_b32 v5, s47
    s_mov_b32 s47, 0
LA_kvw:
    ds_read_b32 v6, v5
    s_add_u32 s47, s47, 1
    s_waitcnt lgkmcnt(0)
    v_cmp_ne_u32 vcc, 4, v6
    s_cbranch_vccz LA_loop
    s_cmp_lt_u32 s47, {SPIN * 16}
    s_cbranch_scc1 LA_kvw
    s_branch LA_loop
LA_fini:''')
    A(mfma(OB, VF(0), PB, OB)); A(mfma(OB, VF(1), PB + 4, OB))
    stamp(A, 11)
    if 'clk' in EXP:
        stamp(A, 10, True)
        A('s_sub_u32 s90, s90, s89\ns_add_u32 s90, s90, s80\ns_mov_b32 s89, 0')
    A('LA_fin:')
    A(f'v_add_f32 v{SA}, |v{OA}|, |v{OA+1}|')
    for j in range(2, 8): A(f'v_add_f32 v{SA}, v{SA}, |v{OA+j}|')
    A(f'''
    v_cmp_gt_f32 vcc, s54, v{SA}
    v_cmp_lt_f32 s[58:59], s55, v{SA}
    v_cmp_gt_f32 s[60:61], s56, v{OA+8}
    s_and_b64 vcc, vcc, s[58:59]
    s_and_b64 vcc, vcc, s[60:61]
    s_cmp_eq_u64 vcc, -1
    s_cbranch_scc0 LA_fallback
LA_norm:
    v_rcp_f32 v{OA+8}, v{OA+8}
    s_nop 0
    ''')
    for j in range(8): A(f'v_mul_f32 v{OA+j}, v{OA+j}, v{OA+8}')
    for p in range(4): A(f'v_cvt_pk_bf16_f32 v{PA+p}, v{OA+2*p}, v{OA+2*p+1}')
    A(f'''
    v_min_u32 v{PA}, -2, v{PA}
    buffer_store_dwordx4 {v(PA,4)}, v1, {s(sWS,4)}, s66 offen sc1
    s_cmp_eq_u32 s57, 1
    s_cbranch_scc1 LA_done
    s_mov_b32 s57, 1
    s_add_u32 s66, s66, 0x8000
    ''')
    for j in range(0, 10, 2): A(f'v_mov_b64 {v(OA+j,2)}, {v(OB+j,2)}')
    for j in range(0, 4, 2): A(f'v_mov_b64 {v(QA+j,2)}, {v(QB+j,2)}')
    A('s_branch LA_fin\nLA_done:')
    stamp(A, 12)
    stamp_end(A, sWS, sW, tr=144)
    A('s_endpgm')
    A(f'''
LA_fallback:
    v_mov_b32 v{CA}, 0xff800000
    v_mov_b32 v2, v1
    s_mov_b32 {s(sIt)}, 0
LA_fb1:
    ds_read_b128 {v(KF(0),4)}, v2
    v_add_u32 v2, 0x800, v2
    s_waitcnt lgkmcnt(0)
    ''')
    A(mfma(SA, KF(0), QA, None))
    A('s_nop 11')
    for j in range(0, 16, 2): A(f'v_max3_f32 v{CA}, v{CA}, v{SA+j}, v{SA+j+1}')
    A(f'''
    s_add_u32 {s(sIt)}, {s(sIt)}, 1
    s_cmp_lt_u32 {s(sIt)}, 64
    s_cbranch_scc1 LA_fb1
    v_mov_b32 v{CA+1}, v{CA}
    v_cmp_eq_u32 vcc, 0, v4
    v_lshrrev_b32 v6, {NT.bit_length()-1}, v4
    v_permlane32_swap_b32 v{CA}, v{CA+1}
    v_max_f32 v{CA}, v{CA}, v{CA+1}
    v_sub_f32 v{CA}, 0, v{CA}
    v_cndmask_b32 v3, v1, v3, vcc
    ''')
    for j in range(1, 16): A(f'v_mov_b32 v{CA+j}, v{CA}')
    for j in range(0, 16, 2): A(f'v_mov_b64 {v(OA+j,2)}, 0')
    A(f'''
    v_mov_b32 v2, v1
    s_mov_b32 {s(sIt)}, 0
LA_fb2:
    ds_read_b128 {v(KF(0),4)}, v2
    ds_read_b128 {v(VF(0),4)}, v3 offset:1024
    ds_read_b128 {v(VF(1),4)}, v3 offset:1280
    v_add_u32 v2, 0x800, v2
    v_add_u32 v3, v6, v3
    s_waitcnt lgkmcnt(0)
    ''')
    A(mfma(SA, KF(0), QA, CA))
    A('s_nop 11')
    for j in range(16): E(SA, j)
    A('s_nop 0')
    for p in range(8): Cv(SA, PA, p)
    A('s_nop 1')
    A(mfma(OA, VF(0), PA, OA)); A(mfma(OA, VF(1), PA + 4, OA))
    A(f'''
    s_add_u32 {s(sIt)}, {s(sIt)}, 1
    s_cmp_lt_u32 {s(sIt)}, 64
    s_cbranch_scc1 LA_fb2
    s_nop 11
    s_branch LA_norm
    ''')

def main(out):
    A = Asm()
    top = f'''; out = x + (MHA(LN x) @ wo) * silu(GEGLU-FFN(LN x)); one persistent launch, 256 workgroups (generated by gen/gen5.py)
; @launch grid=(256,1,1) block=(512,1,1) lds={LDS_BYTES}
.amdgcn_target "amdgcn-amd-amdhsa--gfx950"
.text
'''
    gen(A)
    tail = f'''.section .rodata,"a"
.p2align 6
.amdhsa_kernel {NAME}_kernel
  .amdhsa_next_free_vgpr 256
  .amdhsa_next_free_sgpr 100
  .amdhsa_accum_offset 256
  .amdhsa_group_segment_fixed_size 0
  .amdhsa_kernarg_size 80
  .amdhsa_user_sgpr_count 2
  .amdhsa_user_sgpr_kernarg_segment_ptr 1
  .amdhsa_system_sgpr_workgroup_id_x 1
.end_amdhsa_kernel
'''
    open(out, 'w').write(top + A.text() + tail)

if __name__ == '__main__':
    main(sys.argv[1] if len(sys.argv) > 1 else 'cdna_kernels/%s.s' % NAME)
```

```python
import struct, sys, math, os

NAME = 'recurrent_scan__mha_block__glu_gated_geglu__prompt'
def f2u(x): return struct.unpack('<I', struct.pack('<f', x))[0]
def hx(x): return '0x%x' % (x & 0xffffffff)
class Asm:
    def __init__(self): self.l = []
    def __call__(self, s):
        for line in s.split('\n'):
            line = line.strip()
            if not line: continue
            self.l.append(line if line.endswith(':') or line.startswith('.') else '    ' + line)
    def text(self): return '\n'.join(self.l) + '\n'
def v(a, n=1): return 'v%d' % a if n == 1 else 'v[%d:%d]' % (a, a + n - 1)
def s(a, n=1): return 's%d' % a if n == 1 else 's[%d:%d]' % (a, a + n - 1)
def mfma(d, a, b, c):
    return 'v_mfma_f32_32x32x16_bf16 %s, %s, %s, %s' % (v(d, 16), v(a, 4), v(b, 4), '0' if c is None else v(c, 16))

QF  = 0x000000
KV  = 0x200000
HF  = 0x600000
OF  = 0xD00000
CSP = 0x1200000
RSP = 0x1280000
FL  = 0x13C0000
FH  = 0x13C8000
NW  = 0x13D0000
STB = 0x1400000
WS_BYTES = 0x1500000
LOG2E = 1.4426950408889634
ONES = 0x3f803f80
SPIN = 1 << 18

LIGHT = os.environ.get('STAMP') == '2'
STAMP = os.environ.get('STAMP') == '1'
EXP = set(os.environ.get('EXP', '').split(','))
BIAS = float(os.environ.get('BIAS', '100'))
NFL = int(os.environ.get('NFL', '4'))

TM = 's_memrealtime' if os.environ.get('RT') else 's_memtime'
_seen = set()
def stamp(A, idx, real=False):
    if 'frozen' in EXP and idx in (5, 6, 7, 8, 9, 10, 11, 12) and not any('L_C:' == x for x in A.l): return
    if not STAMP and not (LIGHT and idx in (0, 13, 14, 15)): return
    if 'e1' in EXP and A.l and any('L_C:' == x for x in A.l):
        if idx in _seen: return
        _seen.add(idx)
    A('%s s[78:79]\ns_waitcnt lgkmcnt(0)\ns_mov_b32 s%d, s78' % ('s_memrealtime' if real or os.environ.get('RT') else 's_memtime', 80 + idx))
AMP = os.environ.get('AMP')
def amp(A, name):
    if AMP == name: A('s_memrealtime s[78:79]\ns_waitcnt lgkmcnt(0)\ns_mov_b32 s97, s78')
def stamp_begin(A):
    if AMP: A('s_memrealtime s[78:79]\ns_waitcnt lgkmcnt(0)\ns_mov_b32 s96, s78\ns_mov_b32 s97, s78')
    if not STAMP and not LIGHT: return
    for i in range(16): A('s_mov_b32 s%d, 0' % (80 + i))
    stamp(A, 14, True); stamp(A, 0)
def stamp_end(A, sWS, sW, vt=3, tr=None):
    if not STAMP and not (LIGHT and tr is None): return
    A('s_waitcnt vmcnt(0)')
    stamp(A, 13); stamp(A, 15, True)
    A('s_nop 4')
    if tr is not None: A('v_mov_b32 v%d, v%d' % (vt, tr))
    for i in range(16): A('v_writelane_b32 v%d, s%d, %d' % (vt, 80 + i, i))
    A('''s_lshl_b32 s78, s2, 3
    s_add_u32 s78, s78, s%d
    s_lshl_b32 s78, s78, 7
    s_add_u32 s78, s78, %s
    v_lshlrev_b32 v%d, 2, v0
    s_mov_b64 exec, 0xffffffff
    buffer_store_dword v%d, v%d, s[%d:%d], s78 offen''' % (sW, hx(STB), vt + 1, vt, vt + 1, sWS, sWS + 3))

PAN, APAN = 4224, 4352
WST = 2 * PAN + APAN
XST = 16 * 1040
L_X = 6 * WST
L_CS = L_X + 4 * XST
L_RS = L_CS + 10 * 256
L_ONES = 131072
L_EX = L_ONES + 7 * 2048 + 1536
assert L_RS + 1024 <= L_EX
L_H = 98304
L_FLAG = L_EX + 16384
L_NON = L_FLAG + 4
LDS_BYTES = L_FLAG + 64
assert LDS_BYTES <= 163840
NT = 8
F1N, F1A, F1B = [int(t) for t in os.environ.get('F1IT', '2,1,4').split(',')]
NK1 = int(os.environ.get('NK1', '13'))

sX, sA, sH0, sH1, sWS, sPK, sDBG = 16, 20, 24, 28, 32, 36, 12
sP0, sP1 = 36, 12
sRB, sCG, sW, sHead, sQB = 40, 41, 42, 74, 75

def flag_store(A, soff, vt):
    A(f'''
    s_mov_b64 exec, 1
    buffer_store_dword v{vt}, off, {s(sWS,4)}, {soff} sc1
    s_mov_b64 exec, -1
    ''')

def gen(A):
    K = NAME + '_kernel'
    A(f'.globl {K}\n.p2align 8\n.type {K},@function\n{K}:')
    A('''
    s_cmp_ge_u32 s2, 256
    s_cbranch_scc1 L_end
    ''')
    stamp_begin(A)
    A(f'''
    v_lshrrev_b32 v1, 6, v0
    s_getpc_b64 s[4:5]
L_pc:
    v_readfirstlane_b32 {s(sW)}, v1
    s_and_b32 s47, s2, 0xf8
    s_load_dwordx2 {s(sX,2)}, s[0:1], 0
    s_add_u32 s47, s47, {s(sW)}
    s_lshl_b32 s47, s47, 6
    s_load_dword s6, s[4:5], s47
    s_add_u32 s47, s47, 0x4000
    s_min_u32 s47, s47, L_code_end-L_pc-4
    s_load_dword s7, s[4:5], s47
    s_load_dwordx2 {s(sA,2)}, s[0:1], 8
    s_load_dwordx2 {s(sH0,2)}, s[0:1], 32
    s_load_dwordx2 {s(sH1,2)}, s[0:1], 40
    s_load_dwordx2 {s(sWS,2)}, s[0:1], 72
    v_and_b32 v0, 63, v0
    s_and_b32 s3, s2, 7
    s_lshr_b32 s43, s2, 3
    s_lshr_b32 {s(sRB)}, s3, 2
    s_lshl_b32 {s(sRB)}, {s(sRB)}, 3
    s_and_b32 s70, s43, 7
    s_add_u32 {s(sRB)}, {s(sRB)}, s70
    s_and_b32 {s(sCG)}, s3, 3
    s_lshl_b32 {s(sCG)}, {s(sCG)}, 2
    s_lshr_b32 s71, s43, 3
    s_add_u32 {s(sCG)}, {s(sCG)}, s71
    s_and_b32 s44, {s(sW)}, 3
    s_lshr_b32 s45, s44, 1
    s_and_b32 s46, s44, 1
    s_mov_b32 {s(sWS+2)}, {hx(WS_BYTES)}
    s_mov_b32 {s(sWS+3)}, 0x20000
    s_mov_b32 {s(sX+2)}, 2097152
    s_mov_b32 {s(sX+3)}, 0x20000
    s_mov_b32 {s(sA+2)}, 1572864
    s_mov_b32 {s(sA+3)}, 0x20000
    s_lshl_b32 {s(sHead)}, s3, 2
    s_add_u32 {s(sHead)}, {s(sHead)}, s71
    s_mov_b32 {s(sQB)}, s70
    ''')
    patterns = f'''
    v_bfe_u32 v5, v0, 4, 1
    v_bfe_u32 v6, v0, 2, 2
    v_lshrrev_b32 v7, 5, v0
    v_and_b32 v1, 3, v0
    v_lshlrev_b32 v1, 3, v1
    v_lshl_add_u32 v1, v7, 8, v1
    v_mul_u32_u24 v2, {PAN}, v5
    v_mul_u32_u24 v8, 1056, v6
    v_add3_u32 v2, v2, v8, v1
    v_mul_u32_u24 v8, 1088, v6
    v_lshl_add_u32 v3, v5, 5, v8
    v_add_u32 v3, v3, v1
    v_and_b32 v8, 15, v0
    v_mul_u32_u24 v8, 1040, v8
    v_lshl_add_u32 v4, v5, 8, v8
    v_lshl_add_u32 v4, v7, 4, v4
    s_lshl_b32 s47, s45, 6
    v_add_u32 v2, s47, v2
    s_add_u32 s47, s47, {2*PAN}
    v_add_u32 v3, s47, v3
    '''
    A(f'''
    s_and_b32 s47, {s(sW)}, 6
    s_cmp_eq_u32 s47, 4
    s_cbranch_scc1 L_L
    ''')
    if 'tlb' in EXP:
        A(f'''
        s_load_dwordx2 s[8:9], s[0:1], 16
        s_load_dwordx4 s[12:15], s[0:1], 48
        s_lshl_b32 s47, {s(sW)}, 21
        s_add_u32 s48, s47, {hx(0x400000)}
        s_waitcnt lgkmcnt(0)
        s_load_dword s6, {s(sA,2)}, 0
        s_load_dword s6, {s(sH0,2)}, 0
        s_load_dword s6, {s(sH1,2)}, 0
        s_load_dword s6, {s(sWS,2)}, s47
        s_load_dword s6, {s(sWS,2)}, s48
        s_load_dword s6, s[8:9], 0
        s_load_dword s6, s[12:13], 0
        s_load_dword s6, s[14:15], 0
        ''')
    A(f'''
    s_cmp_lt_u32 {s(sW)}, 4
    s_cbranch_scc1 L_C
    s_branch L_M
L_L:
    ''')
    gen_H(A, patterns)
    gen_C(A, patterns)
    A('L_end:\ns_endpgm\nL_code_end:')

def gen_H(A, patterns):
    sStrH, sColH = 48, 49
    sRowA, sRowH, sMH, sMA, sMX, sXo, sRot, sG = 50, 51, 52, 53, 54, 55, 59, 60
    ROTM = int(os.environ.get('ROTM', '7'))
    sStr, sRowP, sRowA, sRowB, sMA, sMB, sMX, sXo, sRot, sGA, sGB, sJ = 48, 49, 50, 51, 52, 53, 54, 55, 59, 60, 56, 57
    A(f"""
    v_lshrrev_b32 v8, 3, v0
    v_and_b32 v9, 7, v0
    v_lshlrev_b32 v9, 4, v9
    v_and_b32 v13, 4, v8
    v_bfe_u32 v14, v8, 1, 1
    v_and_b32 v15, 1, v8
    v_lshl_add_u32 v14, v15, 1, v14
    v_add_u32 v13, v13, v14
    v_lshl_add_u32 v13, v13, 14, v9
    s_lshl_b32 s47, {s(sRB)}, 17
    s_lshl_b32 s61, s46, 12
    s_add_u32 s47, s47, s61
    v_add_u32 v13, s47, v13
    s_lshl_b32 s62, s71, 1
    s_add_u32 {s(sRot)}, s70, s62
    s_and_b32 s47, s3, 1
    s_add_u32 {s(sRot)}, {s(sRot)}, s47
    s_and_b32 {s(sRot)}, {s(sRot)}, 7
    s_lshl_b32 {s(sXo)}, {s(sRot)}, 7
    s_lshl_b32 {s(sRot)}, {s(sRot)}, 1
    s_mul_i32 s58, s46, 4160
    s_add_u32 s58, s58, {L_X}
    s_mov_b32 {s(sMX)}, s58
    s_mov_b32 {s(sJ)}, 0
    s_and_b32 s64, s3, 3
    s_mul_i32 s65, s64, 7
    s_add_u32 s65, s65, s62
    s_lshl_b32 s65, s65, 7
    s_add_u32 s66, s65, 128
    s_lshl_b32 s64, s64, 8
    s_add_u32 s64, s64, 2048
    s_cmp_lt_u32 s71, 3
    s_mov_b32 {s(sP0+2)}, 1572864
    s_cmov_b32 {s(sP0+2)}, 1835008
    s_mov_b32 {s(sP1+2)}, {1572864-128}
    s_cmov_b32 {s(sP1+2)}, 1835008
    s_mov_b32 {s(sP0+3)}, 0x20000
    s_mov_b32 {s(sP1+3)}, 0x20000
    s_movk_i32 {s(sStr)}, 3072
    s_cmovk_i32 {s(sStr)}, 3584
    s_cselect_b32 s64, s65, s64
    s_cselect_b32 s65, s66, s65
    s_lshl_b32 s47, s46, 1
    v_lshl_add_u32 v10, v8, 2, s47
    v_mul_u32_u24 v11, 3072, v10
    s_lshl_b32 s47, {s(sCG)}, 7
    v_add3_u32 v11, v11, v9, s47
    v_mul_lo_u32 v18, v10, {s(sStr)}
    v_add3_u32 v18, v18, v9, s64
    v_add_u32 v19, {s(sStr)}, v18
    s_lshl_b32 {s(sStr)}, {s(sStr)}, 5
    s_mul_i32 {s(sRowA)}, {s(sRot)}, {32*3072}
    s_mul_i32 {s(sRowP)}, {s(sRot)}, {s(sStr)}
    s_mul_i32 {s(sMA)}, s46, 2112
    s_add_u32 {s(sMA)}, {s(sMA)}, {2*WST}
    s_lshl_b32 s69, s46, 6
    s_mov_b32 {s(sGA)}, 0
    s_waitcnt lgkmcnt(0)
    """)
    sel = f"""
    s_add_u32 s62, {s(sA)}, 128
    s_addc_u32 s63, {s(sA+1)}, 0
    s_cmp_lt_u32 s71, 3
    s_cselect_b64 {s(sP0,2)}, {s(sH0,2)}, {s(sA,2)}
    s_cselect_b64 {s(sP1,2)}, {s(sH1,2)}, s[62:63]
    """
    setup2 = f"""
    s_mov_b32 {s(sH0+2)}, 1835008
    s_mov_b32 {s(sH1+2)}, 1835008
    s_mov_b32 {s(sH0+3)}, 0x20000
    s_mov_b32 {s(sH1+3)}, 0x20000
    v_mul_u32_u24 v16, 3584, v10
    v_add3_u32 v16, v16, v9, s65
    v_add_u32 v17, 3584, v16
    s_add_u32 s47, {s(sRot)}, 14
    s_and_b32 s47, s47, 15
    s_mul_i32 {s(sRowB)}, s47, {32*3584}
    s_mul_i32 {s(sMB)}, s46, 2112
    s_add_u32 {s(sMB)}, {s(sMB)}, {4*WST}
    s_mov_b32 {s(sGB)}, 0
    """
    ops = []
    def call(tag):
        name = {'X': 'LL_X', 'A': 'LL_A', 'B': 'LL_B', 'p': 'LH_pp'}[tag[0]]
        A(f's_call_b64 s[8:9], {name}')
        ops.extend([tag] * {'LL_X': 4, 'LL_A': 6, 'LL_B': 4, 'LH_pp': 4}[name])
    def bar(*need):
        if need:
            assert all(t in ops for t in need), need
            last = max(i for i, t in enumerate(ops) if t in need)
            if len(ops) - 1 - last < 64: A(f's_waitcnt vmcnt({len(ops) - 1 - last})')
        A('s_barrier')
    def bodyX():
        ld = [(f's_add_u32 m0, {s(sMX)}, {16*i}', f'buffer_load_dwordx4 v13, {s(sX,4)}, {s(sXo)} offen offset:{1024*i} lds') for i in range(4)]
        pre = [f's_add_u32 {s(sJ)}, {s(sJ)}, 1', f's_lshr_b32 s67, {s(sJ)}, 1', 's_sub_u32 s68, 11, s67',
               f's_cmp_lt_u32 {s(sJ)}, 16\ns_cselect_b32 s67, s67, s68']
        post = ['s_and_b32 s68, s67, 3\ns_lshl_b32 s68, s68, 1', f's_and_b32 s62, {s(sJ)}, 1\ns_add_u32 s68, s68, s62',
                f's_mul_i32 s68, s68, {XST//2}\ns_add_u32 {s(sMX)}, s68, s58\ns_lshl_b32 s67, s67, 1',
                f's_add_u32 s67, s67, {s(sRot)}\ns_and_b32 s67, s67, 15\ns_lshl_b32 s67, s67, 6\ns_lshl_b32 s62, s62, 13\ns_add_u32 {s(sXo)}, s67, s62']
        return ld, pre, post
    def bodyA():
        ld = [(f's_add_u32 m0, {s(sMA)}, {hf*PAN+1056*bb}', f'buffer_load_dwordx4 v{18+bb}, {s(sP0 if hf == 0 else sP1,4)}, {s(sRowP)} offen lds')
              for hf in range(2) for bb in range(2)]
        ld += [(f's_add_u32 m0, s61, {2*PAN+(1088-3072)*bb}', f'buffer_load_dwordx4 v11, {s(sA,4)}, {s(sRowA)} offen offset:{3072*bb} lds') for bb in range(2)]
        pre = [f's_add_u32 {s(sGA)}, {s(sGA)}, 1', f's_add_u32 s47, {s(sGA)}, {s(sRot)}', 's_and_b32 s47, s47, 15', f's_add_u32 s61, {s(sMA)}, s69',
               f's_mul_i32 {s(sRowP)}, s47, {s(sStr)}\ns_add_u32 {s(sMA)}, {s(sMA)}, {WST}',
               f's_cmp_ge_u32 {s(sMA)}, {4*WST}\ns_cselect_b32 s63, {4*WST}, 0\ns_sub_u32 {s(sMA)}, {s(sMA)}, s63']
        post = [f's_mul_i32 {s(sRowA)}, s47, {32*3072}']
        return ld, pre, post
    def bodyB():
        ld = [(f's_add_u32 m0, {s(sMB)}, {hf*PAN+1056*bb}', f'buffer_load_dwordx4 v{16+bb}, {s(sH0 if hf == 0 else sH1,4)}, {s(sRowB)} offen lds')
              for hf in range(2) for bb in range(2)]
        pre = [f's_add_u32 {s(sGB)}, {s(sGB)}, 1', f's_xor_b32 s47, {s(sGB)}, 14', f's_add_u32 s47, s47, {s(sRot)}\ns_and_b32 s47, s47, 15',
               f's_bitcmp1_b32 {s(sGB)}, 0\ns_mov_b32 s63, {3*WST}\ns_cmov_b32 s63, {WST}\ns_add_u32 {s(sMB)}, {s(sMB)}, s63\ns_cmp_ge_u32 {s(sMB)}, {6*WST}\ns_cselect_b32 s63, {6*WST}, 0\ns_sub_u32 {s(sMB)}, {s(sMB)}, s63']
        post = [f's_mul_i32 {s(sRowB)}, s47, {32*3584}']
        return ld, pre, post
    def emit(*bodies):
        carry = []
        for ld, pre, post in bodies:
            for i, (m, l) in enumerate(ld):
                A(m); A(pre[i])
                if carry: A(carry.pop(0))
                A(l)
            for t in carry: A(t)
            carry = list(post)
        for t in carry: A(t)
    if 'st0' in EXP: stamp(A, 9)
    call('X0'); A(sel)
    if 'st0' in EXP: stamp(A, 10)
    call('X1')
    if 'st0' in EXP: stamp(A, 7)
    call('A0')
    if 'st0' in EXP: stamp(A, 6)
    call('A1')
    if 'st0' in EXP: stamp(A, 11)
    A('s_branch LL_go\nLL_X:')
    emit(bodyX())
    A('s_setpc_b64 s[8:9]\nLL_A:')
    emit(bodyA())
    A('s_setpc_b64 s[8:9]\nLL_go:')
    A(setup2)
    A('s_call_b64 s[8:9], LH_prep')
    if 'st0' in EXP:
        stamp(A, 12); A('s_waitcnt vmcnt(12)'); stamp(A, 8); A('s_waitcnt vmcnt(6)'); stamp(A, 5); EXP.add('frozen')
    def need(c):
        n = [f'A{c}' if c < 16 else f'B{c-16}']
        if c % 2 == 0 and c < 16: n += [f'X{c}', f'X{c+1}']
        if c % 2 == 0 and c >= 24: n += [f'X{c-8}', f'X{c-7}']
        if c == 2: n += ['B0', 'B1']
        return n
    def dist(c):
        return len(ops) - 1 - max(i for i, t in enumerate(ops) if t in need(c))
    def loop(label, c0, c1, second, cnt, lim):
        A(f's_waitcnt vmcnt({dist(c0)})\n{label}:\ns_barrier')
        emit(bodyX(), second())
        w = 63
        for c in range(c0, c1 + 1):
            ops.extend([f'X{c+4 if c < 16 else c-2}'] * 4 + ([f'A{c+3}'] * 6 if c < 16 else [f'B{c-11}'] * 4))
            if c < c1: w = min(w, dist(c + 1))
        A(f's_cmp_lt_u32 {cnt}, {lim}\ns_waitcnt vmcnt({w})\ns_cbranch_scc1 {label}')
    sched = {0: 'X2,X3,B0,B1', 1: 'A2,A3,X4,X5,A4', 12: 'A15', 13: 'B2', 14: 'B3', 15: 'B4', 16: 'B5', 17: 'B6', 26: 'B15'}
    if os.environ.get('LS0'): sched[0], sched[1] = os.environ['LS0'].split('/')
    c = 0
    while c < 32:
        if c == 2:
            loop('LL_loopA', 2, 11, bodyA, s(sGA), 15); c = 12; continue
        if c == 18:
            loop('LL_loopB', 18, 25, bodyB, s(sGB), 15); c = 26; continue
        bar(*need(c))
        amp(A, f'b{c}')
        if c == 27:
            A(f"""
    v_mov_b32 v9, {L_NON}
    ds_read_b32 v3, v9
    s_call_b64 s[8:9], LH_prep2
    s_mov_b32 s52, {hx(FL)}
    s_lshl_b32 s61, {s(sHead)}, 3
    s_add_u32 s61, s61, {s(sQB)}
    s_lshl_b32 s61, s61, 13
    s_lshl_b32 s47, s46, 12
    s_add_u32 s61, s61, s47
    s_lshl_b32 s62, s46, 13
    s_add_u32 s62, s62, {L_ONES+512}
    s_lshl_b32 s63, s46, 10
    s_lshl_b32 s47, {s(sHead)}, 17
    s_add_u32 s47, s47, {hx(KV)}
    s_add_u32 s47, s47, s63
    s_mov_b32 s53, 0
    """)
        if c == 30:
            A(f"""
    s_cmp_eq_u32 s71, {3 if 'noearly' not in EXP else 9}
    s_cselect_b32 s55, s52, 0x2000000
    buffer_load_dword v241, v251, {s(sWS,4)}, s55 offen sc1
    """)
            ops.append('poll')
        for t in sched.get(c, '').split(','):
            if t: call(t)
        c += 1
    A(f"""
    s_setprio 2
    s_barrier
    s_cmp_eq_u32 s55, s52
    s_cbranch_scc1 LL_f1c
    s_sleep {os.environ.get('SL1', '6')}
LL_f1:
    buffer_load_dword v241, v251, {s(sWS,4)}, s52 offen sc1
LL_f1c:
    s_add_u32 s53, s53, 1
    s_waitcnt vmcnt(0) lgkmcnt(0)
    v_cmp_ne_u32 vcc, v3, v241
    s_cbranch_vccz LL_f1ok
    s_sleep 4
    s_cmp_lt_u32 s53, {SPIN}
    s_cbranch_scc1 LL_f1
LL_f1ok:
    """)
    stamp(A, 1)
    if STAMP: A('s_add_u32 s82, s53, s80')
    A('s_call_b64 s[8:9], LL_qkv\ns_branch LH_join\nLL_qkv:')
    for i in range(4):
        A(f's_add_u32 m0, s62, {1024*i}\ns_nop 0\nbuffer_load_dwordx4 v1, {s(sWS,4)}, s61 offen offset:{1024*i} sc1 lds')
    A(f"""
    s_mov_b32 m0, s63
    s_nop 0
LL_kv:
    buffer_load_dwordx4 v1, {s(sWS,4)}, s47 offen sc1 lds
    buffer_load_dwordx4 v1, {s(sWS,4)}, s47 offen offset:2048 sc1 lds
    s_add_u32 m0, m0, 4096
    s_add_u32 s47, s47, 4096
    s_cmp_lt_u32 m0, 20480
    s_cbranch_scc1 LL_kv
    s_setpc_b64 s[8:9]
LL_B:
    """)
    emit(bodyB())
    A(f"""
    s_setpc_b64 s[8:9]
    """)
    CS, RS = 16, 24
    WF, XF = 32, 52
    sOne = 73
    A(f"""
L_M:
    s_setprio {os.environ.get('MPRIO', '0')}
    s_mov_b32 s45, s46
    """)
    A(patterns)
    A(f"""
    s_mov_b32 s45, 1
    s_mov_b32 {s(sOne)}, {hx(ONES)}
    s_lshl_b32 s47, s46, 9
    s_add_u32 s47, s47, {L_X}
    v_add_u32 v4, s47, v4
    v_lshlrev_b32 v1, 4, v0
    s_mov_b32 s50, 0
    """)
    for i in range(16, 28, 2): A(f'v_mov_b64 {v(i,2)}, 0')
    A(f's_mov_b32 s47, {hx(NW)}\ns_waitcnt lgkmcnt(0)\nbuffer_load_dword v30, off, {s(sWS,4)}, s47 sc1')
    nb = -1
    def bars(upto):
        nonlocal nb
        while nb < upto:
            A('s_barrier'); nb += 1
    A('s_call_b64 s[8:9], LH_prep')
    if 'st0' in EXP:
        EXP.discard('frozen'); stamp(A, 9); EXP.add('frozen')
    XF = 44
    A(f"""
    v_add_u32 v10, {4*WST}, v2
    v_add_u32 v2, {2*WST}, v2
    v_add_u32 v3, {2*WST}, v3
LM_stat:
    s_bitcmp1_b32 s50, 0
    s_cbranch_scc1 LM_nobar
    s_barrier
LM_nobar:
    ds_read_b128 {v(XF,4)}, v4
    ds_read_b128 {v(XF+4,4)}, v4 offset:128
    ds_read_b64_tr_b16 {v(WF,2)}, v3
    ds_read_b64_tr_b16 {v(WF+2,2)}, v3 offset:128
    """)
    for u in range(2):
        A(f'ds_read_b64_tr_b16 {v(WF+4+4*u,2)}, v2 offset:{u*32}')
        A(f'ds_read_b64_tr_b16 {v(WF+6+4*u,2)}, v2 offset:{u*32+128}')
    A(f"""
    s_movk_i32 s47, 512
    s_cmovk_i32 s47, {WST-512}
    v_add_u32 v2, s47, v2
    v_add_u32 v3, s47, v3
    v_add_u32 v4, 32, v4
    s_add_u32 s50, s50, 1
    s_waitcnt lgkmcnt(6)
    """)
    for j in range(4):
        for T in range(2):
            A(f'v_dot2c_f32_bf16 v{RS+2*T}, {s(sOne)}, v{XF+4*T+j}')
            A(f'v_dot2c_f32_bf16 v{RS+2*T+1}, v{XF+4*T+j}, v{XF+4*T+j}')
    A('s_waitcnt lgkmcnt(0)')
    for j in range(4):
        for i in range(3):
            A(f'v_dot2c_f32_bf16 v{CS+i}, {s(sOne)}, v{WF+4*i+j}')
    A(f"""
    s_cmp_lt_u32 s50, 4
    s_cbranch_scc1 LM_stat
    s_barrier
    """)
    nb = 2
    for q in range(4):
        for u in range(2):
            for rd in range(2):
                A(f'ds_read_b64_tr_b16 {v(WF+8*q+4*u+2*rd,2)}, v10 offset:{(q>>1)*WST+(4*(q&1)+rd)*128+u*32}')
        if q == 2: A('s_waitcnt lgkmcnt(4)')
    A(f"""
    s_lshl_b32 s50, {s(sCG)}, 4
    s_add_u32 s50, s50, {s(sRB)}
    s_lshl_b32 s50, s50, 1
    s_add_u32 s50, s50, s46
    s_lshl_b32 s50, s50, 10
    s_add_u32 s50, s50, {hx(CSP)}
    s_lshl_b32 s51, {s(sRB)}, 4
    s_add_u32 s51, s51, {s(sCG)}
    s_lshl_b32 s51, s51, 1
    s_add_u32 s51, s51, s46
    s_lshl_b32 s51, s51, 10
    s_add_u32 s51, s51, {hx(RSP)}
    s_waitcnt lgkmcnt(0)
    """)
    for hh in range(2):
        for q in (2 * hh, 2 * hh + 1):
            for j in range(4):
                for u in range(2):
                    r = WF + 8 * q + 4 * u + j
                    A(f'v_lshlrev_b32 v28, 16, v{r}\nv_and_b32 v29, 0xffff0000, v{r}\nv_add_f32 v{CS+3+u}, v{CS+3+u}, v28\nv_add_f32 v{CS+5+u}, v{CS+5+u}, v29')
        bars(nb + 1)
    A(f"""
    v_add_f32 v{CS+3}, v{CS+3}, v{CS+5}
    v_add_f32 v{CS+4}, v{CS+4}, v{CS+6}
    s_mov_b32 s47, 1664525
    s_waitcnt vmcnt(0)
    v_mul_lo_u32 v30, v30, s47
    v_add_u32 v30, 1013904223, v30
    """)
    for i in range(5): A(f'v_mov_b32 v{WF+i}, v{CS+i}')
    for i in range(4): A(f'v_mov_b32 v{WF+8+i}, v{RS+i}')
    A('v_cmp_gt_u32 vcc, 32, v0')
    for i in range(5): A(f'v_permlane32_swap_b32 v{CS+i}, v{WF+i}')
    for i in range(4): A(f'v_permlane32_swap_b32 v{RS+i}, v{WF+8+i}')
    for i in range(5): A(f'v_add_f32 v{CS+i}, v{CS+i}, v{WF+i}')
    for i in range(4): A(f'v_add_f32 v{RS+i}, v{RS+i}, v{WF+8+i}')
    A(f"""
    v_cndmask_b32 v{CS}, v{CS+3}, v{CS}, vcc
    v_cndmask_b32 v{CS+1}, v{CS+4}, v{CS+1}, vcc
    v_mov_b32 v{CS+3}, v30
    v_cndmask_b32 v{RS}, v{RS+2}, v{RS}, vcc
    v_cndmask_b32 v{RS+1}, v{RS+3}, v{RS+1}, vcc
    v_mov_b32 v{RS+3}, v30
    buffer_store_dwordx4 {v(CS,4)}, v1, {s(sWS,4)}, s50 offen sc1
    buffer_store_dwordx4 {v(RS,4)}, v1, {s(sWS,4)}, s51 offen sc1
    """)
    bars(nb + 1)
    A(f"""
    s_and_b32 s50, s50, {hx(~0x3800)}
    s_and_b32 s51, s51, {hx(~0x3800)}
    v_lshlrev_b32 v8, 2, v0
    v_mov_b32 v9, {L_FLAG}
    v_mov_b32 v29, 0
    ds_write_b32 v9, v29
    ds_write_b32 v9, v30 offset:4
    ds_write_b32 v9, v29 offset:8
    ds_write_b32 v9, v29 offset:12
    """)
    B_GAT, B_RED = [int(t) for t in os.environ.get('MSCHED', '11,15').split(',')]
    A('v_mov_b32 v3, v30')
    bars(B_GAT)
    GC, GR = 32, 64
    A('s_mov_b32 s53, 0\nLM_gat:\ns_mov_b32 s47, s50\ns_mov_b32 s61, s51')
    for i in range(8):
        A(f'buffer_load_dwordx4 {v(GR+4*i,4)}, v1, {s(sWS,4)}, s61 offen offset:{2048*(i&1)} sc1')
        A(f'buffer_load_dwordx4 {v(GC+4*i,4)}, v1, {s(sWS,4)}, s47 offen offset:{2048*(i&1)} sc1')
        if i & 1 and i < 7: A('s_add_u32 s47, s47, 4096\ns_add_u32 s61, s61, 4096')
    A('s_cmp_lg_u32 s53, 0\ns_cbranch_scc1 LM_chk')
    bars(B_RED - 1)
    A('LM_chk:\ns_waitcnt vmcnt(0)\ns_add_u32 s53, s53, 1')
    A(f'v_xor_b32 v10, v30, v{GC+3}')
    for r in [GC + 4 * i + 3 for i in range(1, 16)]:
        A(f'v_xor_b32 v11, v30, v{r}\nv_or_b32 v10, v10, v11')
    A(f"""
    v_cmp_ne_u32 vcc, 0, v10
    s_cbranch_vccz LM_red
    s_cmp_lt_u32 s53, {SPIN}
    s_cbranch_scc1 LM_gat
LM_red:
    """)
    stamp(A, 1)
    for i in range(1, 8):
        for t in range(3):
            if t < 2: A(f'v_add_f32 v{GR+t}, v{GR+t}, v{GR+4*i+t}')
            A(f'v_add_f32 v{GC+t}, v{GC+t}, v{GC+4*i+t}')
    bars(B_RED)
    SUM, SQ = GR, GR + 1
    A(f"""
    s_mul_i32 s47, s46, {5*256}
    s_add_u32 s47, s47, {L_CS}
    v_add_u32 v10, s47, v8
    s_lshl_b32 s47, s46, 9
    s_add_u32 s47, s47, {L_RS}
    v_lshl_add_u32 v9, v0, 3, s47
    v_cmp_gt_u32 vcc, 32, v0
    v_mul_f32 v{SUM}, {hx(f2u(-1.0/512))}, v{SUM}
    v_mul_f32 v{SQ}, {hx(f2u(1.0/512))}, v{SQ}
    v_fma_f32 v{SQ}, -v{SUM}, v{SUM}, v{SQ}
    v_max_f32 v{SQ}, 0, v{SQ}
    v_cvt_pk_bf16_f32 v{SQ}, v{SQ}, v{SQ}
    v_and_b32 v{SQ}, 0xffff0000, v{SQ}
    v_add_f32 v{SQ}, {hx(f2u(1e-5))}, v{SQ}
    v_cvt_pk_bf16_f32 v{SQ}, v{SQ}, v{SQ}
    v_and_b32 v{SQ}, 0xffff0000, v{SQ}
    v_sqrt_f32 v{SQ}, v{SQ}
    v_cvt_pk_bf16_f32 v{SUM}, v{SUM}, v{SUM}
    v_cvt_pk_bf16_f32 v{SQ}, v{SQ}, v{SQ}
    v_and_b32 v{SQ}, 0xffff0000, v{SQ}
    ds_write_b64 v9, {v(SUM,2)}
    """)
    for t in range(3):
        A(f"""
        v_cvt_pk_bf16_f32 v28, v{GC+t}, v{GC+t}
        v_and_b32 v28, 0xffff0000, v28
        v_sub_f32 v29, v{GC+t}, v28
        v_cvt_pk_bf16_f32 v28, v28, v29
        v_cndmask_b32 v{16+t}, 0, v28, vcc
        ds_write_b32 v10, v{16+t} offset:{t*256}
        """)
        if t < 2: A(f'v_sub_u32 v{20+t}, v28, v{16+t}\nds_write_b32 v10, v{20+t} offset:{(3+t)*256}')
    A('s_waitcnt lgkmcnt(0)')
    stamp(A, 2)
    assert nb <= 15
    A(f"""
    s_lshl_b32 s51, s2, 7
    s_add_u32 s51, s51, {hx(FL)}
    s_cmp_lg_u32 s46, 0
    s_cmov_b32 s51, 0x2000000
    s_mov_b32 s52, 0x2000000
    s_cmp_eq_u32 s71, 3
    s_cselect_b32 s53, s51, s52
    s_cselect_b32 s51, s52, s51
    """)
    bars(16 + 2 * F1N + 1)
    flag_store(A, 's51', 3)
    bars(16 + 2 * F1B + 1)
    flag_store(A, 's53', 3)
    bars(27)
    A('s_call_b64 s[8:9], LH_prep2')
    bars(32)
    A('s_setprio 2')
    A(f"""
LH_join:
    s_mov_b32 s48, {NK1*4096}
    s_lshl_b32 s61, {s(sRB)}, 2
    s_lshl_b32 s62, s46, 1
    s_add_u32 s61, s61, s62
    s_mul_i32 s61, s61, 112
    s_and_b32 s62, s3, 3
    s_mul_i32 s62, s62, 28
    s_add_u32 s61, s61, s62
    s_lshl_b32 s62, s71, 3
    s_add_u32 s61, s61, s62
    s_lshl_b32 s62, s45, 1
    s_add_u32 s61, s61, s62
    s_lshl_b32 s61, s61, 10
    s_add_u32 s64, s61, {hx(HF)}
    s_add_u32 s66, s64, 4096
    s_cmp_eq_u32 s71, 3
    s_cselect_b32 s66, s64, s66
    s_cmov_b32 s64, 0x2000000
    s_add_u32 s65, s64, {112*1024}
    s_add_u32 s67, s66, {112*1024}
    s_lshl_b32 s63, s2, 7
    s_lshl_b32 s62, s44, 2
    s_add_u32 s61, s63, s62
    s_add_u32 s61, s61, {hx(FH)}
    s_lshl_b32 s68, {s(sQB)}, 3
    s_lshl_b32 s62, s44, 1
    s_add_u32 s68, s68, s62
    s_lshl_b32 s68, s68, 5
    s_add_u32 s68, s68, {s(sHead)}
    s_lshl_b32 s68, s68, 10
    s_add_u32 s68, s68, {hx(OF)}
    s_add_u32 s69, s68, 0x8000
    s_lshl_b32 s50, s3, 3
    s_lshl_b32 s47, s71, 1
    s_add_u32 s50, s50, s47
    s_add_u32 s50, s50, s46
    s_lshl_b32 s51, s70, 1
    s_add_u32 s51, s51, s45
    s_mul_i32 s47, s44, {28*1024}
    s_add_u32 s47, s47, {hx(HF)}
    s_mul_i32 s56, s50, {112*1024}
    s_add_u32 s56, s56, s47
    s_xor_b32 s57, s50, 1
    s_mul_i32 s57, s57, {112*1024}
    s_add_u32 s57, s57, s47
    s_mul_i32 s58, s44, {28*16384}
    s_lshl_b32 s47, s71, 1
    s_add_u32 s59, s70, s47
    s_cmp_ge_u32 s59, 7
    s_cselect_b32 s47, 7, 0
    s_sub_u32 s59, s59, s47
    s_lshl_b32 s59, s59, 12
    s_lshr_b32 s49, s50, 2
    s_and_b32 s47, s49, 7
    s_lshl_b32 s47, s47, 3
    s_lshr_b32 s49, s49, 3
    s_lshl_b32 s49, s49, 2
    s_add_u32 s49, s49, s47
    s_lshl_b32 s49, s49, 7
    s_add_u32 s49, s49, {hx(FH)}
    s_lshl_b32 s54, s50, 15
    s_lshl_b32 s47, s51, 6
    s_add_u32 s54, s54, s47
    s_load_dwordx2 {s(sA,2)}, s[0:1], 56
    s_load_dwordx2 {s(sPK,2)}, s[0:1], 48
    s_load_dwordx2 {s(sH0,2)}, s[0:1], 16
    s_mov_b32 {s(sA+2)}, 2097152
    s_mov_b32 {s(sPK+2)}, 1835008
    s_mov_b32 {s(sPK+3)}, 0x20000
    s_mov_b32 {s(sH0+2)}, 524288
    s_mov_b32 {s(sH0+3)}, 0x20000
    s_waitcnt vmcnt(0) lgkmcnt(0)
    """)
    A(f"""
    s_lshl_b32 s63, s44, 10
    s_lshl_b32 s47, {s(sHead)}, 17
    s_add_u32 s47, s47, {hx(KV+20480)}
    s_add_u32 s47, s47, s63
    s_add_u32 m0, s63, 20480
    """)
    stamp(A, 3)
    A('s_barrier')
    amp(A, 'B1')
    for n in range(8): A(f'ds_read_b128 {v(96+4*n,4)}, v248 offset:{n*4096}')
    A(f"""
LH_kv:
    buffer_load_dwordx4 v1, {s(sWS,4)}, s47 offen sc1 lds
    s_add_u32 m0, m0, 4096
    s_add_u32 s47, s47, 4096
    s_cmp_lt_u32 m0, s48
    s_cbranch_scc1 LH_kv
    s_cmp_eq_u32 s48, 131072
    s_cbranch_scc1 LH_kvdone
    s_mov_b32 s48, 131072
    """)
    for n in range(8):
        A(f's_waitcnt lgkmcnt({7-n})\nbuffer_store_dwordx4 {v(96+4*n,4)}, v1, {s(sWS,4)}, s{64+(n>>1)} offen offset:{(n&1)*1024} sc1')
    A(f'buffer_store_dwordx4 v[236:239], v1, {s(sWS,4)}, s68 offen sc1\nbuffer_store_dwordx4 v[236:239], v1, {s(sWS,4)}, s69 offen sc1')
    A(f's_waitcnt vmcnt(10)\ns_mov_b64 exec, 1\nds_add_u32 v247, v240 offset:12\ns_mov_b64 exec, -1')
    A(f"""
    s_mov_b32 s62, m0
    s_add_u32 m0, s63, 65536
    s_lshl_b32 s55, s44, 17
LH_wo:
    buffer_load_dwordx4 v242, {s(sH0,4)}, s55 offen lds
    s_add_u32 m0, m0, 4096
    s_add_u32 s55, s55, 8192
    s_cmp_lt_u32 m0, 131072
    s_cbranch_scc1 LH_wo
    s_mov_b32 m0, s62
    s_sub_u32 s62, s63, s60
    s_add_u32 s62, s62, 65536
    v_add_u32 v72, s62, v244
    v_add_u32 v73, s62, v245
    s_waitcnt vmcnt(16)
    """)
    stamp(A, 4)
    A(f"""
    s_mov_b64 exec, 1
    buffer_store_dword v3, off, {s(sWS,4)}, s61 sc1
    s_mov_b64 exec, -1
    s_waitcnt vmcnt(1)
    """)
    for k in range(8):
        for b in range(2):
            for rd in range(2):
                A(f'ds_read_b64_tr_b16 {v(176+8*k+4*b+2*rd,2)}, v{72+b} offset:{(2*k+rd)*4096}')
        if k in (2, 5, 7): A('s_waitcnt lgkmcnt(0)')
    A(f"""
    s_branch LH_kv
LH_kvdone:
    """)
    A(f"""
    s_mov_b32 s63, 0
    s_mov_b32 m0, s60
    """)
    D, G, X, T0, FO, WO = 8, 72, 88, 96, 112, 176
    Dj = lambda a, b: D + 16 * (a + 2 * b)
    adv = f"""
    s_add_u32 s52, s56, s59
    s_add_u32 s53, s57, s59
    s_lshl_b32 s55, s59, 4
    s_add_u32 s55, s55, s58
    s_add_u32 s59, s59, 4096
    s_cmp_ge_u32 s59, {7*4096}
    s_cselect_b32 s59, 0, s59
    """
    def dma(srd, buf):
        A(f"""
        buffer_load_dwordx4 v242, {s(srd,4)}, s55 offen offset:{2048*buf} lds
        buffer_load_dwordx4 v243, {s(srd,4)}, s55 offen offset:{2048*buf+1024} lds
        s_add_u32 s55, s55, {16384+2048*(2*buf-1)}
        """)
    def grp(i):
        if i & 3 == 0: A(adv)
        for a in range(2):
            A(f'buffer_load_dwordx4 {v(FO+8*(i&3)+4*a,4)}, v1, {s(sWS,4)}, s{52+a} offen offset:{(i&3)*1024} sc1')
        dma(sPK, i & 1)
    def trd(dst, buf):
        for b in range(2):
            for rd in range(2):
                A(f'ds_read_b64_tr_b16 {v(dst+4*b+2*rd,2)}, v{244+b} offset:{2048*buf+1024*rd}')
    A(f"""
    buffer_load_dwordx4 {v(X,4)}, v249, {s(sX,4)}, s54 offen
    buffer_load_dwordx4 {v(X+4,4)}, v249, {s(sX,4)}, s54 offen offset:32
    buffer_load_dwordx4 v[76:79], v246, {s(sWS,4)}, s49 offen sc1
    s_waitcnt vmcnt(3)
    s_mov_b64 exec, 1
    ds_add_u32 v247, v240 offset:8
    s_mov_b64 exec, -1
    """)
    stamp(A, 5)
    A(f"""
LH_fh:
    s_add_u32 s63, s63, 1
    s_waitcnt vmcnt(0)
    v_cmp_ne_u64 vcc, v[2:3], v[76:77]
    v_cmp_ne_u64 s[4:5], v[2:3], v[78:79]
    s_or_b64 vcc, vcc, s[4:5]
    s_cbranch_scc0 LH_gemm
    s_sleep 8
    buffer_load_dwordx4 v[76:79], v246, {s(sWS,4)}, s49 offen sc1
    s_cmp_lt_u32 s63, {SPIN}
    s_cbranch_scc1 LH_fh
LH_gemm:
    """)
    stamp(A, 6)
    amp(A, 'gemm')
    grp(0); grp(1)
    A('s_waitcnt vmcnt(4)')
    trd(G, 0)
    A('s_waitcnt lgkmcnt(0)')
    grp(2)
    A(f"s_setprio {os.environ.get('GPRIO', '0')}\ns_mov_b32 s63, {6 if 'nog' in EXP else 0}\nLH_gloop:")
    for i in range(4):
        A('s_waitcnt vmcnt(4)')
        trd(G + 8 * ((i + 1) & 1), (i + 1) & 1)
        for a in range(2): A(mfma(Dj(a, 0), G + 8 * (i & 1), FO + 8 * i + 4 * a, Dj(a, 0)))
        A('s_waitcnt lgkmcnt(0)')
        grp(i + 3)
        for a in range(2): A(mfma(Dj(a, 1), G + 8 * (i & 1) + 4, FO + 8 * i + 4 * a, Dj(a, 1)))
    A(f"""
    s_add_u32 s63, s63, 1
    s_cmp_lt_u32 s63, 7
    s_cbranch_scc1 LH_gloop
    s_setprio {os.environ.get('MEETP', '0')}
    """)
    A(f"""
    s_lshl_b32 s47, s3, 3
    s_lshl_b32 s61, s44, 1
    s_add_u32 s47, s47, s61
    s_lshl_b32 s47, s47, 7
    s_lshl_b32 s61, s71, 2
    s_add_u32 s47, s47, s61
    s_add_u32 s47, s47, {hx(FH)}
    s_mov_b32 s63, 0
LH_fs:
    buffer_load_dword v241, v250, {s(sWS,4)}, s47 offen sc1
    s_add_u32 s63, s63, 1
    s_waitcnt vmcnt(0)
    v_cmp_ne_u32 vcc, v3, v241
    s_cbranch_vccz LH_fsok
    s_sleep 8
    s_cmp_lt_u32 s63, {SPIN}
    s_cbranch_scc1 LH_fs
LH_fsok:
    s_mov_b32 s62, 0
    """)
    for j in range(1, 4):
        A('s_call_b64 s[8:9], LH_meet')
        for q in range(4): A(f'ds_write_b128 v{4+j}, {v(D+16*j+4*q,4)} offset:{q*1024}')
        A('s_call_b64 s[8:9], LH_meet')
        for q in range(4): A(f'ds_read_b128 {v(D+16*j+4*q,4)}, v4 offset:{q*1024}')
    A(f"""
    s_lshl_b32 s52, s50, 5
    s_lshl_b32 s61, s44, 3
    s_add_u32 s52, s52, s61
    s_lshl_b32 s52, s52, 10
    s_add_u32 s58, s52, {hx(OF)}
    s_xor_b32 s56, s58, 0x8000
    s_add_u32 s57, s56, 4096
    s_add_u32 s59, s58, 4096
    s_mov_b32 s63, 0
    """)
    def send():
        for j in (2,):
            for q in range(4): A(f'ds_write_b128 v{252+j}, {v(D+16*j+4*q,4)} offset:{(j-1)*4096+q*1024}')
        A('s_waitcnt lgkmcnt(0)\ns_barrier')
        for j in range(1, 4):
            for q in range(4): A(f'ds_read_b128 {v(D+16*j+4*q,4)}, v252 offset:{(j-1)*4096+q*1024}')
    A(f"""
    s_or_b32 s61, s44, s2
    s_mov_b32 s61, {hx(NW)}
    s_cmov_b32 s61, 0x2000000
    s_mov_b32 s52, -1
    s_waitcnt lgkmcnt(0)
    """)
    stamp(A, 7)
    amp(A, 'ready')
    A('s_barrier')
    amp(A, 'X')
    stamp(A, 8)
    for g in range(4):
        A(f'LH_o{g}:')
        for k in range(4 * g, 4 * g + 4):
            A(f'buffer_load_dwordx4 {v(FO+4*k,4)}, v1, {s(sWS,4)}, s{56+g} offen offset:{(k&3)*1024} sc1')
    for g in range(4):
        A(f's_cmp_eq_u32 s52, {g}\ns_cbranch_scc1 LH_c{g}')
    A(f's_mov_b32 s4, {hx(f2u(-LOG2E))}\ns_mov_b32 s5, 1.0')
    for j in range(1, 4):
        for p in range(8): A(f'v_pk_add_f32 {v((D if j < 3 else G)+2*p,2)}, {v(D+2*p,2)}, {v(D+16*j+2*p,2)}')
    for p in range(8): A(f'v_pk_mul_f32 {v(D+2*p,2)}, {v(G+2*p,2)}, s[4:5] op_sel_hi:[1,0]')
    for j in range(16): A(f'v_exp_f32 v{D+j}, v{D+j}')
    for p in range(8): A(f'v_pk_add_f32 {v(D+2*p,2)}, {v(D+2*p,2)}, s[4:5] op_sel:[0,1] op_sel_hi:[1,1]')
    for j in range(16): A(f'v_rcp_f32 v{D+j}, v{D+j}')
    for p in range(8): A(f'v_pk_mul_f32 {v(G+2*p,2)}, {v(D+2*p,2)}, {v(G+2*p,2)}')
    for g in range(4):
        f0 = FO + 16 * g
        a, hh = 1 - (g >> 1), g & 1
        A(f"""
LH_c{g}:
        s_mov_b32 s52, {g}
        s_add_u32 s63, s63, 1
        s_waitcnt vmcnt({12-4*g})
        v_max3_u32 v241, v{f0}, v{f0+4}, v{f0+8}
        v_max_u32 v241, v241, v{f0+12}
        v_cmp_eq_u32 vcc, -1, v241
        s_cbranch_vccz LH_m{g}
        s_sleep {os.environ.get('RSL', '4')}
        s_cmp_lt_u32 s63, {SPIN}
        s_cbranch_scc1 LH_o{g}
LH_m{g}:
        """)
        n = 0
        for b in (1, 0):
            for k in range(4):
                A(mfma(Dj(a, b), WO + 8 * (4 * hh + k) + 4 * b, f0 + 4 * k, None if hh == 0 and k == 0 else Dj(a, b)))
                if g == 2:
                    j, q = (3, 1)[n >> 2], n & 3
                    A(f'ds_write_b128 v{252+j}, {v(D+16*j+4*q,4)} offset:{(j-1)*4096+q*1024}')
                if g == 3: A(f'v_lshlrev_b32 v{T0+2*n}, 16, v{X+n}\nv_and_b32 v{T0+2*n+1}, 0xffff0000, v{X+n}')
                n += 1
    if STAMP and 'st0' not in EXP: A('s_add_u32 s89, s63, s80')
    stamp(A, 10)
    send()
    for j in range(1, 3):
        A(f's_waitcnt lgkmcnt({12-4*j})')
        for p in range(8): A(f'v_pk_add_f32 {v(D+2*p,2)}, {v(D+2*p,2)}, {v(D+16*j+2*p,2)}')
    for q in range(4):
        A(f's_waitcnt lgkmcnt({3-q})')
        for p in (2 * q, 2 * q + 1):
            A(f'v_pk_add_f32 {v(D+2*p,2)}, {v(D+2*p,2)}, {v(D+48+2*p,2)}')
            A(f'v_pk_fma_f32 {v(D+2*p,2)}, {v(D+2*p,2)}, {v(G+2*p,2)}, {v(T0+2*p,2)}')
            A(f'v_cvt_pk_bf16_f32 v{X+p}, v{D+2*p}, v{D+2*p+1}')
        if q & 1: A(f'buffer_store_dwordx4 {v(X+4*(q>>1),4)}, v249, {s(sA,4)}, s54 offen offset:{32*(q>>1)} {os.environ.get("OST", "")}')
    flag_store(A, 's61', 3)
    stamp(A, 11)
    stamp_end(A, sWS, sW, 2)
    if AMP:
        amp(A, 'end')
        A(f'''
        s_cmp_lg_u32 {s(sW)}, 4
        s_cbranch_scc1 L_end
        s_memrealtime s[78:79]
        s_sub_u32 s97, s97, s96
        s_waitcnt lgkmcnt(0)
        s_mov_b32 s96, s78
LH_amp:
        s_memrealtime s[78:79]
        s_waitcnt lgkmcnt(0)
        s_sub_u32 s78, s78, s96
        s_cmp_lt_u32 s78, s97
        s_cbranch_scc1 LH_amp
        ''')
    A(f"""
    s_endpgm
LH_meet:
    s_add_u32 s62, s62, 4
    s_mov_b32 s63, 0
    s_waitcnt lgkmcnt(0)
    s_mov_b64 exec, 1
    ds_add_u32 v247, v240
    s_mov_b64 exec, -1
LH_meetw:
    ds_read_b32 v241, v247
    s_add_u32 s63, s63, 1
    s_waitcnt lgkmcnt(0)
    v_cmp_gt_u32 vcc, s62, v241
    s_cbranch_vccz LH_meetok
    s_sleep {os.environ.get('MEETS', '4')}
    s_cmp_lt_u32 s63, {SPIN * 16}
    s_cbranch_scc1 LH_meetw
LH_meetok:
    s_setpc_b64 s[8:9]
LH_prep:
    v_lshlrev_b32 v1, 4, v0
    v_cmp_gt_u32 vcc, 32, v0
    v_and_b32 v200, 15, v0
    v_and_b32 v201, 1, v0
    s_lshl_b32 s47, {s(sQB)}, 1
    v_add_u32 v201, s47, v201
    s_add_u32 s61, s3, 8
    s_lshr_b32 s62, s3, 1
    s_lshl_b32 s62, s62, 2
    s_add_u32 s62, s62, 3
    v_cndmask_b32 v200, v201, v200, vcc
    v_mov_b32 v201, s3
    v_mov_b32 v202, s62
    v_cndmask_b32 v201, v201, v202, vcc
    v_cmp_gt_u32 vcc, 16, v0
    v_mov_b32 v202, s61
    v_lshrrev_b32 v203, 3, v200
    v_cndmask_b32 v201, v201, v202, vcc
    v_and_b32 v200, 7, v200
    v_lshlrev_b32 v200, 3, v200
    v_lshl_add_u32 v200, v203, 2, v200
    v_lshrrev_b32 v203, 2, v201
    v_add_u32 v200, v200, v203
    v_and_b32 v201, 3, v201
    v_lshl_add_u32 v200, v201, 6, v200
    v_lshlrev_b32 v251, 7, v200
    s_lshl_b32 s61, s44, 12
    s_add_u32 s47, s61, {L_ONES}
    s_add_u32 s61, s61, {L_EX}
    v_and_b32 v204, 11, v0
    v_cmp_eq_u32 vcc, 0, v204
    v_mov_b32 v204, {hx(ONES)}
    v_and_b32 v205, 0x1ff, v1
    v_cndmask_b32 v232, 0, v204, vcc
    v_add_u32 v231, s47, v205
    v_mov_b32 v233, v232
    v_mov_b64 v[234:235], v[232:233]
    v_mov_b32 v240, 1
    v_mov_b32 v247, {L_FLAG}
    v_mov_b64 v[236:237], -1
    v_mov_b64 v[238:239], -1
    s_lshl_b32 s47, s44, 10
    s_add_u32 s47, s47, {L_H}
    v_add_u32 v248, s47, v1
    v_lshrrev_b32 v207, 5, v0
    v_lshrrev_b32 v204, 3, v0
    v_and_b32 v205, 7, v0
    v_and_b32 v206, 2, v204
    v_lshlrev_b32 v206, 1, v206
    v_xor_b32 v205, v205, v206
    v_lshlrev_b32 v205, 4, v205
    v_lshl_add_u32 v242, v204, 10, v205
    s_lshl_b32 s47, s70, 7
    v_add_u32 v242, s47, v242
    v_add_u32 v243, 7168, v242
    v_and_b32 v205, 1, v0
    v_bfe_u32 v204, v0, 1, 1
    v_lshl_add_u32 v205, v205, 1, v204
    v_lshlrev_b32 v205, 3, v205
    v_bfe_u32 v204, v0, 4, 1
    v_lshl_add_u32 v205, v204, 5, v205
    v_bfe_u32 v206, v0, 2, 2
    v_lshl_add_u32 v204, v207, 2, v206
    v_lshl_add_u32 v205, v204, 7, v205
    v_bfe_u32 v204, v0, 3, 1
    v_xor_b32 v204, s45, v204
    v_lshl_add_u32 v205, v204, 6, v205
    v_add_u32 v244, s61, v205
    v_xor_b32 v245, 64, v244
    v_and_b32 v205, 3, v0
    v_lshl_add_u32 v246, v206, 6, v205
    v_lshlrev_b32 v246, 7, v246
    v_bfe_u32 v204, v0, 2, 1
    v_lshl_add_u32 v250, v205, 6, v204
    v_lshlrev_b32 v250, 7, v250
    v_and_b32 v204, 31, v0
    v_lshlrev_b32 v204, 10, v204
    v_lshl_add_u32 v249, v207, 4, v204
    v_mov_b64 v[224:225], 0
    v_mov_b64 v[226:227], 0
    """)
    for j in range(4):
        A(f's_xor_b32 s47, s44, {j}\ns_lshl_b32 s47, s47, 14\nv_add_u32 v{252+j}, s47, v1')
    A(f"""
    s_setpc_b64 s[8:9]
LH_prep2:
    ds_write_b128 v231, v[232:235]
    ds_write_b128 v231, v[232:235] offset:2048
    s_lshl_b32 s60, s44, 12
    s_add_u32 s60, s60, {L_EX}
    """)
    for j in range(4):
        A(mfma(D + 16 * j, 224, 224, None))
        A(f's_xor_b32 s47, s44, {j}\ns_lshl_b32 s47, s47, 12\ns_add_u32 s47, s47, {L_EX}\nv_add_u32 v{4+j}, s47, v1')
    A('s_waitcnt lgkmcnt(0)\nv_mov_b32 v2, v3\ns_setpc_b64 s[8:9]')

def gen_C(A, patterns):
    sDW, sXs, sIt, sF1, sF3, sOne = 48, 49, 50, 72, 73, 76
    A(f"""
L_C:
    v_mov_b64 v[64:65], 0
    v_mov_b64 v[66:67], 0
    """)
    A(patterns)
    A(f"""
    s_waitcnt lgkmcnt(0)
    s_lshl_b32 s47, s46, 9
    s_add_u32 s47, s47, {L_X}
    v_add_u32 v4, s47, v4
    v_mov_b32 v1, v4
    v_add_u32 v2, {2*WST}, v2
    v_add_u32 v3, {2*WST}, v3
    s_mov_b32 {s(sDW)}, {hx(-2*WST)}
    s_mov_b32 {s(sXs)}, 0
    s_mov_b32 {s(sIt)}, 0
    s_lshl_b32 s53, {s(sRB)}, 2
    s_lshl_b32 s47, s46, 1
    s_add_u32 s53, s53, s47
    s_and_b32 s47, {s(sCG)}, 7
    s_lshl_b32 s47, s47, 2
    s_lshl_b32 s61, s45, 1
    s_add_u32 s47, s47, s61
    s_lshl_b32 s47, s47, 6
    s_add_u32 s47, s47, s53
    s_cmp_lt_u32 {s(sCG)}, 8
    s_cselect_b32 s52, 10, 11
    s_cselect_b32 s61, {hx(QF)}, {hx(KV)}
    s_cselect_b32 s58, {hx(f2u(0.25*LOG2E))}, 1.0
    s_lshl_b32 s47, s47, s52
    s_add_u32 s62, s47, s61
    s_lshl_b32 s47, 1, s52
    s_add_u32 s64, s62, s47
    s_lshl_b32 s47, 64, s52
    s_add_u32 s63, s62, s47
    s_add_u32 s65, s64, s47
    s_mul_i32 s47, s45, {5*256}
    s_add_u32 s47, s47, {L_CS}
    v_lshl_add_u32 v60, v0, 2, s47
    s_lshl_b32 s47, s46, 9
    s_add_u32 s47, s47, {L_RS}
    v_and_b32 v61, 31, v0
    v_lshl_add_u32 v61, v61, 3, s47
    v_lshlrev_b32 v63, 4, v0
    v_and_b32 v72, 15, v0
    v_and_b32 v73, 16, v0
    v_cmp_eq_u32 vcc, 0, v73
    v_lshlrev_b32 v72, 4, v72
    v_add_u32 v72, {L_ONES-1024}, v72
    v_mov_b32 v73, {NT*2048}
    v_cndmask_b32 v72, v72, v63, vcc
    v_cndmask_b32 v73, 0, v73, vcc
    s_lshl_b32 s47, s44, 12
    s_add_u32 s47, s47, {L_ONES}
    v_add_u32 v74, s47, v63
    s_lshl_b32 s66, {s(sQB)}, 3
    s_lshl_b32 s47, s44, 1
    s_add_u32 s66, s66, s47
    s_lshl_b32 s66, s66, 5
    s_add_u32 s66, s66, {s(sHead)}
    s_lshl_b32 s66, s66, 10
    s_add_u32 s66, s66, {hx(OF)}
    s_mov_b32 s54, {hx(f2u(2.0**126))}
    s_mov_b32 s55, {hx(f2u(2.0**-112))}
    s_mov_b32 s56, {hx(f2u(2.0**120))}
    s_mov_b32 s57, 0
    """)
    acc = lambda T, i: 96 + (i * 2 + T) * 16
    for i in range(5):
        for T in range(2): A(mfma(acc(T, i), 64, 64, None))
    FB = lambda f: 8 + 20 * f
    Wf = lambda f, i: FB(f) + 4 * i
    Xf = lambda f, T: FB(f) + 12 + 4 * T
    def reads(f, q, withA):
        st, ks = (q >> 1) & 1, q & 1
        r = [f'ds_read_b128 {v(Xf(f,T),4)}, v1 offset:{T*128+(q&3)*32}' for T in range(2)]
        for u in range(2):
            for rd in range(2):
                r.append(f'ds_read_b64_tr_b16 {v(Wf(f,1+u)+2*rd,2)}, v2 offset:{st*WST+(4*ks+rd)*128+u*32}')
        if withA:
            for rd in range(2):
                r.append(f'ds_read_b64_tr_b16 {v(Wf(f,0)+2*rd,2)}, v3 offset:{st*WST+(4*ks+rd)*128}')
        return r
    def kloop(label, withA, adv, lim, tr0):
        for r in reads(0, 0, withA): A(r)
        A(label + ':')
        for q in range(4):
            f = q & 1
            rr = reads(f ^ 1, q + 1, withA)
            A('s_waitcnt lgkmcnt(0)')
            if q & 1: A('s_barrier')
            tiles = [(1, 1), (2, 2), (0, 0)] if withA else [(1, 3), (2, 4)]
            ms = [mfma(acc(T, ai), Wf(f, wi), Xf(f, T), acc(T, ai)) for (wi, ai) in tiles for T in range(2)]
            k = 0
            for m in range(len(ms)):
                A(ms[m])
                for _ in range(3):
                    if k < len(rr): A(rr[k]); k += 1
                if q == 2 and m == len(ms) - 1: A(adv)
                if q == 3 and m == len(ms) - 2: A(f's_add_u32 {s(sIt)}, {s(sIt)}, 1')
                if q == 3 and m == len(ms) - 1 and not STAMP: A(f's_cmp_lt_u32 {s(sIt)}, {lim}')
            assert k == len(rr)
        if STAMP:
            A(f'{TM} s[78:79]\ns_add_u32 m0, {s(sIt)}, {tr0}\ns_waitcnt lgkmcnt(0)\nv_writelane_b32 v79, s78, m0\ns_cmp_lt_u32 {s(sIt)}, {lim}')
        A(f's_cbranch_scc1 {label}')
    def vstore(T, u):
        a = acc(T, 1 + u)
        for hd in range(2):
            A(f'buffer_store_dwordx4 {v(a+8+4*hd,4)}, v63, {s(sWS,4)}, s{62+2*u+hd} offen offset:{1024+2048*T} sc1')
    def vpath():
        A(f"""
        s_mul_i32 s47, s44, {WST}
        s_add_u32 s47, s47, {2*WST+2*PAN}
        v_and_b32 v52, 31, v0
        v_lshlrev_b32 v52, 5, v52
        v_lshl_add_u32 v52, v7, 3, v52
        v_add_u32 v52, s47, v52
        v_lshlrev_b32 v53, 2, v5
        v_add_u32 v53, v53, v7
        v_lshl_add_u32 v53, v53, 2, v6
        v_lshlrev_b32 v53, 5, v53
        v_and_b32 v54, 3, v0
        v_lshl_add_u32 v53, v54, 3, v53
        v_add_u32 v53, s47, v53
        s_and_b32 s47, s3, 3
        s_lshl_b32 s47, s47, 2
        s_add_u32 s47, s47, s45
        s_lshl_b32 s47, s47, 7
        s_add_u32 s47, s47, s53
        s_lshl_b32 s47, s47, 11
        s_add_u32 s62, s47, {hx(KV)}
        s_add_u32 s63, s62, {4*64*2048}
        s_add_u32 s64, s62, {64*2048}
        s_add_u32 s65, s62, {5*64*2048}
        """)
        prev = None
        for T in range(2):
            for u in range(2):
                a = acc(T, 1 + u)
                for p in range(8):
                    A(f'v_pk_mul_f32 {v(a+2*p,2)}, {v(a+2*p,2)}, {v(84+8*T,2)} op_sel_hi:[1,0]')
                for p in range(8):
                    A(f'v_cvt_pk_bf16_f32 v{a+p}, v{a+2*p}, v{a+2*p+1}')
                if prev is not None and prev[0] == 0:
                    A('s_waitcnt lgkmcnt(0)')
                    vstore(*prev)
                for hd in range(2):
                    o = (u * 2 + hd) * 1024
                    A(f'ds_write_b64 v52, {v(a+4*hd,2)} offset:{o}')
                    A(f'ds_write_b64 v52, {v(a+4*hd+2,2)} offset:{o+16}')
                for hd in range(2):
                    o = (u * 2 + hd) * 1024
                    A(f'ds_read_b64_tr_b16 {v(a+8+4*hd,2)}, v53 offset:{o}')
                    A(f'ds_read_b64_tr_b16 {v(a+8+4*hd+2,2)}, v53 offset:{o+256}')
                prev = (T, u)
    stamp(A, 1)
    A('s_barrier')
    stamp(A, 2)
    kloop('LC_loopA', True, f"""
        v_add_u32 v2, {s(sDW)}, v2
        v_add_u32 v3, {s(sDW)}, v3
        s_add_u32 {s(sXs)}, {s(sXs)}, {XST}
        s_cmp_ge_u32 {s(sXs)}, {4*XST}
        s_cselect_b32 {s(sXs)}, 0, {s(sXs)}
        s_sub_u32 {s(sDW)}, 0, {s(sDW)}
        v_add_u32 v1, {s(sXs)}, v4
        """, '8', 15)
    A("""
    s_waitcnt lgkmcnt(0)
    ds_read_b64 v[68:69], v61
    ds_read_b64 v[70:71], v61 offset:256
    """)
    CO = lambda i: 8 + 4 * i
    for i in range(5): A(f'ds_read_b32 v{CO(i)}, v60 offset:{i*256}')
    for i in range(5): A(f'v_mov_b32 v{CO(i)+1}, 0\nv_mov_b64 {v(CO(i)+2,2)}, 0')
    A('v_mov_b32 v49, 0\nv_mov_b64 v[50:51], 0\ns_waitcnt lgkmcnt(5)\nv_mov_b32 v64, v68\nv_mov_b32 v48, v70')
    K0 = -2.0 * math.sqrt(2.0 / math.pi) * LOG2E
    K1c = K0 * 0.044715
    A('v_rcp_f32 v84, v69\nv_rcp_f32 v92, v71\ns_waitcnt lgkmcnt(0)')
    for i in range(5):
        for T in range(2): A(mfma(acc(T, i), CO(i), (64, 48)[T], acc(T, i)))
        if i == 0:
            for T in range(2):
                b = 80 + 8 * T
                A(f"""
                v_mul_f32 v{b+2}, v{69+2*T}, v{69+2*T}
                v_mul_f32 v{b+1}, {hx(f2u(K0))}, v{b+4}
                v_mul_f32 v{b+3}, s58, v{b+4}
                v_mul_f32 v{b}, v{b+4}, v{b+4}
                v_mul_f32 v{b}, v{b}, v{b+4}
                v_mul_f32 v{b}, {hx(f2u(K1c))}, v{b}
                """)
        if i in (1, 2, 3, 4):
            T, hd = divmod(i - 1, 2)
            a = acc(T, 0) + 8 * hd
            for j in range(8): A(f'v_mul_f32 v{a+j}, v{83+8*T}, v{a+j}')
            for p in range(4): A(f'v_cvt_pk_bf16_f32 v{a+p}, v{a+2*p}, v{a+2*p+1}')
            A(f'buffer_store_dwordx4 {v(a,4)}, v63, {s(sWS,4)}, s{62+2*T+hd} offen sc1')
    A(f"""
    s_cmp_eq_u32 s71, 3
    s_cbranch_scc0 LC_B
    """)
    vpath()
    A(f"""
LC_B:
    v_add_u32 v2, {2*WST}, v2
    v_add_u32 v1, {3*XST}, v4
    s_mov_b32 {s(sDW)}, {4*WST}
    s_mov_b32 {s(sXs)}, {3*XST}
    s_mov_b32 {s(sIt)}, 0
    s_cmp_eq_u32 s71, 3
    s_cselect_b32 s51, {F1A}, {F1N}
    v_subrev_u32 v3, {4*WST}, v2
    """)
    stamp(A, 3)
    kloop('LC_loopB', False, f"""
        s_sub_u32 {s(sDW)}, {s(sDW)}, {2*WST}
        s_cselect_b32 {s(sDW)}, {4*WST}, {s(sDW)}
        v_add_u32 v2, {s(sDW)}, v3
        s_sub_u32 {s(sXs)}, {s(sXs)}, {XST}
        s_cselect_b32 {s(sXs)}, {3*XST}, {s(sXs)}
        v_add_u32 v1, {s(sXs)}, v4
        """, 's51', 23)
    A(f"""
    s_cmp_eq_u32 s51, 8
    s_cbranch_scc1 LC_epi
    s_lshl_b32 s47, s71, 4
    s_add_u32 s47, s47, s51
    s_cmp_eq_u32 s47, {F1A+48}
    s_cbranch_scc0 LC_flag
    s_mov_b32 s51, {F1B}
    """)
    vstore(1, 0); vstore(1, 1)
    A(f"""
    s_branch LC_loopB
LC_flag:
    s_mov_b32 s51, 8
    s_waitcnt vmcnt(0)
    s_branch LC_loopB
LC_epi:
    s_lshl_b32 s47, s44, 10
    s_add_u32 s47, s47, {L_H}
    v_add_u32 v4, s47, v63
    v_mov_b32 v1, v63
    s_cmp_eq_u32 s71, 3
    s_cbranch_scc1 LC_g4
    """)
    stamp(A, 4)
    n = 0
    for pr in range(2):
        if pr == 1: A('LC_g4:\ns_nop 4')
        for T in range(2):
            b = 80 + 8 * T
            for u in range(2):
                a = acc(T, 1 + 2 * pr + u)
                t = 52
                for p in range(4): A(f'v_pk_mul_f32 {v(t+2*p,2)}, {v(a+2*p,2)}, {v(a+2*p,2)}')
                for p in range(4): A(f'v_pk_fma_f32 {v(t+2*p,2)}, {v(t+2*p,2)}, {v(b,2)}, {v(b,2)} op_sel:[0,0,1] op_sel_hi:[1,0,1]')
                for p in range(4): A(f'v_pk_mul_f32 {v(t+2*p,2)}, {v(t+2*p,2)}, {v(a+2*p,2)}')
                for j in range(8): A(f'v_exp_f32 v{t+j}, v{t+j}')
                for p in range(4): A(f'v_pk_mul_f32 {v(a+2*p,2)}, {v(a+2*p,2)}, {v(a+8+2*p,2)}')
                for p in range(4): A(f'v_pk_fma_f32 {v(t+2*p,2)}, {v(t+2*p,2)}, {v(b+2,2)}, {v(b+2,2)} op_sel:[0,0,0] op_sel_hi:[1,0,0]')
                for j in range(8): A(f'v_rcp_f32 v{t+j}, v{t+j}')
                for p in range(4): A(f'v_pk_mul_f32 {v(a+2*p,2)}, {v(a+2*p,2)}, {v(t+2*p,2)}')
                for p in range(4): A(f'v_cvt_pk_bf16_f32 v{a+8+p}, v{a+2*p}, v{a+2*p+1}')
                A(f'ds_write_b128 v4, {v(a+8,4)} offset:{n*4096}')
                n += 1
    QA, QB, CA, CB, OA, OB, SA, SB, PA, PB = 8, 12, 16, 32, 48, 64, 80, 96, 112, 120
    KF = lambda b: 128 + 4 * b
    VF = lambda j: 136 + 4 * j
    A('LC_att:')
    if STAMP: A('v_mov_b32 v144, v79')
    stamp(A, 5)
    A('s_waitcnt lgkmcnt(0)')
    stamp(A, 6)
    A('s_barrier')
    stamp(A, 7)
    A(f"""
    ds_read_b128 {v(QA,4)}, v74 offset:512
    ds_read_b128 {v(KF(0),4)}, v1
    ds_read_b128 {v(KF(1),4)}, v1 offset:2048
    ds_read_b128 {v(QB,4)}, v74 offset:2560
    v_mov_b32 v2, v1
    v_mov_b32 v3, v72
    v_mov_b32 v4, v73
    s_mov_b32 {s(sIt)}, 0
    s_mov_b32 s51, 1
    """)
    for j in range(0, 8, 2): A(f'v_mov_b64 {v(VF(0)+j,2)}, 0')
    for j in range(0, 8, 2): A(f'v_mov_b64 {v(PB+j,2)}, 0')
    A('s_waitcnt lgkmcnt(2)')
    A(mfma(SA, KF(0), QA, None))
    A('s_waitcnt lgkmcnt(1)')
    A(mfma(OA, KF(1), QA, None))
    A('s_waitcnt lgkmcnt(0)')
    A(mfma(SB, KF(0), QB, None))
    A(mfma(OB, KF(1), QB, None))
    A('s_nop 6')
    for (S, O, C) in ((SA, OA, CA), (SB, OB, CB)):
        A(f'v_max3_f32 v{C}, v{S}, v{S+1}, v{S+2}')
        for j in range(3, 15, 2): A(f'v_max3_f32 v{C}, v{C}, v{S+j}, v{S+j+1}')
        A(f'v_max3_f32 v{C}, v{C}, v{S+15}, v{O}')
        for j in range(1, 15, 2): A(f'v_max3_f32 v{C}, v{C}, v{O+j}, v{O+j+1}')
        A(f'v_max_f32 v{C}, v{C}, v{O+15}')
        A(f'v_mov_b32 v{C+1}, v{C}')
        A(f'v_mov_b64 {v(O,2)}, 0\nv_mov_b64 {v(O+2,2)}, 0')
        A(f'v_permlane32_swap_b32 v{C}, v{C+1}')
        A(f'v_max_f32 v{C}, v{C}, v{C+1}')
        A(f'v_sub_f32 v{C}, {hx(f2u(-BIAS))}, v{C}')
        A(f'v_mov_b32 v{C+1}, v{C}')
        for j in range(2, 16, 2): A(f'v_mov_b64 {v(C+j,2)}, {v(C,2)}')
        for j in range(4, 10, 2): A(f'v_mov_b64 {v(O+j,2)}, 0')
        if S == SA: A(mfma(SA, KF(0), QA, CA))
    stamp(A, 8)
    if 'clk' in EXP: stamp(A, 9, True)
    E = lambda S, j: A(f'v_exp_f32 v{S+j}, v{S+j}')
    Cv = lambda S, P, p: A(f'v_cvt_pk_bf16_f32 v{P+p}, v{S+2*p}, v{S+2*p+1}')
    ORD = {'even': 'm0 e0 e1 e2 e3 e4 c0 c1 m1 e5 e6 c2 e7 e8 c3 e9 e10 c4 m2 e11 e12 c5 e13 e14 e15 c6 c7',
           'tight': 'm0 e0 e1 e2 m1 e3 e4 e5 m2 c0 c1 c2 e6 e7 e8 c3 e9 e10 c4 e11 e12 c5 e13 e14 e15 c6 c7',
           'mid': 'm0 e0 e1 e2 c0 m1 e3 e4 e5 c1 m2 c2 e6 e7 e8 c3 e9 e10 c4 e11 e12 c5 e13 e14 e15 c6 c7',
           'two': 'm0 e0 e1 e2 m1 e3 e4 e5 c0 c1 e6 e7 c2 e8 e9 c3 m2 e10 c4 e11 e12 c5 e13 e14 e15 c6 c7'}[os.environ.get('ORD', 'tight')].split()
    def phase(S, P, *m):
        for t in ORD:
            if t[0] == 'm':
                mm = m[int(t[1])]
                if ('nopv' in EXP and t[1] != '0') or ('noqk' in EXP and t[1] == '0'): mm = 's_nop 0\ns_nop 0\n' + '\n'.join(mm.split('\n')[1:])
                A(mm)
            elif t[0] == 'e' and 'noexp' in EXP: A('s_nop 1')
            elif t[0] == 'e': E(S, int(t[1:]))
            else: Cv(S, P, int(t[1:]))
    if os.environ.get('CPRIO'): A('s_setprio ' + os.environ['CPRIO'])
    A('s_nop 0\n.p2align 3\nLA_loop:')
    for t in range(NT):
        kb = t & 1
        o = t * 2048
        phase(SA, PA,
              mfma(SB, KF(kb), QB, CB) + f'\nds_read_b128 {v(KF(kb),4)}, v2 offset:{o+4096}',
              mfma(OB, VF(0), PB, OB) + f'\nds_read_b128 {v(VF(0),4)}, v3 offset:{o+1024}',
              mfma(OB, VF(1), PB + 4, OB) + f'\nds_read_b128 {v(VF(1),4)}, v3 offset:{o+1280}')
        tail = ''
        if t == NT - 2: tail = f'\ns_add_u32 {s(sIt)}, {s(sIt)}, 1'
        if t == NT - 1: tail = f'\ns_cmp_lt_u32 {s(sIt)}, s51\nv_add_u32 v2, {NT*2048}, v2\nv_add_u32 v3, v4, v3'
        phase(SB, PB,
              mfma(SA, KF(kb ^ 1), QA, CA) + '\ns_waitcnt lgkmcnt(1)',
              mfma(OA, VF(0), PA, OA) + '\ns_waitcnt lgkmcnt(0)',
              mfma(OA, VF(1), PA + 4, OA) + tail)
    if STAMP and 'atr' in EXP:
        A(f's_memtime s[78:79]\ns_add_u32 m0, {s(sIt)}, 15\ns_waitcnt lgkmcnt(0)\nv_writelane_b32 v144, s78, m0\ns_cmp_lt_u32 {s(sIt)}, s51')
    A(f'''
    s_cbranch_scc1 LA_loop
    s_cmp_eq_u32 s51, {64//NT}
    s_cbranch_scc1 LA_fini
    s_cmp_eq_u32 s51, 1
    s_cselect_b32 s51, {(2*NK1-2)//NT}, {64//NT}
    s_cselect_b32 s47, 4, 0
    s_add_u32 s47, s47, {L_FLAG}
    v_mov_b32 v5, s47
    s_mov_b32 s47, 0
LA_kvw:
    ds_read_b32 v6, v5 offset:8
    s_add_u32 s47, s47, 1
    s_waitcnt lgkmcnt(0)
    v_cmp_ne_u32 vcc, 4, v6
    s_cbranch_vccz LA_loop
    s_cmp_lt_u32 s47, {SPIN * 16}
    s_cbranch_scc1 LA_kvw
    s_branch LA_loop
LA_fini:''')
    A(mfma(OB, VF(0), PB, OB))
    A(mfma(OB, VF(1), PB + 4, OB))
    stamp(A, 11)
    if 'clk' in EXP:
        stamp(A, 10, True)
        A('s_sub_u32 s90, s90, s89\ns_add_u32 s90, s90, s80\ns_mov_b32 s89, 0')
    A('LA_fin:')
    A(f'v_add_f32 v{SA}, |v{OA}|, |v{OA+1}|')
    for j in range(2, 8): A(f'v_add_f32 v{SA}, v{SA}, |v{OA+j}|')
    A(f'''
    v_cmp_gt_f32 vcc, s54, v{SA}
    v_cmp_lt_f32 s[58:59], s55, v{SA}
    v_cmp_gt_f32 s[60:61], s56, v{OA+8}
    s_and_b64 vcc, vcc, s[58:59]
    s_and_b64 vcc, vcc, s[60:61]
    s_cmp_eq_u64 vcc, -1
    s_cbranch_scc0 LA_fallback
LA_norm:
    v_rcp_f32 v{OA+8}, v{OA+8}
    s_nop 0
    ''')
    for j in range(8): A(f'v_mul_f32 v{OA+j}, v{OA+j}, v{OA+8}')
    for p in range(4): A(f'v_cvt_pk_bf16_f32 v{PA+p}, v{OA+2*p}, v{OA+2*p+1}')
    A(f'''
    v_min_u32 v{PA}, -2, v{PA}
    buffer_store_dwordx4 {v(PA,4)}, v1, {s(sWS,4)}, s66 offen sc1
    s_cmp_eq_u32 s57, 1
    s_cbranch_scc1 LA_done
    s_mov_b32 s57, 1
    s_add_u32 s66, s66, 0x8000
    ''')
    for j in range(0, 10, 2): A(f'v_mov_b64 {v(OA+j,2)}, {v(OB+j,2)}')
    for j in range(0, 4, 2): A(f'v_mov_b64 {v(QA+j,2)}, {v(QB+j,2)}')
    A('s_branch LA_fin\nLA_done:')
    stamp(A, 12)
    stamp_end(A, sWS, sW, tr=144)
    A('s_endpgm')
    A(f'''
LA_fallback:
    v_mov_b32 v{CA}, 0xff800000
    v_mov_b32 v2, v1
    s_mov_b32 {s(sIt)}, 0
LA_fb1:
    ds_read_b128 {v(KF(0),4)}, v2
    v_add_u32 v2, 0x800, v2
    s_waitcnt lgkmcnt(0)
    ''')
    A(mfma(SA, KF(0), QA, None))
    A('s_nop 11')
    for j in range(0, 16, 2): A(f'v_max3_f32 v{CA}, v{CA}, v{SA+j}, v{SA+j+1}')
    A(f'''
    s_add_u32 {s(sIt)}, {s(sIt)}, 1
    s_cmp_lt_u32 {s(sIt)}, 64
    s_cbranch_scc1 LA_fb1
    v_mov_b32 v{CA+1}, v{CA}
    v_cmp_eq_u32 vcc, 0, v4
    v_lshrrev_b32 v6, {NT.bit_length()-1}, v4
    v_permlane32_swap_b32 v{CA}, v{CA+1}
    v_max_f32 v{CA}, v{CA}, v{CA+1}
    v_sub_f32 v{CA}, 0, v{CA}
    v_cndmask_b32 v3, v1, v3, vcc
    ''')
    for j in range(1, 16): A(f'v_mov_b32 v{CA+j}, v{CA}')
    for j in range(0, 16, 2): A(f'v_mov_b64 {v(OA+j,2)}, 0')
    A(f'''
    v_mov_b32 v2, v1
    s_mov_b32 {s(sIt)}, 0
LA_fb2:
    ds_read_b128 {v(KF(0),4)}, v2
    ds_read_b128 {v(VF(0),4)}, v3 offset:1024
    ds_read_b128 {v(VF(1),4)}, v3 offset:1280
    v_add_u32 v2, 0x800, v2
    v_add_u32 v3, v6, v3
    s_waitcnt lgkmcnt(0)
    ''')
    A(mfma(SA, KF(0), QA, CA))
    A('s_nop 11')
    for j in range(16): E(SA, j)
    A('s_nop 0')
    for p in range(8): Cv(SA, PA, p)
    A('s_nop 1')
    A(mfma(OA, VF(0), PA, OA)); A(mfma(OA, VF(1), PA + 4, OA))
    A(f'''
    s_add_u32 {s(sIt)}, {s(sIt)}, 1
    s_cmp_lt_u32 {s(sIt)}, 64
    s_cbranch_scc1 LA_fb2
    s_nop 11
    s_branch LA_norm
    ''')

def main(out):
    A = Asm()
    top = f'''; out = x + (MHA(LN x) @ wo) * silu(GEGLU-FFN(LN x)); one persistent launch, 256 workgroups (generated by gen/gen5.py)
; @launch grid=(256,1,1) block=(512,1,1) lds={LDS_BYTES}
.amdgcn_target "amdgcn-amd-amdhsa--gfx950"
.text
'''
    gen(A)
    tail = f'''.section .rodata,"a"
.p2align 6
.amdhsa_kernel {NAME}_kernel
  .amdhsa_next_free_vgpr 256
  .amdhsa_next_free_sgpr 100
  .amdhsa_accum_offset 256
  .amdhsa_group_segment_fixed_size 0
  .amdhsa_kernarg_size 80
  .amdhsa_user_sgpr_count 2
  .amdhsa_user_sgpr_kernarg_segment_ptr 1
  .amdhsa_system_sgpr_workgroup_id_x 1
.end_amdhsa_kernel
'''
    open(out, 'w').write(top + A.text() + tail)

if __name__ == '__main__':
    main(sys.argv[1] if len(sys.argv) > 1 else 'cdna_kernels/%s.s' % NAME)
```

```python
import struct, sys, math, os

NAME = 'recurrent_scan__mha_block__glu_gated_geglu__prompt'
def f2u(x): return struct.unpack('<I', struct.pack('<f', x))[0]
def hx(x): return '0x%x' % (x & 0xffffffff)
class Asm:
    def __init__(self): self.l = []
    def __call__(self, s):
        for line in s.split('\n'):
            line = line.strip()
            if not line: continue
            self.l.append(line if line.endswith(':') or line.startswith('.') else '    ' + line)
    def text(self): return '\n'.join(self.l) + '\n'
def v(a, n=1): return 'v%d' % a if n == 1 else 'v[%d:%d]' % (a, a + n - 1)
def s(a, n=1): return 's%d' % a if n == 1 else 's[%d:%d]' % (a, a + n - 1)
def mfma(d, a, b, c):
    return 'v_mfma_f32_32x32x16_bf16 %s, %s, %s, %s' % (v(d, 16), v(a, 4), v(b, 4), '0' if c is None else v(c, 16))

QF  = 0x000000
KV  = 0x200000
HF  = 0x600000
OF  = 0xD00000
CSP = 0x1200000
RSP = 0x1280000
FL  = 0x13C0000
FH  = 0x13C8000
NW  = 0x13D0000
STB = 0x1400000
WS_BYTES = 0x1500000
LOG2E = 1.4426950408889634
ONES = 0x3f803f80
SPIN = 1 << 18

LIGHT = os.environ.get('STAMP') == '2'
STAMP = os.environ.get('STAMP') == '1'
EXP = set(os.environ.get('EXP', '').split(','))
BIAS = float(os.environ.get('BIAS', '100'))
NFL = int(os.environ.get('NFL', '4'))

TM = 's_memrealtime' if os.environ.get('RT') else 's_memtime'
_seen = set()
def stamp(A, idx, real=False):
    if 'frozen' in EXP and idx in (5, 6, 7, 8, 9, 10, 11, 12) and not any('L_C:' == x for x in A.l): return
    if not STAMP and not (LIGHT and idx in (0, 13, 14, 15)): return
    if 'e1' in EXP and A.l and any('L_C:' == x for x in A.l):
        if idx in _seen: return
        _seen.add(idx)
    A('%s s[78:79]\ns_waitcnt lgkmcnt(0)\ns_mov_b32 s%d, s78' % ('s_memrealtime' if real or os.environ.get('RT') else 's_memtime', 80 + idx))
AMP = os.environ.get('AMP')
def amp(A, name):
    if AMP == name: A('s_memrealtime s[78:79]\ns_waitcnt lgkmcnt(0)\ns_mov_b32 s97, s78')
def stamp_begin(A):
    if AMP: A('s_memrealtime s[78:79]\ns_waitcnt lgkmcnt(0)\ns_mov_b32 s96, s78\ns_mov_b32 s97, s78')
    if not STAMP and not LIGHT: return
    for i in range(16): A('s_mov_b32 s%d, 0' % (80 + i))
    stamp(A, 14, True); stamp(A, 0)
def stamp_end(A, sWS, sW, vt=3, tr=None):
    if not STAMP and not (LIGHT and tr is None): return
    A('s_waitcnt vmcnt(0)')
    stamp(A, 13); stamp(A, 15, True)
    A('s_nop 4')
    if tr is not None: A('v_mov_b32 v%d, v%d' % (vt, tr))
    for i in range(16): A('v_writelane_b32 v%d, s%d, %d' % (vt, 80 + i, i))
    A('''s_lshl_b32 s78, s2, 3
    s_add_u32 s78, s78, s%d
    s_lshl_b32 s78, s78, 7
    s_add_u32 s78, s78, %s
    v_lshlrev_b32 v%d, 2, v0
    s_mov_b64 exec, 0xffffffff
    buffer_store_dword v%d, v%d, s[%d:%d], s78 offen''' % (sW, hx(STB), vt + 1, vt, vt + 1, sWS, sWS + 3))

PAN, APAN = 4224, 4352
WST = 2 * PAN + APAN
XST = 16 * 1040
L_X = 6 * WST
L_CS = L_X + 4 * XST
L_RS = L_CS + 10 * 256
L_ONES = 131072
L_EX = L_ONES + 7 * 2048 + 1536
assert L_RS + 1024 <= L_EX
L_H = 98304
L_FLAG = L_EX + 16384
L_NON = L_FLAG + 4
LDS_BYTES = L_FLAG + 64
assert LDS_BYTES <= 163840
NT = 8
F1N, F1A, F1B = [int(t) for t in os.environ.get('F1IT', '2,1,4').split(',')]
NK1 = int(os.environ.get('NK1', '13'))

sX, sA, sH0, sH1, sWS, sPK, sDBG = 16, 20, 24, 28, 32, 36, 12
sP0, sP1 = 36, 12
sRB, sCG, sW, sHead, sQB = 40, 41, 42, 74, 75

def flag_store(A, soff, vt):
    A(f'''
    s_mov_b64 exec, 1
    buffer_store_dword v{vt}, off, {s(sWS,4)}, {soff} sc1
    s_mov_b64 exec, -1
    ''')

def gen(A):
    K = NAME + '_kernel'
    A(f'.globl {K}\n.p2align 8\n.type {K},@function\n{K}:')
    A('''
    s_cmp_ge_u32 s2, 256
    s_cbranch_scc1 L_end
    ''')
    stamp_begin(A)
    A(f'''
    v_lshrrev_b32 v1, 6, v0
    s_getpc_b64 s[4:5]
L_pc:
    v_readfirstlane_b32 {s(sW)}, v1
    s_and_b32 s47, s2, 0xf8
    s_load_dwordx2 {s(sX,2)}, s[0:1], 0
    s_add_u32 s47, s47, {s(sW)}
    s_lshl_b32 s47, s47, 6
    s_load_dword s6, s[4:5], s47
    s_add_u32 s47, s47, 0x4000
    s_min_u32 s47, s47, L_code_end-L_pc-4
    s_load_dword s7, s[4:5], s47
    s_load_dwordx2 {s(sA,2)}, s[0:1], 8
    s_load_dwordx2 {s(sH0,2)}, s[0:1], 32
    s_load_dwordx2 {s(sH1,2)}, s[0:1], 40
    s_load_dwordx2 {s(sWS,2)}, s[0:1], 72
    v_and_b32 v0, 63, v0
    s_and_b32 s3, s2, 7
    s_lshr_b32 s43, s2, 3
    s_lshr_b32 {s(sRB)}, s3, 2
    s_lshl_b32 {s(sRB)}, {s(sRB)}, 3
    s_and_b32 s70, s43, 7
    s_add_u32 {s(sRB)}, {s(sRB)}, s70
    s_and_b32 {s(sCG)}, s3, 3
    s_lshl_b32 {s(sCG)}, {s(sCG)}, 2
    s_lshr_b32 s71, s43, 3
    s_add_u32 {s(sCG)}, {s(sCG)}, s71
    s_and_b32 s44, {s(sW)}, 3
    s_lshr_b32 s45, s44, 1
    s_and_b32 s46, s44, 1
    s_mov_b32 {s(sWS+2)}, {hx(WS_BYTES)}
    s_mov_b32 {s(sWS+3)}, 0x20000
    s_mov_b32 {s(sX+2)}, 2097152
    s_mov_b32 {s(sX+3)}, 0x20000
    s_mov_b32 {s(sA+2)}, 1572864
    s_mov_b32 {s(sA+3)}, 0x20000
    s_lshl_b32 {s(sHead)}, s3, 2
    s_add_u32 {s(sHead)}, {s(sHead)}, s71
    s_mov_b32 {s(sQB)}, s70
    ''')
    patterns = f'''
    v_bfe_u32 v5, v0, 4, 1
    v_bfe_u32 v6, v0, 2, 2
    v_lshrrev_b32 v7, 5, v0
    v_and_b32 v1, 3, v0
    v_lshlrev_b32 v1, 3, v1
    v_lshl_add_u32 v1, v7, 8, v1
    v_mul_u32_u24 v2, {PAN}, v5
    v_mul_u32_u24 v8, 1056, v6
    v_add3_u32 v2, v2, v8, v1
    v_mul_u32_u24 v8, 1088, v6
    v_lshl_add_u32 v3, v5, 5, v8
    v_add_u32 v3, v3, v1
    v_and_b32 v8, 15, v0
    v_mul_u32_u24 v8, 1040, v8
    v_lshl_add_u32 v4, v5, 8, v8
    v_lshl_add_u32 v4, v7, 4, v4
    s_lshl_b32 s47, s45, 6
    v_add_u32 v2, s47, v2
    s_add_u32 s47, s47, {2*PAN}
    v_add_u32 v3, s47, v3
    '''
    A(f'''
    s_and_b32 s47, {s(sW)}, 6
    s_cmp_eq_u32 s47, 4
    s_cbranch_scc1 L_L
    ''')
    if 'tlb' in EXP:
        A(f'''
        s_load_dwordx2 s[8:9], s[0:1], 16
        s_load_dwordx4 s[12:15], s[0:1], 48
        s_lshl_b32 s47, {s(sW)}, 21
        s_add_u32 s48, s47, {hx(0x400000)}
        s_waitcnt lgkmcnt(0)
        s_load_dword s6, {s(sA,2)}, 0
        s_load_dword s6, {s(sH0,2)}, 0
        s_load_dword s6, {s(sH1,2)}, 0
        s_load_dword s6, {s(sWS,2)}, s47
        s_load_dword s6, {s(sWS,2)}, s48
        s_load_dword s6, s[8:9], 0
        s_load_dword s6, s[12:13], 0
        s_load_dword s6, s[14:15], 0
        ''')
    A(f'''
    s_cmp_lt_u32 {s(sW)}, 4
    s_cbranch_scc1 L_C
    s_branch L_M
L_L:
    ''')
    gen_H(A, patterns)
    gen_C(A, patterns)
    A('L_end:\ns_endpgm\nL_code_end:')

def gen_H(A, patterns):
    sStrH, sColH = 48, 49
    sRowA, sRowH, sMH, sMA, sMX, sXo, sRot, sG = 50, 51, 52, 53, 54, 55, 59, 60
    ROTM = int(os.environ.get('ROTM', '7'))
    sStr, sRowP, sRowA, sRowB, sMA, sMB, sMX, sXo, sRot, sGA, sGB, sJ = 48, 49, 50, 51, 52, 53, 54, 55, 59, 60, 56, 57
    A(f"""
    v_lshrrev_b32 v8, 3, v0
    v_and_b32 v9, 7, v0
    v_lshlrev_b32 v9, 4, v9
    v_and_b32 v13, 4, v8
    v_bfe_u32 v14, v8, 1, 1
    v_and_b32 v15, 1, v8
    v_lshl_add_u32 v14, v15, 1, v14
    v_add_u32 v13, v13, v14
    v_lshl_add_u32 v13, v13, 14, v9
    s_lshl_b32 s47, {s(sRB)}, 17
    s_lshl_b32 s61, s46, 12
    s_add_u32 s47, s47, s61
    v_add_u32 v13, s47, v13
    s_lshl_b32 s62, s71, 1
    s_add_u32 {s(sRot)}, s70, s62
    s_and_b32 s47, s3, 1
    s_add_u32 {s(sRot)}, {s(sRot)}, s47
    s_and_b32 {s(sRot)}, {s(sRot)}, 7
    s_lshl_b32 {s(sXo)}, {s(sRot)}, 7
    s_lshl_b32 {s(sRot)}, {s(sRot)}, 1
    s_mul_i32 s58, s46, 4160
    s_add_u32 s58, s58, {L_X}
    s_mov_b32 {s(sMX)}, s58
    s_mov_b32 {s(sJ)}, 0
    s_and_b32 s64, s3, 3
    s_mul_i32 s65, s64, 7
    s_add_u32 s65, s65, s62
    s_lshl_b32 s65, s65, 7
    s_add_u32 s66, s65, 128
    s_lshl_b32 s64, s64, 8
    s_add_u32 s64, s64, 2048
    s_cmp_lt_u32 s71, 3
    s_mov_b32 {s(sP0+2)}, 1572864
    s_cmov_b32 {s(sP0+2)}, 1835008
    s_mov_b32 {s(sP1+2)}, {1572864-128}
    s_cmov_b32 {s(sP1+2)}, 1835008
    s_mov_b32 {s(sP0+3)}, 0x20000
    s_mov_b32 {s(sP1+3)}, 0x20000
    s_movk_i32 {s(sStr)}, 3072
    s_cmovk_i32 {s(sStr)}, 3584
    s_cselect_b32 s64, s65, s64
    s_cselect_b32 s65, s66, s65
    s_lshl_b32 s47, s46, 1
    v_lshl_add_u32 v10, v8, 2, s47
    v_mul_u32_u24 v11, 3072, v10
    s_lshl_b32 s47, {s(sCG)}, 7
    v_add3_u32 v11, v11, v9, s47
    v_mul_lo_u32 v18, v10, {s(sStr)}
    v_add3_u32 v18, v18, v9, s64
    v_add_u32 v19, {s(sStr)}, v18
    s_lshl_b32 {s(sStr)}, {s(sStr)}, 5
    s_mul_i32 {s(sRowA)}, {s(sRot)}, {32*3072}
    s_mul_i32 {s(sRowP)}, {s(sRot)}, {s(sStr)}
    s_mul_i32 {s(sMA)}, s46, 2112
    s_add_u32 {s(sMA)}, {s(sMA)}, {2*WST}
    s_lshl_b32 s69, s46, 6
    s_mov_b32 {s(sGA)}, 0
    s_waitcnt lgkmcnt(0)
    """)
    sel = f"""
    s_add_u32 s62, {s(sA)}, 128
    s_addc_u32 s63, {s(sA+1)}, 0
    s_cmp_lt_u32 s71, 3
    s_cselect_b64 {s(sP0,2)}, {s(sH0,2)}, {s(sA,2)}
    s_cselect_b64 {s(sP1,2)}, {s(sH1,2)}, s[62:63]
    """
    setup2 = f"""
    s_mov_b32 {s(sH0+2)}, 1835008
    s_mov_b32 {s(sH1+2)}, 1835008
    s_mov_b32 {s(sH0+3)}, 0x20000
    s_mov_b32 {s(sH1+3)}, 0x20000
    v_mul_u32_u24 v16, 3584, v10
    v_add3_u32 v16, v16, v9, s65
    v_add_u32 v17, 3584, v16
    s_add_u32 s47, {s(sRot)}, 14
    s_and_b32 s47, s47, 15
    s_mul_i32 {s(sRowB)}, s47, {32*3584}
    s_mul_i32 {s(sMB)}, s46, 2112
    s_add_u32 {s(sMB)}, {s(sMB)}, {4*WST}
    s_mov_b32 {s(sGB)}, 0
    """
    ops = []
    def call(tag):
        name = {'X': 'LL_X', 'A': 'LL_A', 'B': 'LL_B', 'p': 'LH_pp'}[tag[0]]
        A(f's_call_b64 s[8:9], {name}')
        ops.extend([tag] * {'LL_X': 4, 'LL_A': 6, 'LL_B': 4, 'LH_pp': 4}[name])
    def bar(*need):
        if need:
            assert all(t in ops for t in need), need
            last = max(i for i, t in enumerate(ops) if t in need)
            if len(ops) - 1 - last < 64: A(f's_waitcnt vmcnt({len(ops) - 1 - last})')
        A('s_barrier')
    def bodyX():
        ld = [(f's_add_u32 m0, {s(sMX)}, {16*i}', f'buffer_load_dwordx4 v13, {s(sX,4)}, {s(sXo)} offen offset:{1024*i} lds') for i in range(4)]
        pre = [f's_add_u32 {s(sJ)}, {s(sJ)}, 1', f's_lshr_b32 s67, {s(sJ)}, 1', 's_sub_u32 s68, 11, s67',
               f's_cmp_lt_u32 {s(sJ)}, 16\ns_cselect_b32 s67, s67, s68']
        post = ['s_and_b32 s68, s67, 3\ns_lshl_b32 s68, s68, 1', f's_and_b32 s62, {s(sJ)}, 1\ns_add_u32 s68, s68, s62',
                f's_mul_i32 s68, s68, {XST//2}\ns_add_u32 {s(sMX)}, s68, s58\ns_lshl_b32 s67, s67, 1',
                f's_add_u32 s67, s67, {s(sRot)}\ns_and_b32 s67, s67, 15\ns_lshl_b32 s67, s67, 6\ns_lshl_b32 s62, s62, 13\ns_add_u32 {s(sXo)}, s67, s62']
        return ld, pre, post
    def bodyA():
        ld = [(f's_add_u32 m0, {s(sMA)}, {hf*PAN+1056*bb}', f'buffer_load_dwordx4 v{18+bb}, {s(sP0 if hf == 0 else sP1,4)}, {s(sRowP)} offen lds')
              for hf in range(2) for bb in range(2)]
        ld += [(f's_add_u32 m0, s61, {2*PAN+(1088-3072)*bb}', f'buffer_load_dwordx4 v11, {s(sA,4)}, {s(sRowA)} offen offset:{3072*bb} lds') for bb in range(2)]
        pre = [f's_add_u32 {s(sGA)}, {s(sGA)}, 1', f's_add_u32 s47, {s(sGA)}, {s(sRot)}', 's_and_b32 s47, s47, 15', f's_add_u32 s61, {s(sMA)}, s69',
               f's_mul_i32 {s(sRowP)}, s47, {s(sStr)}\ns_add_u32 {s(sMA)}, {s(sMA)}, {WST}',
               f's_cmp_ge_u32 {s(sMA)}, {4*WST}\ns_cselect_b32 s63, {4*WST}, 0\ns_sub_u32 {s(sMA)}, {s(sMA)}, s63']
        post = [f's_mul_i32 {s(sRowA)}, s47, {32*3072}']
        return ld, pre, post
    def bodyB():
        ld = [(f's_add_u32 m0, {s(sMB)}, {hf*PAN+1056*bb}', f'buffer_load_dwordx4 v{16+bb}, {s(sH0 if hf == 0 else sH1,4)}, {s(sRowB)} offen lds')
              for hf in range(2) for bb in range(2)]
        pre = [f's_add_u32 {s(sGB)}, {s(sGB)}, 1', f's_xor_b32 s47, {s(sGB)}, 14', f's_add_u32 s47, s47, {s(sRot)}\ns_and_b32 s47, s47, 15',
               f's_bitcmp1_b32 {s(sGB)}, 0\ns_mov_b32 s63, {3*WST}\ns_cmov_b32 s63, {WST}\ns_add_u32 {s(sMB)}, {s(sMB)}, s63\ns_cmp_ge_u32 {s(sMB)}, {6*WST}\ns_cselect_b32 s63, {6*WST}, 0\ns_sub_u32 {s(sMB)}, {s(sMB)}, s63']
        post = [f's_mul_i32 {s(sRowB)}, s47, {32*3584}']
        return ld, pre, post
    def emit(*bodies):
        carry = []
        for ld, pre, post in bodies:
            for i, (m, l) in enumerate(ld):
                A(m); A(pre[i])
                if carry: A(carry.pop(0))
                A(l)
            for t in carry: A(t)
            carry = list(post)
        for t in carry: A(t)
    if 'st0' in EXP: stamp(A, 9)
    call('X0'); A(sel)
    if 'st0' in EXP: stamp(A, 10)
    call('X1')
    if 'st0' in EXP: stamp(A, 7)
    call('A0')
    if 'st0' in EXP: stamp(A, 6)
    call('A1')
    if 'st0' in EXP: stamp(A, 11)
    A('s_branch LL_go\nLL_X:')
    emit(bodyX())
    A('s_setpc_b64 s[8:9]\nLL_A:')
    emit(bodyA())
    A('s_setpc_b64 s[8:9]\nLL_go:')
    A(setup2)
    A('s_call_b64 s[8:9], LH_prep')
    if 'st0' in EXP:
        stamp(A, 12); A('s_waitcnt vmcnt(12)'); stamp(A, 8); A('s_waitcnt vmcnt(6)'); stamp(A, 5); EXP.add('frozen')
    def need(c):
        n = [f'A{c}' if c < 16 else f'B{c-16}']
        if c % 2 == 0 and c < 16: n += [f'X{c}', f'X{c+1}']
        if c % 2 == 0 and c >= 24: n += [f'X{c-8}', f'X{c-7}']
        if c == 2: n += ['B0', 'B1']
        return n
    def dist(c):
        return len(ops) - 1 - max(i for i, t in enumerate(ops) if t in need(c))
    def loop(label, c0, c1, second, cnt, lim):
        A(f's_waitcnt vmcnt({dist(c0)})\n{label}:\ns_barrier')
        emit(bodyX(), second())
        w = 63
        for c in range(c0, c1 + 1):
            ops.extend([f'X{c+4 if c < 16 else c-2}'] * 4 + ([f'A{c+3}'] * 6 if c < 16 else [f'B{c-11}'] * 4))
            if c < c1: w = min(w, dist(c + 1))
        A(f's_cmp_lt_u32 {cnt}, {lim}\ns_waitcnt vmcnt({w})\ns_cbranch_scc1 {label}')
    sched = {0: 'X2,X3,B0,B1', 1: 'A2,A3,X4,X5,A4', 12: 'A15', 13: 'B2', 14: 'B3', 15: 'B4', 16: 'B5', 17: 'B6', 26: 'B15'}
    if os.environ.get('LS0'): sched[0], sched[1] = os.environ['LS0'].split('/')
    c = 0
    while c < 32:
        if c == 2:
            loop('LL_loopA', 2, 11, bodyA, s(sGA), 15); c = 12; continue
        if c == 18:
            loop('LL_loopB', 18, 25, bodyB, s(sGB), 15); c = 26; continue
        bar(*need(c))
        amp(A, f'b{c}')
        if c == 27:
            A(f"""
    v_mov_b32 v9, {L_NON}
    ds_read_b32 v3, v9
    s_call_b64 s[8:9], LH_prep2
    s_mov_b32 s52, {hx(FL)}
    s_lshl_b32 s61, {s(sHead)}, 3
    s_add_u32 s61, s61, {s(sQB)}
    s_lshl_b32 s61, s61, 13
    s_lshl_b32 s47, s46, 12
    s_add_u32 s61, s61, s47
    s_lshl_b32 s62, s46, 13
    s_add_u32 s62, s62, {L_ONES+512}
    s_lshl_b32 s63, s46, 10
    s_lshl_b32 s47, {s(sHead)}, 17
    s_add_u32 s47, s47, {hx(KV)}
    s_add_u32 s47, s47, s63
    s_mov_b32 s53, 0
    """)
        if c == 30:
            A(f"""
    s_cmp_eq_u32 s71, {3 if 'noearly' not in EXP else 9}
    s_cselect_b32 s55, s52, 0x2000000
    buffer_load_dword v241, v251, {s(sWS,4)}, s55 offen sc1
    """)
            ops.append('poll')
        for t in sched.get(c, '').split(','):
            if t: call(t)
        c += 1
    A(f"""
    s_setprio 2
    s_barrier
    s_cmp_eq_u32 s55, s52
    s_cbranch_scc1 LL_f1c
    s_sleep {os.environ.get('SL1', '6')}
LL_f1:
    buffer_load_dword v241, v251, {s(sWS,4)}, s52 offen sc1
LL_f1c:
    s_add_u32 s53, s53, 1
    s_waitcnt vmcnt(0) lgkmcnt(0)
    v_cmp_ne_u32 vcc, v3, v241
    s_cbranch_vccz LL_f1ok
    s_sleep 4
    s_cmp_lt_u32 s53, {SPIN}
    s_cbranch_scc1 LL_f1
LL_f1ok:
    """)
    stamp(A, 1)
    if STAMP: A('s_add_u32 s82, s53, s80')
    A('s_call_b64 s[8:9], LL_qkv\ns_branch LH_join\nLL_qkv:')
    for i in range(4):
        A(f's_add_u32 m0, s62, {1024*i}\ns_nop 0\nbuffer_load_dwordx4 v1, {s(sWS,4)}, s61 offen offset:{1024*i} sc1 lds')
    A(f"""
    s_mov_b32 m0, s63
    s_nop 0
LL_kv:
    buffer_load_dwordx4 v1, {s(sWS,4)}, s47 offen sc1 lds
    buffer_load_dwordx4 v1, {s(sWS,4)}, s47 offen offset:2048 sc1 lds
    s_add_u32 m0, m0, 4096
    s_add_u32 s47, s47, 4096
    s_cmp_lt_u32 m0, 20480
    s_cbranch_scc1 LL_kv
    s_setpc_b64 s[8:9]
LL_B:
    """)
    emit(bodyB())
    A(f"""
    s_setpc_b64 s[8:9]
    """)
    CS, RS = 16, 24
    WF, XF = 32, 52
    sOne = 73
    A(f"""
L_M:
    s_setprio {os.environ.get('MPRIO', '0')}
    s_mov_b32 s45, s46
    """)
    A(patterns)
    A(f"""
    s_mov_b32 s45, 1
    s_mov_b32 {s(sOne)}, {hx(ONES)}
    s_lshl_b32 s47, s46, 9
    s_add_u32 s47, s47, {L_X}
    v_add_u32 v4, s47, v4
    v_lshlrev_b32 v1, 4, v0
    s_mov_b32 s50, 0
    """)
    for i in range(16, 28, 2): A(f'v_mov_b64 {v(i,2)}, 0')
    A(f's_mov_b32 s47, {hx(NW)}\ns_waitcnt lgkmcnt(0)\nbuffer_load_dword v30, off, {s(sWS,4)}, s47 sc1')
    nb = -1
    def bars(upto):
        nonlocal nb
        while nb < upto:
            A('s_barrier'); nb += 1
    A('s_call_b64 s[8:9], LH_prep')
    if 'st0' in EXP:
        EXP.discard('frozen'); stamp(A, 9); EXP.add('frozen')
    XF = 44
    A(f"""
    v_add_u32 v10, {4*WST}, v2
    v_add_u32 v2, {2*WST}, v2
    v_add_u32 v3, {2*WST}, v3
LM_stat:
    s_bitcmp1_b32 s50, 0
    s_cbranch_scc1 LM_nobar
    s_barrier
LM_nobar:
    ds_read_b128 {v(XF,4)}, v4
    ds_read_b128 {v(XF+4,4)}, v4 offset:128
    ds_read_b64_tr_b16 {v(WF,2)}, v3
    ds_read_b64_tr_b16 {v(WF+2,2)}, v3 offset:128
    """)
    for u in range(2):
        A(f'ds_read_b64_tr_b16 {v(WF+4+4*u,2)}, v2 offset:{u*32}')
        A(f'ds_read_b64_tr_b16 {v(WF+6+4*u,2)}, v2 offset:{u*32+128}')
    A(f"""
    s_movk_i32 s47, 512
    s_cmovk_i32 s47, {WST-512}
    v_add_u32 v2, s47, v2
    v_add_u32 v3, s47, v3
    v_add_u32 v4, 32, v4
    s_add_u32 s50, s50, 1
    s_waitcnt lgkmcnt(6)
    """)
    for j in range(4):
        for T in range(2):
            A(f'v_dot2c_f32_bf16 v{RS+2*T}, {s(sOne)}, v{XF+4*T+j}')
            A(f'v_dot2c_f32_bf16 v{RS+2*T+1}, v{XF+4*T+j}, v{XF+4*T+j}')
    A('s_waitcnt lgkmcnt(0)')
    for j in range(4):
        for i in range(3):
            A(f'v_dot2c_f32_bf16 v{CS+i}, {s(sOne)}, v{WF+4*i+j}')
    A(f"""
    s_cmp_lt_u32 s50, 4
    s_cbranch_scc1 LM_stat
    s_barrier
    """)
    nb = 2
    for q in range(4):
        for u in range(2):
            for rd in range(2):
                A(f'ds_read_b64_tr_b16 {v(WF+8*q+4*u+2*rd,2)}, v10 offset:{(q>>1)*WST+(4*(q&1)+rd)*128+u*32}')
        if q == 2: A('s_waitcnt lgkmcnt(4)')
    A(f"""
    s_lshl_b32 s50, {s(sCG)}, 4
    s_add_u32 s50, s50, {s(sRB)}
    s_lshl_b32 s50, s50, 1
    s_add_u32 s50, s50, s46
    s_lshl_b32 s50, s50, 10
    s_add_u32 s50, s50, {hx(CSP)}
    s_lshl_b32 s51, {s(sRB)}, 4
    s_add_u32 s51, s51, {s(sCG)}
    s_lshl_b32 s51, s51, 1
    s_add_u32 s51, s51, s46
    s_lshl_b32 s51, s51, 10
    s_add_u32 s51, s51, {hx(RSP)}
    s_waitcnt lgkmcnt(0)
    """)
    for hh in range(2):
        for q in (2 * hh, 2 * hh + 1):
            for j in range(4):
                for u in range(2):
                    r = WF + 8 * q + 4 * u + j
                    A(f'v_lshlrev_b32 v28, 16, v{r}\nv_and_b32 v29, 0xffff0000, v{r}\nv_add_f32 v{CS+3+u}, v{CS+3+u}, v28\nv_add_f32 v{CS+5+u}, v{CS+5+u}, v29')
        bars(nb + 1)
    A(f"""
    v_add_f32 v{CS+3}, v{CS+3}, v{CS+5}
    v_add_f32 v{CS+4}, v{CS+4}, v{CS+6}
    s_mov_b32 s47, 1664525
    s_waitcnt vmcnt(0)
    v_mul_lo_u32 v30, v30, s47
    v_add_u32 v30, 1013904223, v30
    """)
    for i in range(5): A(f'v_mov_b32 v{WF+i}, v{CS+i}')
    for i in range(4): A(f'v_mov_b32 v{WF+8+i}, v{RS+i}')
    A('v_cmp_gt_u32 vcc, 32, v0')
    for i in range(5): A(f'v_permlane32_swap_b32 v{CS+i}, v{WF+i}')
    for i in range(4): A(f'v_permlane32_swap_b32 v{RS+i}, v{WF+8+i}')
    for i in range(5): A(f'v_add_f32 v{CS+i}, v{CS+i}, v{WF+i}')
    for i in range(4): A(f'v_add_f32 v{RS+i}, v{RS+i}, v{WF+8+i}')
    A(f"""
    v_cndmask_b32 v{CS}, v{CS+3}, v{CS}, vcc
    v_cndmask_b32 v{CS+1}, v{CS+4}, v{CS+1}, vcc
    v_mov_b32 v{CS+3}, v30
    v_cndmask_b32 v{RS}, v{RS+2}, v{RS}, vcc
    v_cndmask_b32 v{RS+1}, v{RS+3}, v{RS+1}, vcc
    v_mov_b32 v{RS+3}, v30
    buffer_store_dwordx4 {v(CS,4)}, v1, {s(sWS,4)}, s50 offen sc1
    buffer_store_dwordx4 {v(RS,4)}, v1, {s(sWS,4)}, s51 offen sc1
    """)
    bars(nb + 1)
    A(f"""
    s_and_b32 s50, s50, {hx(~0x3800)}
    s_and_b32 s51, s51, {hx(~0x3800)}
    v_lshlrev_b32 v8, 2, v0
    v_mov_b32 v9, {L_FLAG}
    v_mov_b32 v29, 0
    ds_write_b32 v9, v29
    ds_write_b32 v9, v30 offset:4
    ds_write_b32 v9, v29 offset:8
    ds_write_b32 v9, v29 offset:12
    """)
    B_GAT, B_RED = [int(t) for t in os.environ.get('MSCHED', '11,15').split(',')]
    A('v_mov_b32 v3, v30')
    bars(B_GAT)
    GC, GR = 32, 64
    A('s_mov_b32 s53, 0\nLM_gat:\ns_mov_b32 s47, s50\ns_mov_b32 s61, s51')
    for i in range(8):
        A(f'buffer_load_dwordx4 {v(GR+4*i,4)}, v1, {s(sWS,4)}, s61 offen offset:{2048*(i&1)} sc1')
        A(f'buffer_load_dwordx4 {v(GC+4*i,4)}, v1, {s(sWS,4)}, s47 offen offset:{2048*(i&1)} sc1')
        if i & 1 and i < 7: A('s_add_u32 s47, s47, 4096\ns_add_u32 s61, s61, 4096')
    A('s_cmp_lg_u32 s53, 0\ns_cbranch_scc1 LM_chk')
    bars(B_RED - 1)
    A('LM_chk:\ns_waitcnt vmcnt(0)\ns_add_u32 s53, s53, 1')
    A(f'v_xor_b32 v10, v30, v{GC+3}')
    for r in [GC + 4 * i + 3 for i in range(1, 16)]:
        A(f'v_xor_b32 v11, v30, v{r}\nv_or_b32 v10, v10, v11')
    A(f"""
    v_cmp_ne_u32 vcc, 0, v10
    s_cbranch_vccz LM_red
    s_cmp_lt_u32 s53, {SPIN}
    s_cbranch_scc1 LM_gat
LM_red:
    """)
    stamp(A, 1)
    for i in range(1, 8):
        for t in range(3):
            if t < 2: A(f'v_add_f32 v{GR+t}, v{GR+t}, v{GR+4*i+t}')
            A(f'v_add_f32 v{GC+t}, v{GC+t}, v{GC+4*i+t}')
    bars(B_RED)
    SUM, SQ = GR, GR + 1
    A(f"""
    s_mul_i32 s47, s46, {5*256}
    s_add_u32 s47, s47, {L_CS}
    v_add_u32 v10, s47, v8
    s_lshl_b32 s47, s46, 9
    s_add_u32 s47, s47, {L_RS}
    v_lshl_add_u32 v9, v0, 3, s47
    v_cmp_gt_u32 vcc, 32, v0
    v_mul_f32 v{SUM}, {hx(f2u(-1.0/512))}, v{SUM}
    v_mul_f32 v{SQ}, {hx(f2u(1.0/512))}, v{SQ}
    v_fma_f32 v{SQ}, -v{SUM}, v{SUM}, v{SQ}
    v_max_f32 v{SQ}, 0, v{SQ}
    v_cvt_pk_bf16_f32 v{SQ}, v{SQ}, v{SQ}
    v_and_b32 v{SQ}, 0xffff0000, v{SQ}
    v_add_f32 v{SQ}, {hx(f2u(1e-5))}, v{SQ}
    v_cvt_pk_bf16_f32 v{SQ}, v{SQ}, v{SQ}
    v_and_b32 v{SQ}, 0xffff0000, v{SQ}
    v_sqrt_f32 v{SQ}, v{SQ}
    v_cvt_pk_bf16_f32 v{SUM}, v{SUM}, v{SUM}
    v_cvt_pk_bf16_f32 v{SQ}, v{SQ}, v{SQ}
    v_and_b32 v{SQ}, 0xffff0000, v{SQ}
    ds_write_b64 v9, {v(SUM,2)}
    """)
    for t in range(3):
        A(f"""
        v_cvt_pk_bf16_f32 v28, v{GC+t}, v{GC+t}
        v_and_b32 v28, 0xffff0000, v28
        v_sub_f32 v29, v{GC+t}, v28
        v_cvt_pk_bf16_f32 v28, v28, v29
        v_cndmask_b32 v{16+t}, 0, v28, vcc
        ds_write_b32 v10, v{16+t} offset:{t*256}
        """)
        if t < 2: A(f'v_sub_u32 v{20+t}, v28, v{16+t}\nds_write_b32 v10, v{20+t} offset:{(3+t)*256}')
    A('s_waitcnt lgkmcnt(0)')
    stamp(A, 2)
    assert nb <= 15
    A(f"""
    s_lshl_b32 s51, s2, 7
    s_add_u32 s51, s51, {hx(FL)}
    s_cmp_lg_u32 s46, 0
    s_cmov_b32 s51, 0x2000000
    s_mov_b32 s52, 0x2000000
    s_cmp_eq_u32 s71, 3
    s_cselect_b32 s53, s51, s52
    s_cselect_b32 s51, s52, s51
    """)
    bars(16 + 2 * F1N + 1)
    flag_store(A, 's51', 3)
    bars(16 + 2 * F1B + 1)
    flag_store(A, 's53', 3)
    bars(27)
    A('s_call_b64 s[8:9], LH_prep2')
    bars(32)
    A('s_setprio 2')
    A(f"""
LH_join:
    s_mov_b32 s48, {NK1*4096}
    s_lshl_b32 s61, {s(sRB)}, 2
    s_lshl_b32 s62, s46, 1
    s_add_u32 s61, s61, s62
    s_mul_i32 s61, s61, 112
    s_and_b32 s62, s3, 3
    s_mul_i32 s62, s62, 28
    s_add_u32 s61, s61, s62
    s_lshl_b32 s62, s71, 3
    s_add_u32 s61, s61, s62
    s_lshl_b32 s62, s45, 1
    s_add_u32 s61, s61, s62
    s_lshl_b32 s61, s61, 10
    s_add_u32 s64, s61, {hx(HF)}
    s_add_u32 s66, s64, 4096
    s_cmp_eq_u32 s71, 3
    s_cselect_b32 s66, s64, s66
    s_cmov_b32 s64, 0x2000000
    s_add_u32 s65, s64, {112*1024}
    s_add_u32 s67, s66, {112*1024}
    s_lshl_b32 s63, s2, 7
    s_lshl_b32 s62, s44, 2
    s_add_u32 s61, s63, s62
    s_add_u32 s61, s61, {hx(FH)}
    s_lshl_b32 s68, {s(sQB)}, 3
    s_lshl_b32 s62, s44, 1
    s_add_u32 s68, s68, s62
    s_lshl_b32 s68, s68, 5
    s_add_u32 s68, s68, {s(sHead)}
    s_lshl_b32 s68, s68, 10
    s_add_u32 s68, s68, {hx(OF)}
    s_add_u32 s69, s68, 0x8000
    s_lshl_b32 s50, s3, 3
    s_lshl_b32 s47, s71, 1
    s_add_u32 s50, s50, s47
    s_add_u32 s50, s50, s46
    s_lshl_b32 s51, s70, 1
    s_add_u32 s51, s51, s45
    s_mul_i32 s47, s44, {28*1024}
    s_add_u32 s47, s47, {hx(HF)}
    s_mul_i32 s56, s50, {112*1024}
    s_add_u32 s56, s56, s47
    s_xor_b32 s57, s50, 1
    s_mul_i32 s57, s57, {112*1024}
    s_add_u32 s57, s57, s47
    s_mul_i32 s58, s44, {28*16384}
    s_lshl_b32 s47, s71, 1
    s_add_u32 s59, s70, s47
    s_cmp_ge_u32 s59, 7
    s_cselect_b32 s47, 7, 0
    s_sub_u32 s59, s59, s47
    s_lshl_b32 s59, s59, 12
    s_lshr_b32 s49, s50, 2
    s_and_b32 s47, s49, 7
    s_lshl_b32 s47, s47, 3
    s_lshr_b32 s49, s49, 3
    s_lshl_b32 s49, s49, 2
    s_add_u32 s49, s49, s47
    s_lshl_b32 s49, s49, 7
    s_add_u32 s49, s49, {hx(FH)}
    s_lshl_b32 s54, s50, 15
    s_lshl_b32 s47, s51, 6
    s_add_u32 s54, s54, s47
    s_load_dwordx2 {s(sA,2)}, s[0:1], 56
    s_load_dwordx2 {s(sPK,2)}, s[0:1], 48
    s_load_dwordx2 {s(sH0,2)}, s[0:1], 16
    s_mov_b32 {s(sA+2)}, 2097152
    s_mov_b32 {s(sPK+2)}, 1835008
    s_mov_b32 {s(sPK+3)}, 0x20000
    s_mov_b32 {s(sH0+2)}, 524288
    s_mov_b32 {s(sH0+3)}, 0x20000
    s_waitcnt vmcnt(0) lgkmcnt(0)
    """)
    A(f"""
    s_lshl_b32 s63, s44, 10
    s_lshl_b32 s47, {s(sHead)}, 17
    s_add_u32 s47, s47, {hx(KV+20480)}
    s_add_u32 s47, s47, s63
    s_add_u32 m0, s63, 20480
    """)
    stamp(A, 3)
    A('s_barrier')
    amp(A, 'B1')
    for n in range(8): A(f'ds_read_b128 {v(96+4*n,4)}, v248 offset:{n*4096}')
    A(f"""
LH_kv:
    buffer_load_dwordx4 v1, {s(sWS,4)}, s47 offen sc1 lds
    s_add_u32 m0, m0, 4096
    s_add_u32 s47, s47, 4096
    s_cmp_lt_u32 m0, s48
    s_cbranch_scc1 LH_kv
    s_cmp_eq_u32 s48, 131072
    s_cbranch_scc1 LH_kvdone
    s_mov_b32 s48, 131072
    """)
    for n in range(8):
        A(f's_waitcnt lgkmcnt({7-n})\nbuffer_store_dwordx4 {v(96+4*n,4)}, v1, {s(sWS,4)}, s{64+(n>>1)} offen offset:{(n&1)*1024} sc1')
    A(f'buffer_store_dwordx4 v[236:239], v1, {s(sWS,4)}, s68 offen sc1\nbuffer_store_dwordx4 v[236:239], v1, {s(sWS,4)}, s69 offen sc1')
    A(f's_waitcnt vmcnt(10)\ns_mov_b64 exec, 1\nds_add_u32 v247, v240 offset:12\ns_mov_b64 exec, -1')
    A(f"""
    s_mov_b32 s62, m0
    s_add_u32 m0, s63, 65536
    s_lshl_b32 s55, s44, 17
LH_wo:
    buffer_load_dwordx4 v242, {s(sH0,4)}, s55 offen lds
    s_add_u32 m0, m0, 4096
    s_add_u32 s55, s55, 8192
    s_cmp_lt_u32 m0, 131072
    s_cbranch_scc1 LH_wo
    s_mov_b32 m0, s62
    s_sub_u32 s62, s63, s60
    s_add_u32 s62, s62, 65536
    v_add_u32 v72, s62, v244
    v_add_u32 v73, s62, v245
    s_waitcnt vmcnt(16)
    """)
    stamp(A, 4)
    A(f"""
    s_mov_b64 exec, 1
    buffer_store_dword v3, off, {s(sWS,4)}, s61 sc1
    s_mov_b64 exec, -1
    s_waitcnt vmcnt(1)
    """)
    for k in range(8):
        for b in range(2):
            for rd in range(2):
                A(f'ds_read_b64_tr_b16 {v(176+8*k+4*b+2*rd,2)}, v{72+b} offset:{(2*k+rd)*4096}')
        if k in (2, 5, 7): A('s_waitcnt lgkmcnt(0)')
    A(f"""
    s_branch LH_kv
LH_kvdone:
    """)
    A(f"""
    s_mov_b32 s63, 0
    s_mov_b32 m0, s60
    """)
    D, G, X, T0, FO, WO = 8, 72, 88, 96, 112, 176
    Dj = lambda a, b: D + 16 * (a + 2 * b)
    adv = f"""
    s_add_u32 s52, s56, s59
    s_add_u32 s53, s57, s59
    s_lshl_b32 s55, s59, 4
    s_add_u32 s55, s55, s58
    s_add_u32 s59, s59, 4096
    s_cmp_ge_u32 s59, {7*4096}
    s_cselect_b32 s59, 0, s59
    """
    def dma(srd, buf):
        A(f"""
        buffer_load_dwordx4 v242, {s(srd,4)}, s55 offen offset:{2048*buf} lds
        buffer_load_dwordx4 v243, {s(srd,4)}, s55 offen offset:{2048*buf+1024} lds
        s_add_u32 s55, s55, {16384+2048*(2*buf-1)}
        """)
    def grp(i):
        if i & 3 == 0: A(adv)
        for a in range(2):
            A(f'buffer_load_dwordx4 {v(FO+8*(i&3)+4*a,4)}, v1, {s(sWS,4)}, s{52+a} offen offset:{(i&3)*1024} sc1')
        dma(sPK, i & 1)
    def trd(dst, buf):
        for b in range(2):
            for rd in range(2):
                A(f'ds_read_b64_tr_b16 {v(dst+4*b+2*rd,2)}, v{244+b} offset:{2048*buf+1024*rd}')
    A(f"""
    s_or_b32 s61, s44, s2
    s_mov_b32 s61, {hx(NW)}
    s_cmov_b32 s61, 0x2000000
    s_mov_b64 exec, 1
    buffer_store_dword v3, off, {s(sWS,4)}, s61 sc1
    s_mov_b64 exec, -1
    {'buffer_load_dword v241, v249, ' + s(sA,4) + ', s54 offen' if 'notouch' not in EXP else 'buffer_load_dword v241, v249, ' + s(sX,4) + ', s54 offen'}
    buffer_load_dwordx4 {v(X,4)}, v249, {s(sX,4)}, s54 offen
    buffer_load_dwordx4 {v(X+4,4)}, v249, {s(sX,4)}, s54 offen offset:32
    buffer_load_dwordx4 v[76:79], v246, {s(sWS,4)}, s49 offen sc1
    s_waitcnt vmcnt(5)
    s_mov_b64 exec, 1
    ds_add_u32 v247, v240 offset:8
    s_mov_b64 exec, -1
    """)
    stamp(A, 5)
    A(f"""
LH_fh:
    s_add_u32 s63, s63, 1
    s_waitcnt vmcnt(0)
    v_cmp_ne_u64 vcc, v[2:3], v[76:77]
    v_cmp_ne_u64 s[4:5], v[2:3], v[78:79]
    s_or_b64 vcc, vcc, s[4:5]
    s_cbranch_scc0 LH_gemm
    s_sleep 8
    buffer_load_dwordx4 v[76:79], v246, {s(sWS,4)}, s49 offen sc1
    s_cmp_lt_u32 s63, {SPIN}
    s_cbranch_scc1 LH_fh
LH_gemm:
    """)
    stamp(A, 6)
    amp(A, 'gemm')
    grp(0); grp(1)
    A('s_waitcnt vmcnt(4)')
    trd(G, 0)
    A('s_waitcnt lgkmcnt(0)')
    grp(2)
    A(f"s_setprio {os.environ.get('GPRIO', '0')}\ns_mov_b32 s63, {6 if 'nog' in EXP else 0}\nLH_gloop:")
    for i in range(4):
        A('s_waitcnt vmcnt(4)')
        trd(G + 8 * ((i + 1) & 1), (i + 1) & 1)
        for a in range(2): A(mfma(Dj(a, 0), G + 8 * (i & 1), FO + 8 * i + 4 * a, Dj(a, 0)))
        A('s_waitcnt lgkmcnt(0)')
        grp(i + 3)
        for a in range(2): A(mfma(Dj(a, 1), G + 8 * (i & 1) + 4, FO + 8 * i + 4 * a, Dj(a, 1)))
    A(f"""
    s_add_u32 s63, s63, 1
    s_cmp_lt_u32 s63, 7
    s_cbranch_scc1 LH_gloop
    s_setprio {os.environ.get('MEETP', '0')}
    """)
    A(f"""
    s_lshl_b32 s47, s3, 3
    s_lshl_b32 s61, s44, 1
    s_add_u32 s47, s47, s61
    s_lshl_b32 s47, s47, 7
    s_lshl_b32 s61, s71, 2
    s_add_u32 s47, s47, s61
    s_add_u32 s47, s47, {hx(FH)}
    s_mov_b32 s63, 0
LH_fs:
    buffer_load_dword v241, v250, {s(sWS,4)}, s47 offen sc1
    s_add_u32 s63, s63, 1
    s_waitcnt vmcnt(0)
    v_cmp_ne_u32 vcc, v3, v241
    s_cbranch_vccz LH_fsok
    s_sleep 8
    s_cmp_lt_u32 s63, {SPIN}
    s_cbranch_scc1 LH_fs
LH_fsok:
    s_mov_b32 s62, 0
    """)
    for j in range(1, 4):
        A('s_call_b64 s[8:9], LH_meet')
        for q in range(4): A(f'ds_write_b128 v{4+j}, {v(D+16*j+4*q,4)} offset:{q*1024}')
        A('s_call_b64 s[8:9], LH_meet')
        for q in range(4): A(f'ds_read_b128 {v(D+16*j+4*q,4)}, v4 offset:{q*1024}')
    A(f"""
    s_lshl_b32 s52, s50, 5
    s_lshl_b32 s61, s44, 3
    s_add_u32 s52, s52, s61
    s_lshl_b32 s52, s52, 10
    s_add_u32 s58, s52, {hx(OF)}
    s_xor_b32 s56, s58, 0x8000
    s_add_u32 s57, s56, 4096
    s_add_u32 s59, s58, 4096
    s_mov_b32 s63, 0
    """)
    def send():
        for j in (2,):
            for q in range(4): A(f'ds_write_b128 v{252+j}, {v(D+16*j+4*q,4)} offset:{(j-1)*4096+q*1024}')
        A('s_waitcnt lgkmcnt(0)\ns_barrier')
        for j in range(1, 4):
            for q in range(4): A(f'ds_read_b128 {v(D+16*j+4*q,4)}, v252 offset:{(j-1)*4096+q*1024}')
    A(f"""
    s_mov_b32 s52, -1
    s_waitcnt lgkmcnt(0)
    """)
    stamp(A, 7)
    amp(A, 'ready')
    A('s_barrier')
    amp(A, 'X')
    stamp(A, 8)
    for g in range(4):
        A(f'LH_o{g}:')
        for k in range(4 * g, 4 * g + 4):
            A(f'buffer_load_dwordx4 {v(FO+4*k,4)}, v1, {s(sWS,4)}, s{56+g} offen offset:{(k&3)*1024} sc1')
    for g in range(4):
        A(f's_cmp_eq_u32 s52, {g}\ns_cbranch_scc1 LH_c{g}')
    A(f's_mov_b32 s4, {hx(f2u(-LOG2E))}\ns_mov_b32 s5, 1.0')
    for j in range(1, 4):
        for p in range(8): A(f'v_pk_add_f32 {v((D if j < 3 else G)+2*p,2)}, {v(D+2*p,2)}, {v(D+16*j+2*p,2)}')
    for p in range(8): A(f'v_pk_mul_f32 {v(D+2*p,2)}, {v(G+2*p,2)}, s[4:5] op_sel_hi:[1,0]')
    for j in range(16): A(f'v_exp_f32 v{D+j}, v{D+j}')
    for p in range(8): A(f'v_pk_add_f32 {v(D+2*p,2)}, {v(D+2*p,2)}, s[4:5] op_sel:[0,1] op_sel_hi:[1,1]')
    for j in range(16): A(f'v_rcp_f32 v{D+j}, v{D+j}')
    for p in range(8): A(f'v_pk_mul_f32 {v(G+2*p,2)}, {v(D+2*p,2)}, {v(G+2*p,2)}')
    for g in range(4):
        f0 = FO + 16 * g
        a, hh = 1 - (g >> 1), g & 1
        A(f"""
LH_c{g}:
        s_mov_b32 s52, {g}
        s_add_u32 s63, s63, 1
        s_waitcnt vmcnt({12-4*g})
        v_max3_u32 v241, v{f0}, v{f0+4}, v{f0+8}
        v_max_u32 v241, v241, v{f0+12}
        v_cmp_eq_u32 vcc, -1, v241
        s_cbranch_vccz LH_m{g}
        s_sleep {os.environ.get('RSL', '4')}
        s_cmp_lt_u32 s63, {SPIN}
        s_cbranch_scc1 LH_o{g}
LH_m{g}:
        """)
        n = 0
        for b in (1, 0):
            for k in range(4):
                A(mfma(Dj(a, b), WO + 8 * (4 * hh + k) + 4 * b, f0 + 4 * k, None if hh == 0 and k == 0 else Dj(a, b)))
                if g == 2:
                    j, q = (3, 1)[n >> 2], n & 3
                    A(f'ds_write_b128 v{252+j}, {v(D+16*j+4*q,4)} offset:{(j-1)*4096+q*1024}')
                if g == 3: A(f'v_lshlrev_b32 v{T0+2*n}, 16, v{X+n}\nv_and_b32 v{T0+2*n+1}, 0xffff0000, v{X+n}')
                n += 1
    if STAMP and 'st0' not in EXP: A('s_add_u32 s89, s63, s80')
    stamp(A, 10)
    send()
    for j in range(1, 3):
        A(f's_waitcnt lgkmcnt({12-4*j})')
        for p in range(8): A(f'v_pk_add_f32 {v(D+2*p,2)}, {v(D+2*p,2)}, {v(D+16*j+2*p,2)}')
    for q in range(4):
        A(f's_waitcnt lgkmcnt({3-q})')
        for p in (2 * q, 2 * q + 1):
            A(f'v_pk_add_f32 {v(D+2*p,2)}, {v(D+2*p,2)}, {v(D+48+2*p,2)}')
            A(f'v_pk_fma_f32 {v(D+2*p,2)}, {v(D+2*p,2)}, {v(G+2*p,2)}, {v(T0+2*p,2)}')
            A(f'v_cvt_pk_bf16_f32 v{X+p}, v{D+2*p}, v{D+2*p+1}')
        if q & 1: A(f'buffer_store_dwordx4 {v(X+4*(q>>1),4)}, v249, {s(sA,4)}, s54 offen offset:{32*(q>>1)} {os.environ.get("OST", "")}')
    stamp(A, 11)
    stamp_end(A, sWS, sW, 2)
    if AMP:
        amp(A, 'end')
        A(f'''
        s_cmp_lg_u32 {s(sW)}, 4
        s_cbranch_scc1 L_end
        s_memrealtime s[78:79]
        s_sub_u32 s97, s97, s96
        s_waitcnt lgkmcnt(0)
        s_mov_b32 s96, s78
LH_amp:
        s_memrealtime s[78:79]
        s_waitcnt lgkmcnt(0)
        s_sub_u32 s78, s78, s96
        s_cmp_lt_u32 s78, s97
        s_cbranch_scc1 LH_amp
        ''')
    A(f"""
    s_endpgm
LH_meet:
    s_add_u32 s62, s62, 4
    s_mov_b32 s63, 0
    s_waitcnt lgkmcnt(0)
    s_mov_b64 exec, 1
    ds_add_u32 v247, v240
    s_mov_b64 exec, -1
LH_meetw:
    ds_read_b32 v241, v247
    s_add_u32 s63, s63, 1
    s_waitcnt lgkmcnt(0)
    v_cmp_gt_u32 vcc, s62, v241
    s_cbranch_vccz LH_meetok
    s_sleep {os.environ.get('MEETS', '4')}
    s_cmp_lt_u32 s63, {SPIN * 16}
    s_cbranch_scc1 LH_meetw
LH_meetok:
    s_setpc_b64 s[8:9]
LH_prep:
    v_lshlrev_b32 v1, 4, v0
    v_cmp_gt_u32 vcc, 32, v0
    v_and_b32 v200, 15, v0
    v_and_b32 v201, 1, v0
    s_lshl_b32 s47, {s(sQB)}, 1
    v_add_u32 v201, s47, v201
    s_add_u32 s61, s3, 8
    s_lshr_b32 s62, s3, 1
    s_lshl_b32 s62, s62, 2
    s_add_u32 s62, s62, 3
    v_cndmask_b32 v200, v201, v200, vcc
    v_mov_b32 v201, s3
    v_mov_b32 v202, s62
    v_cndmask_b32 v201, v201, v202, vcc
    v_cmp_gt_u32 vcc, 16, v0
    v_mov_b32 v202, s61
    v_lshrrev_b32 v203, 3, v200
    v_cndmask_b32 v201, v201, v202, vcc
    v_and_b32 v200, 7, v200
    v_lshlrev_b32 v200, 3, v200
    v_lshl_add_u32 v200, v203, 2, v200
    v_lshrrev_b32 v203, 2, v201
    v_add_u32 v200, v200, v203
    v_and_b32 v201, 3, v201
    v_lshl_add_u32 v200, v201, 6, v200
    v_lshlrev_b32 v251, 7, v200
    s_lshl_b32 s61, s44, 12
    s_add_u32 s47, s61, {L_ONES}
    s_add_u32 s61, s61, {L_EX}
    v_and_b32 v204, 11, v0
    v_cmp_eq_u32 vcc, 0, v204
    v_mov_b32 v204, {hx(ONES)}
    v_and_b32 v205, 0x1ff, v1
    v_cndmask_b32 v232, 0, v204, vcc
    v_add_u32 v231, s47, v205
    v_mov_b32 v233, v232
    v_mov_b64 v[234:235], v[232:233]
    v_mov_b32 v240, 1
    v_mov_b32 v247, {L_FLAG}
    v_mov_b64 v[236:237], -1
    v_mov_b64 v[238:239], -1
    s_lshl_b32 s47, s44, 10
    s_add_u32 s47, s47, {L_H}
    v_add_u32 v248, s47, v1
    v_lshrrev_b32 v207, 5, v0
    v_lshrrev_b32 v204, 3, v0
    v_and_b32 v205, 7, v0
    v_and_b32 v206, 2, v204
    v_lshlrev_b32 v206, 1, v206
    v_xor_b32 v205, v205, v206
    v_lshlrev_b32 v205, 4, v205
    v_lshl_add_u32 v242, v204, 10, v205
    s_lshl_b32 s47, s70, 7
    v_add_u32 v242, s47, v242
    v_add_u32 v243, 7168, v242
    v_and_b32 v205, 1, v0
    v_bfe_u32 v204, v0, 1, 1
    v_lshl_add_u32 v205, v205, 1, v204
    v_lshlrev_b32 v205, 3, v205
    v_bfe_u32 v204, v0, 4, 1
    v_lshl_add_u32 v205, v204, 5, v205
    v_bfe_u32 v206, v0, 2, 2
    v_lshl_add_u32 v204, v207, 2, v206
    v_lshl_add_u32 v205, v204, 7, v205
    v_bfe_u32 v204, v0, 3, 1
    v_xor_b32 v204, s45, v204
    v_lshl_add_u32 v205, v204, 6, v205
    v_add_u32 v244, s61, v205
    v_xor_b32 v245, 64, v244
    v_and_b32 v205, 3, v0
    v_lshl_add_u32 v246, v206, 6, v205
    v_lshlrev_b32 v246, 7, v246
    v_bfe_u32 v204, v0, 2, 1
    v_lshl_add_u32 v250, v205, 6, v204
    v_lshlrev_b32 v250, 7, v250
    v_and_b32 v204, 31, v0
    v_lshlrev_b32 v204, 10, v204
    v_lshl_add_u32 v249, v207, 4, v204
    v_mov_b64 v[224:225], 0
    v_mov_b64 v[226:227], 0
    """)
    for j in range(4):
        A(f's_xor_b32 s47, s44, {j}\ns_lshl_b32 s47, s47, 14\nv_add_u32 v{252+j}, s47, v1')
    A(f"""
    s_setpc_b64 s[8:9]
LH_prep2:
    ds_write_b128 v231, v[232:235]
    ds_write_b128 v231, v[232:235] offset:2048
    s_lshl_b32 s60, s44, 12
    s_add_u32 s60, s60, {L_EX}
    """)
    for j in range(4):
        A(mfma(D + 16 * j, 224, 224, None))
        A(f's_xor_b32 s47, s44, {j}\ns_lshl_b32 s47, s47, 12\ns_add_u32 s47, s47, {L_EX}\nv_add_u32 v{4+j}, s47, v1')
    A('s_waitcnt lgkmcnt(0)\nv_mov_b32 v2, v3\ns_setpc_b64 s[8:9]')

def gen_C(A, patterns):
    sDW, sXs, sIt, sF1, sF3, sOne = 48, 49, 50, 72, 73, 76
    A(f"""
L_C:
    v_mov_b64 v[64:65], 0
    v_mov_b64 v[66:67], 0
    """)
    A(patterns)
    A(f"""
    s_waitcnt lgkmcnt(0)
    s_lshl_b32 s47, s46, 9
    s_add_u32 s47, s47, {L_X}
    v_add_u32 v4, s47, v4
    v_mov_b32 v1, v4
    v_add_u32 v2, {2*WST}, v2
    v_add_u32 v3, {2*WST}, v3
    s_mov_b32 {s(sDW)}, {hx(-2*WST)}
    s_mov_b32 {s(sXs)}, 0
    s_mov_b32 {s(sIt)}, 0
    s_lshl_b32 s53, {s(sRB)}, 2
    s_lshl_b32 s47, s46, 1
    s_add_u32 s53, s53, s47
    s_and_b32 s47, {s(sCG)}, 7
    s_lshl_b32 s47, s47, 2
    s_lshl_b32 s61, s45, 1
    s_add_u32 s47, s47, s61
    s_lshl_b32 s47, s47, 6
    s_add_u32 s47, s47, s53
    s_cmp_lt_u32 {s(sCG)}, 8
    s_cselect_b32 s52, 10, 11
    s_cselect_b32 s61, {hx(QF)}, {hx(KV)}
    s_cselect_b32 s58, {hx(f2u(0.25*LOG2E))}, 1.0
    s_lshl_b32 s47, s47, s52
    s_add_u32 s62, s47, s61
    s_lshl_b32 s47, 1, s52
    s_add_u32 s64, s62, s47
    s_lshl_b32 s47, 64, s52
    s_add_u32 s63, s62, s47
    s_add_u32 s65, s64, s47
    s_mul_i32 s47, s45, {5*256}
    s_add_u32 s47, s47, {L_CS}
    v_lshl_add_u32 v60, v0, 2, s47
    s_lshl_b32 s47, s46, 9
    s_add_u32 s47, s47, {L_RS}
    v_and_b32 v61, 31, v0
    v_lshl_add_u32 v61, v61, 3, s47
    v_lshlrev_b32 v63, 4, v0
    v_and_b32 v72, 15, v0
    v_and_b32 v73, 16, v0
    v_cmp_eq_u32 vcc, 0, v73
    v_lshlrev_b32 v72, 4, v72
    v_add_u32 v72, {L_ONES-1024}, v72
    v_mov_b32 v73, {NT*2048}
    v_cndmask_b32 v72, v72, v63, vcc
    v_cndmask_b32 v73, 0, v73, vcc
    s_lshl_b32 s47, s44, 12
    s_add_u32 s47, s47, {L_ONES}
    v_add_u32 v74, s47, v63
    s_lshl_b32 s66, {s(sQB)}, 3
    s_lshl_b32 s47, s44, 1
    s_add_u32 s66, s66, s47
    s_lshl_b32 s66, s66, 5
    s_add_u32 s66, s66, {s(sHead)}
    s_lshl_b32 s66, s66, 10
    s_add_u32 s66, s66, {hx(OF)}
    s_mov_b32 s54, {hx(f2u(2.0**126))}
    s_mov_b32 s55, {hx(f2u(2.0**-112))}
    s_mov_b32 s56, {hx(f2u(2.0**120))}
    s_mov_b32 s57, 0
    """)
    acc = lambda T, i: 96 + (i * 2 + T) * 16
    for i in range(5):
        for T in range(2): A(mfma(acc(T, i), 64, 64, None))
    FB = lambda f: 8 + 20 * f
    Wf = lambda f, i: FB(f) + 4 * i
    Xf = lambda f, T: FB(f) + 12 + 4 * T
    def reads(f, q, withA):
        st, ks = (q >> 1) & 1, q & 1
        r = [f'ds_read_b128 {v(Xf(f,T),4)}, v1 offset:{T*128+(q&3)*32}' for T in range(2)]
        for u in range(2):
            for rd in range(2):
                r.append(f'ds_read_b64_tr_b16 {v(Wf(f,1+u)+2*rd,2)}, v2 offset:{st*WST+(4*ks+rd)*128+u*32}')
        if withA:
            for rd in range(2):
                r.append(f'ds_read_b64_tr_b16 {v(Wf(f,0)+2*rd,2)}, v3 offset:{st*WST+(4*ks+rd)*128}')
        return r
    def kloop(label, withA, adv, lim, tr0):
        for r in reads(0, 0, withA): A(r)
        A(label + ':')
        for q in range(4):
            f = q & 1
            rr = reads(f ^ 1, q + 1, withA)
            A('s_waitcnt lgkmcnt(0)')
            if q & 1: A('s_barrier')
            tiles = [(1, 1), (2, 2), (0, 0)] if withA else [(1, 3), (2, 4)]
            ms = [mfma(acc(T, ai), Wf(f, wi), Xf(f, T), acc(T, ai)) for (wi, ai) in tiles for T in range(2)]
            k = 0
            for m in range(len(ms)):
                A(ms[m])
                for _ in range(3):
                    if k < len(rr): A(rr[k]); k += 1
                if q == 2 and m == len(ms) - 1: A(adv)
                if q == 3 and m == len(ms) - 2: A(f's_add_u32 {s(sIt)}, {s(sIt)}, 1')
                if q == 3 and m == len(ms) - 1 and not STAMP: A(f's_cmp_lt_u32 {s(sIt)}, {lim}')
            assert k == len(rr)
        if STAMP:
            A(f'{TM} s[78:79]\ns_add_u32 m0, {s(sIt)}, {tr0}\ns_waitcnt lgkmcnt(0)\nv_writelane_b32 v79, s78, m0\ns_cmp_lt_u32 {s(sIt)}, {lim}')
        A(f's_cbranch_scc1 {label}')
    def vstore(T, u):
        a = acc(T, 1 + u)
        for hd in range(2):
            A(f'buffer_store_dwordx4 {v(a+8+4*hd,4)}, v63, {s(sWS,4)}, s{62+2*u+hd} offen offset:{1024+2048*T} sc1')
    def vpath():
        A(f"""
        s_mul_i32 s47, s44, {WST}
        s_add_u32 s47, s47, {2*WST+2*PAN}
        v_and_b32 v52, 31, v0
        v_lshlrev_b32 v52, 5, v52
        v_lshl_add_u32 v52, v7, 3, v52
        v_add_u32 v52, s47, v52
        v_lshlrev_b32 v53, 2, v5
        v_add_u32 v53, v53, v7
        v_lshl_add_u32 v53, v53, 2, v6
        v_lshlrev_b32 v53, 5, v53
        v_and_b32 v54, 3, v0
        v_lshl_add_u32 v53, v54, 3, v53
        v_add_u32 v53, s47, v53
        s_and_b32 s47, s3, 3
        s_lshl_b32 s47, s47, 2
        s_add_u32 s47, s47, s45
        s_lshl_b32 s47, s47, 7
        s_add_u32 s47, s47, s53
        s_lshl_b32 s47, s47, 11
        s_add_u32 s62, s47, {hx(KV)}
        s_add_u32 s63, s62, {4*64*2048}
        s_add_u32 s64, s62, {64*2048}
        s_add_u32 s65, s62, {5*64*2048}
        """)
        prev = None
        for T in range(2):
            for u in range(2):
                a = acc(T, 1 + u)
                for p in range(8):
                    A(f'v_pk_mul_f32 {v(a+2*p,2)}, {v(a+2*p,2)}, {v(84+8*T,2)} op_sel_hi:[1,0]')
                for p in range(8):
                    A(f'v_cvt_pk_bf16_f32 v{a+p}, v{a+2*p}, v{a+2*p+1}')
                if prev is not None and prev[0] == 0:
                    A('s_waitcnt lgkmcnt(0)')
                    vstore(*prev)
                for hd in range(2):
                    o = (u * 2 + hd) * 1024
                    A(f'ds_write_b64 v52, {v(a+4*hd,2)} offset:{o}')
                    A(f'ds_write_b64 v52, {v(a+4*hd+2,2)} offset:{o+16}')
                for hd in range(2):
                    o = (u * 2 + hd) * 1024
                    A(f'ds_read_b64_tr_b16 {v(a+8+4*hd,2)}, v53 offset:{o}')
                    A(f'ds_read_b64_tr_b16 {v(a+8+4*hd+2,2)}, v53 offset:{o+256}')
                prev = (T, u)
    stamp(A, 1)
    A('s_barrier')
    stamp(A, 2)
    kloop('LC_loopA', True, f"""
        v_add_u32 v2, {s(sDW)}, v2
        v_add_u32 v3, {s(sDW)}, v3
        s_add_u32 {s(sXs)}, {s(sXs)}, {XST}
        s_cmp_ge_u32 {s(sXs)}, {4*XST}
        s_cselect_b32 {s(sXs)}, 0, {s(sXs)}
        s_sub_u32 {s(sDW)}, 0, {s(sDW)}
        v_add_u32 v1, {s(sXs)}, v4
        """, '8', 15)
    A("""
    s_waitcnt lgkmcnt(0)
    ds_read_b64 v[68:69], v61
    ds_read_b64 v[70:71], v61 offset:256
    """)
    CO = lambda i: 8 + 4 * i
    for i in range(5): A(f'ds_read_b32 v{CO(i)}, v60 offset:{i*256}')
    for i in range(5): A(f'v_mov_b32 v{CO(i)+1}, 0\nv_mov_b64 {v(CO(i)+2,2)}, 0')
    A('v_mov_b32 v49, 0\nv_mov_b64 v[50:51], 0\ns_waitcnt lgkmcnt(5)\nv_mov_b32 v64, v68\nv_mov_b32 v48, v70')
    K0 = -2.0 * math.sqrt(2.0 / math.pi) * LOG2E
    K1c = K0 * 0.044715
    A('v_rcp_f32 v84, v69\nv_rcp_f32 v92, v71\ns_waitcnt lgkmcnt(0)')
    for i in range(5):
        for T in range(2): A(mfma(acc(T, i), CO(i), (64, 48)[T], acc(T, i)))
        if i == 0:
            for T in range(2):
                b = 80 + 8 * T
                A(f"""
                v_mul_f32 v{b+2}, v{69+2*T}, v{69+2*T}
                v_mul_f32 v{b+1}, {hx(f2u(K0))}, v{b+4}
                v_mul_f32 v{b+3}, s58, v{b+4}
                v_mul_f32 v{b}, v{b+4}, v{b+4}
                v_mul_f32 v{b}, v{b}, v{b+4}
                v_mul_f32 v{b}, {hx(f2u(K1c))}, v{b}
                """)
        if i in (1, 2, 3, 4):
            T, hd = divmod(i - 1, 2)
            a = acc(T, 0) + 8 * hd
            for j in range(8): A(f'v_mul_f32 v{a+j}, v{83+8*T}, v{a+j}')
            for p in range(4): A(f'v_cvt_pk_bf16_f32 v{a+p}, v{a+2*p}, v{a+2*p+1}')
            A(f'buffer_store_dwordx4 {v(a,4)}, v63, {s(sWS,4)}, s{62+2*T+hd} offen sc1')
    A(f"""
    s_cmp_eq_u32 s71, 3
    s_cbranch_scc0 LC_B
    """)
    vpath()
    A(f"""
LC_B:
    v_add_u32 v2, {2*WST}, v2
    v_add_u32 v1, {3*XST}, v4
    s_mov_b32 {s(sDW)}, {4*WST}
    s_mov_b32 {s(sXs)}, {3*XST}
    s_mov_b32 {s(sIt)}, 0
    s_cmp_eq_u32 s71, 3
    s_cselect_b32 s51, {F1A}, {F1N}
    v_subrev_u32 v3, {4*WST}, v2
    """)
    stamp(A, 3)
    kloop('LC_loopB', False, f"""
        s_sub_u32 {s(sDW)}, {s(sDW)}, {2*WST}
        s_cselect_b32 {s(sDW)}, {4*WST}, {s(sDW)}
        v_add_u32 v2, {s(sDW)}, v3
        s_sub_u32 {s(sXs)}, {s(sXs)}, {XST}
        s_cselect_b32 {s(sXs)}, {3*XST}, {s(sXs)}
        v_add_u32 v1, {s(sXs)}, v4
        """, 's51', 23)
    A(f"""
    s_cmp_eq_u32 s51, 8
    s_cbranch_scc1 LC_epi
    s_lshl_b32 s47, s71, 4
    s_add_u32 s47, s47, s51
    s_cmp_eq_u32 s47, {F1A+48}
    s_cbranch_scc0 LC_flag
    s_mov_b32 s51, {F1B}
    """)
    vstore(1, 0); vstore(1, 1)
    A(f"""
    s_branch LC_loopB
LC_flag:
    s_mov_b32 s51, 8
    s_waitcnt vmcnt(0)
    s_branch LC_loopB
LC_epi:
    s_lshl_b32 s47, s44, 10
    s_add_u32 s47, s47, {L_H}
    v_add_u32 v4, s47, v63
    v_mov_b32 v1, v63
    s_cmp_eq_u32 s71, 3
    s_cbranch_scc1 LC_g4
    """)
    stamp(A, 4)
    n = 0
    for pr in range(2):
        if pr == 1: A('LC_g4:\ns_nop 4')
        for T in range(2):
            b = 80 + 8 * T
            for u in range(2):
                a = acc(T, 1 + 2 * pr + u)
                t = 52
                for p in range(4): A(f'v_pk_mul_f32 {v(t+2*p,2)}, {v(a+2*p,2)}, {v(a+2*p,2)}')
                for p in range(4): A(f'v_pk_fma_f32 {v(t+2*p,2)}, {v(t+2*p,2)}, {v(b,2)}, {v(b,2)} op_sel:[0,0,1] op_sel_hi:[1,0,1]')
                for p in range(4): A(f'v_pk_mul_f32 {v(t+2*p,2)}, {v(t+2*p,2)}, {v(a+2*p,2)}')
                for j in range(8): A(f'v_exp_f32 v{t+j}, v{t+j}')
                for p in range(4): A(f'v_pk_mul_f32 {v(a+2*p,2)}, {v(a+2*p,2)}, {v(a+8+2*p,2)}')
                for p in range(4): A(f'v_pk_fma_f32 {v(t+2*p,2)}, {v(t+2*p,2)}, {v(b+2,2)}, {v(b+2,2)} op_sel:[0,0,0] op_sel_hi:[1,0,0]')
                for j in range(8): A(f'v_rcp_f32 v{t+j}, v{t+j}')
                for p in range(4): A(f'v_pk_mul_f32 {v(a+2*p,2)}, {v(a+2*p,2)}, {v(t+2*p,2)}')
                for p in range(4): A(f'v_cvt_pk_bf16_f32 v{a+8+p}, v{a+2*p}, v{a+2*p+1}')
                A(f'ds_write_b128 v4, {v(a+8,4)} offset:{n*4096}')
                n += 1
    QA, QB, CA, CB, OA, OB, SA, SB, PA, PB = 8, 12, 16, 32, 48, 64, 80, 96, 112, 120
    KF = lambda b: 128 + 4 * b
    VF = lambda j: 136 + 4 * j
    A('LC_att:')
    if STAMP: A('v_mov_b32 v144, v79')
    stamp(A, 5)
    A('s_waitcnt lgkmcnt(0)')
    stamp(A, 6)
    A('s_barrier')
    stamp(A, 7)
    A(f"""
    ds_read_b128 {v(QA,4)}, v74 offset:512
    ds_read_b128 {v(KF(0),4)}, v1
    ds_read_b128 {v(KF(1),4)}, v1 offset:2048
    ds_read_b128 {v(QB,4)}, v74 offset:2560
    v_mov_b32 v2, v1
    v_mov_b32 v3, v72
    v_mov_b32 v4, v73
    s_mov_b32 {s(sIt)}, 0
    s_mov_b32 s51, 1
    """)
    for j in range(0, 8, 2): A(f'v_mov_b64 {v(VF(0)+j,2)}, 0')
    for j in range(0, 8, 2): A(f'v_mov_b64 {v(PB+j,2)}, 0')
    A('s_waitcnt lgkmcnt(2)')
    A(mfma(SA, KF(0), QA, None))
    A('s_waitcnt lgkmcnt(1)')
    A(mfma(OA, KF(1), QA, None))
    A('s_waitcnt lgkmcnt(0)')
    A(mfma(SB, KF(0), QB, None))
    A(mfma(OB, KF(1), QB, None))
    A('s_nop 6')
    for (S, O, C) in ((SA, OA, CA), (SB, OB, CB)):
        A(f'v_max3_f32 v{C}, v{S}, v{S+1}, v{S+2}')
        for j in range(3, 15, 2): A(f'v_max3_f32 v{C}, v{C}, v{S+j}, v{S+j+1}')
        A(f'v_max3_f32 v{C}, v{C}, v{S+15}, v{O}')
        for j in range(1, 15, 2): A(f'v_max3_f32 v{C}, v{C}, v{O+j}, v{O+j+1}')
        A(f'v_max_f32 v{C}, v{C}, v{O+15}')
        A(f'v_mov_b32 v{C+1}, v{C}')
        A(f'v_mov_b64 {v(O,2)}, 0\nv_mov_b64 {v(O+2,2)}, 0')
        A(f'v_permlane32_swap_b32 v{C}, v{C+1}')
        A(f'v_max_f32 v{C}, v{C}, v{C+1}')
        A(f'v_sub_f32 v{C}, {hx(f2u(-BIAS))}, v{C}')
        A(f'v_mov_b32 v{C+1}, v{C}')
        for j in range(2, 16, 2): A(f'v_mov_b64 {v(C+j,2)}, {v(C,2)}')
        for j in range(4, 10, 2): A(f'v_mov_b64 {v(O+j,2)}, 0')
        if S == SA: A(mfma(SA, KF(0), QA, CA))
    stamp(A, 8)
    if 'clk' in EXP: stamp(A, 9, True)
    E = lambda S, j: A(f'v_exp_f32 v{S+j}, v{S+j}')
    Cv = lambda S, P, p: A(f'v_cvt_pk_bf16_f32 v{P+p}, v{S+2*p}, v{S+2*p+1}')
    ORD = {'even': 'm0 e0 e1 e2 e3 e4 c0 c1 m1 e5 e6 c2 e7 e8 c3 e9 e10 c4 m2 e11 e12 c5 e13 e14 e15 c6 c7',
           'tight': 'm0 e0 e1 e2 m1 e3 e4 e5 m2 c0 c1 c2 e6 e7 e8 c3 e9 e10 c4 e11 e12 c5 e13 e14 e15 c6 c7',
           'mid': 'm0 e0 e1 e2 c0 m1 e3 e4 e5 c1 m2 c2 e6 e7 e8 c3 e9 e10 c4 e11 e12 c5 e13 e14 e15 c6 c7',
           'two': 'm0 e0 e1 e2 m1 e3 e4 e5 c0 c1 e6 e7 c2 e8 e9 c3 m2 e10 c4 e11 e12 c5 e13 e14 e15 c6 c7'}[os.environ.get('ORD', 'tight')].split()
    def phase(S, P, *m):
        for t in ORD:
            if t[0] == 'm':
                mm = m[int(t[1])]
                if ('nopv' in EXP and t[1] != '0') or ('noqk' in EXP and t[1] == '0'): mm = 's_nop 0\ns_nop 0\n' + '\n'.join(mm.split('\n')[1:])
                A(mm)
            elif t[0] == 'e' and 'noexp' in EXP: A('s_nop 1')
            elif t[0] == 'e': E(S, int(t[1:]))
            else: Cv(S, P, int(t[1:]))
    if os.environ.get('CPRIO'): A('s_setprio ' + os.environ['CPRIO'])
    A('s_nop 0\n.p2align 3\nLA_loop:')
    for t in range(NT):
        kb = t & 1
        o = t * 2048
        phase(SA, PA,
              mfma(SB, KF(kb), QB, CB) + f'\nds_read_b128 {v(KF(kb),4)}, v2 offset:{o+4096}',
              mfma(OB, VF(0), PB, OB) + f'\nds_read_b128 {v(VF(0),4)}, v3 offset:{o+1024}',
              mfma(OB, VF(1), PB + 4, OB) + f'\nds_read_b128 {v(VF(1),4)}, v3 offset:{o+1280}')
        tail = ''
        if t == NT - 2: tail = f'\ns_add_u32 {s(sIt)}, {s(sIt)}, 1'
        if t == NT - 1: tail = f'\ns_cmp_lt_u32 {s(sIt)}, s51\nv_add_u32 v2, {NT*2048}, v2\nv_add_u32 v3, v4, v3'
        phase(SB, PB,
              mfma(SA, KF(kb ^ 1), QA, CA) + '\ns_waitcnt lgkmcnt(1)',
              mfma(OA, VF(0), PA, OA) + '\ns_waitcnt lgkmcnt(0)',
              mfma(OA, VF(1), PA + 4, OA) + tail)
    if STAMP and 'atr' in EXP:
        A(f's_memtime s[78:79]\ns_add_u32 m0, {s(sIt)}, 15\ns_waitcnt lgkmcnt(0)\nv_writelane_b32 v144, s78, m0\ns_cmp_lt_u32 {s(sIt)}, s51')
    A(f'''
    s_cbranch_scc1 LA_loop
    s_cmp_eq_u32 s51, {64//NT}
    s_cbranch_scc1 LA_fini
    s_cmp_eq_u32 s51, 1
    s_cselect_b32 s51, {(2*NK1-2)//NT}, {64//NT}
    s_cselect_b32 s47, 4, 0
    s_add_u32 s47, s47, {L_FLAG}
    v_mov_b32 v5, s47
    s_mov_b32 s47, 0
LA_kvw:
    ds_read_b32 v6, v5 offset:8
    s_add_u32 s47, s47, 1
    s_waitcnt lgkmcnt(0)
    v_cmp_ne_u32 vcc, 4, v6
    s_cbranch_vccz LA_loop
    s_cmp_lt_u32 s47, {SPIN * 16}
    s_cbranch_scc1 LA_kvw
    s_branch LA_loop
LA_fini:''')
    A(mfma(OB, VF(0), PB, OB))
    A(mfma(OB, VF(1), PB + 4, OB))
    stamp(A, 11)
    if 'clk' in EXP:
        stamp(A, 10, True)
        A('s_sub_u32 s90, s90, s89\ns_add_u32 s90, s90, s80\ns_mov_b32 s89, 0')
    A('LA_fin:')
    A(f'v_add_f32 v{SA}, |v{OA}|, |v{OA+1}|')
    for j in range(2, 8): A(f'v_add_f32 v{SA}, v{SA}, |v{OA+j}|')
    A(f'''
    v_cmp_gt_f32 vcc, s54, v{SA}
    v_cmp_lt_f32 s[58:59], s55, v{SA}
    v_cmp_gt_f32 s[60:61], s56, v{OA+8}
    s_and_b64 vcc, vcc, s[58:59]
    s_and_b64 vcc, vcc, s[60:61]
    s_cmp_eq_u64 vcc, -1
    s_cbranch_scc0 LA_fallback
LA_norm:
    v_rcp_f32 v{OA+8}, v{OA+8}
    s_nop 0
    ''')
    for j in range(8): A(f'v_mul_f32 v{OA+j}, v{OA+j}, v{OA+8}')
    for p in range(4): A(f'v_cvt_pk_bf16_f32 v{PA+p}, v{OA+2*p}, v{OA+2*p+1}')
    A(f'''
    v_min_u32 v{PA}, -2, v{PA}
    buffer_store_dwordx4 {v(PA,4)}, v1, {s(sWS,4)}, s66 offen sc1
    s_cmp_eq_u32 s57, 1
    s_cbranch_scc1 LA_done
    s_mov_b32 s57, 1
    s_add_u32 s66, s66, 0x8000
    ''')
    for j in range(0, 10, 2): A(f'v_mov_b64 {v(OA+j,2)}, {v(OB+j,2)}')
    for j in range(0, 4, 2): A(f'v_mov_b64 {v(QA+j,2)}, {v(QB+j,2)}')
    A('s_branch LA_fin\nLA_done:')
    stamp(A, 12)
    stamp_end(A, sWS, sW, tr=144)
    A('s_endpgm')
    A(f'''
LA_fallback:
    v_mov_b32 v{CA}, 0xff800000
    v_mov_b32 v2, v1
    s_mov_b32 {s(sIt)}, 0
LA_fb1:
    ds_read_b128 {v(KF(0),4)}, v2
    v_add_u32 v2, 0x800, v2
    s_waitcnt lgkmcnt(0)
    ''')
    A(mfma(SA, KF(0), QA, None))
    A('s_nop 11')
    for j in range(0, 16, 2): A(f'v_max3_f32 v{CA}, v{CA}, v{SA+j}, v{SA+j+1}')
    A(f'''
    s_add_u32 {s(sIt)}, {s(sIt)}, 1
    s_cmp_lt_u32 {s(sIt)}, 64
    s_cbranch_scc1 LA_fb1
    v_mov_b32 v{CA+1}, v{CA}
    v_cmp_eq_u32 vcc, 0, v4
    v_lshrrev_b32 v6, {NT.bit_length()-1}, v4
    v_permlane32_swap_b32 v{CA}, v{CA+1}
    v_max_f32 v{CA}, v{CA}, v{CA+1}
    v_sub_f32 v{CA}, 0, v{CA}
    v_cndmask_b32 v3, v1, v3, vcc
    ''')
    for j in range(1, 16): A(f'v_mov_b32 v{CA+j}, v{CA}')
    for j in range(0, 16, 2): A(f'v_mov_b64 {v(OA+j,2)}, 0')
    A(f'''
    v_mov_b32 v2, v1
    s_mov_b32 {s(sIt)}, 0
LA_fb2:
    ds_read_b128 {v(KF(0),4)}, v2
    ds_read_b128 {v(VF(0),4)}, v3 offset:1024
    ds_read_b128 {v(VF(1),4)}, v3 offset:1280
    v_add_u32 v2, 0x800, v2
    v_add_u32 v3, v6, v3
    s_waitcnt lgkmcnt(0)
    ''')
    A(mfma(SA, KF(0), QA, CA))
    A('s_nop 11')
    for j in range(16): E(SA, j)
    A('s_nop 0')
    for p in range(8): Cv(SA, PA, p)
    A('s_nop 1')
    A(mfma(OA, VF(0), PA, OA)); A(mfma(OA, VF(1), PA + 4, OA))
    A(f'''
    s_add_u32 {s(sIt)}, {s(sIt)}, 1
    s_cmp_lt_u32 {s(sIt)}, 64
    s_cbranch_scc1 LA_fb2
    s_nop 11
    s_branch LA_norm
    ''')

def main(out):
    A = Asm()
    top = f'''; out = x + (MHA(LN x) @ wo) * silu(GEGLU-FFN(LN x)); one persistent launch, 256 workgroups (generated by gen/gen5.py)
; @launch grid=(256,1,1) block=(512,1,1) lds={LDS_BYTES}
.amdgcn_target "amdgcn-amd-amdhsa--gfx950"
.text
'''
    gen(A)
    tail = f'''.section .rodata,"a"
.p2align 6
.amdhsa_kernel {NAME}_kernel
  .amdhsa_next_free_vgpr 256
  .amdhsa_next_free_sgpr 100
  .amdhsa_accum_offset 256
  .amdhsa_group_segment_fixed_size 0
  .amdhsa_kernarg_size 80
  .amdhsa_user_sgpr_count 2
  .amdhsa_user_sgpr_kernarg_segment_ptr 1
  .amdhsa_system_sgpr_workgroup_id_x 1
.end_amdhsa_kernel
'''
    open(out, 'w').write(top + A.text() + tail)

if __name__ == '__main__':
    main(sys.argv[1] if len(sys.argv) > 1 else 'cdna_kernels/%s.s' % NAME)
```

```python
import struct, sys, math, os

NAME = 'recurrent_scan__mha_block__glu_gated_geglu__prompt'
def f2u(x): return struct.unpack('<I', struct.pack('<f', x))[0]
def hx(x): return '0x%x' % (x & 0xffffffff)
class Asm:
    def __init__(self): self.l = []
    def __call__(self, s):
        for line in s.split('\n'):
            line = line.strip()
            if not line: continue
            self.l.append(line if line.endswith(':') or line.startswith('.') else '    ' + line)
    def text(self): return '\n'.join(self.l) + '\n'
def v(a, n=1): return 'v%d' % a if n == 1 else 'v[%d:%d]' % (a, a + n - 1)
def s(a, n=1): return 's%d' % a if n == 1 else 's[%d:%d]' % (a, a + n - 1)
def mfma(d, a, b, c):
    return 'v_mfma_f32_32x32x16_bf16 %s, %s, %s, %s' % (v(d, 16), v(a, 4), v(b, 4), '0' if c is None else v(c, 16))

QF  = 0x000000
KV  = 0x200000
HF  = 0x600000
OF  = 0xD00000
CSP = 0x1200000
RSP = 0x1280000
FL  = 0x13C0000
FH  = 0x13C8000
NW  = 0x13D0000
STB = 0x1400000
WS_BYTES = 0x1500000
LOG2E = 1.4426950408889634
ONES = 0x3f803f80
SPIN = 1 << 18

LIGHT = os.environ.get('STAMP') == '2'
STAMP = os.environ.get('STAMP') == '1'
EXP = set(os.environ.get('EXP', '').split(','))
BIAS = float(os.environ.get('BIAS', '100'))
NFL = int(os.environ.get('NFL', '4'))

TM = 's_memrealtime' if os.environ.get('RT') else 's_memtime'
_seen = set()
def stamp(A, idx, real=False):
    if 'frozen' in EXP and idx in (5, 6, 7, 8, 9, 10, 11, 12) and not any('L_C:' == x for x in A.l): return
    if not STAMP and not (LIGHT and idx in (0, 13, 14, 15)): return
    if 'e1' in EXP and A.l and any('L_C:' == x for x in A.l):
        if idx in _seen: return
        _seen.add(idx)
    A('%s s[78:79]\ns_waitcnt lgkmcnt(0)\ns_mov_b32 s%d, s78' % ('s_memrealtime' if real or os.environ.get('RT') else 's_memtime', 80 + idx))
AMP = os.environ.get('AMP')
def amp(A, name):
    if AMP == name: A('s_memrealtime s[78:79]\ns_waitcnt lgkmcnt(0)\ns_mov_b32 s97, s78')
def stamp_begin(A):
    if AMP: A('s_memrealtime s[78:79]\ns_waitcnt lgkmcnt(0)\ns_mov_b32 s96, s78\ns_mov_b32 s97, s78')
    if not STAMP and not LIGHT: return
    for i in range(16): A('s_mov_b32 s%d, 0' % (80 + i))
    stamp(A, 14, True); stamp(A, 0)
def stamp_end(A, sWS, sW, vt=3, tr=None):
    if not STAMP and not (LIGHT and tr is None): return
    A('s_waitcnt vmcnt(0)')
    stamp(A, 13); stamp(A, 15, True)
    A('s_nop 4')
    if tr is not None: A('v_mov_b32 v%d, v%d' % (vt, tr))
    for i in range(16): A('v_writelane_b32 v%d, s%d, %d' % (vt, 80 + i, i))
    A('''s_lshl_b32 s78, s2, 3
    s_add_u32 s78, s78, s%d
    s_lshl_b32 s78, s78, 7
    s_add_u32 s78, s78, %s
    v_lshlrev_b32 v%d, 2, v0
    s_mov_b64 exec, 0xffffffff
    buffer_store_dword v%d, v%d, s[%d:%d], s78 offen''' % (sW, hx(STB), vt + 1, vt, vt + 1, sWS, sWS + 3))

PAN, APAN = 4224, 4352
WST = 2 * PAN + APAN
XST = 16 * 1040
L_X = 6 * WST
L_CS = L_X + 4 * XST
L_RS = L_CS + 10 * 256
L_ONES = 131072
L_EX = L_ONES + 7 * 2048 + 1536
assert L_RS + 1024 <= L_EX
L_H = 98304
L_FLAG = L_EX + 16384
L_NON = L_FLAG + 4
LDS_BYTES = L_FLAG + 64
assert LDS_BYTES <= 163840
NT = 8
F1N, F1B = [int(t) for t in os.environ.get('F1IT', '2,3').split(',')]
NK1 = int(os.environ.get('NK1', '16'))

sX, sA, sH0, sH1, sWS, sPK, sDBG = 16, 20, 24, 28, 32, 36, 12
sP0, sP1 = 36, 12
sRB, sCG, sW, sHead, sQB = 40, 41, 42, 74, 75

def flag_store(A, soff, vt):
    A(f'''
    s_mov_b64 exec, 1
    buffer_store_dword v{vt}, off, {s(sWS,4)}, {soff} sc1
    s_mov_b64 exec, -1
    ''')

def gen(A):
    K = NAME + '_kernel'
    A(f'.globl {K}\n.p2align 8\n.type {K},@function\n{K}:')
    A('''
    s_cmp_ge_u32 s2, 256
    s_cbranch_scc1 L_end
    ''')
    stamp_begin(A)
    A(f'''
    v_lshrrev_b32 v1, 6, v0
    s_getpc_b64 s[4:5]
L_pc:
    v_readfirstlane_b32 {s(sW)}, v1
    s_and_b32 s47, s2, 0xf8
    s_load_dwordx2 {s(sX,2)}, s[0:1], 0
    s_add_u32 s47, s47, {s(sW)}
    s_lshl_b32 s47, s47, 6
    s_load_dword s6, s[4:5], s47
    s_add_u32 s47, s47, 0x4000
    s_min_u32 s47, s47, L_code_end-L_pc-4
    s_load_dword s7, s[4:5], s47
    s_load_dwordx2 {s(sA,2)}, s[0:1], 8
    s_load_dwordx2 {s(sH0,2)}, s[0:1], 32
    s_load_dwordx2 {s(sH1,2)}, s[0:1], 40
    s_load_dwordx2 {s(sWS,2)}, s[0:1], 72
    v_and_b32 v0, 63, v0
    s_and_b32 s3, s2, 7
    s_lshr_b32 s43, s2, 3
    s_lshr_b32 {s(sRB)}, s3, 2
    s_lshl_b32 {s(sRB)}, {s(sRB)}, 3
    s_and_b32 s70, s43, 7
    s_add_u32 {s(sRB)}, {s(sRB)}, s70
    s_and_b32 {s(sCG)}, s3, 3
    s_lshl_b32 {s(sCG)}, {s(sCG)}, 2
    s_lshr_b32 s71, s43, 3
    s_add_u32 {s(sCG)}, {s(sCG)}, s71
    s_and_b32 s44, {s(sW)}, 3
    s_lshr_b32 s45, s44, 1
    s_and_b32 s46, s44, 1
    s_mov_b32 {s(sWS+2)}, {hx(WS_BYTES)}
    s_mov_b32 {s(sWS+3)}, 0x20000
    s_mov_b32 {s(sX+2)}, 2097152
    s_mov_b32 {s(sX+3)}, 0x20000
    s_mov_b32 {s(sA+2)}, 1572864
    s_mov_b32 {s(sA+3)}, 0x20000
    s_lshl_b32 {s(sHead)}, s3, 2
    s_add_u32 {s(sHead)}, {s(sHead)}, s71
    s_mov_b32 {s(sQB)}, s70
    ''')
    patterns = f'''
    v_bfe_u32 v5, v0, 4, 1
    v_bfe_u32 v6, v0, 2, 2
    v_lshrrev_b32 v7, 5, v0
    v_and_b32 v1, 3, v0
    v_lshlrev_b32 v1, 3, v1
    v_lshl_add_u32 v1, v7, 8, v1
    v_mul_u32_u24 v2, {PAN}, v5
    v_mul_u32_u24 v8, 1056, v6
    v_add3_u32 v2, v2, v8, v1
    v_mul_u32_u24 v8, 1088, v6
    v_lshl_add_u32 v3, v5, 5, v8
    v_add_u32 v3, v3, v1
    v_and_b32 v8, 15, v0
    v_mul_u32_u24 v8, 1040, v8
    v_lshl_add_u32 v4, v5, 8, v8
    v_lshl_add_u32 v4, v7, 4, v4
    s_lshl_b32 s47, s45, 6
    v_add_u32 v2, s47, v2
    s_add_u32 s47, s47, {2*PAN}
    v_add_u32 v3, s47, v3
    '''
    A(f'''
    s_and_b32 s47, {s(sW)}, 6
    s_cmp_eq_u32 s47, 4
    s_cbranch_scc1 L_L
    ''')
    if 'tlb' in EXP:
        A(f'''
        s_load_dwordx2 s[8:9], s[0:1], 16
        s_load_dwordx4 s[12:15], s[0:1], 48
        s_lshl_b32 s47, {s(sW)}, 21
        s_add_u32 s48, s47, {hx(0x400000)}
        s_waitcnt lgkmcnt(0)
        s_load_dword s6, {s(sA,2)}, 0
        s_load_dword s6, {s(sH0,2)}, 0
        s_load_dword s6, {s(sH1,2)}, 0
        s_load_dword s6, {s(sWS,2)}, s47
        s_load_dword s6, {s(sWS,2)}, s48
        s_load_dword s6, s[8:9], 0
        s_load_dword s6, s[12:13], 0
        s_load_dword s6, s[14:15], 0
        ''')
    A(f'''
    s_cmp_lt_u32 {s(sW)}, 4
    s_cbranch_scc1 L_C
    s_branch L_M
L_L:
    ''')
    gen_H(A, patterns)
    gen_C(A, patterns)
    A('L_end:\ns_endpgm\nL_code_end:')

def gen_H(A, patterns):
    sStrH, sColH = 48, 49
    sRowA, sRowH, sMH, sMA, sMX, sXo, sRot, sG = 50, 51, 52, 53, 54, 55, 59, 60
    ROTM = int(os.environ.get('ROTM', '7'))
    sStr, sRowP, sRowA, sRowB, sMA, sMB, sMX, sXo, sRot, sGA, sGB, sJ = 48, 49, 50, 51, 52, 53, 54, 55, 59, 60, 56, 57
    A(f"""
    v_lshrrev_b32 v8, 3, v0
    v_and_b32 v9, 7, v0
    v_lshlrev_b32 v9, 4, v9
    v_and_b32 v13, 4, v8
    v_bfe_u32 v14, v8, 1, 1
    v_and_b32 v15, 1, v8
    v_lshl_add_u32 v14, v15, 1, v14
    v_add_u32 v13, v13, v14
    v_lshl_add_u32 v13, v13, 14, v9
    s_lshl_b32 s47, {s(sRB)}, 17
    s_lshl_b32 s61, s46, 12
    s_add_u32 s47, s47, s61
    v_add_u32 v13, s47, v13
    s_lshl_b32 s62, s71, 1
    s_add_u32 {s(sRot)}, s70, s62
    s_and_b32 s47, s3, 1
    s_add_u32 {s(sRot)}, {s(sRot)}, s47
    s_and_b32 {s(sRot)}, {s(sRot)}, 7
    s_lshl_b32 {s(sXo)}, {s(sRot)}, 7
    s_lshl_b32 {s(sRot)}, {s(sRot)}, 1
    s_mul_i32 s58, s46, 4160
    s_add_u32 s58, s58, {L_X}
    s_mov_b32 {s(sMX)}, s58
    s_mov_b32 {s(sJ)}, 0
    s_and_b32 s64, s3, 3
    s_mul_i32 s65, s64, 7
    s_add_u32 s65, s65, s62
    s_lshl_b32 s65, s65, 7
    s_add_u32 s66, s65, 128
    s_lshl_b32 s64, s64, 8
    s_add_u32 s64, s64, 2048
    s_cmp_lt_u32 s71, 3
    s_mov_b32 {s(sP0+2)}, 1572864
    s_cmov_b32 {s(sP0+2)}, 1835008
    s_mov_b32 {s(sP1+2)}, {1572864-128}
    s_cmov_b32 {s(sP1+2)}, 1835008
    s_mov_b32 {s(sP0+3)}, 0x20000
    s_mov_b32 {s(sP1+3)}, 0x20000
    s_movk_i32 {s(sStr)}, 3072
    s_cmovk_i32 {s(sStr)}, 3584
    s_cselect_b32 s64, s65, s64
    s_cselect_b32 s65, s66, s65
    s_lshl_b32 s47, s46, 1
    v_lshl_add_u32 v10, v8, 2, s47
    v_mul_u32_u24 v11, 3072, v10
    s_lshl_b32 s47, {s(sCG)}, 7
    v_add3_u32 v11, v11, v9, s47
    v_mul_lo_u32 v18, v10, {s(sStr)}
    v_add3_u32 v18, v18, v9, s64
    v_add_u32 v19, {s(sStr)}, v18
    s_lshl_b32 {s(sStr)}, {s(sStr)}, 5
    s_mul_i32 {s(sRowA)}, {s(sRot)}, {32*3072}
    s_mul_i32 {s(sRowP)}, {s(sRot)}, {s(sStr)}
    s_mul_i32 {s(sMA)}, s46, 2112
    s_add_u32 {s(sMA)}, {s(sMA)}, {2*WST}
    s_lshl_b32 s69, s46, 6
    s_mov_b32 {s(sGA)}, 0
    s_waitcnt lgkmcnt(0)
    """)
    sel = f"""
    s_add_u32 s62, {s(sA)}, 128
    s_addc_u32 s63, {s(sA+1)}, 0
    s_cmp_lt_u32 s71, 3
    s_cselect_b64 {s(sP0,2)}, {s(sH0,2)}, {s(sA,2)}
    s_cselect_b64 {s(sP1,2)}, {s(sH1,2)}, s[62:63]
    """
    setup2 = f"""
    s_mov_b32 {s(sH0+2)}, 1835008
    s_mov_b32 {s(sH1+2)}, 1835008
    s_mov_b32 {s(sH0+3)}, 0x20000
    s_mov_b32 {s(sH1+3)}, 0x20000
    v_mul_u32_u24 v16, 3584, v10
    v_add3_u32 v16, v16, v9, s65
    v_add_u32 v17, 3584, v16
    s_add_u32 s47, {s(sRot)}, 14
    s_and_b32 s47, s47, 15
    s_mul_i32 {s(sRowB)}, s47, {32*3584}
    s_mul_i32 {s(sMB)}, s46, 2112
    s_add_u32 {s(sMB)}, {s(sMB)}, {4*WST}
    s_mov_b32 {s(sGB)}, 0
    """
    ops = []
    def call(tag):
        name = {'X': 'LL_X', 'A': 'LL_A', 'B': 'LL_B', 'p': 'LH_pp'}[tag[0]]
        A(f's_call_b64 s[8:9], {name}')
        ops.extend([tag] * {'LL_X': 4, 'LL_A': 6, 'LL_B': 4, 'LH_pp': 4}[name])
    def bar(*need):
        if need:
            assert all(t in ops for t in need), need
            last = max(i for i, t in enumerate(ops) if t in need)
            if len(ops) - 1 - last < 64: A(f's_waitcnt vmcnt({len(ops) - 1 - last})')
        A('s_barrier')
    def bodyX():
        ld = [(f's_add_u32 m0, {s(sMX)}, {16*i}', f'buffer_load_dwordx4 v13, {s(sX,4)}, {s(sXo)} offen offset:{1024*i} lds') for i in range(4)]
        pre = [f's_add_u32 {s(sJ)}, {s(sJ)}, 1', f's_lshr_b32 s67, {s(sJ)}, 1', 's_sub_u32 s68, 11, s67',
               f's_cmp_lt_u32 {s(sJ)}, 16\ns_cselect_b32 s67, s67, s68']
        post = ['s_and_b32 s68, s67, 3\ns_lshl_b32 s68, s68, 1', f's_and_b32 s62, {s(sJ)}, 1\ns_add_u32 s68, s68, s62',
                f's_mul_i32 s68, s68, {XST//2}\ns_add_u32 {s(sMX)}, s68, s58\ns_lshl_b32 s67, s67, 1',
                f's_add_u32 s67, s67, {s(sRot)}\ns_and_b32 s67, s67, 15\ns_lshl_b32 s67, s67, 6\ns_lshl_b32 s62, s62, 13\ns_add_u32 {s(sXo)}, s67, s62']
        return ld, pre, post
    def bodyA():
        ld = [(f's_add_u32 m0, {s(sMA)}, {hf*PAN+1056*bb}', f'buffer_load_dwordx4 v{18+bb}, {s(sP0 if hf == 0 else sP1,4)}, {s(sRowP)} offen lds')
              for hf in range(2) for bb in range(2)]
        ld += [(f's_add_u32 m0, s61, {2*PAN+(1088-3072)*bb}', f'buffer_load_dwordx4 v11, {s(sA,4)}, {s(sRowA)} offen offset:{3072*bb} lds') for bb in range(2)]
        pre = [f's_add_u32 {s(sGA)}, {s(sGA)}, 1', f's_add_u32 s47, {s(sGA)}, {s(sRot)}', 's_and_b32 s47, s47, 15', f's_add_u32 s61, {s(sMA)}, s69',
               f's_mul_i32 {s(sRowP)}, s47, {s(sStr)}\ns_add_u32 {s(sMA)}, {s(sMA)}, {WST}',
               f's_cmp_ge_u32 {s(sMA)}, {4*WST}\ns_cselect_b32 s63, {4*WST}, 0\ns_sub_u32 {s(sMA)}, {s(sMA)}, s63']
        post = [f's_mul_i32 {s(sRowA)}, s47, {32*3072}']
        return ld, pre, post
    def bodyB():
        ld = [(f's_add_u32 m0, {s(sMB)}, {hf*PAN+1056*bb}', f'buffer_load_dwordx4 v{16+bb}, {s(sH0 if hf == 0 else sH1,4)}, {s(sRowB)} offen lds')
              for hf in range(2) for bb in range(2)]
        pre = [f's_add_u32 {s(sGB)}, {s(sGB)}, 1', f's_xor_b32 s47, {s(sGB)}, 14', f's_add_u32 s47, s47, {s(sRot)}\ns_and_b32 s47, s47, 15',
               f's_bitcmp1_b32 {s(sGB)}, 0\ns_mov_b32 s63, {3*WST}\ns_cmov_b32 s63, {WST}\ns_add_u32 {s(sMB)}, {s(sMB)}, s63\ns_cmp_ge_u32 {s(sMB)}, {6*WST}\ns_cselect_b32 s63, {6*WST}, 0\ns_sub_u32 {s(sMB)}, {s(sMB)}, s63']
        post = [f's_mul_i32 {s(sRowB)}, s47, {32*3584}']
        return ld, pre, post
    def emit(*bodies):
        carry = []
        for ld, pre, post in bodies:
            for i, (m, l) in enumerate(ld):
                A(m); A(pre[i])
                if carry: A(carry.pop(0))
                A(l)
            for t in carry: A(t)
            carry = list(post)
        for t in carry: A(t)
    if 'st0' in EXP: stamp(A, 9)
    call('X0'); A(sel)
    if 'st0' in EXP: stamp(A, 10)
    call('X1')
    if 'st0' in EXP: stamp(A, 7)
    call('A0')
    if 'st0' in EXP: stamp(A, 6)
    call('A1')
    if 'st0' in EXP: stamp(A, 11)
    A('s_branch LL_go\nLL_X:')
    emit(bodyX())
    A('s_setpc_b64 s[8:9]\nLL_A:')
    emit(bodyA())
    A('s_setpc_b64 s[8:9]\nLL_go:')
    A(setup2)
    A('s_call_b64 s[8:9], LH_prep')
    if 'st0' in EXP:
        stamp(A, 12); A('s_waitcnt vmcnt(12)'); stamp(A, 8); A('s_waitcnt vmcnt(6)'); stamp(A, 5); EXP.add('frozen')
    def need(c):
        n = [f'A{c}' if c < 16 else f'B{c-16}']
        if c % 2 == 0 and c < 16: n += [f'X{c}', f'X{c+1}']
        if c % 2 == 0 and c >= 24: n += [f'X{c-8}', f'X{c-7}']
        if c == 2: n += ['B0', 'B1']
        return n
    def dist(c):
        return len(ops) - 1 - max(i for i, t in enumerate(ops) if t in need(c))
    def loop(label, c0, c1, second, cnt, lim):
        A(f's_waitcnt vmcnt({dist(c0)})\n{label}:\ns_barrier')
        emit(bodyX(), second())
        w = 63
        for c in range(c0, c1 + 1):
            ops.extend([f'X{c+4 if c < 16 else c-2}'] * 4 + ([f'A{c+3}'] * 6 if c < 16 else [f'B{c-11}'] * 4))
            if c < c1: w = min(w, dist(c + 1))
        A(f's_cmp_lt_u32 {cnt}, {lim}\ns_waitcnt vmcnt({w})\ns_cbranch_scc1 {label}')
    sched = {0: 'X2,X3,B0,B1', 1: 'A2,A3,X4,X5,A4', 12: 'A15', 13: 'B2', 14: 'B3', 15: 'B4', 16: 'B5', 17: 'B6', 26: 'B15'}
    if os.environ.get('LS0'): sched[0], sched[1] = os.environ['LS0'].split('/')
    c = 0
    while c < 32:
        if c == 2:
            loop('LL_loopA', 2, 11, bodyA, s(sGA), 15); c = 12; continue
        if c == 18:
            loop('LL_loopB', 18, 25, bodyB, s(sGB), 15); c = 26; continue
        bar(*need(c))
        amp(A, f'b{c}')
        if c == 27:
            A(f"""
    v_mov_b32 v9, {L_NON}
    ds_read_b32 v3, v9
    s_mov_b32 s52, {hx(FL)}
    s_lshl_b32 s61, {s(sHead)}, 3
    s_add_u32 s61, s61, {s(sQB)}
    s_lshl_b32 s61, s61, 13
    s_lshl_b32 s47, s46, 12
    s_add_u32 s61, s61, s47
    s_lshl_b32 s62, s46, 13
    s_add_u32 s62, s62, {L_ONES+512}
    s_lshl_b32 s63, s46, 10
    s_lshl_b32 s47, {s(sHead)}, 17
    s_add_u32 s47, s47, {hx(KV)}
    s_add_u32 s47, s47, s63
    s_mov_b32 s53, 0
    """)
        if c == int(os.environ.get('EARLYC', '30')):
            A(f"""
    s_cmp_ge_u32 s71, {os.environ.get('EARLYJ', '0')}
    s_cselect_b32 s55, s52, 0x2000000
    buffer_load_dword v241, v251, {s(sWS,4)}, s55 offen sc1
    """)
            ops.append('poll')
        for t in sched.get(c, '').split(','):
            if t: call(t)
        c += 1
    A(f"""
    s_setprio 2
    s_barrier
    s_cmp_eq_u32 s55, s52
    s_cbranch_scc1 LL_f1c
    s_sleep {os.environ.get('SL1', '6')}
LL_f1:
    buffer_load_dword v241, v251, {s(sWS,4)}, s52 offen sc1
LL_f1c:
    s_add_u32 s53, s53, 1
    s_waitcnt vmcnt(0) lgkmcnt(0)
    v_cmp_ne_u32 vcc, v3, v241
    s_cbranch_vccz LL_f1ok
    s_sleep 4
    s_cmp_lt_u32 s53, {SPIN}
    s_cbranch_scc1 LL_f1
LL_f1ok:
    """)
    stamp(A, 1)
    if STAMP: A('s_add_u32 s82, s53, s80')
    A('s_call_b64 s[8:9], LL_qkv\ns_branch LH_join\nLL_qkv:')
    for i in range(4):
        A(f's_add_u32 m0, s62, {1024*i}\ns_nop 0\nbuffer_load_dwordx4 v1, {s(sWS,4)}, s61 offen offset:{1024*i} sc1 lds')
    A(f"""
    s_mov_b32 m0, s63
    s_nop 0
LL_kv:
    buffer_load_dwordx4 v1, {s(sWS,4)}, s47 offen sc1 lds
    buffer_load_dwordx4 v1, {s(sWS,4)}, s47 offen offset:2048 sc1 lds
    s_add_u32 m0, m0, 4096
    s_add_u32 s47, s47, 4096
    s_cmp_lt_u32 m0, 20480
    s_cbranch_scc1 LL_kv
    s_setpc_b64 s[8:9]
LL_B:
    """)
    emit(bodyB())
    A(f"""
    s_setpc_b64 s[8:9]
    """)
    CS, RS = 16, 24
    WF, XF = 32, 52
    sOne = 73
    A(f"""
L_M:
    s_setprio {os.environ.get('MPRIO', '0')}
    s_mov_b32 s45, s46
    """)
    A(patterns)
    A(f"""
    s_mov_b32 s45, 1
    s_mov_b32 {s(sOne)}, {hx(ONES)}
    s_lshl_b32 s47, s46, 9
    s_add_u32 s47, s47, {L_X}
    v_add_u32 v4, s47, v4
    v_lshlrev_b32 v1, 4, v0
    s_mov_b32 s50, 0
    """)
    for i in range(16, 28, 2): A(f'v_mov_b64 {v(i,2)}, 0')
    A(f's_mov_b32 s47, {hx(NW)}\ns_waitcnt lgkmcnt(0)\nbuffer_load_dword v30, off, {s(sWS,4)}, s47 sc1')
    nb = -1
    def bars(upto):
        nonlocal nb
        while nb < upto:
            A('s_barrier'); nb += 1
    A('s_call_b64 s[8:9], LH_prep')
    if 'st0' in EXP:
        EXP.discard('frozen'); stamp(A, 9); EXP.add('frozen')
    XF = 44
    A(f"""
    v_add_u32 v10, {4*WST}, v2
    v_add_u32 v2, {2*WST}, v2
    v_add_u32 v3, {2*WST}, v3
LM_stat:
    s_bitcmp1_b32 s50, 0
    s_cbranch_scc1 LM_nobar
    s_barrier
LM_nobar:
    ds_read_b128 {v(XF,4)}, v4
    ds_read_b128 {v(XF+4,4)}, v4 offset:128
    ds_read_b64_tr_b16 {v(WF,2)}, v3
    ds_read_b64_tr_b16 {v(WF+2,2)}, v3 offset:128
    """)
    for u in range(2):
        A(f'ds_read_b64_tr_b16 {v(WF+4+4*u,2)}, v2 offset:{u*32}')
        A(f'ds_read_b64_tr_b16 {v(WF+6+4*u,2)}, v2 offset:{u*32+128}')
    A(f"""
    s_movk_i32 s47, 512
    s_cmovk_i32 s47, {WST-512}
    v_add_u32 v2, s47, v2
    v_add_u32 v3, s47, v3
    v_add_u32 v4, 32, v4
    s_add_u32 s50, s50, 1
    s_waitcnt lgkmcnt(6)
    """)
    for j in range(4):
        for T in range(2):
            A(f'v_dot2c_f32_bf16 v{RS+2*T}, {s(sOne)}, v{XF+4*T+j}')
            A(f'v_dot2c_f32_bf16 v{RS+2*T+1}, v{XF+4*T+j}, v{XF+4*T+j}')
    A('s_waitcnt lgkmcnt(0)')
    for j in range(4):
        for i in range(3):
            A(f'v_dot2c_f32_bf16 v{CS+i}, {s(sOne)}, v{WF+4*i+j}')
    A(f"""
    s_cmp_lt_u32 s50, 4
    s_cbranch_scc1 LM_stat
    s_barrier
    """)
    nb = 2
    for q in range(4):
        for u in range(2):
            for rd in range(2):
                A(f'ds_read_b64_tr_b16 {v(WF+8*q+4*u+2*rd,2)}, v10 offset:{(q>>1)*WST+(4*(q&1)+rd)*128+u*32}')
        if q == 2: A('s_waitcnt lgkmcnt(4)')
    A(f"""
    s_lshl_b32 s50, {s(sCG)}, 4
    s_add_u32 s50, s50, {s(sRB)}
    s_lshl_b32 s50, s50, 1
    s_add_u32 s50, s50, s46
    s_lshl_b32 s50, s50, 10
    s_add_u32 s50, s50, {hx(CSP)}
    s_lshl_b32 s51, {s(sRB)}, 4
    s_add_u32 s51, s51, {s(sCG)}
    s_lshl_b32 s51, s51, 1
    s_add_u32 s51, s51, s46
    s_lshl_b32 s51, s51, 10
    s_add_u32 s51, s51, {hx(RSP)}
    s_waitcnt lgkmcnt(0)
    """)
    for hh in range(2):
        for q in (2 * hh, 2 * hh + 1):
            for j in range(4):
                for u in range(2):
                    r = WF + 8 * q + 4 * u + j
                    A(f'v_lshlrev_b32 v28, 16, v{r}\nv_and_b32 v29, 0xffff0000, v{r}\nv_add_f32 v{CS+3+u}, v{CS+3+u}, v28\nv_add_f32 v{CS+5+u}, v{CS+5+u}, v29')
        bars(nb + 1)
    A(f"""
    v_add_f32 v{CS+3}, v{CS+3}, v{CS+5}
    v_add_f32 v{CS+4}, v{CS+4}, v{CS+6}
    s_mov_b32 s47, 1664525
    s_waitcnt vmcnt(0)
    v_mul_lo_u32 v30, v30, s47
    v_add_u32 v30, 1013904223, v30
    """)
    for i in range(5): A(f'v_mov_b32 v{WF+i}, v{CS+i}')
    for i in range(4): A(f'v_mov_b32 v{WF+8+i}, v{RS+i}')
    A('v_cmp_gt_u32 vcc, 32, v0')
    for i in range(5): A(f'v_permlane32_swap_b32 v{CS+i}, v{WF+i}')
    for i in range(4): A(f'v_permlane32_swap_b32 v{RS+i}, v{WF+8+i}')
    for i in range(5): A(f'v_add_f32 v{CS+i}, v{CS+i}, v{WF+i}')
    for i in range(4): A(f'v_add_f32 v{RS+i}, v{RS+i}, v{WF+8+i}')
    A(f"""
    v_cndmask_b32 v{CS}, v{CS+3}, v{CS}, vcc
    v_cndmask_b32 v{CS+1}, v{CS+4}, v{CS+1}, vcc
    v_mov_b32 v{CS+3}, v30
    v_cndmask_b32 v{RS}, v{RS+2}, v{RS}, vcc
    v_cndmask_b32 v{RS+1}, v{RS+3}, v{RS+1}, vcc
    v_mov_b32 v{RS+3}, v30
    buffer_store_dwordx4 {v(CS,4)}, v1, {s(sWS,4)}, s50 offen sc1
    buffer_store_dwordx4 {v(RS,4)}, v1, {s(sWS,4)}, s51 offen sc1
    """)
    bars(nb + 1)
    A(f"""
    s_and_b32 s50, s50, {hx(~0x3800)}
    s_and_b32 s51, s51, {hx(~0x3800)}
    v_lshlrev_b32 v8, 2, v0
    v_mov_b32 v9, {L_FLAG}
    v_mov_b32 v29, 0
    ds_write_b32 v9, v29
    ds_write_b32 v9, v30 offset:4
    ds_write_b32 v9, v29 offset:8
    ds_write_b32 v9, v29 offset:12
    """)
    B_GAT, B_RED = [int(t) for t in os.environ.get('MSCHED', '11,15').split(',')]
    A('v_mov_b32 v3, v30')
    bars(B_GAT)
    GC, GR = 32, 64
    A('s_mov_b32 s53, 0\nLM_gat:\ns_mov_b32 s47, s50\ns_mov_b32 s61, s51')
    for i in range(8):
        A(f'buffer_load_dwordx4 {v(GR+4*i,4)}, v1, {s(sWS,4)}, s61 offen offset:{2048*(i&1)} sc1')
        A(f'buffer_load_dwordx4 {v(GC+4*i,4)}, v1, {s(sWS,4)}, s47 offen offset:{2048*(i&1)} sc1')
        if i & 1 and i < 7: A('s_add_u32 s47, s47, 4096\ns_add_u32 s61, s61, 4096')
    A('s_cmp_lg_u32 s53, 0\ns_cbranch_scc1 LM_chk')
    bars(B_RED - 1)
    A('LM_chk:\ns_waitcnt vmcnt(0)\ns_add_u32 s53, s53, 1')
    A(f'v_xor_b32 v10, v30, v{GC+3}')
    for r in [GC + 4 * i + 3 for i in range(1, 16)]:
        A(f'v_xor_b32 v11, v30, v{r}\nv_or_b32 v10, v10, v11')
    A(f"""
    v_cmp_ne_u32 vcc, 0, v10
    s_cbranch_vccz LM_red
    s_cmp_lt_u32 s53, {SPIN}
    s_cbranch_scc1 LM_gat
LM_red:
    """)
    stamp(A, 1)
    for i in range(1, 8):
        for t in range(3):
            if t < 2: A(f'v_add_f32 v{GR+t}, v{GR+t}, v{GR+4*i+t}')
            A(f'v_add_f32 v{GC+t}, v{GC+t}, v{GC+4*i+t}')
    bars(B_RED)
    SUM, SQ = GR, GR + 1
    A(f"""
    s_mul_i32 s47, s46, {5*256}
    s_add_u32 s47, s47, {L_CS}
    v_add_u32 v10, s47, v8
    s_lshl_b32 s47, s46, 9
    s_add_u32 s47, s47, {L_RS}
    v_lshl_add_u32 v9, v0, 3, s47
    v_cmp_gt_u32 vcc, 32, v0
    v_mul_f32 v{SUM}, {hx(f2u(-1.0/512))}, v{SUM}
    v_mul_f32 v{SQ}, {hx(f2u(1.0/512))}, v{SQ}
    v_fma_f32 v{SQ}, -v{SUM}, v{SUM}, v{SQ}
    v_max_f32 v{SQ}, 0, v{SQ}
    v_cvt_pk_bf16_f32 v{SQ}, v{SQ}, v{SQ}
    v_and_b32 v{SQ}, 0xffff0000, v{SQ}
    v_add_f32 v{SQ}, {hx(f2u(1e-5))}, v{SQ}
    v_cvt_pk_bf16_f32 v{SQ}, v{SQ}, v{SQ}
    v_and_b32 v{SQ}, 0xffff0000, v{SQ}
    v_sqrt_f32 v{SQ}, v{SQ}
    v_cvt_pk_bf16_f32 v{SUM}, v{SUM}, v{SUM}
    v_cvt_pk_bf16_f32 v{SQ}, v{SQ}, v{SQ}
    v_and_b32 v{SQ}, 0xffff0000, v{SQ}
    ds_write_b64 v9, {v(SUM,2)}
    """)
    for t in range(3):
        A(f"""
        v_cvt_pk_bf16_f32 v28, v{GC+t}, v{GC+t}
        v_and_b32 v28, 0xffff0000, v28
        v_sub_f32 v29, v{GC+t}, v28
        v_cvt_pk_bf16_f32 v28, v28, v29
        v_cndmask_b32 v{16+t}, 0, v28, vcc
        ds_write_b32 v10, v{16+t} offset:{t*256}
        """)
        if t < 2: A(f'v_sub_u32 v{20+t}, v28, v{16+t}\nds_write_b32 v10, v{20+t} offset:{(3+t)*256}')
    A('s_waitcnt lgkmcnt(0)')
    stamp(A, 2)
    assert nb <= 15
    A(f"""
    s_lshl_b32 s51, s2, 7
    s_add_u32 s51, s51, {hx(FL)}
    s_cmp_lg_u32 s46, 0
    s_cmov_b32 s51, 0x2000000
    s_mov_b32 s52, 0x2000000
    s_cmp_eq_u32 s71, 3
    s_cselect_b32 s53, s51, s52
    s_cselect_b32 s51, s52, s51
    """)
    bars(16 + 2 * F1N + 1)
    flag_store(A, 's51', 3)
    bars(16 + 2 * F1B + 1)
    flag_store(A, 's53', 3)
    bars(27)
    if 'nowpf' not in EXP:
        A(f"""
        s_load_dwordx2 {s(sH0,2)}, s[0:1], 16
        s_mov_b32 {s(sH0+2)}, 524288
        s_mov_b32 {s(sH0+3)}, 0x20000
        s_lshl_b32 s47, s71, 1
        s_add_u32 s47, s47, s46
        s_lshl_b32 s47, s47, 16
        s_lshl_b32 s61, s70, 7
        s_add_u32 s47, s47, s61
        v_lshlrev_b32 v8, 10, v0
        s_waitcnt lgkmcnt(0)
        buffer_load_dword v241, v8, {s(sH0,4)}, s47 offen
        """)
    bars(32)
    A('s_setprio 2')
    A(f"""
LH_join:
    s_call_b64 s[8:9], LH_prep2
    s_lshl_b32 s48, s46, 12
    s_sub_u32 s48, {17*4096}, s48
    s_lshl_b32 s61, {s(sRB)}, 2
    s_lshl_b32 s62, s46, 1
    s_add_u32 s61, s61, s62
    s_mul_i32 s61, s61, 112
    s_and_b32 s62, s3, 3
    s_mul_i32 s62, s62, 28
    s_add_u32 s61, s61, s62
    s_lshl_b32 s62, s71, 3
    s_add_u32 s61, s61, s62
    s_lshl_b32 s62, s45, 1
    s_add_u32 s61, s61, s62
    s_lshl_b32 s61, s61, 10
    s_add_u32 s64, s61, {hx(HF)}
    s_add_u32 s66, s64, 4096
    s_cmp_eq_u32 s71, 3
    s_cselect_b32 s66, s64, s66
    s_add_u32 s67, s66, {112*1024}
    s_and_b32 s47, s3, 3
    s_lshl_b32 s47, s47, 2
    s_add_u32 s47, s47, s45
    s_lshl_b32 s47, s47, 7
    s_lshl_b32 s62, s46, 4
    s_add_u32 s47, s47, s62
    s_add_u32 s47, s47, {s(sRB)}
    s_lshl_b32 s47, s47, 11
    s_add_u32 s47, s47, {hx(KV+32*2048+1024)}
    s_cmp_eq_u32 s71, 3
    s_cselect_b32 s4, s47, s64
    s_movk_i32 s5, 1024
    s_cmov_b32 s5, {4*64*2048}
    s_mov_b32 s6, {112*1024}
    s_cmov_b32 s6, {64*2048}
    s_add_u32 s6, s6, s4
    s_add_u32 s7, s6, s5
    s_add_u32 s5, s5, s4
    s_lshl_b32 s63, s2, 7
    s_lshl_b32 s62, s44, 2
    s_add_u32 s61, s63, s62
    s_add_u32 s61, s61, {hx(FH)}
    s_lshl_b32 s68, {s(sQB)}, 3
    s_lshl_b32 s62, s44, 1
    s_add_u32 s68, s68, s62
    s_lshl_b32 s68, s68, 5
    s_add_u32 s68, s68, {s(sHead)}
    s_lshl_b32 s68, s68, 10
    s_add_u32 s68, s68, {hx(OF)}
    s_add_u32 s69, s68, 0x8000
    s_lshl_b32 s50, s3, 3
    s_lshl_b32 s47, s71, 1
    s_add_u32 s50, s50, s47
    s_add_u32 s50, s50, s46
    s_lshl_b32 s51, s70, 1
    s_add_u32 s51, s51, s45
    s_mul_i32 s47, s44, {28*1024}
    s_add_u32 s47, s47, {hx(HF)}
    s_mul_i32 s56, s50, {112*1024}
    s_add_u32 s56, s56, s47
    s_xor_b32 s57, s50, 1
    s_mul_i32 s57, s57, {112*1024}
    s_add_u32 s57, s57, s47
    s_mul_i32 s58, s44, {28*16384}
    s_lshl_b32 s47, s71, 1
    s_add_u32 s59, s70, s47
    s_cmp_ge_u32 s59, 7
    s_cselect_b32 s47, 7, 0
    s_sub_u32 s59, s59, s47
    s_lshl_b32 s59, s59, 12
    s_mov_b32 s49, {hx(FH)}
    s_lshl_b32 s54, s50, 15
    s_lshl_b32 s47, s51, 6
    s_add_u32 s54, s54, s47
    s_load_dwordx2 {s(sA,2)}, s[0:1], 56
    s_load_dwordx2 {s(sPK,2)}, s[0:1], 48
    s_load_dwordx2 {s(sH0,2)}, s[0:1], 16
    s_mov_b32 {s(sA+2)}, 2097152
    s_mov_b32 {s(sPK+2)}, 1835008
    s_mov_b32 {s(sPK+3)}, 0x20000
    s_mov_b32 {s(sH0+2)}, 524288
    s_mov_b32 {s(sH0+3)}, 0x20000
    s_waitcnt vmcnt(0) lgkmcnt(0)
    """)
    A(f"""
    s_lshl_b32 s63, s44, 10
    s_lshl_b32 s47, {s(sHead)}, 17
    s_add_u32 s47, s47, {hx(KV+20480)}
    s_add_u32 s47, s47, s63
    s_add_u32 m0, s63, 20480
    """)
    stamp(A, 3)
    A('s_barrier')
    amp(A, 'B1')
    A('s_cmp_eq_u32 s71, 3\ns_cbranch_scc1 LH_vr')
    for n in range(4): A(f'ds_read_b128 {v(96+4*n,4)}, v248 offset:{n*4096}')
    A('s_branch LH_hr\nLH_vr:')
    for n in range(4):
        for rd in range(2): A(f'ds_read_b64_tr_b16 {v(96+4*n+2*rd,2)}, v230 offset:{n*4096+64*rd}')
    A('LH_hr:')
    for n in range(4, 8): A(f'ds_read_b128 {v(96+4*n,4)}, v248 offset:{n*4096}')
    A(f"""
LH_kv:
    buffer_load_dwordx4 v1, {s(sWS,4)}, s47 offen sc1 lds
    s_add_u32 m0, m0, 4096
    s_add_u32 s47, s47, 4096
    s_cmp_lt_u32 m0, s48
    s_cbranch_scc1 LH_kv
    s_cmp_eq_u32 s48, 131072
    s_cbranch_scc1 LH_kvdone
    s_mov_b32 s48, 131072
    """)
    for n in range(8):
        A(f's_waitcnt lgkmcnt({min(7-n,4)})\nbuffer_store_dwordx4 {v(96+4*n,4)}, v1, {s(sWS,4)}, ' + (f's{4+n} offen sc1' if n < 4 else f's{64+(n>>1)} offen offset:{(n&1)*1024} sc1'))
    A(f'buffer_store_dwordx4 v[236:239], v1, {s(sWS,4)}, s68 offen sc1\nbuffer_store_dwordx4 v[236:239], v1, {s(sWS,4)}, s69 offen sc1')
    A(f's_waitcnt vmcnt(10)\ns_mov_b64 exec, 1\nds_add_u32 v247, v240 offset:12\ns_mov_b64 exec, -1')
    A('s_waitcnt vmcnt(0)')
    stamp(A, 4)
    A(f"""
    s_or_b32 s62, s44, s2
    s_mov_b32 s62, {hx(NW)}
    s_cmov_b32 s62, 0x2000000
    s_mov_b64 exec, 1
    buffer_store_dword v3, off, {s(sWS,4)}, s61 sc1
    buffer_store_dword v3, off, {s(sWS,4)}, s62 sc1
    s_mov_b64 exec, -1
    s_mov_b32 s62, m0
    s_add_u32 m0, s63, {17*4096}
    s_lshl_b32 s55, s44, 17
LH_wo:
    buffer_load_dwordx4 v242, {s(sH0,4)}, s55 offen lds
    s_add_u32 m0, m0, 4096
    s_add_u32 s55, s55, 8192
    s_cmp_lt_u32 m0, 131072
    s_cbranch_scc1 LH_wo
    s_mov_b32 m0, s60
    s_nop 0
    buffer_load_dwordx4 v242, {s(sH0,4)}, s55 offen lds
    s_mov_b32 exec_lo, 0xffff0000
    s_mov_b32 exec_hi, 0
    buffer_load_dwordx4 v[76:79], v251, {s(sWS,4)}, s49 offen sc1
    s_mov_b64 exec, -1
    s_mov_b32 m0, s62
    s_sub_u32 s62, s63, s60
    s_add_u32 s62, s62, {17*4096}
    v_add_u32 v72, s62, v244
    v_add_u32 v73, s62, v245
    s_mov_b32 s63, 0
    s_waitcnt vmcnt(1)
    """)
    for k in range(8):
        for b in range(2):
            for rd in range(2):
                A(f'ds_read_b64_tr_b16 {v(176+8*k+4*b+2*rd,2)}, ' + (f'v{72+b} offset:{(2*k+rd)*4096}' if 2 * k + rd < 15 else f'v{244+b}'))
        if k in (2, 5, 7): A('s_waitcnt lgkmcnt(0)')
    A(f"""
    s_mov_b32 exec_lo, 0xffff0000
    s_mov_b32 exec_hi, 0
    s_cmp_eq_u32 s46, 0
    s_cbranch_scc1 LH_fvok
LH_fv:
    s_add_u32 s63, s63, 1
    s_waitcnt vmcnt(0)
    v_cmp_ne_u64 vcc, v[2:3], v[76:77]
    v_cmp_ne_u64 s[4:5], v[2:3], v[78:79]
    s_or_b64 vcc, vcc, s[4:5]
    s_cbranch_scc0 LH_fvok
    s_sleep 8
    buffer_load_dwordx4 v[76:79], v251, {s(sWS,4)}, s49 offen sc1
    s_cmp_lt_u32 s63, {SPIN}
    s_cbranch_scc1 LH_fv
LH_fvok:
    s_mov_b64 exec, -1
    s_branch LH_kv
LH_kvdone:
    buffer_load_dwordx4 v[88:91], v249, {s(sX,4)}, s54 offen
    buffer_load_dwordx4 v[92:95], v249, {s(sX,4)}, s54 offen offset:32
    buffer_load_dwordx4 v[76:79], v246, {s(sWS,4)}, s49 offen sc1
    s_mov_b32 m0, s60
    s_waitcnt vmcnt(3)
    s_mov_b64 exec, 1
    ds_add_u32 v247, v240 offset:8
    s_mov_b64 exec, -1
    """)
    stamp(A, 5)
    A(f"""
LH_fh:
    s_add_u32 s63, s63, 1
    s_waitcnt vmcnt(0)
    v_cmp_ne_u64 vcc, v[2:3], v[76:77]
    v_cmp_ne_u64 s[4:5], v[2:3], v[78:79]
    s_or_b64 vcc, vcc, s[4:5]
    s_cbranch_scc0 LH_gemm
    s_sleep 8
    buffer_load_dwordx4 v[76:79], v246, {s(sWS,4)}, s49 offen sc1
    s_cmp_lt_u32 s63, {SPIN}
    s_cbranch_scc1 LH_fh
LH_gemm:
    """)
    D, G, X, T0, FO, WO = 8, 72, 88, 96, 112, 176
    Dj = lambda a, b: D + 16 * (a + 2 * b)
    adv = f"""
    s_add_u32 s52, s56, s59
    s_add_u32 s53, s57, s59
    s_lshl_b32 s55, s59, 4
    s_add_u32 s55, s55, s58
    s_add_u32 s59, s59, 4096
    s_cmp_ge_u32 s59, {7*4096}
    s_cselect_b32 s59, 0, s59
    """
    def dma(srd, buf):
        A(f"""
        buffer_load_dwordx4 v242, {s(srd,4)}, s55 offen offset:{2048*buf} lds
        buffer_load_dwordx4 v243, {s(srd,4)}, s55 offen offset:{2048*buf+1024} lds
        s_add_u32 s55, s55, {16384+2048*(2*buf-1)}
        """)
    def grp(i):
        if i & 3 == 0: A(adv)
        for a in range(2):
            A(f'buffer_load_dwordx4 {v(FO+8*(i&3)+4*a,4)}, v1, {s(sWS,4)}, s{52+a} offen offset:{(i&3)*1024} sc1')
        dma(sPK, i & 1)
    def trd(dst, buf):
        for b in range(2):
            for rd in range(2):
                A(f'ds_read_b64_tr_b16 {v(dst+4*b+2*rd,2)}, v{244+b} offset:{2048*buf+1024*rd}')
    stamp(A, 6)
    amp(A, 'gemm')
    grp(0); grp(1)
    A('s_waitcnt vmcnt(4)')
    trd(G, 0)
    A('s_waitcnt lgkmcnt(0)')
    grp(2)
    A(f"s_setprio {os.environ.get('GPRIO', '0')}\ns_mov_b32 s63, {6 if 'nog' in EXP else 0}\nLH_gloop:")
    for i in range(4):
        A('s_waitcnt vmcnt(4)')
        trd(G + 8 * ((i + 1) & 1), (i + 1) & 1)
        for a in range(2): A(mfma(Dj(a, 0), G + 8 * (i & 1), FO + 8 * i + 4 * a, Dj(a, 0)))
        A('s_waitcnt lgkmcnt(0)')
        grp(i + 3)
        for a in range(2): A(mfma(Dj(a, 1), G + 8 * (i & 1) + 4, FO + 8 * i + 4 * a, Dj(a, 1)))
    A(f"""
    s_add_u32 s63, s63, 1
    s_cmp_lt_u32 s63, 7
    s_cbranch_scc1 LH_gloop
    s_setprio {os.environ.get('MEETP', '0')}
    """)
    A(f"""
    s_lshl_b32 s47, s3, 3
    s_lshl_b32 s61, s44, 1
    s_add_u32 s47, s47, s61
    s_lshl_b32 s47, s47, 7
    s_lshl_b32 s61, s71, 2
    s_add_u32 s47, s47, s61
    s_add_u32 s47, s47, {hx(FH)}
    s_mov_b32 s63, 0
LH_fs:
    buffer_load_dword v241, v250, {s(sWS,4)}, s47 offen sc1
    s_add_u32 s63, s63, 1
    s_waitcnt vmcnt(0)
    v_cmp_ne_u32 vcc, v3, v241
    s_cbranch_vccz LH_fsok
    s_sleep 8
    s_cmp_lt_u32 s63, {SPIN}
    s_cbranch_scc1 LH_fs
LH_fsok:
    s_mov_b32 s62, 0
    """)
    for j in range(1, 4):
        A('s_call_b64 s[8:9], LH_meet')
        for q in range(4): A(f'ds_write_b128 v{4+j}, {v(D+16*j+4*q,4)} offset:{q*1024}')
        A('s_call_b64 s[8:9], LH_meet')
        for q in range(4): A(f'ds_read_b128 {v(D+16*j+4*q,4)}, v4 offset:{q*1024}')
    A(f"""
    s_lshl_b32 s52, s50, 5
    s_lshl_b32 s61, s44, 3
    s_add_u32 s52, s52, s61
    s_lshl_b32 s52, s52, 10
    s_add_u32 s58, s52, {hx(OF)}
    s_xor_b32 s56, s58, 0x8000
    s_add_u32 s57, s56, 4096
    s_add_u32 s59, s58, 4096
    s_mov_b32 s63, 0
    """)
    def send():
        for j in (2,):
            for q in range(4): A(f'ds_write_b128 v{252+j}, {v(D+16*j+4*q,4)} offset:{(j-1)*4096+q*1024}')
        A('s_waitcnt lgkmcnt(0)\ns_barrier')
        for j in range(1, 4):
            for q in range(4): A(f'ds_read_b128 {v(D+16*j+4*q,4)}, v252 offset:{(j-1)*4096+q*1024}')
    A(f"""
    s_mov_b32 s52, -1
    s_waitcnt lgkmcnt(0)
    """)
    stamp(A, 7)
    amp(A, 'ready')
    A('s_barrier')
    amp(A, 'X')
    stamp(A, 8)
    for g in range(4):
        A(f'LH_o{g}:')
        for k in range(4 * g, 4 * g + 4):
            A(f'buffer_load_dwordx4 {v(FO+4*k,4)}, v1, {s(sWS,4)}, s{56+g} offen offset:{(k&3)*1024} sc1')
    for g in range(4):
        A(f's_cmp_eq_u32 s52, {g}\ns_cbranch_scc1 LH_c{g}')
    A(f's_mov_b32 s4, {hx(f2u(-LOG2E))}\ns_mov_b32 s5, 1.0')
    for j in range(1, 4):
        for p in range(8): A(f'v_pk_add_f32 {v((D if j < 3 else G)+2*p,2)}, {v(D+2*p,2)}, {v(D+16*j+2*p,2)}')
    for p in range(8): A(f'v_pk_mul_f32 {v(D+2*p,2)}, {v(G+2*p,2)}, s[4:5] op_sel_hi:[1,0]')
    for j in range(16): A(f'v_exp_f32 v{D+j}, v{D+j}')
    for p in range(8): A(f'v_pk_add_f32 {v(D+2*p,2)}, {v(D+2*p,2)}, s[4:5] op_sel:[0,1] op_sel_hi:[1,1]')
    for j in range(16): A(f'v_rcp_f32 v{D+j}, v{D+j}')
    for p in range(8): A(f'v_pk_mul_f32 {v(G+2*p,2)}, {v(D+2*p,2)}, {v(G+2*p,2)}')
    for g in range(4):
        f0 = FO + 16 * g
        a, hh = 1 - (g >> 1), g & 1
        A(f"""
LH_c{g}:
        s_mov_b32 s52, {g}
        s_add_u32 s63, s63, 1
        s_waitcnt vmcnt({12-4*g})
        v_max3_u32 v241, v{f0}, v{f0+4}, v{f0+8}
        v_max_u32 v241, v241, v{f0+12}
        v_cmp_eq_u32 vcc, -1, v241
        s_cbranch_vccz LH_m{g}
        s_sleep {os.environ.get('RSL', '4')}
        s_cmp_lt_u32 s63, {SPIN}
        s_cbranch_scc1 LH_o{g}
LH_m{g}:
        """)
        n = 0
        for b in (1, 0):
            for k in range(4):
                A(mfma(Dj(a, b), WO + 8 * (4 * hh + k) + 4 * b, f0 + 4 * k, None if hh == 0 and k == 0 else Dj(a, b)))
                if g == 2:
                    j, q = (3, 1)[n >> 2], n & 3
                    A(f'ds_write_b128 v{252+j}, {v(D+16*j+4*q,4)} offset:{(j-1)*4096+q*1024}')
                if g == 3: A(f'v_lshlrev_b32 v{T0+2*n}, 16, v{X+n}\nv_and_b32 v{T0+2*n+1}, 0xffff0000, v{X+n}')
                n += 1
    if STAMP and 'st0' not in EXP: A('s_add_u32 s89, s63, s80')
    stamp(A, 10)
    send()
    for j in range(1, 3):
        A(f's_waitcnt lgkmcnt({12-4*j})')
        for p in range(8): A(f'v_pk_add_f32 {v(D+2*p,2)}, {v(D+2*p,2)}, {v(D+16*j+2*p,2)}')
    for q in range(4):
        A(f's_waitcnt lgkmcnt({3-q})')
        for p in (2 * q, 2 * q + 1):
            A(f'v_pk_add_f32 {v(D+2*p,2)}, {v(D+2*p,2)}, {v(D+48+2*p,2)}')
            A(f'v_pk_fma_f32 {v(D+2*p,2)}, {v(D+2*p,2)}, {v(G+2*p,2)}, {v(T0+2*p,2)}')
            A(f'v_cvt_pk_bf16_f32 v{X+p}, v{D+2*p}, v{D+2*p+1}')
        if q & 1: A(f'buffer_store_dwordx4 {v(X+4*(q>>1),4)}, v249, {s(sA,4)}, s54 offen offset:{32*(q>>1)} {os.environ.get("OST", "")}')
    stamp(A, 11)
    stamp_end(A, sWS, sW, 2)
    if AMP:
        amp(A, 'end')
        A(f'''
        s_cmp_lg_u32 {s(sW)}, 4
        s_cbranch_scc1 L_end
        s_memrealtime s[78:79]
        s_sub_u32 s97, s97, s96
        s_waitcnt lgkmcnt(0)
        s_mov_b32 s96, s78
LH_amp:
        s_memrealtime s[78:79]
        s_waitcnt lgkmcnt(0)
        s_sub_u32 s78, s78, s96
        s_cmp_lt_u32 s78, s97
        s_cbranch_scc1 LH_amp
        ''')
    A(f"""
    s_endpgm
LH_meet:
    s_add_u32 s62, s62, 4
    s_mov_b32 s63, 0
    s_waitcnt lgkmcnt(0)
    s_mov_b64 exec, 1
    ds_add_u32 v247, v240
    s_mov_b64 exec, -1
LH_meetw:
    ds_read_b32 v241, v247
    s_add_u32 s63, s63, 1
    s_waitcnt lgkmcnt(0)
    v_cmp_gt_u32 vcc, s62, v241
    s_cbranch_vccz LH_meetok
    s_sleep {os.environ.get('MEETS', '4')}
    s_cmp_lt_u32 s63, {SPIN * 16}
    s_cbranch_scc1 LH_meetw
LH_meetok:
    s_setpc_b64 s[8:9]
LH_prep:
    v_lshlrev_b32 v1, 4, v0
    v_cmp_gt_u32 vcc, 32, v0
    v_and_b32 v200, 15, v0
    v_and_b32 v201, 1, v0
    s_lshl_b32 s47, {s(sQB)}, 1
    v_add_u32 v201, s47, v201
    s_add_u32 s61, s3, 8
    s_lshr_b32 s62, s3, 1
    s_lshl_b32 s62, s62, 2
    s_add_u32 s62, s62, 3
    v_cndmask_b32 v200, v201, v200, vcc
    v_mov_b32 v201, s3
    v_mov_b32 v202, s62
    v_cndmask_b32 v201, v201, v202, vcc
    v_cmp_gt_u32 vcc, 16, v0
    v_mov_b32 v202, s61
    v_lshrrev_b32 v203, 3, v200
    v_cndmask_b32 v201, v201, v202, vcc
    v_and_b32 v200, 7, v200
    v_lshlrev_b32 v200, 3, v200
    v_lshl_add_u32 v200, v203, 2, v200
    v_lshrrev_b32 v203, 2, v201
    v_add_u32 v200, v200, v203
    v_and_b32 v201, 3, v201
    v_lshl_add_u32 v200, v201, 6, v200
    v_lshlrev_b32 v251, 7, v200
    s_lshl_b32 s61, s44, 12
    s_add_u32 s47, s61, {L_ONES}
    s_add_u32 s61, s61, {L_EX}
    v_and_b32 v204, 11, v0
    v_cmp_eq_u32 vcc, 0, v204
    v_mov_b32 v204, {hx(ONES)}
    v_and_b32 v205, 0x1ff, v1
    v_cndmask_b32 v232, 0, v204, vcc
    v_add_u32 v231, s47, v205
    v_mov_b32 v233, v232
    v_mov_b64 v[234:235], v[232:233]
    v_mov_b32 v240, 1
    v_mov_b32 v247, {L_FLAG}
    v_mov_b64 v[236:237], -1
    v_mov_b64 v[238:239], -1
    s_lshl_b32 s47, s44, 10
    s_add_u32 s47, s47, {L_H}
    v_add_u32 v248, s47, v1
    v_lshrrev_b32 v207, 5, v0
    v_bfe_u32 v204, v0, 4, 1
    v_lshl_add_u32 v204, v204, 2, v207
    v_bfe_u32 v205, v0, 2, 2
    v_lshl_add_u32 v204, v204, 2, v205
    v_and_b32 v205, 3, v0
    v_lshlrev_b32 v205, 8, v205
    v_lshl_add_u32 v204, v204, 3, v205
    v_add_u32 v230, s47, v204
    v_lshrrev_b32 v204, 3, v0
    v_and_b32 v205, 7, v0
    v_and_b32 v206, 2, v204
    v_lshlrev_b32 v206, 1, v206
    v_xor_b32 v205, v205, v206
    v_lshlrev_b32 v205, 4, v205
    v_lshl_add_u32 v242, v204, 10, v205
    s_lshl_b32 s47, s70, 7
    v_add_u32 v242, s47, v242
    v_add_u32 v243, 7168, v242
    v_and_b32 v205, 1, v0
    v_bfe_u32 v204, v0, 1, 1
    v_lshl_add_u32 v205, v205, 1, v204
    v_lshlrev_b32 v205, 3, v205
    v_bfe_u32 v204, v0, 4, 1
    v_lshl_add_u32 v205, v204, 5, v205
    v_bfe_u32 v206, v0, 2, 2
    v_lshl_add_u32 v204, v207, 2, v206
    v_lshl_add_u32 v205, v204, 7, v205
    v_bfe_u32 v204, v0, 3, 1
    v_xor_b32 v204, s45, v204
    v_lshl_add_u32 v205, v204, 6, v205
    v_add_u32 v244, s61, v205
    v_xor_b32 v245, 64, v244
    v_and_b32 v205, 3, v0
    v_lshl_add_u32 v246, v206, 6, v205
    s_lshl_b32 s47, s3, 1
    s_lshr_b32 s62, s71, 1
    s_add_u32 s47, s47, s62
    s_and_b32 s62, s47, 7
    s_lshl_b32 s62, s62, 3
    s_lshr_b32 s47, s47, 3
    s_lshl_b32 s47, s47, 2
    s_add_u32 s47, s47, s62
    v_add_lshl_u32 v246, v246, s47, 7
    v_bfe_u32 v204, v0, 2, 1
    v_lshl_add_u32 v250, v205, 6, v204
    v_lshlrev_b32 v250, 7, v250
    v_and_b32 v204, 31, v0
    v_lshlrev_b32 v204, 10, v204
    v_lshl_add_u32 v249, v207, 4, v204
    v_mov_b64 v[224:225], 0
    v_mov_b64 v[226:227], 0
    """)
    for j in range(4):
        A(f's_xor_b32 s47, s44, {j}\ns_lshl_b32 s47, s47, 14\nv_add_u32 v{252+j}, s47, v1')
    A(f"""
    s_setpc_b64 s[8:9]
LH_prep2:
    ds_write_b128 v231, v[232:235]
    ds_write_b128 v231, v[232:235] offset:2048
    s_lshl_b32 s60, s44, 12
    s_add_u32 s60, s60, {L_EX}
    """)
    for j in range(4):
        A(mfma(D + 16 * j, 224, 224, None))
        A(f's_xor_b32 s47, s44, {j}\ns_lshl_b32 s47, s47, 12\ns_add_u32 s47, s47, {L_EX}\nv_add_u32 v{4+j}, s47, v1')
    A('s_waitcnt lgkmcnt(0)\nv_mov_b32 v2, v3\ns_setpc_b64 s[8:9]')

def gen_C(A, patterns):
    sDW, sXs, sIt, sF1, sF3, sOne = 48, 49, 50, 72, 73, 76
    A(f"""
L_C:
    v_mov_b64 v[64:65], 0
    v_mov_b64 v[66:67], 0
    """)
    A(patterns)
    A(f"""
    s_waitcnt lgkmcnt(0)
    s_lshl_b32 s47, s46, 9
    s_add_u32 s47, s47, {L_X}
    v_add_u32 v4, s47, v4
    v_mov_b32 v1, v4
    v_add_u32 v2, {2*WST}, v2
    v_add_u32 v3, {2*WST}, v3
    s_mov_b32 {s(sDW)}, {hx(-2*WST)}
    s_mov_b32 {s(sXs)}, 0
    s_mov_b32 {s(sIt)}, 0
    s_lshl_b32 s53, {s(sRB)}, 2
    s_lshl_b32 s47, s46, 1
    s_add_u32 s53, s53, s47
    s_and_b32 s47, {s(sCG)}, 7
    s_lshl_b32 s47, s47, 2
    s_lshl_b32 s61, s45, 1
    s_add_u32 s47, s47, s61
    s_lshl_b32 s47, s47, 6
    s_lshl_b32 s59, s46, 4
    s_add_u32 s59, s59, {s(sRB)}
    s_cmp_lt_u32 {s(sCG)}, 8
    s_cselect_b32 s52, 10, 11
    s_cselect_b32 s61, {hx(QF)}, {hx(KV)}
    s_cselect_b32 s58, {hx(f2u(0.25*LOG2E))}, 1.0
    s_cselect_b32 s53, s53, s59
    s_cselect_b32 s60, 1, 32
    s_add_u32 s47, s47, s53
    s_lshl_b32 s47, s47, s52
    s_add_u32 s62, s47, s61
    s_lshl_b32 s47, s60, s52
    s_add_u32 s64, s62, s47
    s_lshl_b32 s47, 64, s52
    s_add_u32 s63, s62, s47
    s_add_u32 s65, s64, s47
    s_mul_i32 s47, s45, {5*256}
    s_add_u32 s47, s47, {L_CS}
    v_lshl_add_u32 v60, v0, 2, s47
    s_lshl_b32 s47, s46, 9
    s_add_u32 s47, s47, {L_RS}
    v_and_b32 v61, 31, v0
    v_lshl_add_u32 v61, v61, 3, s47
    v_lshlrev_b32 v63, 4, v0
    v_and_b32 v72, 15, v0
    v_and_b32 v73, 16, v0
    v_cmp_eq_u32 vcc, 0, v73
    v_lshlrev_b32 v72, 4, v72
    v_add_u32 v72, {L_ONES-1024}, v72
    v_mov_b32 v73, {NT*2048}
    v_cndmask_b32 v72, v72, v63, vcc
    v_cndmask_b32 v73, 0, v73, vcc
    s_lshl_b32 s47, s44, 12
    s_add_u32 s47, s47, {L_ONES}
    v_add_u32 v74, s47, v63
    s_lshl_b32 s66, {s(sQB)}, 3
    s_lshl_b32 s47, s44, 1
    s_add_u32 s66, s66, s47
    s_lshl_b32 s66, s66, 5
    s_add_u32 s66, s66, {s(sHead)}
    s_lshl_b32 s66, s66, 10
    s_add_u32 s66, s66, {hx(OF)}
    s_mov_b32 s54, {hx(f2u(2.0**126))}
    s_mov_b32 s55, {hx(f2u(2.0**-112))}
    s_mov_b32 s56, {hx(f2u(2.0**120))}
    s_mov_b32 s57, 0
    """)
    acc = lambda T, i: 96 + (i * 2 + T) * 16
    for i in range(5):
        for T in range(2): A(mfma(acc(T, i), 64, 64, None))
    FB = lambda f: 8 + 20 * f
    Wf = lambda f, i: FB(f) + 4 * i
    Xf = lambda f, T: FB(f) + 12 + 4 * T
    def reads(f, q, withA):
        st, ks = (q >> 1) & 1, q & 1
        r = [f'ds_read_b128 {v(Xf(f,T),4)}, v1 offset:{T*128+(q&3)*32}' for T in range(2)]
        for u in range(2):
            for rd in range(2):
                r.append(f'ds_read_b64_tr_b16 {v(Wf(f,1+u)+2*rd,2)}, v2 offset:{st*WST+(4*ks+rd)*128+u*32}')
        if withA:
            for rd in range(2):
                r.append(f'ds_read_b64_tr_b16 {v(Wf(f,0)+2*rd,2)}, v3 offset:{st*WST+(4*ks+rd)*128}')
        return r
    def kloop(label, withA, adv, lim, tr0):
        for r in reads(0, 0, withA): A(r)
        A(label + ':')
        for q in range(4):
            f = q & 1
            rr = reads(f ^ 1, q + 1, withA)
            A('s_waitcnt lgkmcnt(0)')
            if q & 1: A('s_barrier')
            tiles = [(1, 1), (2, 2), (0, 0)] if withA else [(1, 3), (2, 4)]
            ms = [mfma(acc(T, ai), Wf(f, wi), Xf(f, T), acc(T, ai)) for (wi, ai) in tiles for T in range(2)]
            k = 0
            for m in range(len(ms)):
                A(ms[m])
                for _ in range(3):
                    if k < len(rr): A(rr[k]); k += 1
                if q == 2 and m == len(ms) - 1: A(adv)
                if q == 3 and m == len(ms) - 2: A(f's_add_u32 {s(sIt)}, {s(sIt)}, 1')
                if q == 3 and m == len(ms) - 1 and not STAMP: A(f's_cmp_lt_u32 {s(sIt)}, {lim}')
            assert k == len(rr)
        if STAMP:
            A(f'{TM} s[78:79]\ns_add_u32 m0, {s(sIt)}, {tr0}\ns_waitcnt lgkmcnt(0)\nv_writelane_b32 v79, s78, m0\ns_cmp_lt_u32 {s(sIt)}, {lim}')
        A(f's_cbranch_scc1 {label}')
    A(f"""
    s_mul_i32 s47, s44, {WST}
    s_add_u32 s47, s47, {2*WST+2*PAN}
    v_and_b32 v75, 31, v0
    v_mul_u32_u24 v76, 288, v7
    v_lshl_add_u32 v75, v75, 3, v76
    v_add_u32 v75, s47, v75
    v_lshlrev_b32 v76, 2, v5
    v_add_u32 v76, v76, v7
    v_lshl_add_u32 v76, v76, 2, v6
    v_and_b32 v77, 3, v0
    v_mul_u32_u24 v77, 288, v77
    v_lshl_add_u32 v76, v76, 3, v77
    v_add_u32 v76, s47, v76
    s_and_b32 s47, s3, 3
    s_lshl_b32 s47, s47, 2
    s_add_u32 s47, s47, s45
    s_lshl_b32 s47, s47, 7
    s_add_u32 s47, s47, s59
    s_lshl_b32 s47, s47, 11
    s_add_u32 s8, s47, {hx(KV)}
    s_add_u32 s9, s8, {4*64*2048}
    s_add_u32 s10, s8, {64*2048}
    s_add_u32 s11, s8, {5*64*2048}
    s_lshl_b32 s47, s44, 10
    s_add_u32 s47, s47, {L_H}
    v_add_u32 v77, s47, v63
    v_subrev_u32 v62, {2*WST}, v2
    v_mov_b32 v49, 0
    v_mov_b64 v[50:51], 0
    """)
    stamp(A, 1)
    A('s_barrier')
    stamp(A, 2)
    kloop('LC_loopA', True, f"""
        v_add_u32 v2, {s(sDW)}, v2
        v_add_u32 v3, {s(sDW)}, v3
        s_add_u32 {s(sXs)}, {s(sXs)}, {XST}
        s_cmp_ge_u32 {s(sXs)}, {4*XST}
        s_cselect_b32 {s(sXs)}, 0, {s(sXs)}
        s_sub_u32 {s(sDW)}, 0, {s(sDW)}
        v_add_u32 v1, {s(sXs)}, v4
        """, '8', 15)
    A("""
    s_waitcnt lgkmcnt(0)
    ds_read_b64 v[68:69], v61
    ds_read_b64 v[70:71], v61 offset:256
    """)
    CO = lambda i: 8 + 4 * i
    for i in range(5): A(f'ds_read_b32 v{CO(i)}, v60 offset:{i*256}')
    for i in range(5): A(f'v_mov_b32 v{CO(i)+1}, 0\nv_mov_b64 {v(CO(i)+2,2)}, 0')
    A('s_waitcnt lgkmcnt(5)\nv_mov_b32 v64, v68\nv_mov_b32 v48, v70')
    K0 = -2.0 * math.sqrt(2.0 / math.pi) * LOG2E
    K1c = K0 * 0.044715
    A('v_rcp_f32 v84, v69\nv_rcp_f32 v92, v71\ns_waitcnt lgkmcnt(0)')
    def readsB(q):
        f, it = (q + 1) & 1, q >> 2
        wo = ((4 - 2 * (it % 3)) + ((q >> 1) & 1)) * WST + 4 * (q & 1) * 128
        r = [f'ds_read_b128 {v(Xf(f,T),4)}, v4 offset:{((3-it)&3)*XST+T*128+(q&3)*32}' for T in range(2)]
        for u in range(2):
            for rd in range(2):
                r.append(f'ds_read_b64_tr_b16 {v(Wf(f,1+u)+2*rd,2)}, v62 offset:{wo+rd*128+u*32}')
        return r
    cst = []
    for T in range(2):
        b = 80 + 8 * T
        cst += [f'v_mul_f32 v{b+3}, s58, v{b+4}', f'v_mul_f32 v{b+2}, v{69+2*T}, v{69+2*T}', f'v_mul_f32 v{b+1}, {hx(f2u(K0))}, v{b+4}',
                f'v_mul_f32 v{b}, v{b+4}, v{b+4}', f'v_mul_f32 v{b}, v{b}, v{b+4}', f'v_mul_f32 v{b}, {hx(f2u(K1c))}, v{b}']
    def atile(T, hd):
        a = acc(T, 0) + 8 * hd
        return ([f'v_mul_f32 v{a+j}, v{83+8*T}, v{a+j}' for j in range(8)] + [f'v_cvt_pk_bf16_f32 v{a+p}, v{a+2*p}, v{a+2*p+1}' for p in range(4)]
                + [f'buffer_store_dwordx4 {v(a,4)}, v63, {s(sWS,4)}, s{62+2*T+hd} offen sc1'])
    fill = readsB(0) + cst + atile(0, 0) + atile(0, 1)
    for i in range(5):
        for T in range(2):
            A(mfma(acc(T, i), CO(i), (64, 48)[T], acc(T, i)))
            for _ in range(5 if i or T else 6):
                if fill: A(fill.pop(0))
    assert not fill
    def geglu_plain(T, u):
        a, b, t, r = acc(T, 1 + u), 80 + 8 * T, 52, []
        for h4 in (0, 4):
            J = range(h4, h4 + 4)
            r += [f'v_mul_f32 v{t+j}, v{a+j}, v{a+j}' for j in J] + [f'v_fma_f32 v{t+j}, v{t+j}, v{b}, v{b+1}' for j in J]
            r += [f'v_mul_f32 v{t+j}, v{t+j}, v{a+j}' for j in J] + [f'v_exp_f32 v{t+j}, v{t+j}' for j in J]
            r += [f'v_mul_f32 v{a+j}, v{a+j}, v{a+8+j}' for j in J] + [f'v_fma_f32 v{t+j}, v{t+j}, v{b+2}, v{b+2}' for j in J]
            r += [f'v_rcp_f32 v{t+j}, v{t+j}' for j in J] + [f'v_mul_f32 v{a+j}, v{a+j}, v{t+j}' for j in J]
            r += [f'v_cvt_pk_bf16_f32 v{a+8+p}, v{a+2*p}, v{a+2*p+1}' for p in (h4 // 2, h4 // 2 + 1)]
        return r
    def vtile(T, u):
        a = acc(T, 1 + u)
        r = [f'v_mul_f32 v{a+j}, v{84+8*T}, v{a+j}' for j in range(16)]
        r += [f'v_cvt_pk_bf16_f32 v{a+p}, v{a+2*p}, v{a+2*p+1}' for p in range(8)]
        wr, rd, st = [], [], []
        for hd in range(2):
            o = hd * 1152
            wr.append(f'ds_write2_b64 v75, {v(a+4*hd,2)}, {v(a+4*hd+2,2)} offset0:{o//8} offset1:{(o+576)//8}')
            rd += [f'ds_read_b64_tr_b16 {v(a+8+4*hd,2)}, v76 offset:{o}', f'ds_read_b64_tr_b16 {v(a+8+4*hd+2,2)}, v76 offset:{o+64}']
            st.append((f's_add_u32 s{8+2*u+hd}, s{8+2*u+hd}, 65536\n' if T else '') +
                      f'buffer_store_dwordx4 {v(a+8+4*hd,4)}, v63, {s(sWS,4)}, s{8+2*u+hd} offen offset:1024 sc1')
        return r + [('lds', wr + rd, st)]
    cost = lambda t: 8 if t.startswith(('v_exp', 'v_rcp')) else 4
    STM = int(os.environ.get('STM', '3'))
    def passB(side, ack, budget, late=()):
        side = list(side)
        stores, lds, pend = [], [], 0
        for q in range(32):
            f = (q + 1) & 1
            rr = readsB(q + 1) if q < 31 else []
            if q == 4 * ack - 1: assert not stores and not lds and not any(isinstance(t, tuple) or t.startswith('buffer') for t in side), q
            A(f's_waitcnt lgkmcnt({pend})' + (' vmcnt(0)' if q == 4 * ack + 1 else ''))
            pend = 0
            if q == 4 * ack - 1: side += late
            if q & 1: A('s_barrier')
            for m in range(4):
                A(mfma(acc(m & 1, 3 + (m >> 1)), Wf(f, 1 + (m >> 1)), Xf(f, m & 1), acc(m & 1, 3 + (m >> 1))))
                for _ in range(3):
                    if rr: A(rr.pop(0))
                left = budget[m]
                if m == 2 and lds:
                    _, ops_, st = lds.pop(0)
                    if 'xds' in EXP: ops_ = []
                    for t in ops_: A(t)
                    pend = len(ops_); left = 0
                    stores += [(q + 2, t) for t in st]
                if m == STM and stores and stores[0][0] <= q:
                    t = stores.pop(0)[1]
                    if 'xst' not in EXP: A(t)
                    left -= 12
                while side and (isinstance(side[0], tuple) or side[0].startswith('buffer') or left >= cost(side[0])):
                    t = side.pop(0)
                    if isinstance(t, tuple): lds.append(t)
                    elif t.startswith('buffer'): stores.append((q + (m >= STM), t))
                    else: left -= cost(t); A(t)
            if STAMP and 'trb' in EXP and q & 3 == 3:
                A(f'{TM} s[78:79]\ns_waitcnt lgkmcnt(0)\nv_writelane_b32 v79, s78, {24+(q>>2)}')
        assert not side and not stores and not lds, len(side)
    BUD = [int(t) for t in os.environ.get('BUD', '8,8,16,16').split(',')]
    stamp(A, 3)
    A(f's_cmp_eq_u32 s71, {os.environ.get("VJ", "3")}\ns_cbranch_scc1 LC_Bv')
    passB(atile(1, 0) + atile(1, 1) + sum((geglu_plain(T, u) for T in range(2) for u in range(2)), []), F1N, BUD)
    for n in range(4): A(f'ds_write_b128 v77, {v(acc(n>>1,1+(n&1))+8,4)} offset:{n*4096}')
    A('LC_g4:\nv_mov_b32 v1, v63\ns_nop 6')
    stamp(A, 4)
    for T in range(2):
        b = 80 + 8 * T
        for u in range(2):
            a = acc(T, 3 + u)
            t = 52
            for p in range(4): A(f'v_pk_mul_f32 {v(t+2*p,2)}, {v(a+2*p,2)}, {v(a+2*p,2)}')
            for p in range(4): A(f'v_pk_fma_f32 {v(t+2*p,2)}, {v(t+2*p,2)}, {v(b,2)}, {v(b,2)} op_sel:[0,0,1] op_sel_hi:[1,0,1]')
            for p in range(4): A(f'v_pk_mul_f32 {v(t+2*p,2)}, {v(t+2*p,2)}, {v(a+2*p,2)}')
            for j in range(8): A(f'v_exp_f32 v{t+j}, v{t+j}')
            for p in range(4): A(f'v_pk_mul_f32 {v(a+2*p,2)}, {v(a+2*p,2)}, {v(a+8+2*p,2)}')
            for p in range(4): A(f'v_pk_fma_f32 {v(t+2*p,2)}, {v(t+2*p,2)}, {v(b+2,2)}, {v(b+2,2)} op_sel:[0,0,0] op_sel_hi:[1,0,0]')
            for j in range(8): A(f'v_rcp_f32 v{t+j}, v{t+j}')
            for p in range(4): A(f'v_pk_mul_f32 {v(a+2*p,2)}, {v(a+2*p,2)}, {v(t+2*p,2)}')
            for p in range(4): A(f'v_cvt_pk_bf16_f32 v{a+8+p}, v{a+2*p}, v{a+2*p+1}')
            A(f'ds_write_b128 v77, {v(a+8,4)} offset:{(4+2*T+u)*4096}')
    def vvariant():
        A('LC_Bv:')
        passB(vtile(0, 0) + atile(1, 0) + vtile(0, 1) + atile(1, 1), F1B, [int(t) for t in os.environ.get('BUDV', '12,12,24,24').split(',')], vtile(1, 0)[:-1] + vtile(1, 1)[:-1])
        A('v_lshrrev_b32 v75, 1, v63\nv_sub_u32 v75, v77, v75')
        for n in range(4):
            a = acc(1, 1 + (n >> 1)) + 4 * (n & 1)
            A(f'ds_write_b64 v75, {v(a,2)} offset:{n*4096}\nds_write_b64 v75, {v(a+2,2)} offset:{n*4096+512}')
        A('s_branch LC_g4')
    QA, QB, CA, CB, OA, OB, SA, SB, PA, PB = 8, 12, 16, 32, 48, 64, 80, 96, 112, 120
    KF = lambda b: 128 + 4 * b
    VF = lambda j: 136 + 4 * j
    A('LC_att:')
    if STAMP: A('v_mov_b32 v144, v79')
    stamp(A, 5)
    A('s_waitcnt lgkmcnt(0)')
    stamp(A, 6)
    A('s_barrier')
    stamp(A, 7)
    A(f"""
    ds_read_b128 {v(QA,4)}, v74 offset:512
    ds_read_b128 {v(KF(0),4)}, v1
    ds_read_b128 {v(KF(1),4)}, v1 offset:2048
    ds_read_b128 {v(QB,4)}, v74 offset:2560
    v_mov_b32 v2, v1
    v_mov_b32 v3, v72
    v_mov_b32 v4, v73
    s_mov_b32 {s(sIt)}, 0
    s_mov_b32 s51, 1
    """)
    for j in range(0, 8, 2): A(f'v_mov_b64 {v(VF(0)+j,2)}, 0')
    for j in range(0, 8, 2): A(f'v_mov_b64 {v(PB+j,2)}, 0')
    A('s_waitcnt lgkmcnt(2)')
    A(mfma(SA, KF(0), QA, None))
    A('s_waitcnt lgkmcnt(1)')
    A(mfma(OA, KF(1), QA, None))
    A('s_waitcnt lgkmcnt(0)')
    A(mfma(SB, KF(0), QB, None))
    A(mfma(OB, KF(1), QB, None))
    A('s_nop 6')
    for (S, O, C) in ((SA, OA, CA), (SB, OB, CB)):
        A(f'v_max3_f32 v{C}, v{S}, v{S+1}, v{S+2}')
        for j in range(3, 15, 2): A(f'v_max3_f32 v{C}, v{C}, v{S+j}, v{S+j+1}')
        A(f'v_max3_f32 v{C}, v{C}, v{S+15}, v{O}')
        for j in range(1, 15, 2): A(f'v_max3_f32 v{C}, v{C}, v{O+j}, v{O+j+1}')
        A(f'v_max_f32 v{C}, v{C}, v{O+15}')
        A(f'v_mov_b32 v{C+1}, v{C}')
        A(f'v_mov_b64 {v(O,2)}, 0\nv_mov_b64 {v(O+2,2)}, 0')
        A(f'v_permlane32_swap_b32 v{C}, v{C+1}')
        A(f'v_max_f32 v{C}, v{C}, v{C+1}')
        A(f'v_sub_f32 v{C}, {hx(f2u(-BIAS))}, v{C}')
        A(f'v_mov_b32 v{C+1}, v{C}')
        for j in range(2, 16, 2): A(f'v_mov_b64 {v(C+j,2)}, {v(C,2)}')
        for j in range(4, 10, 2): A(f'v_mov_b64 {v(O+j,2)}, 0')
        if S == SA: A(mfma(SA, KF(0), QA, CA))
    stamp(A, 8)
    if 'clk' in EXP: stamp(A, 9, True)
    E = lambda S, j: A(f'v_exp_f32 v{S+j}, v{S+j}')
    Cv = lambda S, P, p: A(f'v_cvt_pk_bf16_f32 v{P+p}, v{S+2*p}, v{S+2*p+1}')
    ORD = {'even': 'm0 e0 e1 e2 e3 e4 c0 c1 m1 e5 e6 c2 e7 e8 c3 e9 e10 c4 m2 e11 e12 c5 e13 e14 e15 c6 c7',
           'tight': 'm0 e0 e1 e2 m1 e3 e4 e5 m2 c0 c1 c2 e6 e7 e8 c3 e9 e10 c4 e11 e12 c5 e13 e14 e15 c6 c7',
           'mid': 'm0 e0 e1 e2 c0 m1 e3 e4 e5 c1 m2 c2 e6 e7 e8 c3 e9 e10 c4 e11 e12 c5 e13 e14 e15 c6 c7',
           'two': 'm0 e0 e1 e2 m1 e3 e4 e5 c0 c1 e6 e7 c2 e8 e9 c3 m2 e10 c4 e11 e12 c5 e13 e14 e15 c6 c7'}[os.environ.get('ORD', 'tight')].split()
    def phase(S, P, *m):
        for t in ORD:
            if t[0] == 'm':
                mm = m[int(t[1])]
                if ('nopv' in EXP and t[1] != '0') or ('noqk' in EXP and t[1] == '0'): mm = 's_nop 0\ns_nop 0\n' + '\n'.join(mm.split('\n')[1:])
                A(mm)
            elif t[0] == 'e' and 'noexp' in EXP: A('s_nop 1')
            elif t[0] == 'e': E(S, int(t[1:]))
            else: Cv(S, P, int(t[1:]))
    if os.environ.get('CPRIO'): A('s_setprio ' + os.environ['CPRIO'])
    A('s_nop 0\n.p2align 3\nLA_loop:')
    for t in range(NT):
        kb = t & 1
        o = t * 2048
        phase(SA, PA,
              mfma(SB, KF(kb), QB, CB) + f'\nds_read_b128 {v(KF(kb),4)}, v2 offset:{o+4096}',
              mfma(OB, VF(0), PB, OB) + f'\nds_read_b128 {v(VF(0),4)}, v3 offset:{o+1024}',
              mfma(OB, VF(1), PB + 4, OB) + f'\nds_read_b128 {v(VF(1),4)}, v3 offset:{o+1280}')
        tail = ''
        if t == NT - 2: tail = f'\ns_add_u32 {s(sIt)}, {s(sIt)}, 1'
        if t == NT - 1: tail = f'\ns_cmp_lt_u32 {s(sIt)}, s51\nv_add_u32 v2, {NT*2048}, v2\nv_add_u32 v3, v4, v3'
        phase(SB, PB,
              mfma(SA, KF(kb ^ 1), QA, CA) + '\ns_waitcnt lgkmcnt(1)',
              mfma(OA, VF(0), PA, OA) + '\ns_waitcnt lgkmcnt(0)',
              mfma(OA, VF(1), PA + 4, OA) + tail)
    if STAMP and 'atr' in EXP:
        A(f's_memtime s[78:79]\ns_add_u32 m0, {s(sIt)}, 15\ns_waitcnt lgkmcnt(0)\nv_writelane_b32 v144, s78, m0\ns_cmp_lt_u32 {s(sIt)}, s51')
    A(f'''
    s_cbranch_scc1 LA_loop
    s_cmp_eq_u32 s51, {64//NT}
    s_cbranch_scc1 LA_fini
    s_cmp_eq_u32 s51, 1
    s_cselect_b32 s51, 4, {64//NT}
    s_cselect_b32 s47, 4, 0
    s_add_u32 s47, s47, {L_FLAG}
    v_mov_b32 v5, s47
    s_mov_b32 s47, 0
LA_kvw:
    ds_read_b32 v6, v5 offset:8
    s_add_u32 s47, s47, 1
    s_waitcnt lgkmcnt(0)
    v_cmp_ne_u32 vcc, 4, v6
    s_cbranch_vccz LA_loop
    s_cmp_lt_u32 s47, {SPIN * 16}
    s_cbranch_scc1 LA_kvw
    s_branch LA_loop
LA_fini:''')
    A(mfma(OB, VF(0), PB, OB))
    A(mfma(OB, VF(1), PB + 4, OB))
    stamp(A, 11)
    if 'clk' in EXP:
        stamp(A, 10, True)
        A('s_sub_u32 s90, s90, s89\ns_add_u32 s90, s90, s80\ns_mov_b32 s89, 0')
    A('LA_fin:')
    A(f'v_add_f32 v{SA}, |v{OA}|, |v{OA+1}|')
    for j in range(2, 8): A(f'v_add_f32 v{SA}, v{SA}, |v{OA+j}|')
    A(f'''
    v_cmp_gt_f32 vcc, s54, v{SA}
    v_cmp_lt_f32 s[58:59], s55, v{SA}
    v_cmp_gt_f32 s[60:61], s56, v{OA+8}
    s_and_b64 vcc, vcc, s[58:59]
    s_and_b64 vcc, vcc, s[60:61]
    s_cmp_eq_u64 vcc, -1
    s_cbranch_scc0 LA_fallback
LA_norm:
    v_rcp_f32 v{OA+8}, v{OA+8}
    s_nop 0
    ''')
    for j in range(8): A(f'v_mul_f32 v{OA+j}, v{OA+j}, v{OA+8}')
    for p in range(4): A(f'v_cvt_pk_bf16_f32 v{PA+p}, v{OA+2*p}, v{OA+2*p+1}')
    A(f'''
    v_min_u32 v{PA}, -2, v{PA}
    buffer_store_dwordx4 {v(PA,4)}, v1, {s(sWS,4)}, s66 offen sc1
    s_cmp_eq_u32 s57, 1
    s_cbranch_scc1 LA_done
    s_mov_b32 s57, 1
    s_add_u32 s66, s66, 0x8000
    ''')
    for j in range(0, 10, 2): A(f'v_mov_b64 {v(OA+j,2)}, {v(OB+j,2)}')
    for j in range(0, 4, 2): A(f'v_mov_b64 {v(QA+j,2)}, {v(QB+j,2)}')
    A('s_branch LA_fin\nLA_done:')
    stamp(A, 12)
    stamp_end(A, sWS, sW, tr=144)
    A('s_endpgm')
    A(f'''
LA_fallback:
    v_mov_b32 v{CA}, 0xff800000
    v_mov_b32 v2, v1
    s_mov_b32 {s(sIt)}, 0
LA_fb1:
    ds_read_b128 {v(KF(0),4)}, v2
    v_add_u32 v2, 0x800, v2
    s_waitcnt lgkmcnt(0)
    ''')
    A(mfma(SA, KF(0), QA, None))
    A('s_nop 11')
    for j in range(0, 16, 2): A(f'v_max3_f32 v{CA}, v{CA}, v{SA+j}, v{SA+j+1}')
    A(f'''
    s_add_u32 {s(sIt)}, {s(sIt)}, 1
    s_cmp_lt_u32 {s(sIt)}, 64
    s_cbranch_scc1 LA_fb1
    v_mov_b32 v{CA+1}, v{CA}
    v_cmp_eq_u32 vcc, 0, v4
    v_lshrrev_b32 v6, {NT.bit_length()-1}, v4
    v_permlane32_swap_b32 v{CA}, v{CA+1}
    v_max_f32 v{CA}, v{CA}, v{CA+1}
    v_sub_f32 v{CA}, 0, v{CA}
    v_cndmask_b32 v3, v1, v3, vcc
    ''')
    for j in range(1, 16): A(f'v_mov_b32 v{CA+j}, v{CA}')
    for j in range(0, 16, 2): A(f'v_mov_b64 {v(OA+j,2)}, 0')
    A(f'''
    v_mov_b32 v2, v1
    s_mov_b32 {s(sIt)}, 0
LA_fb2:
    ds_read_b128 {v(KF(0),4)}, v2
    ds_read_b128 {v(VF(0),4)}, v3 offset:1024
    ds_read_b128 {v(VF(1),4)}, v3 offset:1280
    v_add_u32 v2, 0x800, v2
    v_add_u32 v3, v6, v3
    s_waitcnt lgkmcnt(0)
    ''')
    A(mfma(SA, KF(0), QA, CA))
    A('s_nop 11')
    for j in range(16): E(SA, j)
    A('s_nop 0')
    for p in range(8): Cv(SA, PA, p)
    A('s_nop 1')
    A(mfma(OA, VF(0), PA, OA)); A(mfma(OA, VF(1), PA + 4, OA))
    A(f'''
    s_add_u32 {s(sIt)}, {s(sIt)}, 1
    s_cmp_lt_u32 {s(sIt)}, 64
    s_cbranch_scc1 LA_fb2
    s_nop 11
    s_branch LA_norm
    ''')
    vvariant()

def main(out):
    A = Asm()
    top = f'''; out = x + (MHA(LN x) @ wo) * silu(GEGLU-FFN(LN x)); one persistent launch, 256 workgroups (generated by gen/gen6.py)
; @launch grid=(256,1,1) block=(512,1,1) lds={LDS_BYTES}
.amdgcn_target "amdgcn-amd-amdhsa--gfx950"
.text
'''
    gen(A)
    tail = f'''.section .rodata,"a"
.p2align 6
.amdhsa_kernel {NAME}_kernel
  .amdhsa_next_free_vgpr 256
  .amdhsa_next_free_sgpr 100
  .amdhsa_accum_offset 256
  .amdhsa_group_segment_fixed_size 0
  .amdhsa_kernarg_size 80
  .amdhsa_user_sgpr_count 2
  .amdhsa_user_sgpr_kernarg_segment_ptr 1
  .amdhsa_system_sgpr_workgroup_id_x 1
.end_amdhsa_kernel
'''
    open(out, 'w').write(top + A.text() + tail)

if __name__ == '__main__':
    main(sys.argv[1] if len(sys.argv) > 1 else 'cdna_kernels/%s.s' % NAME)
```

```python
import struct, sys, math, os, re

NAME = 'recurrent_scan__mha_block__glu_gated_geglu__prompt'
def f2u(x): return struct.unpack('<I', struct.pack('<f', x))[0]
def hx(x): return '0x%x' % (x & 0xffffffff)
class Asm:
    def __init__(self): self.l = []; self.shift = 0
    def __call__(self, s):
        if self.shift:
            f = lambda n: str(int(n) + self.shift) if 8 <= int(n) < 100 else n
            s = re.sub(r'\bv(\d+)\b', lambda m: 'v' + f(m.group(1)), s)
            s = re.sub(r'\bv\[(\d+):(\d+)\]', lambda m: 'v[%s:%s]' % (f(m.group(1)), f(m.group(2))), s)
        for line in s.split('\n'):
            line = line.strip()
            if not line: continue
            self.l.append(line if line.endswith(':') or line.startswith('.') else '    ' + line)
    def text(self): return '\n'.join(self.l) + '\n'
def v(a, n=1): return 'v%d' % a if n == 1 else 'v[%d:%d]' % (a, a + n - 1)
def s(a, n=1): return 's%d' % a if n == 1 else 's[%d:%d]' % (a, a + n - 1)
def mfma(d, a, b, c):
    return 'v_mfma_f32_32x32x16_bf16 %s, %s, %s, %s' % (v(d, 16), v(a, 4), v(b, 4), '0' if c is None else v(c, 16))

QF  = 0x000000
KV  = 0x200000
HF  = 0x600000
OF  = 0xD00000
CSP = 0x1200000
RSP = 0x1280000
FL  = 0x13C0000
FH  = 0x13C8000
NW  = 0x13D0000
STB = 0x1400000
WS_BYTES = 0x1500000
LOG2E = 1.4426950408889634
ONES = 0x3f803f80
SPIN = 1 << 18

LIGHT = os.environ.get('STAMP') == '2'
STAMP = os.environ.get('STAMP') == '1'
EXP = set(os.environ.get('EXP', '').split(','))
BIAS = float(os.environ.get('BIAS', '96'))
NFL = int(os.environ.get('NFL', '4'))

TM = 's_memrealtime' if os.environ.get('RT') else 's_memtime'
_seen = set()
def stamp(A, idx, real=False):
    if 'frozen' in EXP and idx in (5, 6, 7, 8, 9, 10, 11, 12) and not any('L_C:' == x for x in A.l): return
    if not STAMP and not (LIGHT and idx in (0, 13, 14, 15)): return
    if 'e1' in EXP and A.l and any('L_C:' == x for x in A.l):
        if idx in _seen: return
        _seen.add(idx)
    A('%s s[78:79]\ns_waitcnt lgkmcnt(0)\ns_mov_b32 s%d, s78' % ('s_memrealtime' if real or os.environ.get('RT') else 's_memtime', 80 + idx))
AMP = os.environ.get('AMP')
def amp(A, name):
    if AMP == name: A('s_memrealtime s[78:79]\ns_waitcnt lgkmcnt(0)\ns_mov_b32 s97, s78')
def stamp_begin(A):
    if AMP: A('s_memrealtime s[78:79]\ns_waitcnt lgkmcnt(0)\ns_mov_b32 s96, s78\ns_mov_b32 s97, s78')
    if not STAMP and not LIGHT: return
    for i in range(16): A('s_mov_b32 s%d, 0' % (80 + i))
    stamp(A, 14, True); stamp(A, 0)
def stamp_end(A, sWS, sW, vt=3, tr=None):
    if not STAMP and not (LIGHT and tr is None): return
    A('s_waitcnt vmcnt(0)')
    stamp(A, 13); stamp(A, 15, True)
    A('s_nop 4')
    if tr is not None: A('v_mov_b32 v%d, v%d' % (vt, tr))
    for i in range(16): A('v_writelane_b32 v%d, s%d, %d' % (vt, 80 + i, i))
    A('''s_lshl_b32 s78, s2, 3
    s_add_u32 s78, s78, s%d
    s_lshl_b32 s78, s78, 7
    s_add_u32 s78, s78, %s
    v_lshlrev_b32 v%d, 2, v0
    s_mov_b64 exec, 0xffffffff
    buffer_store_dword v%d, v%d, s[%d:%d], s78 offen''' % (sW, hx(STB), vt + 1, vt, vt + 1, sWS, sWS + 3))

PAN, APAN = 4224, 4352
WST = 2 * PAN + APAN
XST = 16 * 1040
L_X = 6 * WST
L_CS = L_X + 4 * XST
L_RS = L_CS + 10 * 256
L_ONES = 131072
L_EX = L_ONES + 7 * 2048 + 1536
assert L_RS + 1024 <= L_EX
L_H = 98304
L_FLAG = L_EX + 16384
L_NON = L_FLAG + 4
LDS_BYTES = L_FLAG + 64
assert LDS_BYTES <= 163840
NT = 8
BAT = int(os.environ.get('BAT', '3'))
F1N, F1B = [int(t) for t in os.environ.get('F1IT', '2,3').split(',')]
NK1 = int(os.environ.get('NK1', '16'))

sX, sA, sH0, sH1, sWS, sPK, sDBG = 16, 20, 24, 28, 32, 36, 12
sP0, sP1 = 36, 12
sRB, sCG, sW, sHead, sQB = 40, 41, 42, 74, 75

def flag_store(A, soff, vt):
    A(f'''
    s_mov_b64 exec, 1
    buffer_store_dword v{vt}, off, {s(sWS,4)}, {soff} sc1
    s_mov_b64 exec, -1
    ''')

def gen(A):
    K = NAME + '_kernel'
    A(f'.globl {K}\n.p2align 8\n.type {K},@function\n{K}:')
    A('''
    s_cmp_ge_u32 s2, 256
    s_cbranch_scc1 L_end
    ''')
    stamp_begin(A)
    A(f'''
    v_lshrrev_b32 v1, 6, v0
    s_getpc_b64 s[4:5]
L_pc:
    v_readfirstlane_b32 {s(sW)}, v1
    s_and_b32 s47, s2, 0xf8
    s_load_dwordx2 {s(sX,2)}, s[0:1], 0
    s_add_u32 s47, s47, {s(sW)}
    s_lshl_b32 s47, s47, 6
    s_load_dword s6, s[4:5], s47
    s_add_u32 s47, s47, 0x4000
    s_min_u32 s47, s47, L_code_end-L_pc-4
    s_load_dword s7, s[4:5], s47
    s_load_dwordx2 {s(sA,2)}, s[0:1], 8
    s_load_dwordx2 {s(sH0,2)}, s[0:1], 32
    s_load_dwordx2 {s(sH1,2)}, s[0:1], 40
    s_load_dwordx2 {s(sWS,2)}, s[0:1], 72
    v_and_b32 v0, 63, v0
    s_and_b32 s3, s2, 7
    s_lshr_b32 s43, s2, 3
    s_lshr_b32 {s(sRB)}, s3, 2
    s_lshl_b32 {s(sRB)}, {s(sRB)}, 3
    s_and_b32 s70, s43, 7
    s_add_u32 {s(sRB)}, {s(sRB)}, s70
    s_and_b32 {s(sCG)}, s3, 3
    s_lshl_b32 {s(sCG)}, {s(sCG)}, 2
    s_lshr_b32 s71, s43, 3
    s_add_u32 {s(sCG)}, {s(sCG)}, s71
    s_and_b32 s44, {s(sW)}, 3
    s_lshr_b32 s45, s44, 1
    s_and_b32 s46, s44, 1
    s_mov_b32 {s(sWS+2)}, {hx(WS_BYTES)}
    s_mov_b32 {s(sWS+3)}, 0x20000
    s_mov_b32 {s(sX+2)}, 2097152
    s_mov_b32 {s(sX+3)}, 0x20000
    s_mov_b32 {s(sA+2)}, 1572864
    s_mov_b32 {s(sA+3)}, 0x20000
    s_lshl_b32 {s(sHead)}, s3, 2
    s_add_u32 {s(sHead)}, {s(sHead)}, s71
    s_mov_b32 {s(sQB)}, s70
    ''')
    patterns = f'''
    v_bfe_u32 v5, v0, 4, 1
    v_bfe_u32 v6, v0, 2, 2
    v_lshrrev_b32 v7, 5, v0
    v_and_b32 v1, 3, v0
    v_lshlrev_b32 v1, 3, v1
    v_lshl_add_u32 v1, v7, 8, v1
    v_mul_u32_u24 v2, {PAN}, v5
    v_mul_u32_u24 v8, 1056, v6
    v_add3_u32 v2, v2, v8, v1
    v_mul_u32_u24 v8, 1088, v6
    v_lshl_add_u32 v3, v5, 5, v8
    v_add_u32 v3, v3, v1
    v_and_b32 v8, 15, v0
    v_mul_u32_u24 v8, 1040, v8
    v_lshl_add_u32 v4, v5, 8, v8
    v_lshl_add_u32 v4, v7, 4, v4
    s_lshl_b32 s47, s45, 6
    v_add_u32 v2, s47, v2
    s_add_u32 s47, s47, {2*PAN}
    v_add_u32 v3, s47, v3
    '''
    A(f'''
    s_and_b32 s47, {s(sW)}, 6
    s_cmp_eq_u32 s47, 4
    s_cbranch_scc1 L_L
    ''')
    if 'tlb' in EXP:
        A(f'''
        s_load_dwordx2 s[8:9], s[0:1], 16
        s_load_dwordx4 s[12:15], s[0:1], 48
        s_lshl_b32 s47, {s(sW)}, 21
        s_add_u32 s48, s47, {hx(0x400000)}
        s_waitcnt lgkmcnt(0)
        s_load_dword s6, {s(sA,2)}, 0
        s_load_dword s6, {s(sH0,2)}, 0
        s_load_dword s6, {s(sH1,2)}, 0
        s_load_dword s6, {s(sWS,2)}, s47
        s_load_dword s6, {s(sWS,2)}, s48
        s_load_dword s6, s[8:9], 0
        s_load_dword s6, s[12:13], 0
        s_load_dword s6, s[14:15], 0
        ''')
    A(f'''
    s_cmp_lt_u32 {s(sW)}, 4
    s_cbranch_scc1 L_C
    s_branch L_M
L_L:
    ''')
    gen_H(A, patterns)
    gen_C(A, patterns)
    A('L_end:\ns_endpgm\nL_code_end:')

def gen_H(A, patterns):
    A.shift = 104
    sStrH, sColH = 48, 49
    sRowA, sRowH, sMH, sMA, sMX, sXo, sRot, sG = 50, 51, 52, 53, 54, 55, 59, 60
    ROTM = int(os.environ.get('ROTM', '7'))
    sStr, sRowP, sRowA, sRowB, sMA, sMB, sMX, sXo, sRot, sGA, sGB, sJ = 48, 49, 50, 51, 52, 53, 54, 55, 59, 60, 56, 57
    A(f"""
    v_lshrrev_b32 v8, 3, v0
    v_and_b32 v9, 7, v0
    v_lshlrev_b32 v9, 4, v9
    v_and_b32 v13, 4, v8
    v_bfe_u32 v14, v8, 1, 1
    v_and_b32 v15, 1, v8
    v_lshl_add_u32 v14, v15, 1, v14
    v_add_u32 v13, v13, v14
    v_lshl_add_u32 v13, v13, 14, v9
    s_lshl_b32 s47, {s(sRB)}, 17
    s_lshl_b32 s61, s46, 12
    s_add_u32 s47, s47, s61
    v_add_u32 v13, s47, v13
    s_lshl_b32 s62, s71, 1
    s_add_u32 {s(sRot)}, s70, s62
    s_and_b32 s47, s3, 1
    s_add_u32 {s(sRot)}, {s(sRot)}, s47
    s_and_b32 {s(sRot)}, {s(sRot)}, 7
    s_lshl_b32 {s(sXo)}, {s(sRot)}, 7
    s_lshl_b32 {s(sRot)}, {s(sRot)}, 1
    s_mul_i32 s58, s46, 4160
    s_add_u32 s58, s58, {L_X}
    s_mov_b32 {s(sMX)}, s58
    s_mov_b32 {s(sJ)}, 0
    s_and_b32 s64, s3, 3
    s_mul_i32 s65, s64, 7
    s_add_u32 s65, s65, s62
    s_lshl_b32 s65, s65, 7
    s_add_u32 s66, s65, 128
    s_lshl_b32 s64, s64, 8
    s_add_u32 s64, s64, 2048
    s_cmp_lt_u32 s71, 3
    s_mov_b32 {s(sP0+2)}, 1572864
    s_cmov_b32 {s(sP0+2)}, 1835008
    s_mov_b32 {s(sP1+2)}, {1572864-128}
    s_cmov_b32 {s(sP1+2)}, 1835008
    s_mov_b32 {s(sP0+3)}, 0x20000
    s_mov_b32 {s(sP1+3)}, 0x20000
    s_movk_i32 {s(sStr)}, 3072
    s_cmovk_i32 {s(sStr)}, 3584
    s_cselect_b32 s64, s65, s64
    s_cselect_b32 s65, s66, s65
    s_lshl_b32 s47, s46, 1
    v_lshl_add_u32 v10, v8, 2, s47
    v_mul_u32_u24 v11, 3072, v10
    s_lshl_b32 s47, {s(sCG)}, 7
    v_add3_u32 v11, v11, v9, s47
    v_mul_lo_u32 v18, v10, {s(sStr)}
    v_add3_u32 v18, v18, v9, s64
    v_add_u32 v19, {s(sStr)}, v18
    s_lshl_b32 {s(sStr)}, {s(sStr)}, 5
    s_mul_i32 {s(sRowA)}, {s(sRot)}, {32*3072}
    s_mul_i32 {s(sRowP)}, {s(sRot)}, {s(sStr)}
    s_mul_i32 {s(sMA)}, s46, 2112
    s_add_u32 {s(sMA)}, {s(sMA)}, {2*WST}
    s_lshl_b32 s69, s46, 6
    s_mov_b32 {s(sGA)}, 0
    s_waitcnt lgkmcnt(0)
    """)
    sel = f"""
    s_add_u32 s62, {s(sA)}, 128
    s_addc_u32 s63, {s(sA+1)}, 0
    s_cmp_lt_u32 s71, 3
    s_cselect_b64 {s(sP0,2)}, {s(sH0,2)}, {s(sA,2)}
    s_cselect_b64 {s(sP1,2)}, {s(sH1,2)}, s[62:63]
    """
    setup2 = f"""
    s_mov_b32 {s(sH0+2)}, 1835008
    s_mov_b32 {s(sH1+2)}, 1835008
    s_mov_b32 {s(sH0+3)}, 0x20000
    s_mov_b32 {s(sH1+3)}, 0x20000
    v_mul_u32_u24 v16, 3584, v10
    v_add3_u32 v16, v16, v9, s65
    v_add_u32 v17, 3584, v16
    s_add_u32 s47, {s(sRot)}, 14
    s_and_b32 s47, s47, 15
    s_mul_i32 {s(sRowB)}, s47, {32*3584}
    s_mul_i32 {s(sMB)}, s46, 2112
    s_add_u32 {s(sMB)}, {s(sMB)}, {4*WST}
    s_mov_b32 {s(sGB)}, 0
    """
    ops = []
    def call(tag):
        name = {'X': 'LL_X', 'A': 'LL_A', 'B': 'LL_B', 'p': 'LH_pp'}[tag[0]]
        A(f's_call_b64 s[8:9], {name}')
        ops.extend([tag] * {'LL_X': 4, 'LL_A': 6, 'LL_B': 4, 'LH_pp': 4}[name])
    def bar(*need):
        if need:
            assert all(t in ops for t in need), need
            last = max(i for i, t in enumerate(ops) if t in need)
            if len(ops) - 1 - last < 64: A(f's_waitcnt vmcnt({len(ops) - 1 - last})')
        A('s_barrier')
    def bodyX():
        ld = [(f's_add_u32 m0, {s(sMX)}, {16*i}', f'buffer_load_dwordx4 v13, {s(sX,4)}, {s(sXo)} offen offset:{1024*i} lds') for i in range(4)]
        pre = [f's_add_u32 {s(sJ)}, {s(sJ)}, 1', f's_lshr_b32 s67, {s(sJ)}, 1', 's_sub_u32 s68, 11, s67',
               f's_cmp_lt_u32 {s(sJ)}, 16\ns_cselect_b32 s67, s67, s68']
        post = ['s_and_b32 s68, s67, 3\ns_lshl_b32 s68, s68, 1', f's_and_b32 s62, {s(sJ)}, 1\ns_add_u32 s68, s68, s62',
                f's_mul_i32 s68, s68, {XST//2}\ns_add_u32 {s(sMX)}, s68, s58\ns_lshl_b32 s67, s67, 1',
                f's_add_u32 s67, s67, {s(sRot)}\ns_and_b32 s67, s67, 15\ns_lshl_b32 s67, s67, 6\ns_lshl_b32 s62, s62, 13\ns_add_u32 {s(sXo)}, s67, s62']
        return ld, pre, post
    def bodyA():
        ld = [(f's_add_u32 m0, {s(sMA)}, {hf*PAN+1056*bb}', f'buffer_load_dwordx4 v{18+bb}, {s(sP0 if hf == 0 else sP1,4)}, {s(sRowP)} offen lds')
              for hf in range(2) for bb in range(2)]
        ld += [(f's_add_u32 m0, s61, {2*PAN+(1088-3072)*bb}', f'buffer_load_dwordx4 v11, {s(sA,4)}, {s(sRowA)} offen offset:{3072*bb} lds') for bb in range(2)]
        pre = [f's_add_u32 {s(sGA)}, {s(sGA)}, 1', f's_add_u32 s47, {s(sGA)}, {s(sRot)}', 's_and_b32 s47, s47, 15', f's_add_u32 s61, {s(sMA)}, s69',
               f's_mul_i32 {s(sRowP)}, s47, {s(sStr)}\ns_add_u32 {s(sMA)}, {s(sMA)}, {WST}',
               f's_cmp_ge_u32 {s(sMA)}, {4*WST}\ns_cselect_b32 s63, {4*WST}, 0\ns_sub_u32 {s(sMA)}, {s(sMA)}, s63']
        post = [f's_mul_i32 {s(sRowA)}, s47, {32*3072}']
        return ld, pre, post
    def bodyB():
        ld = [(f's_add_u32 m0, {s(sMB)}, {hf*PAN+1056*bb}', f'buffer_load_dwordx4 v{16+bb}, {s(sH0 if hf == 0 else sH1,4)}, {s(sRowB)} offen lds')
              for hf in range(2) for bb in range(2)]
        pre = [f's_add_u32 {s(sGB)}, {s(sGB)}, 1', f's_xor_b32 s47, {s(sGB)}, 14', f's_add_u32 s47, s47, {s(sRot)}\ns_and_b32 s47, s47, 15',
               f's_bitcmp1_b32 {s(sGB)}, 0\ns_mov_b32 s63, {3*WST}\ns_cmov_b32 s63, {WST}\ns_add_u32 {s(sMB)}, {s(sMB)}, s63\ns_cmp_ge_u32 {s(sMB)}, {6*WST}\ns_cselect_b32 s63, {6*WST}, 0\ns_sub_u32 {s(sMB)}, {s(sMB)}, s63']
        post = [f's_mul_i32 {s(sRowB)}, s47, {32*3584}']
        return ld, pre, post
    def emit(*bodies):
        carry = []
        for ld, pre, post in bodies:
            for i, (m, l) in enumerate(ld):
                A(m); A(pre[i])
                if carry: A(carry.pop(0))
                A(l)
            for t in carry: A(t)
            carry = list(post)
        for t in carry: A(t)
    if 'st0' in EXP: stamp(A, 9)
    call('X0'); A(sel)
    if 'st0' in EXP: stamp(A, 10)
    call('X1')
    if 'st0' in EXP: stamp(A, 7)
    call('A0')
    if 'st0' in EXP: stamp(A, 6)
    if not os.environ.get('PRE'): call('A1')
    if 'st0' in EXP: stamp(A, 11)
    A('s_branch LL_go\nLL_X:')
    emit(bodyX())
    A('s_setpc_b64 s[8:9]\nLL_A:')
    emit(bodyA())
    A('s_setpc_b64 s[8:9]\nLL_go:')
    A(setup2)
    A('s_call_b64 s[8:9], LH_prep')
    if 'st0' in EXP:
        stamp(A, 12); A('s_waitcnt vmcnt(12)'); stamp(A, 8); A('s_waitcnt vmcnt(6)'); stamp(A, 5); EXP.add('frozen')
    if os.environ.get('PRE'):
        A('s_waitcnt vmcnt(%s)' % os.environ.get('PREW', '6'))
        for t in os.environ['PRE'].split(','): call(t)
    def need(c):
        n = [f'A{c}' if c < 16 else f'B{c-16}']
        if c % 2 == 0 and c < 16: n += [f'X{c}', f'X{c+1}']
        if c % 2 == 0 and c >= 24: n += [f'X{c-8}', f'X{c-7}']
        if c == BAT: n += ['B0', 'B1']
        return n
    def dist(c):
        return len(ops) - 1 - max(i for i, t in enumerate(ops) if t in need(c))
    def loop(label, c0, c1, second, cnt, lim):
        A(f's_waitcnt vmcnt({dist(c0)})\n{label}:\ns_barrier')
        emit(bodyX(), second())
        w = 63
        for c in range(c0, c1 + 1):
            ops.extend([f'X{c+4 if c < 16 else c-XO}'] * 4 + ([f'A{c+3}'] * 6 if c < 16 else [f'B{c-BO}'] * 4))
            if c < c1: w = min(w, dist(c + 1))
        A(f's_cmp_lt_u32 {cnt}, {lim}\ns_waitcnt vmcnt({w})\ns_cbranch_scc1 {label}')
    sched = {0: 'X2,X3,A2', 1: 'B0,B1,A3,X4,X5,A4', 12: 'A15', 13: 'B2', 14: 'B3', 15: 'B4', 16: 'B5', 17: 'B6', 26: 'B15'}
    LB = os.environ.get('LB', 'mid')
    if LB == 'early': LB0, LB1, XO, BO = 18, 25, 2, 11
    elif LB == 'mid':
        LB0, LB1, XO, BO = 20, 26, 3, 12
        sched.update({18: 'X16', 19: 'B7', 27: 'B15'}); del sched[26]
    else:
        LB0, LB1, XO, BO = 21, 26, 3, 13
        sched.update({18: 'X16', 19: 'B7', 20: 'X17', 27: 'B14,B15'}); del sched[26]
    if os.environ.get('LS0'): sched[0], sched[1] = os.environ['LS0'].split('/')
    c = 0
    while c < 32:
        if c == 2:
            loop('LL_loopA', 2, 11, bodyA, s(sGA), 15); c = 12; continue
        if c == LB0:
            loop('LL_loopB', LB0, LB1, bodyB, s(sGB), LB1 - BO + 1); c = LB1 + 1; continue
        bar(*need(c))
        amp(A, f'b{c}')
        if c == 28:
            A(f"""
    v_mov_b32 v9, {L_NON}
    ds_read_b32 v3, v9
    s_mov_b32 s52, {hx(FL)}
    s_lshl_b32 s61, {s(sHead)}, 3
    s_add_u32 s61, s61, {s(sQB)}
    s_lshl_b32 s61, s61, 13
    s_lshl_b32 s47, s46, 12
    s_add_u32 s61, s61, s47
    s_lshl_b32 s62, s46, 13
    s_add_u32 s62, s62, {L_ONES+512}
    s_lshl_b32 s63, s46, 10
    s_lshl_b32 s47, {s(sHead)}, 17
    s_add_u32 s47, s47, {hx(KV)}
    s_add_u32 s47, s47, s63
    s_mov_b32 s53, 0
    """)
        if c == int(os.environ.get('EARLYC', '30')):
            A(f"""
    s_cmp_ge_u32 s71, {os.environ.get('EARLYJ', '0')}
    s_cselect_b32 s55, s52, 0x2000000
    buffer_load_dword v241, v251, {s(sWS,4)}, s55 offen sc1
    """)
            ops.append('poll')
        for t in sched.get(c, '').split(','):
            if t: call(t)
        c += 1
    A(f"""
    s_setprio 2
    s_barrier
    s_cmp_eq_u32 s55, s52
    s_cbranch_scc1 LL_f1c
    s_sleep {os.environ.get('SL1', '6')}
LL_f1:
    buffer_load_dword v241, v251, {s(sWS,4)}, s52 offen sc1
LL_f1c:
    s_add_u32 s53, s53, 1
    s_waitcnt vmcnt(0) lgkmcnt(0)
    v_cmp_ne_u32 vcc, v3, v241
    s_cbranch_vccz LL_f1ok
    s_sleep 4
    s_cmp_lt_u32 s53, {SPIN}
    s_cbranch_scc1 LL_f1
LL_f1ok:
    """)
    stamp(A, 1)
    if STAMP: A('s_add_u32 s82, s53, s80')
    A('s_call_b64 s[8:9], LL_qkv\ns_branch LH_join\nLL_qkv:')
    for i in range(4):
        A(f's_add_u32 m0, s62, {1024*i}\ns_nop 0\nbuffer_load_dwordx4 v1, {s(sWS,4)}, s61 offen offset:{1024*i} sc1 lds')
    A(f"""
    s_mov_b32 m0, s63
    s_nop 0
LL_kv:
    buffer_load_dwordx4 v1, {s(sWS,4)}, s47 offen sc1 lds
    buffer_load_dwordx4 v1, {s(sWS,4)}, s47 offen offset:2048 sc1 lds
    s_add_u32 m0, m0, 4096
    s_add_u32 s47, s47, 4096
    s_cmp_lt_u32 m0, 20480
    s_cbranch_scc1 LL_kv
    s_setpc_b64 s[8:9]
LL_B:
    """)
    emit(bodyB())
    A(f"""
    s_setpc_b64 s[8:9]
    """)
    CS, RS = 16, 24
    WF, XF = 32, 52
    sOne = 73
    A(f"""
L_M:
    s_setprio {os.environ.get('MPRIO', '0')}
    s_mov_b32 s45, s46
    """)
    A(patterns)
    A(f"""
    s_mov_b32 s45, 1
    s_mov_b32 {s(sOne)}, {hx(ONES)}
    s_lshl_b32 s47, s46, 9
    s_add_u32 s47, s47, {L_X}
    v_add_u32 v4, s47, v4
    v_lshlrev_b32 v1, 4, v0
    s_mov_b32 s50, 0
    """)
    for i in range(16, 28, 2): A(f'v_mov_b64 {v(i,2)}, 0')
    A(f's_mov_b32 s47, {hx(NW)}\ns_waitcnt lgkmcnt(0)\nbuffer_load_dword v30, off, {s(sWS,4)}, s47 sc1')
    nb = -1
    def bars(upto):
        nonlocal nb
        while nb < upto:
            A('s_barrier'); nb += 1
    A('s_call_b64 s[8:9], LH_prep')
    if 'st0' in EXP:
        EXP.discard('frozen'); stamp(A, 9); EXP.add('frozen')
    XF = 44
    A(f"""
    v_add_u32 v10, {4*WST}, v2
    v_add_u32 v2, {2*WST}, v2
    v_add_u32 v3, {2*WST}, v3
LM_stat:
    s_bitcmp1_b32 s50, 0
    s_cbranch_scc1 LM_nobar
    s_barrier
LM_nobar:
    ds_read_b128 {v(XF,4)}, v4
    ds_read_b128 {v(XF+4,4)}, v4 offset:128
    ds_read_b64_tr_b16 {v(WF,2)}, v3
    ds_read_b64_tr_b16 {v(WF+2,2)}, v3 offset:128
    """)
    for u in range(2):
        A(f'ds_read_b64_tr_b16 {v(WF+4+4*u,2)}, v2 offset:{u*32}')
        A(f'ds_read_b64_tr_b16 {v(WF+6+4*u,2)}, v2 offset:{u*32+128}')
    A(f"""
    s_movk_i32 s47, 512
    s_cmovk_i32 s47, {WST-512}
    v_add_u32 v2, s47, v2
    v_add_u32 v3, s47, v3
    v_add_u32 v4, 32, v4
    s_add_u32 s50, s50, 1
    s_waitcnt lgkmcnt(6)
    """)
    for j in range(4):
        for T in range(2):
            A(f'v_dot2c_f32_bf16 v{RS+2*T}, {s(sOne)}, v{XF+4*T+j}')
            A(f'v_dot2c_f32_bf16 v{RS+2*T+1}, v{XF+4*T+j}, v{XF+4*T+j}')
    A('s_waitcnt lgkmcnt(0)')
    for j in range(4):
        for i in range(3):
            A(f'v_dot2c_f32_bf16 v{CS+i}, {s(sOne)}, v{WF+4*i+j}')
    A(f"""
    s_cmp_lt_u32 s50, 4
    s_cbranch_scc1 LM_stat
    s_barrier
    """)
    nb = 2
    bars(BAT)
    for q in range(4):
        for u in range(2):
            for rd in range(2):
                A(f'ds_read_b64_tr_b16 {v(WF+8*q+4*u+2*rd,2)}, v10 offset:{(q>>1)*WST+(4*(q&1)+rd)*128+u*32}')
        if q == 2: A('s_waitcnt lgkmcnt(4)')
    A(f"""
    s_lshl_b32 s50, {s(sCG)}, 4
    s_add_u32 s50, s50, {s(sRB)}
    s_lshl_b32 s50, s50, 1
    s_add_u32 s50, s50, s46
    s_lshl_b32 s50, s50, 10
    s_add_u32 s50, s50, {hx(CSP)}
    s_lshl_b32 s51, {s(sRB)}, 4
    s_add_u32 s51, s51, {s(sCG)}
    s_lshl_b32 s51, s51, 1
    s_add_u32 s51, s51, s46
    s_lshl_b32 s51, s51, 10
    s_add_u32 s51, s51, {hx(RSP)}
    s_waitcnt lgkmcnt(0)
    """)
    for hh in range(2):
        for q in (2 * hh, 2 * hh + 1):
            for j in range(4):
                for u in range(2):
                    r = WF + 8 * q + 4 * u + j
                    A(f'v_lshlrev_b32 v28, 16, v{r}\nv_and_b32 v29, 0xffff0000, v{r}\nv_add_f32 v{CS+3+u}, v{CS+3+u}, v28\nv_add_f32 v{CS+5+u}, v{CS+5+u}, v29')
        bars(nb + 1)
    A(f"""
    v_add_f32 v{CS+3}, v{CS+3}, v{CS+5}
    v_add_f32 v{CS+4}, v{CS+4}, v{CS+6}
    s_mov_b32 s47, 1664525
    s_waitcnt vmcnt(0)
    v_mul_lo_u32 v30, v30, s47
    v_add_u32 v30, 1013904223, v30
    """)
    for i in range(5): A(f'v_mov_b32 v{WF+i}, v{CS+i}')
    for i in range(4): A(f'v_mov_b32 v{WF+8+i}, v{RS+i}')
    A('v_cmp_gt_u32 vcc, 32, v0')
    for i in range(5): A(f'v_permlane32_swap_b32 v{CS+i}, v{WF+i}')
    for i in range(4): A(f'v_permlane32_swap_b32 v{RS+i}, v{WF+8+i}')
    for i in range(5): A(f'v_add_f32 v{CS+i}, v{CS+i}, v{WF+i}')
    for i in range(4): A(f'v_add_f32 v{RS+i}, v{RS+i}, v{WF+8+i}')
    A(f"""
    v_cndmask_b32 v{CS}, v{CS+3}, v{CS}, vcc
    v_cndmask_b32 v{CS+1}, v{CS+4}, v{CS+1}, vcc
    v_mov_b32 v{CS+3}, v30
    v_cndmask_b32 v{RS}, v{RS+2}, v{RS}, vcc
    v_cndmask_b32 v{RS+1}, v{RS+3}, v{RS+1}, vcc
    v_mov_b32 v{RS+3}, v30
    buffer_store_dwordx4 {v(CS,4)}, v1, {s(sWS,4)}, s50 offen sc1
    buffer_store_dwordx4 {v(RS,4)}, v1, {s(sWS,4)}, s51 offen sc1
    """)
    bars(nb + 1)
    A(f"""
    s_and_b32 s50, s50, {hx(~0x3800)}
    s_and_b32 s51, s51, {hx(~0x3800)}
    v_lshlrev_b32 v8, 2, v0
    v_mov_b32 v9, {L_FLAG}
    v_mov_b32 v29, 0
    ds_write_b32 v9, v29
    ds_write_b32 v9, v30 offset:4
    v_mov_b32 v28, 0
    ds_write_b64 v9, v[28:29] offset:16
    ds_write_b64 v9, v[28:29] offset:24
    """)
    B_GAT, B_RED = [int(t) for t in os.environ.get('MSCHED', '11,15').split(',')]
    A(f"""
    v_mov_b32 v3, v30
    s_lshl_b32 s54, {s(sQB)}, 3
    s_lshl_b32 s62, s46, 2
    s_add_u32 s54, s54, s62
    s_lshl_b32 s54, s54, 5
    s_add_u32 s54, s54, {s(sHead)}
    s_lshl_b32 s54, s54, 10
    s_add_u32 s54, s54, {hx(OF)}
    """)
    for n in range(4):
        A(f'buffer_store_dwordx4 v[236:239], v1, {s(sWS,4)}, s54 offen sc1\ns_add_u32 s54, s54, 0x8000')
        bars(nb + 1)
    bars(B_GAT)
    GC, GR = 32, 64
    A('s_mov_b32 s53, 0\nLM_gat:\ns_mov_b32 s47, s50\ns_mov_b32 s61, s51')
    for i in range(8):
        A(f'buffer_load_dwordx4 {v(GR+4*i,4)}, v1, {s(sWS,4)}, s61 offen offset:{2048*(i&1)} sc1')
        A(f'buffer_load_dwordx4 {v(GC+4*i,4)}, v1, {s(sWS,4)}, s47 offen offset:{2048*(i&1)} sc1')
        if i & 1 and i < 7: A('s_add_u32 s47, s47, 4096\ns_add_u32 s61, s61, 4096')
    A('s_cmp_lg_u32 s53, 0\ns_cbranch_scc1 LM_chk')
    bars(B_RED - 1)
    A('LM_chk:\ns_waitcnt vmcnt(0)\ns_add_u32 s53, s53, 1')
    A(f'v_xor_b32 v10, v30, v{GC+3}')
    for r in [GC + 4 * i + 3 for i in range(1, 16)]:
        A(f'v_xor_b32 v11, v30, v{r}\nv_or_b32 v10, v10, v11')
    A(f"""
    v_cmp_ne_u32 vcc, 0, v10
    s_cbranch_vccz LM_red
    s_cmp_lt_u32 s53, {SPIN}
    s_cbranch_scc1 LM_gat
LM_red:
    """)
    stamp(A, 1)
    for i in range(1, 8):
        for t in range(3):
            if t < 2: A(f'v_add_f32 v{GR+t}, v{GR+t}, v{GR+4*i+t}')
            A(f'v_add_f32 v{GC+t}, v{GC+t}, v{GC+4*i+t}')
    bars(B_RED)
    SUM, SQ = GR, GR + 1
    A(f"""
    s_mul_i32 s47, s46, {5*256}
    s_add_u32 s47, s47, {L_CS}
    v_add_u32 v10, s47, v8
    s_lshl_b32 s47, s46, 9
    s_add_u32 s47, s47, {L_RS}
    v_lshl_add_u32 v9, v0, 3, s47
    v_cmp_gt_u32 vcc, 32, v0
    v_mul_f32 v{SUM}, {hx(f2u(-1.0/512))}, v{SUM}
    v_mul_f32 v{SQ}, {hx(f2u(1.0/512))}, v{SQ}
    v_fma_f32 v{SQ}, -v{SUM}, v{SUM}, v{SQ}
    v_max_f32 v{SQ}, 0, v{SQ}
    v_cvt_pk_bf16_f32 v{SQ}, v{SQ}, v{SQ}
    v_and_b32 v{SQ}, 0xffff0000, v{SQ}
    v_add_f32 v{SQ}, {hx(f2u(1e-5))}, v{SQ}
    v_cvt_pk_bf16_f32 v{SQ}, v{SQ}, v{SQ}
    v_and_b32 v{SQ}, 0xffff0000, v{SQ}
    v_sqrt_f32 v{SQ}, v{SQ}
    v_cvt_pk_bf16_f32 v{SUM}, v{SUM}, v{SUM}
    v_cvt_pk_bf16_f32 v{SQ}, v{SQ}, v{SQ}
    v_and_b32 v{SQ}, 0xffff0000, v{SQ}
    ds_write_b64 v9, {v(SUM,2)}
    """)
    for t in range(3):
        A(f"""
        v_cvt_pk_bf16_f32 v28, v{GC+t}, v{GC+t}
        v_and_b32 v28, 0xffff0000, v28
        v_sub_f32 v29, v{GC+t}, v28
        v_cvt_pk_bf16_f32 v28, v28, v29
        v_cndmask_b32 v{16+t}, 0, v28, vcc
        ds_write_b32 v10, v{16+t} offset:{t*256}
        """)
        if t < 2: A(f'v_sub_u32 v{20+t}, v28, v{16+t}\nds_write_b32 v10, v{20+t} offset:{(3+t)*256}')
    A('s_waitcnt lgkmcnt(0)')
    stamp(A, 2)
    assert nb <= 15
    A(f"""
    s_lshl_b32 s51, s2, 7
    s_add_u32 s51, s51, {hx(FL)}
    s_cmp_lg_u32 s46, 0
    s_cmov_b32 s51, 0x2000000
    s_mov_b32 s52, 0x2000000
    s_cmp_eq_u32 s71, 3
    s_cselect_b32 s53, s51, s52
    s_cselect_b32 s51, s52, s51
    """)
    bars(16 + 2 * F1N + 1)
    flag_store(A, 's51', 3)
    bars(16 + 2 * F1B + 1)
    flag_store(A, 's53', 3)
    bars(int(os.environ.get('WPF', '28')))
    if 'nowpf' not in EXP:
        A(f"""
        s_load_dwordx2 {s(sH0,2)}, s[0:1], 16
        s_mov_b32 {s(sH0+2)}, 524288
        s_mov_b32 {s(sH0+3)}, 0x20000
        s_lshl_b32 s47, s71, 1
        s_add_u32 s47, s47, s46
        s_lshl_b32 s47, s47, 16
        s_lshl_b32 s61, s70, 7
        s_add_u32 s47, s47, s61
        v_lshlrev_b32 v8, 10, v0
        s_waitcnt lgkmcnt(0)
        buffer_load_dword v241, v8, {s(sH0,4)}, s47 offen
        """)
    bars(32)
    A('s_setprio 2')
    A.shift = 0
    A(f"""
LH_join:
    s_call_b64 s[8:9], LH_prep2
    s_lshl_b32 s61, {s(sRB)}, 2
    s_lshl_b32 s62, s46, 1
    s_add_u32 s61, s61, s62
    s_mul_i32 s61, s61, 112
    s_and_b32 s62, s3, 3
    s_mul_i32 s62, s62, 28
    s_add_u32 s61, s61, s62
    s_lshl_b32 s62, s71, 3
    s_add_u32 s61, s61, s62
    s_lshl_b32 s62, s45, 1
    s_add_u32 s61, s61, s62
    s_lshl_b32 s61, s61, 10
    s_add_u32 s64, s61, {hx(HF)}
    s_add_u32 s66, s64, 4096
    s_cmp_eq_u32 s71, 3
    s_cselect_b32 s66, s64, s66
    s_add_u32 s67, s66, {112*1024}
    s_and_b32 s47, s3, 3
    s_lshl_b32 s47, s47, 2
    s_add_u32 s47, s47, s45
    s_lshl_b32 s47, s47, 7
    s_lshl_b32 s62, s46, 4
    s_add_u32 s47, s47, s62
    s_add_u32 s47, s47, {s(sRB)}
    s_lshl_b32 s47, s47, 11
    s_add_u32 s47, s47, {hx(KV+32*2048+1024)}
    s_cmp_eq_u32 s71, 3
    s_cselect_b32 s4, s47, s64
    s_movk_i32 s5, 1024
    s_cmov_b32 s5, {4*64*2048}
    s_mov_b32 s6, {112*1024}
    s_cmov_b32 s6, {64*2048}
    s_add_u32 s6, s6, s4
    s_add_u32 s7, s6, s5
    s_add_u32 s5, s5, s4
    s_lshl_b32 s63, s2, 7
    s_lshl_b32 s62, s44, 2
    s_add_u32 s61, s63, s62
    s_add_u32 s61, s61, {hx(FH)}
    s_lshl_b32 s50, s3, 3
    s_lshl_b32 s47, s71, 1
    s_add_u32 s50, s50, s47
    s_add_u32 s50, s50, s46
    s_lshl_b32 s51, s70, 1
    s_add_u32 s51, s51, s45
    s_mul_i32 s47, s44, {28*1024}
    s_add_u32 s47, s47, {hx(HF)}
    s_mul_i32 s56, s50, {112*1024}
    s_add_u32 s56, s56, s47
    s_xor_b32 s57, s50, 1
    s_mul_i32 s57, s57, {112*1024}
    s_add_u32 s57, s57, s47
    s_mul_i32 s58, s44, {28*16384}
    s_lshl_b32 s47, s71, 1
    s_add_u32 s59, s70, s47
    s_cmp_ge_u32 s59, 7
    s_cselect_b32 s47, 7, 0
    s_sub_u32 s59, s59, s47
    s_lshl_b32 s59, s59, 12
    s_mov_b32 s49, {hx(FH)}
    s_lshl_b32 s54, s50, 15
    s_lshl_b32 s47, s51, 6
    s_add_u32 s54, s54, s47
    s_load_dwordx2 {s(sA,2)}, s[0:1], 56
    s_load_dwordx2 {s(sPK,2)}, s[0:1], 48
    s_load_dwordx2 {s(sH0,2)}, s[0:1], 16
    s_mov_b32 {s(sA+2)}, 2097152
    s_mov_b32 {s(sPK+2)}, 1835008
    s_mov_b32 {s(sPK+3)}, 0x20000
    s_mov_b32 {s(sH0+2)}, 524288
    s_mov_b32 {s(sH0+3)}, 0x20000
    s_waitcnt vmcnt(0) lgkmcnt(0)
    """)
    A(f"""
    s_lshl_b32 s63, s44, 10
    s_lshl_b32 s47, {s(sHead)}, 17
    s_add_u32 s47, s47, {hx(KV+20480)}
    s_add_u32 s47, s47, s63
    s_add_u32 m0, s63, 20480
    """)
    stamp(A, 3)
    A('s_barrier')
    amp(A, 'B1')
    A('s_cmp_eq_u32 s71, 3\ns_cbranch_scc1 LH_vr')
    for n in range(4): A(f'ds_read_b128 {v(96+4*n,4)}, v248 offset:{n*4096}')
    A('s_branch LH_hr\nLH_vr:')
    for n in range(4):
        for rd in range(2): A(f'ds_read_b64_tr_b16 {v(96+4*n+2*rd,2)}, v230 offset:{n*4096+64*rd}')
    A('LH_hr:')
    for n in range(4, 8): A(f'ds_read_b128 {v(96+4*n,4)}, v248 offset:{n*4096}')
    level = lambda n: f'v_mov_b32 v241, {n}\nds_write_b32 v229, v241'
    A(f's_mov_b32 s48, {9*4096}\ns_call_b64 s[8:9], LH_kv')
    for n in range(8):
        A(f's_waitcnt lgkmcnt({min(7-n,4)})\nbuffer_store_dwordx4 {v(96+4*n,4)}, v1, {s(sWS,4)}, ' + (f's{4+n} offen sc1' if n < 4 else f's{64+(n>>1)} offen offset:{(n&1)*1024} sc1'))
    A('s_waitcnt vmcnt(8)\n' + level(2))
    A(f's_mov_b32 s48, {17*4096}\ns_call_b64 s[8:9], LH_kv\ns_waitcnt vmcnt(8)')
    stamp(A, 4)
    A(f"""
    s_or_b32 s62, s44, s2
    s_mov_b32 s62, {hx(NW)}
    s_cmov_b32 s62, 0x2000000
    s_mov_b64 exec, 1
    buffer_store_dword v3, off, {s(sWS,4)}, s61 sc1
    buffer_store_dword v3, off, {s(sWS,4)}, s62 sc1
    s_mov_b64 exec, -1
    s_waitcnt vmcnt(2)
    {level(4)}
    s_lshl_b32 s55, s44, 17
LH_wo:
    buffer_load_dwordx4 v242, {s(sH0,4)}, s55 offen lds
    s_add_u32 m0, m0, 4096
    s_add_u32 s55, s55, 8192
    s_cmp_lt_u32 m0, 131072
    s_cbranch_scc1 LH_wo
    s_mov_b32 m0, s60
    s_sub_u32 s62, s63, s60
    buffer_load_dwordx4 v242, {s(sH0,4)}, s55 offen lds
    buffer_load_dwordx4 v[88:91], v249, {s(sX,4)}, s54 offen
    buffer_load_dwordx4 v[92:95], v249, {s(sX,4)}, s54 offen offset:32
    s_lshl_b32 s55, s59, 4
    s_add_u32 s55, s55, s58
    s_lshl_b32 s48, s70, 7
    s_add_u32 s55, s55, s48
    v_lshlrev_b32 v74, 6, v1
    buffer_load_dword v75, v74, {s(sPK,4)}, s55 offen
    s_add_u32 s55, s55, 65536
    buffer_load_dword v75, v74, {s(sPK,4)}, s55 offen
    s_add_u32 s62, s62, {17*4096}
    v_add_u32 v72, s62, v244
    v_add_u32 v73, s62, v245
    v_mov_b32 v251, v229
    s_add_u32 m0, s63, {16*4096}
    s_sub_u32 s47, s47, 4096
    s_mov_b32 s48, 131072
    s_mov_b32 s63, 0
    s_waitcnt vmcnt(4)
    """)
    for k in range(8):
        for b in range(2):
            for rd in range(2):
                A(f'ds_read_b64_tr_b16 {v(176+8*k+4*b+2*rd,2)}, ' + (f'v{72+b} offset:{(2*k+rd)*4096}' if 2 * k + rd < 15 else f'v{244+b}'))
        if k in (2, 5, 7): A('s_waitcnt lgkmcnt(0)')
    stamp(A, 5)
    A(f"""
    s_cmp_lg_u32 s46, 0
    s_cbranch_scc1 LH_fh0
    s_call_b64 s[8:9], LH_kv
LH_fh0:
    buffer_load_dwordx4 v[76:79], v246, {s(sWS,4)}, s49 offen sc1
LH_fh:
    s_add_u32 s63, s63, 1
    s_waitcnt vmcnt(0)
    v_cmp_ne_u64 vcc, v[2:3], v[76:77]
    v_cmp_ne_u64 s[4:5], v[2:3], v[78:79]
    s_or_b64 vcc, vcc, s[4:5]
    s_cbranch_scc0 LH_gemm
    s_sleep 8
    buffer_load_dwordx4 v[76:79], v246, {s(sWS,4)}, s49 offen sc1
    s_cmp_lt_u32 s63, {SPIN}
    s_cbranch_scc1 LH_fh
LH_gemm:
    s_cmp_eq_u32 s46, 0
    s_cbranch_scc1 LH_g0
    s_call_b64 s[8:9], LH_kv
LH_g0:
    s_mov_b32 m0, s60
    v_mov_b32 v241, 8
    """)
    D, G, X, T0, FO, WO = 8, 72, 88, 96, 112, 176
    Dj = lambda a, b: D + 16 * (a + 2 * b)
    adv = f"""
    s_add_u32 s52, s56, s59
    s_add_u32 s53, s57, s59
    s_lshl_b32 s55, s59, 4
    s_add_u32 s55, s55, s58
    s_add_u32 s59, s59, 4096
    s_cmp_ge_u32 s59, {7*4096}
    s_cselect_b32 s59, 0, s59
    """
    def dma(srd, buf):
        A(f"""
        buffer_load_dwordx4 v242, {s(srd,4)}, s55 offen offset:{2048*buf} lds
        buffer_load_dwordx4 v243, {s(srd,4)}, s55 offen offset:{2048*buf+1024} lds
        s_add_u32 s55, s55, {16384+2048*(2*buf-1)}
        """)
    def grp(i):
        if i & 3 == 0: A(adv)
        for a in range(2):
            A(f'buffer_load_dwordx4 {v(FO+8*(i&3)+4*a,4)}, v1, {s(sWS,4)}, s{52+a} offen offset:{(i&3)*1024} sc1')
        dma(sPK, i & 1)
    def trd(dst, buf):
        for b in range(2):
            for rd in range(2):
                A(f'ds_read_b64_tr_b16 {v(dst+4*b+2*rd,2)}, v{244+b} offset:{2048*buf+1024*rd}')
    stamp(A, 6)
    amp(A, 'gemm')
    grp(0); grp(1)
    A('s_waitcnt vmcnt(8)\nds_write_b32 v251, v241\ns_waitcnt vmcnt(4)')
    trd(G, 0)
    A('s_waitcnt lgkmcnt(0)')
    grp(2)
    A(f"s_setprio {os.environ.get('GPRIO', '0')}")
    def gbody(first):
        for i in range(4):
            A(f's_waitcnt vmcnt({4 if not first or i == 0 else 8})')
            trd(G + 8 * ((i + 1) & 1), (i + 1) & 1)
            for a in range(2): A(mfma(Dj(a, 0), G + 8 * (i & 1), FO + 8 * i + 4 * a, Dj(a, 0)))
            if first:
                for k in range(4):
                    A(f's_add_u32 m0, s48, {(4*i+k)*4096}\ns_add_u32 s47, s61, {(4*i+k)*4096}\nbuffer_load_dwordx4 v1, {s(sWS,4)}, s47 offen sc1 lds')
                A('s_mov_b32 m0, s60')
            A('s_waitcnt lgkmcnt(0)')
            grp(i + 3)
            for a in range(2): A(mfma(Dj(a, 1), G + 8 * (i & 1) + 4, FO + 8 * i + 4 * a, Dj(a, 1)))
    A('s_mov_b32 s63, 0\nLH_gloop:')
    gbody(False)
    A(f"""
    s_add_u32 s63, s63, 1
    s_cmp_lg_u32 s63, {os.environ.get('GSW', '9')}
    s_cbranch_scc1 LH_gsw
    s_setprio {os.environ.get('GPRIO2', '2')}
LH_gsw:
    s_cmp_lt_u32 s63, 7
    s_cbranch_scc1 LH_gloop
    s_setprio {os.environ.get('MEETP', '0')}
    """)
    A(f"""
    s_lshl_b32 s47, s3, 3
    s_lshl_b32 s61, s44, 1
    s_add_u32 s47, s47, s61
    s_lshl_b32 s47, s47, 7
    s_lshl_b32 s61, s71, 2
    s_add_u32 s47, s47, s61
    s_add_u32 s47, s47, {hx(FH)}
    s_mov_b32 s63, 0
LH_fs:
    buffer_load_dword v241, v250, {s(sWS,4)}, s47 offen sc1
    s_add_u32 s63, s63, 1
    s_waitcnt vmcnt(0)
    v_cmp_ne_u32 vcc, v3, v241
    s_cbranch_vccz LH_fsok
    s_sleep 8
    s_cmp_lt_u32 s63, {SPIN}
    s_cbranch_scc1 LH_fs
LH_fsok:
    s_mov_b32 s62, 0
    """)
    for j in range(1, 4):
        A('s_call_b64 s[8:9], LH_meet')
        for q in range(4): A(f'ds_write_b128 v{4+j}, {v(D+16*j+4*q,4)} offset:{q*1024}')
        A('s_call_b64 s[8:9], LH_meet')
        for q in range(4): A(f'ds_read_b128 {v(D+16*j+4*q,4)}, v4 offset:{q*1024}')
    A(f"""
    s_lshl_b32 s52, s50, 5
    s_lshl_b32 s61, s44, 3
    s_add_u32 s52, s52, s61
    s_lshl_b32 s52, s52, 10
    s_add_u32 s58, s52, {hx(OF)}
    s_xor_b32 s56, s58, 0x8000
    s_add_u32 s57, s56, 4096
    s_add_u32 s59, s58, 4096
    s_mov_b32 s63, 0
    """)
    def send():
        for j in (2,):
            for q in range(4): A(f'ds_write_b128 v{252+j}, {v(D+16*j+4*q,4)} offset:{(j-1)*4096+q*1024}')
        A('s_waitcnt lgkmcnt(0)\ns_barrier')
        for j in range(1, 4):
            for q in range(4): A(f'ds_read_b128 {v(D+16*j+4*q,4)}, v252 offset:{(j-1)*4096+q*1024}')
    A(f"""
    s_mov_b32 s52, -1
    s_waitcnt lgkmcnt(0)
    """)
    stamp(A, 7)
    amp(A, 'ready')
    A('s_barrier')
    amp(A, 'X')
    if os.environ.get('XSL'): A('s_sleep ' + os.environ['XSL'])
    stamp(A, 8)
    for g in range(4):
        A(f'LH_o{g}:')
        for k in range(4 * g, 4 * g + 4):
            A(f'buffer_load_dwordx4 {v(FO+4*k,4)}, v1, {s(sWS,4)}, s{56+g} offen offset:{(k&3)*1024} sc1')
    for g in range(4):
        A(f's_cmp_eq_u32 s52, {g}\ns_cbranch_scc1 LH_c{g}')
    A(f's_mov_b32 s4, {hx(f2u(-LOG2E))}\ns_mov_b32 s5, 1.0')
    for j in range(1, 4):
        for p in range(8): A(f'v_pk_add_f32 {v((D if j < 3 else G)+2*p,2)}, {v(D+2*p,2)}, {v(D+16*j+2*p,2)}')
    for p in range(8): A(f'v_pk_mul_f32 {v(D+2*p,2)}, {v(G+2*p,2)}, s[4:5] op_sel_hi:[1,0]')
    for j in range(16): A(f'v_exp_f32 v{D+j}, v{D+j}')
    for p in range(8): A(f'v_pk_add_f32 {v(D+2*p,2)}, {v(D+2*p,2)}, s[4:5] op_sel:[0,1] op_sel_hi:[1,1]')
    for j in range(16): A(f'v_rcp_f32 v{D+j}, v{D+j}')
    for p in range(8): A(f'v_pk_mul_f32 {v(G+2*p,2)}, {v(D+2*p,2)}, {v(G+2*p,2)}')
    for g in range(4):
        f0 = FO + 16 * g
        a, hh = 1 - (g >> 1), g & 1
        A(f"""
LH_c{g}:
        s_mov_b32 s52, {g}
        s_add_u32 s63, s63, 1
        s_waitcnt vmcnt({12-4*g})
        v_max3_u32 v241, v{f0}, v{f0+4}, v{f0+8}
        v_max_u32 v241, v241, v{f0+12}
        v_cmp_eq_u32 vcc, -1, v241
        s_cbranch_vccz LH_m{g}
        s_sleep {os.environ.get('RSL', '4')}
        s_cmp_lt_u32 s63, {SPIN}
        s_cbranch_scc1 LH_o{g}
LH_m{g}:
        """)
        n = 0
        for b in (1, 0):
            for k in range(4):
                A(mfma(Dj(a, b), WO + 8 * (4 * hh + k) + 4 * b, f0 + 4 * k, None if hh == 0 and k == 0 else Dj(a, b)))
                if g == 2:
                    j, q = (3, 1)[n >> 2], n & 3
                    A(f'ds_write_b128 v{252+j}, {v(D+16*j+4*q,4)} offset:{(j-1)*4096+q*1024}')
                if g == 3: A(f'v_lshlrev_b32 v{T0+2*n}, 16, v{X+n}\nv_and_b32 v{T0+2*n+1}, 0xffff0000, v{X+n}')
                n += 1
    if STAMP and 'st0' not in EXP: A('s_add_u32 s89, s63, s80')
    stamp(A, 10)
    send()
    for j in range(1, 3):
        A(f's_waitcnt lgkmcnt({12-4*j})')
        for p in range(8): A(f'v_pk_add_f32 {v(D+2*p,2)}, {v(D+2*p,2)}, {v(D+16*j+2*p,2)}')
    for q in range(4):
        A(f's_waitcnt lgkmcnt({3-q})')
        for p in (2 * q, 2 * q + 1):
            A(f'v_pk_add_f32 {v(D+2*p,2)}, {v(D+2*p,2)}, {v(D+48+2*p,2)}')
            A(f'v_pk_fma_f32 {v(D+2*p,2)}, {v(D+2*p,2)}, {v(G+2*p,2)}, {v(T0+2*p,2)}')
            A(f'v_cvt_pk_bf16_f32 v{X+p}, v{D+2*p}, v{D+2*p+1}')
        if q & 1: A(f'buffer_store_dwordx4 {v(X+4*(q>>1),4)}, v249, {s(sA,4)}, s54 offen offset:{32*(q>>1)} {os.environ.get("OST", "")}')
    stamp(A, 11)
    stamp_end(A, sWS, sW, 2)
    if AMP:
        amp(A, 'end')
        A(f'''
        s_cmp_lg_u32 {s(sW)}, 4
        s_cbranch_scc1 L_end
        s_memrealtime s[78:79]
        s_sub_u32 s97, s97, s96
        s_waitcnt lgkmcnt(0)
        s_mov_b32 s96, s78
LH_amp:
        s_memrealtime s[78:79]
        s_waitcnt lgkmcnt(0)
        s_sub_u32 s78, s78, s96
        s_cmp_lt_u32 s78, s97
        s_cbranch_scc1 LH_amp
        ''')
    A(f"""
    s_endpgm
LH_meet:
    s_add_u32 s62, s62, 4
    s_mov_b32 s63, 0
    s_waitcnt lgkmcnt(0)
    s_mov_b64 exec, 1
    ds_add_u32 v247, v240
    s_mov_b64 exec, -1
LH_meetw:
    ds_read_b32 v241, v247
    s_add_u32 s63, s63, 1
    s_waitcnt lgkmcnt(0)
    v_cmp_gt_u32 vcc, s62, v241
    s_cbranch_vccz LH_meetok
    s_sleep {os.environ.get('MEETS', '4')}
    s_cmp_lt_u32 s63, {SPIN * 16}
    s_cbranch_scc1 LH_meetw
LH_meetok:
    s_setpc_b64 s[8:9]
LH_kv:
    buffer_load_dwordx4 v1, {s(sWS,4)}, s47 offen sc1 lds
    s_add_u32 m0, m0, 4096
    s_add_u32 s47, s47, 4096
    s_cmp_lt_u32 m0, s48
    s_cbranch_scc1 LH_kv
    s_setpc_b64 s[8:9]
LH_prep:
    v_lshlrev_b32 v1, 4, v0
    v_cmp_gt_u32 vcc, 32, v0
    v_and_b32 v200, 15, v0
    v_and_b32 v201, 1, v0
    s_lshl_b32 s47, {s(sQB)}, 1
    v_add_u32 v201, s47, v201
    s_add_u32 s61, s3, 8
    s_lshr_b32 s62, s3, 1
    s_lshl_b32 s62, s62, 2
    s_add_u32 s62, s62, 3
    v_cndmask_b32 v200, v201, v200, vcc
    v_mov_b32 v201, s3
    v_mov_b32 v202, s62
    v_cndmask_b32 v201, v201, v202, vcc
    v_cmp_gt_u32 vcc, 16, v0
    v_mov_b32 v202, s61
    v_lshrrev_b32 v203, 3, v200
    v_cndmask_b32 v201, v201, v202, vcc
    v_and_b32 v200, 7, v200
    v_lshlrev_b32 v200, 3, v200
    v_lshl_add_u32 v200, v203, 2, v200
    v_lshrrev_b32 v203, 2, v201
    v_add_u32 v200, v200, v203
    v_and_b32 v201, 3, v201
    v_lshl_add_u32 v200, v201, 6, v200
    v_lshlrev_b32 v251, 7, v200
    s_lshl_b32 s61, s44, 12
    s_add_u32 s47, s61, {L_ONES}
    s_add_u32 s61, s61, {L_EX}
    v_and_b32 v204, 11, v0
    v_cmp_eq_u32 vcc, 0, v204
    v_mov_b32 v204, {hx(ONES)}
    v_and_b32 v205, 0x1ff, v1
    v_cndmask_b32 v232, 0, v204, vcc
    v_add_u32 v231, s47, v205
    v_mov_b32 v233, v232
    v_mov_b64 v[234:235], v[232:233]
    v_mov_b32 v240, 1
    v_mov_b32 v247, {L_FLAG}
    v_mov_b64 v[236:237], -1
    v_mov_b64 v[238:239], -1
    s_lshl_b32 s47, s44, 10
    s_add_u32 s47, s47, {L_H}
    v_add_u32 v248, s47, v1
    v_lshrrev_b32 v207, 5, v0
    v_bfe_u32 v204, v0, 4, 1
    v_lshl_add_u32 v204, v204, 2, v207
    v_bfe_u32 v205, v0, 2, 2
    v_lshl_add_u32 v204, v204, 2, v205
    v_and_b32 v205, 3, v0
    v_lshlrev_b32 v205, 8, v205
    v_lshl_add_u32 v204, v204, 3, v205
    v_add_u32 v230, s47, v204
    v_lshrrev_b32 v204, 3, v0
    v_and_b32 v205, 7, v0
    v_and_b32 v206, 2, v204
    v_lshlrev_b32 v206, 1, v206
    v_xor_b32 v205, v205, v206
    v_lshlrev_b32 v205, 4, v205
    v_lshl_add_u32 v242, v204, 10, v205
    s_lshl_b32 s47, s70, 7
    v_add_u32 v242, s47, v242
    v_add_u32 v243, 7168, v242
    v_and_b32 v205, 1, v0
    v_bfe_u32 v204, v0, 1, 1
    v_lshl_add_u32 v205, v205, 1, v204
    v_lshlrev_b32 v205, 3, v205
    v_bfe_u32 v204, v0, 4, 1
    v_lshl_add_u32 v205, v204, 5, v205
    v_bfe_u32 v206, v0, 2, 2
    v_lshl_add_u32 v204, v207, 2, v206
    v_lshl_add_u32 v205, v204, 7, v205
    v_bfe_u32 v204, v0, 3, 1
    v_xor_b32 v204, s45, v204
    v_lshl_add_u32 v205, v204, 6, v205
    v_add_u32 v244, s61, v205
    v_xor_b32 v245, 64, v244
    v_and_b32 v205, 3, v0
    v_lshl_add_u32 v246, v206, 6, v205
    s_lshl_b32 s47, s3, 1
    s_lshr_b32 s62, s71, 1
    s_add_u32 s47, s47, s62
    s_and_b32 s62, s47, 7
    s_lshl_b32 s62, s62, 3
    s_lshr_b32 s47, s47, 3
    s_lshl_b32 s47, s47, 2
    s_add_u32 s47, s47, s62
    v_add_lshl_u32 v246, v246, s47, 7
    v_lshrrev_b32 v204, 4, v0
    v_cmp_eq_u32 vcc, 1, v204
    s_lshl_b32 s47, s44, 2
    s_add_u32 s47, s47, {L_FLAG+16}
    v_cndmask_b32 v246, v246, v251, vcc
    v_mov_b32 v229, s47
    v_bfe_u32 v204, v0, 2, 1
    v_lshl_add_u32 v250, v205, 6, v204
    v_lshlrev_b32 v250, 7, v250
    v_and_b32 v204, 31, v0
    v_lshlrev_b32 v204, 10, v204
    v_lshl_add_u32 v249, v207, 4, v204
    v_mov_b64 v[224:225], 0
    v_mov_b64 v[226:227], 0
    """)
    for j in range(4):
        A(f's_xor_b32 s47, s44, {j}\ns_lshl_b32 s47, s47, 14\nv_add_u32 v{252+j}, s47, v1')
        A(mfma(D + 16 * j, 224, 224, None))
    A(f"""
    s_setpc_b64 s[8:9]
LH_prep2:
    ds_write_b128 v231, v[232:235]
    ds_write_b128 v231, v[232:235] offset:2048
    s_lshl_b32 s60, s44, 12
    s_add_u32 s60, s60, {L_EX}
    """)
    for j in range(4):
        A(f's_xor_b32 s47, s44, {j}\ns_lshl_b32 s47, s47, 12\ns_add_u32 s47, s47, {L_EX}\nv_add_u32 v{4+j}, s47, v1')
    A('s_waitcnt lgkmcnt(0)\nv_mov_b32 v2, v3\ns_setpc_b64 s[8:9]')

def gen_C(A, patterns):
    sDW, sXs, sIt, sF1, sF3, sOne = 48, 49, 50, 72, 73, 76
    A(f"""
L_C:
    v_mov_b64 v[64:65], 0
    v_mov_b64 v[66:67], 0
    """)
    A(patterns)
    A(f"""
    s_waitcnt lgkmcnt(0)
    s_lshl_b32 s47, s46, 9
    s_add_u32 s47, s47, {L_X}
    v_add_u32 v4, s47, v4
    v_mov_b32 v1, v4
    v_add_u32 v2, {2*WST}, v2
    v_add_u32 v3, {2*WST}, v3
    s_mov_b32 {s(sDW)}, {hx(-2*WST)}
    s_mov_b32 {s(sXs)}, 0
    s_mov_b32 {s(sIt)}, 0
    s_lshl_b32 s53, {s(sRB)}, 2
    s_lshl_b32 s47, s46, 1
    s_add_u32 s53, s53, s47
    s_and_b32 s47, {s(sCG)}, 7
    s_lshl_b32 s47, s47, 2
    s_lshl_b32 s61, s45, 1
    s_add_u32 s47, s47, s61
    s_lshl_b32 s47, s47, 6
    s_lshl_b32 s59, s46, 4
    s_add_u32 s59, s59, {s(sRB)}
    s_cmp_lt_u32 {s(sCG)}, 8
    s_cselect_b32 s52, 10, 11
    s_cselect_b32 s61, {hx(QF)}, {hx(KV)}
    s_cselect_b32 s58, {hx(f2u(0.25*LOG2E))}, 1.0
    s_cselect_b32 s53, s53, s59
    s_cselect_b32 s60, 1, 32
    s_add_u32 s47, s47, s53
    s_lshl_b32 s47, s47, s52
    s_add_u32 s62, s47, s61
    s_lshl_b32 s47, s60, s52
    s_add_u32 s64, s62, s47
    s_lshl_b32 s47, 64, s52
    s_add_u32 s63, s62, s47
    s_add_u32 s65, s64, s47
    s_mul_i32 s47, s45, {5*256}
    s_add_u32 s47, s47, {L_CS}
    v_lshl_add_u32 v60, v0, 2, s47
    s_lshl_b32 s47, s46, 9
    s_add_u32 s47, s47, {L_RS}
    v_and_b32 v61, 31, v0
    v_lshl_add_u32 v61, v61, 3, s47
    v_lshlrev_b32 v63, 4, v0
    v_and_b32 v72, 15, v0
    v_and_b32 v73, 16, v0
    v_cmp_eq_u32 vcc, 0, v73
    v_lshlrev_b32 v72, 4, v72
    v_add_u32 v72, {L_ONES-1024}, v72
    v_mov_b32 v73, {NT*2048}
    v_cndmask_b32 v72, v72, v63, vcc
    v_cndmask_b32 v73, 0, v73, vcc
    s_lshl_b32 s47, s44, 12
    s_add_u32 s47, s47, {L_ONES}
    v_add_u32 v74, s47, v63
    s_lshl_b32 s66, {s(sQB)}, 3
    s_lshl_b32 s47, s44, 1
    s_add_u32 s66, s66, s47
    s_lshl_b32 s66, s66, 5
    s_add_u32 s66, s66, {s(sHead)}
    s_lshl_b32 s66, s66, 10
    s_add_u32 s66, s66, {hx(OF)}
    s_mov_b32 s54, {hx(f2u(2.0**126))}
    s_mov_b32 s55, {hx(f2u(2.0**-106))}
    s_mov_b32 s56, {hx(f2u(2.0**120))}
    s_mov_b32 s57, 0
    """)
    acc = lambda T, i: 96 + (i * 2 + T) * 16
    for i in range(5):
        for T in range(2): A(mfma(acc(T, i), 64, 64, None))
    FB = lambda f: 8 + 20 * f
    Wf = lambda f, i: FB(f) + 4 * i
    Xf = lambda f, T: FB(f) + 12 + 4 * T
    def reads(f, q, withA):
        st, ks = (q >> 1) & 1, q & 1
        r = [f'ds_read_b128 {v(Xf(f,T),4)}, v1 offset:{T*128+(q&3)*32}' for T in range(2)]
        for u in range(2):
            for rd in range(2):
                r.append(f'ds_read_b64_tr_b16 {v(Wf(f,1+u)+2*rd,2)}, v2 offset:{st*WST+(4*ks+rd)*128+u*32}')
        if withA:
            for rd in range(2):
                r.append(f'ds_read_b64_tr_b16 {v(Wf(f,0)+2*rd,2)}, v3 offset:{st*WST+(4*ks+rd)*128}')
        return r
    def kloop(label, withA, adv, lim, tr0):
        for r in reads(0, 0, withA): A(r)
        A(label + ':')
        for q in range(4):
            f = q & 1
            rr = reads(f ^ 1, q + 1, withA)
            A('s_waitcnt lgkmcnt(0)')
            if q & 1: A('s_barrier')
            tiles = [(1, 1), (2, 2), (0, 0)] if withA else [(1, 3), (2, 4)]
            ms = [mfma(acc(T, ai), Wf(f, wi), Xf(f, T), acc(T, ai)) for (wi, ai) in tiles for T in range(2)]
            k = 0
            for m in range(len(ms)):
                A(ms[m])
                for _ in range(3):
                    if k < len(rr): A(rr[k]); k += 1
                if q == 2 and m == len(ms) - 1: A(adv)
                if q == 3 and m == len(ms) - 2: A(f's_add_u32 {s(sIt)}, {s(sIt)}, 1')
                if q == 3 and m == len(ms) - 1 and not STAMP: A(f's_cmp_lt_u32 {s(sIt)}, {lim}')
            assert k == len(rr)
        if STAMP:
            A(f'{TM} s[78:79]\ns_add_u32 m0, {s(sIt)}, {tr0}\ns_waitcnt lgkmcnt(0)\nv_writelane_b32 v79, s78, m0\ns_cmp_lt_u32 {s(sIt)}, {lim}')
        A(f's_cbranch_scc1 {label}')
    A(f"""
    s_mul_i32 s47, s44, {WST}
    s_add_u32 s47, s47, {2*WST+2*PAN}
    v_and_b32 v75, 31, v0
    v_mul_u32_u24 v76, 288, v7
    v_lshl_add_u32 v75, v75, 3, v76
    v_add_u32 v75, s47, v75
    v_lshlrev_b32 v76, 2, v5
    v_add_u32 v76, v76, v7
    v_lshl_add_u32 v76, v76, 2, v6
    v_and_b32 v77, 3, v0
    v_mul_u32_u24 v77, 288, v77
    v_lshl_add_u32 v76, v76, 3, v77
    v_add_u32 v76, s47, v76
    s_and_b32 s47, s3, 3
    s_lshl_b32 s47, s47, 2
    s_add_u32 s47, s47, s45
    s_lshl_b32 s47, s47, 7
    s_add_u32 s47, s47, s59
    s_lshl_b32 s47, s47, 11
    s_add_u32 s8, s47, {hx(KV)}
    s_add_u32 s9, s8, {4*64*2048}
    s_add_u32 s10, s8, {64*2048}
    s_add_u32 s11, s8, {5*64*2048}
    s_lshl_b32 s47, s44, 10
    s_add_u32 s47, s47, {L_H}
    v_add_u32 v77, s47, v63
    v_subrev_u32 v62, {2*WST}, v2
    v_mov_b32 v49, 0
    v_mov_b64 v[50:51], 0
    """)
    stamp(A, 1)
    A('s_barrier')
    stamp(A, 2)
    kloop('LC_loopA', True, f"""
        v_add_u32 v2, {s(sDW)}, v2
        v_add_u32 v3, {s(sDW)}, v3
        s_add_u32 {s(sXs)}, {s(sXs)}, {XST}
        s_cmp_ge_u32 {s(sXs)}, {4*XST}
        s_cselect_b32 {s(sXs)}, 0, {s(sXs)}
        s_sub_u32 {s(sDW)}, 0, {s(sDW)}
        v_add_u32 v1, {s(sXs)}, v4
        """, '8', 15)
    A("""
    s_waitcnt lgkmcnt(0)
    ds_read_b64 v[68:69], v61
    ds_read_b64 v[70:71], v61 offset:256
    """)
    CO = lambda i: 8 + 4 * i
    for i in range(5): A(f'ds_read_b32 v{CO(i)}, v60 offset:{i*256}')
    for i in range(5): A(f'v_mov_b32 v{CO(i)+1}, 0\nv_mov_b64 {v(CO(i)+2,2)}, 0')
    A('s_waitcnt lgkmcnt(5)\nv_mov_b32 v64, v68\nv_mov_b32 v48, v70')
    K0 = -2.0 * math.sqrt(2.0 / math.pi) * LOG2E
    K1c = K0 * 0.044715
    A('v_rcp_f32 v84, v69\nv_rcp_f32 v92, v71\ns_waitcnt lgkmcnt(0)')
    def readsB(q):
        f, it = (q + 1) & 1, q >> 2
        wo = ((4 - 2 * (it % 3)) + ((q >> 1) & 1)) * WST + 4 * (q & 1) * 128
        r = [f'ds_read_b128 {v(Xf(f,T),4)}, v4 offset:{((3-it)&3)*XST+T*128+(q&3)*32}' for T in range(2)]
        for u in range(2):
            for rd in range(2):
                r.append(f'ds_read_b64_tr_b16 {v(Wf(f,1+u)+2*rd,2)}, v62 offset:{wo+rd*128+u*32}')
        return r
    cst = []
    for T in range(2):
        b = 80 + 8 * T
        cst += [f'v_mul_f32 v{b+3}, s58, v{b+4}', f'v_mul_f32 v{b+2}, v{69+2*T}, v{69+2*T}', f'v_mul_f32 v{b+1}, {hx(f2u(K0))}, v{b+4}',
                f'v_mul_f32 v{b}, v{b+4}, v{b+4}', f'v_mul_f32 v{b}, v{b}, v{b+4}', f'v_mul_f32 v{b}, {hx(f2u(K1c))}, v{b}']
    def atile(T, hd):
        a = acc(T, 0) + 8 * hd
        return ([f'v_mul_f32 v{a+j}, v{83+8*T}, v{a+j}' for j in range(8)] + [f'v_cvt_pk_bf16_f32 v{a+p}, v{a+2*p}, v{a+2*p+1}' for p in range(4)]
                + [f'buffer_store_dwordx4 {v(a,4)}, v63, {s(sWS,4)}, s{62+2*T+hd} offen sc1'])
    fill = readsB(0) + cst + atile(0, 0) + atile(0, 1)
    for i in range(5):
        for T in range(2):
            A(mfma(acc(T, i), CO(i), (64, 48)[T], acc(T, i)))
            for _ in range(5 if i or T else 6):
                if fill: A(fill.pop(0))
    assert not fill
    def geglu_plain(T, u):
        a, b, t, r = acc(T, 1 + u), 80 + 8 * T, 52, []
        for h4 in (0, 4):
            J = range(h4, h4 + 4)
            r += [f'v_mul_f32 v{t+j}, v{a+j}, v{a+j}' for j in J] + [f'v_fma_f32 v{t+j}, v{t+j}, v{b}, v{b+1}' for j in J]
            r += [f'v_mul_f32 v{t+j}, v{t+j}, v{a+j}' for j in J] + [f'v_exp_f32 v{t+j}, v{t+j}' for j in J]
            r += [f'v_mul_f32 v{a+j}, v{a+j}, v{a+8+j}' for j in J] + [f'v_fma_f32 v{t+j}, v{t+j}, v{b+2}, v{b+2}' for j in J]
            r += [f'v_rcp_f32 v{t+j}, v{t+j}' for j in J] + [f'v_mul_f32 v{a+j}, v{a+j}, v{t+j}' for j in J]
            r += [f'v_cvt_pk_bf16_f32 v{a+8+p}, v{a+2*p}, v{a+2*p+1}' for p in (h4 // 2, h4 // 2 + 1)]
        return r
    def vtile(T, u):
        a = acc(T, 1 + u)
        r = [f'v_mul_f32 v{a+j}, v{84+8*T}, v{a+j}' for j in range(16)]
        r += [f'v_cvt_pk_bf16_f32 v{a+p}, v{a+2*p}, v{a+2*p+1}' for p in range(8)]
        wr, rd, st = [], [], []
        for hd in range(2):
            o = hd * 1152
            wr.append(f'ds_write2_b64 v75, {v(a+4*hd,2)}, {v(a+4*hd+2,2)} offset0:{o//8} offset1:{(o+576)//8}')
            rd += [f'ds_read_b64_tr_b16 {v(a+8+4*hd,2)}, v76 offset:{o}', f'ds_read_b64_tr_b16 {v(a+8+4*hd+2,2)}, v76 offset:{o+64}']
            st.append((f's_add_u32 s{8+2*u+hd}, s{8+2*u+hd}, 65536\n' if T else '') +
                      f'buffer_store_dwordx4 {v(a+8+4*hd,4)}, v63, {s(sWS,4)}, s{8+2*u+hd} offen offset:1024 sc1')
        return r + [('lds', wr + rd, st)]
    cost = lambda t: 8 if t.startswith(('v_exp', 'v_rcp')) else 4
    STM = int(os.environ.get('STM', '3'))
    STN, STH = [int(t) for t in os.environ.get('STV', '1,0').split(',')]
    def passB(side, ack, budget, late=()):
        side = list(side)
        stores, lds, pend = [], [], 0
        for q in range(32):
            f = (q + 1) & 1
            rr = readsB(q + 1) if q < 31 else []
            if q == 4 * ack - 1: assert not stores and not lds and not any(isinstance(t, tuple) or t.startswith('buffer') for t in side), q
            A(f's_waitcnt lgkmcnt({pend})' + (' vmcnt(0)' if q == 4 * ack + 1 else ''))
            pend = 0
            if q == 4 * ack - 1: side += late
            if q & 1: A('s_barrier')
            for m in range(4):
                A(mfma(acc(m & 1, 3 + (m >> 1)), Wf(f, 1 + (m >> 1)), Xf(f, m & 1), acc(m & 1, 3 + (m >> 1))))
                for _ in range(3):
                    if rr: A(rr.pop(0))
                left = budget[m]
                if m == 2 and lds:
                    _, ops_, st = lds.pop(0)
                    if 'xds' in EXP: ops_ = []
                    for t in ops_: A(t)
                    pend = len(ops_); left = 0
                    stores += [(q + 2, t) for t in st]
                for _ in range(STN if late else 1):
                    if m == STM and (q >= STH or not late):
                        rdy = [x for x in stores if x[0] <= q]
                        if rdy:
                            stores.remove(rdy[0])
                            if 'xst' not in EXP: A(rdy[0][1])
                            left -= 12
                while side and (isinstance(side[0], tuple) or side[0].startswith('buffer') or left >= cost(side[0])):
                    t = side.pop(0)
                    if isinstance(t, tuple): lds.append(t)
                    elif t.startswith('buffer'): stores.append((q + (m >= STM), t))
                    else: left -= cost(t); A(t)
            if STAMP and 'trb' in EXP and q & 3 == 3:
                A(f'{TM} s[78:79]\ns_waitcnt lgkmcnt(0)\nv_writelane_b32 v79, s78, {24+(q>>2)}')
        assert not side and not stores and not lds, len(side)
    BUD = [int(t) for t in os.environ.get('BUD', '8,8,16,16').split(',')]
    stamp(A, 3)
    A(f's_cmp_eq_u32 s71, {os.environ.get("VJ", "3")}\ns_cbranch_scc1 LC_Bv')
    passB(atile(1, 0) + atile(1, 1) + sum((geglu_plain(T, u) for T in range(2) for u in range(2)), []), F1N, BUD)
    for n in range(4): A(f'ds_write_b128 v77, {v(acc(n>>1,1+(n&1))+8,4)} offset:{n*4096}')
    A('LC_g4:\nv_mov_b32 v1, v63\ns_nop 6')
    stamp(A, 4)
    for u in range(2):
        TT = [(acc(T, 3 + u), 80 + 8 * T, 8 + 8 * T) for T in range(2)]
        for a, b, t in TT:
            for p in range(4): A(f'v_pk_mul_f32 {v(t+2*p,2)}, {v(a+2*p,2)}, {v(a+2*p,2)}')
        for a, b, t in TT:
            for p in range(4): A(f'v_pk_fma_f32 {v(t+2*p,2)}, {v(t+2*p,2)}, {v(b,2)}, {v(b,2)} op_sel:[0,0,1] op_sel_hi:[1,0,1]')
        for a, b, t in TT:
            for p in range(4): A(f'v_pk_mul_f32 {v(t+2*p,2)}, {v(t+2*p,2)}, {v(a+2*p,2)}')
        for a, b, t in TT:
            for j in range(8): A(f'v_exp_f32 v{t+j}, v{t+j}')
        for a, b, t in TT:
            for p in range(4): A(f'v_pk_mul_f32 {v(a+2*p,2)}, {v(a+2*p,2)}, {v(a+8+2*p,2)}')
        for a, b, t in TT:
            for p in range(4): A(f'v_pk_fma_f32 {v(t+2*p,2)}, {v(t+2*p,2)}, {v(b+2,2)}, {v(b+2,2)} op_sel:[0,0,0] op_sel_hi:[1,0,0]')
        for a, b, t in TT:
            for j in range(8): A(f'v_rcp_f32 v{t+j}, v{t+j}')
        for a, b, t in TT:
            for p in range(4): A(f'v_pk_mul_f32 {v(a+2*p,2)}, {v(a+2*p,2)}, {v(t+2*p,2)}')
        for T, (a, b, t) in enumerate(TT):
            for p in range(4): A(f'v_cvt_pk_bf16_f32 v{a+8+p}, v{a+2*p}, v{a+2*p+1}')
            A(f'ds_write_b128 v77, {v(a+8,4)} offset:{(4+2*T+u)*4096}')
    def vvariant():
        A('LC_Bv:')
        passB({'a': vtile(0, 0) + atile(1, 0) + vtile(0, 1) + atile(1, 1), 'b': vtile(0, 0) + vtile(0, 1) + atile(1, 0) + atile(1, 1)}[os.environ.get('VORD', 'a')], F1B, [int(t) for t in os.environ.get('BUDV', '12,12,24,24').split(',')], vtile(1, 0)[:-1] + vtile(1, 1)[:-1])
        A('v_lshrrev_b32 v75, 1, v63\nv_sub_u32 v75, v77, v75')
        for n in range(4):
            a = acc(1, 1 + (n >> 1)) + 4 * (n & 1)
            A(f'ds_write2st64_b64 v75, {v(a,2)}, {v(a+2,2)} offset0:{n*8} offset1:{n*8+1}')
        A('s_branch LC_g4')
    QA, QB, CA, CB, OA, OB, SA, SB, PA, PB = 8, 12, 16, 32, 48, 64, 80, 96, 112, 120
    KF = lambda b: 128 + 4 * b
    VF = lambda j: 136 + 4 * j
    A('LC_att:')
    if STAMP: A('v_mov_b32 v144, v79')
    stamp(A, 5)
    A('s_waitcnt lgkmcnt(0)')
    stamp(A, 6)
    A('s_barrier')
    stamp(A, 7)
    A(f"""
    ds_read_b128 {v(QA,4)}, v74 offset:512
    ds_read_b128 {v(KF(0),4)}, v1
    ds_read_b128 {v(KF(1),4)}, v1 offset:2048
    ds_read_b128 {v(QB,4)}, v74 offset:2560
    v_mov_b32 v2, v1
    v_mov_b32 v3, v72
    v_mov_b32 v4, v73
    s_mov_b32 {s(sIt)}, 0
    v_mov_b32 v5, {L_FLAG+16}
    """)
    for j in range(0, 8, 2): A(f'v_mov_b64 {v(VF(0)+j,2)}, 0')
    for j in range(0, 8, 2): A(f'v_mov_b64 {v(PB+j,2)}, 0')
    A('s_waitcnt lgkmcnt(2)')
    A(mfma(SA, KF(0), QA, None))
    A('s_waitcnt lgkmcnt(1)')
    A(mfma(OA, KF(1), QA, None))
    A('s_waitcnt lgkmcnt(0)')
    A(mfma(SB, KF(0), QB, None))
    A(mfma(OB, KF(1), QB, None))
    A('s_nop 6')
    for (S, O, C) in ((SA, OA, CA), (SB, OB, CB)):
        A(f'v_max3_f32 v{C}, v{S}, v{S+1}, v{S+2}')
        for j in range(3, 15, 2): A(f'v_max3_f32 v{C}, v{C}, v{S+j}, v{S+j+1}')
        A(f'v_max3_f32 v{C}, v{C}, v{S+15}, v{O}')
        for j in range(1, 15, 2): A(f'v_max3_f32 v{C}, v{C}, v{O+j}, v{O+j+1}')
        A(f'v_max_f32 v{C}, v{C}, v{O+15}')
        A(f'v_mov_b32 v{C+1}, v{C}')
        A(f'v_mov_b64 {v(O,2)}, 0\nv_mov_b64 {v(O+2,2)}, 0')
        A(f'v_permlane32_swap_b32 v{C}, v{C+1}')
        A(f'v_max_f32 v{C}, v{C}, v{C+1}')
        A(f'v_sub_f32 v{C}, {hx(f2u(-BIAS))}, v{C}')
        A(f'v_mov_b32 v{C+1}, v{C}')
        for j in range(2, 16, 2): A(f'v_mov_b64 {v(C+j,2)}, {v(C,2)}')
        for j in range(4, 10, 2): A(f'v_mov_b64 {v(O+j,2)}, 0')
        if S == SA: A(mfma(SA, KF(0), QA, CA))
    stamp(A, 8)
    if 'clk' in EXP: stamp(A, 9, True)
    E = lambda S, j: A(f'v_exp_f32 v{S+j}, v{S+j}')
    Cv = lambda S, P, p: A(f'v_cvt_pk_bf16_f32 v{P+p}, v{S+2*p}, v{S+2*p+1}')
    ORD = {'even': 'm0 e0 e1 e2 e3 e4 c0 c1 m1 e5 e6 c2 e7 e8 c3 e9 e10 c4 m2 e11 e12 c5 e13 e14 e15 c6 c7',
           'tight': 'm0 e0 e1 e2 m1 e3 e4 e5 m2 c0 c1 c2 e6 e7 e8 c3 e9 e10 c4 e11 e12 c5 e13 e14 e15 c6 c7',
           'mid': 'm0 e0 e1 e2 c0 m1 e3 e4 e5 c1 m2 c2 e6 e7 e8 c3 e9 e10 c4 e11 e12 c5 e13 e14 e15 c6 c7',
           'two': 'm0 e0 e1 e2 m1 e3 e4 e5 c0 c1 e6 e7 c2 e8 e9 c3 m2 e10 c4 e11 e12 c5 e13 e14 e15 c6 c7'}[os.environ.get('ORD', 'tight')].split()
    def phase(S, P, *m):
        for t in ORD:
            if t[0] == 'm':
                mm = m[int(t[1])]
                if ('nopv' in EXP and t[1] != '0') or ('noqk' in EXP and t[1] == '0'): mm = 's_nop 0\ns_nop 0\n' + '\n'.join(mm.split('\n')[1:])
                A(mm)
            elif t[0] == 'e' and 'noexp' in EXP: A('s_nop 1')
            elif t[0] == 'e': E(S, int(t[1:]))
            else: Cv(S, P, int(t[1:]))
    if os.environ.get('CPRIO'): A('s_setprio ' + os.environ['CPRIO'])
    A('s_nop 0\n.p2align 3\nLA_loop:')
    for t in range(NT):
        kb = t & 1
        o = t * 2048
        phase(SA, PA,
              mfma(SB, KF(kb), QB, CB) + f'\nds_read_b128 {v(KF(kb),4)}, v2 offset:{o+4096}',
              mfma(OB, VF(0), PB, OB) + f'\nds_read_b128 {v(VF(0),4)}, v3 offset:{o+1024}',
              mfma(OB, VF(1), PB + 4, OB) + f'\nds_read_b128 {v(VF(1),4)}, v3 offset:{o+1280}')
        tail = ''
        if t == NT - 3: tail = f'\ns_add_u32 {s(sIt)}, {s(sIt)}, 1'
        if t == NT - 2: tail = '\nds_read_b128 v[148:151], v5'
        if t == NT - 1: tail = (f'\nv_add_u32 v2, {NT*2048}, v2\nv_add_u32 v3, v4, v3\nv_min3_u32 v148, v148, v149, v150\nv_min_u32 v148, v148, v151'
                                f'\nv_cmp_lt_u32 vcc, {s(sIt)}, v148')
        phase(SB, PB,
              mfma(SA, KF(kb ^ 1), QA, CA) + '\ns_waitcnt lgkmcnt(1)',
              mfma(OA, VF(0), PA, OA) + '\ns_waitcnt lgkmcnt(0)',
              mfma(OA, VF(1), PA + 4, OA) + tail)
    if STAMP and 'atr' in EXP:
        A(f's_memtime s[78:79]\ns_add_u32 m0, {s(sIt)}, 15\ns_waitcnt lgkmcnt(0)\nv_writelane_b32 v144, s78, m0')
    A(f'''
    s_cbranch_vccnz LA_loop
    s_cmp_eq_u32 {s(sIt)}, {64//NT}
    s_cbranch_scc1 LA_fini
    s_mov_b32 s47, 0
LA_kvw:
    ds_read_b128 v[148:151], v5
    s_add_u32 s47, s47, 1
    s_waitcnt lgkmcnt(0)
    v_min3_u32 v148, v148, v149, v150
    v_min_u32 v148, v148, v151
    v_cmp_lt_u32 vcc, {s(sIt)}, v148
    s_cbranch_vccnz LA_loop
    s_cmp_lt_u32 s47, {SPIN * 16}
    s_cbranch_scc1 LA_kvw
    s_branch LA_loop
LA_fini:''')
    A(mfma(OB, VF(0), PB, OB))
    A(mfma(OB, VF(1), PB + 4, OB))
    stamp(A, 11)
    if 'clk' in EXP:
        stamp(A, 10, True)
        A('s_sub_u32 s90, s90, s89\ns_add_u32 s90, s90, s80\ns_mov_b32 s89, 0')
    A('LA_fin:')
    A(f'v_add_f32 v{SA}, |v{OA}|, |v{OA+1}|')
    for j in range(2, 8): A(f'v_add_f32 v{SA}, v{SA}, |v{OA+j}|')
    A(f'''
    v_cmp_gt_f32 vcc, s54, v{SA}
    v_cmp_lt_f32 s[58:59], s55, v{SA}
    v_cmp_gt_f32 s[60:61], s56, v{OA+8}
    s_and_b64 vcc, vcc, s[58:59]
    s_and_b64 vcc, vcc, s[60:61]
    s_cmp_eq_u64 vcc, -1
    s_cbranch_scc0 LA_fallback
LA_norm:
    v_rcp_f32 v{OA+8}, v{OA+8}
    s_nop 0
    ''')
    for j in range(8): A(f'v_mul_f32 v{OA+j}, v{OA+j}, v{OA+8}')
    for p in range(4): A(f'v_cvt_pk_bf16_f32 v{PA+p}, v{OA+2*p}, v{OA+2*p+1}')
    A(f'''
    v_min_u32 v{PA}, -2, v{PA}
    buffer_store_dwordx4 {v(PA,4)}, v1, {s(sWS,4)}, s66 offen sc1
    s_cmp_eq_u32 s57, 1
    s_cbranch_scc1 LA_done
    s_mov_b32 s57, 1
    s_add_u32 s66, s66, 0x8000
    ''')
    for j in range(0, 10, 2): A(f'v_mov_b64 {v(OA+j,2)}, {v(OB+j,2)}')
    for j in range(0, 4, 2): A(f'v_mov_b64 {v(QA+j,2)}, {v(QB+j,2)}')
    A('s_branch LA_fin\nLA_done:')
    if 'noxb' not in EXP: A('s_barrier')
    stamp(A, 12)
    stamp_end(A, sWS, sW, tr=144)
    A('s_endpgm')
    A(f'''
LA_fallback:
    v_mov_b32 v{CA}, 0xff800000
    v_mov_b32 v2, v1
    s_mov_b32 {s(sIt)}, 0
LA_fb1:
    ds_read_b128 {v(KF(0),4)}, v2
    v_add_u32 v2, 0x800, v2
    s_waitcnt lgkmcnt(0)
    ''')
    A(mfma(SA, KF(0), QA, None))
    A('s_nop 11')
    for j in range(0, 16, 2): A(f'v_max3_f32 v{CA}, v{CA}, v{SA+j}, v{SA+j+1}')
    A(f'''
    s_add_u32 {s(sIt)}, {s(sIt)}, 1
    s_cmp_lt_u32 {s(sIt)}, 64
    s_cbranch_scc1 LA_fb1
    v_mov_b32 v{CA+1}, v{CA}
    v_cmp_eq_u32 vcc, 0, v4
    v_lshrrev_b32 v6, {NT.bit_length()-1}, v4
    v_permlane32_swap_b32 v{CA}, v{CA+1}
    v_max_f32 v{CA}, v{CA}, v{CA+1}
    v_sub_f32 v{CA}, 0, v{CA}
    v_cndmask_b32 v3, v1, v3, vcc
    ''')
    for j in range(1, 16): A(f'v_mov_b32 v{CA+j}, v{CA}')
    for j in range(0, 16, 2): A(f'v_mov_b64 {v(OA+j,2)}, 0')
    A(f'''
    v_mov_b32 v2, v1
    s_mov_b32 {s(sIt)}, 0
LA_fb2:
    ds_read_b128 {v(KF(0),4)}, v2
    ds_read_b128 {v(VF(0),4)}, v3 offset:1024
    ds_read_b128 {v(VF(1),4)}, v3 offset:1280
    v_add_u32 v2, 0x800, v2
    v_add_u32 v3, v6, v3
    s_waitcnt lgkmcnt(0)
    ''')
    A(mfma(SA, KF(0), QA, CA))
    A('s_nop 11')
    for j in range(16): E(SA, j)
    A('s_nop 0')
    for p in range(8): Cv(SA, PA, p)
    A('s_nop 1')
    A(mfma(OA, VF(0), PA, OA)); A(mfma(OA, VF(1), PA + 4, OA))
    A(f'''
    s_add_u32 {s(sIt)}, {s(sIt)}, 1
    s_cmp_lt_u32 {s(sIt)}, 64
    s_cbranch_scc1 LA_fb2
    s_nop 11
    s_branch LA_norm
    ''')
    vvariant()

def main(out):
    A = Asm()
    top = f'''; out = x + (MHA(LN x) @ wo) * silu(GEGLU-FFN(LN x)); one persistent launch, 256 workgroups (generated by gen/gen7.py)
; @launch grid=(256,1,1) block=(512,1,1) lds={LDS_BYTES}
.amdgcn_target "amdgcn-amd-amdhsa--gfx950"
.text
'''
    gen(A)
    tail = f'''.section .rodata,"a"
.p2align 6
.amdhsa_kernel {NAME}_kernel
  .amdhsa_next_free_vgpr 256
  .amdhsa_next_free_sgpr 100
  .amdhsa_accum_offset 256
  .amdhsa_group_segment_fixed_size 0
  .amdhsa_kernarg_size 80
  .amdhsa_user_sgpr_count 2
  .amdhsa_user_sgpr_kernarg_segment_ptr 1
  .amdhsa_system_sgpr_workgroup_id_x 1
.end_amdhsa_kernel
'''
    open(out, 'w').write(top + A.text() + tail)

if __name__ == '__main__':
    main(sys.argv[1] if len(sys.argv) > 1 else 'cdna_kernels/%s.s' % NAME)
```

```python
import struct, sys, math, os, re

NOTES = {'L_L': 'waves 4,5: LDS-DMA loaders of x / weight tiles (pass A: q|k unit + one line pair, pass B: second pair, K walked backwards)', 'L_M': 'waves 6,7: LayerNorm statistics (row sums, weight column sums): partials exchanged between workgroups as nonce-tagged 16B granules', 'LH_join': 'waves 4-7 during attention: publish h, stream K/V into LDS, down projection (K quarter per wave), then o @ wo and the output', 'L_C': 'waves 0-3: x @ [wqkv|gate|up] on MFMA, LayerNorm folded in as rstd*(acc - mean*colsum), GEGLU, then attention', 'LC_att': 'softmax reference = max over the first 64 keys + 96 (log2 units); checked at the end, exact two-pass redo with the true max if unsafe', 'LA_fin': 'guard: row sum and |o| must be finite, below 2^120 / 2^126 and clear of underflow, else redo with the true row max', 'LA_fallback': 'exact path: pass 1 true row max over all keys, pass 2 exp2(s - max) and P@V'}
NAME = 'recurrent_scan__mha_block__glu_gated_geglu__prompt'
def f2u(x): return struct.unpack('<I', struct.pack('<f', x))[0]
def hx(x): return '0x%x' % (x & 0xffffffff)
class Asm:
    def __init__(self): self.l = []; self.shift = 0
    def __call__(self, s):
        if self.shift:
            f = lambda n: str(int(n) + self.shift) if 8 <= int(n) < 100 else n
            s = re.sub(r'\bv(\d+)\b', lambda m: 'v' + f(m.group(1)), s)
            s = re.sub(r'\bv\[(\d+):(\d+)\]', lambda m: 'v[%s:%s]' % (f(m.group(1)), f(m.group(2))), s)
        for line in s.split('\n'):
            line = line.strip()
            if not line: continue
            self.l.append(line if line.endswith(':') or line.startswith('.') else '    ' + line)
    def text(self):
        return '\n'.join(('; ' + NOTES[x[:-1]] + '\n' + x) if x[:-1] in NOTES else x for x in self.l) + '\n'
def v(a, n=1): return 'v%d' % a if n == 1 else 'v[%d:%d]' % (a, a + n - 1)
def s(a, n=1): return 's%d' % a if n == 1 else 's[%d:%d]' % (a, a + n - 1)
def mfma(d, a, b, c):
    return 'v_mfma_f32_32x32x16_bf16 %s, %s, %s, %s' % (v(d, 16), v(a, 4), v(b, 4), '0' if c is None else v(c, 16))

QF  = 0x000000
KV  = 0x200000
HF  = 0x600000
OF  = 0xD00000
CSP = 0x1200000
RSP = 0x1280000
FL  = 0x13C0000
FH  = 0x13C8000
NW  = 0x13D0000
STB = 0x1400000
WS_BYTES = 0x1500000
LOG2E = 1.4426950408889634
ONES = 0x3f803f80
SPIN = 1 << 18

LIGHT = os.environ.get('STAMP') == '2'
STAMP = os.environ.get('STAMP') == '1'
EXP = set(os.environ.get('EXP', '').split(','))
BIAS = float(os.environ.get('BIAS', '96'))
NFL = int(os.environ.get('NFL', '4'))

TM = 's_memrealtime' if os.environ.get('RT') else 's_memtime'
_seen = set()
def stamp(A, idx, real=False):
    if 'frozen' in EXP and idx in (5, 6, 7, 8, 9, 10, 11, 12) and not any('L_C:' == x for x in A.l): return
    if not STAMP and not (LIGHT and idx in (0, 13, 14, 15)): return
    if 'e1' in EXP and A.l and any('L_C:' == x for x in A.l):
        if idx in _seen: return
        _seen.add(idx)
    A('%s s[78:79]\ns_waitcnt lgkmcnt(0)\ns_mov_b32 s%d, s78' % ('s_memrealtime' if real or os.environ.get('RT') else 's_memtime', 80 + idx))
AMP = os.environ.get('AMP')
def amp(A, name):
    if LIGHT and name in ('b17', 'B1', 'gemm', 'ready', 'X'):
        A('s_memtime s[78:79]\ns_waitcnt lgkmcnt(0)\ns_mov_b32 s%d, s78' % (83 + ('b17', 'B1', 'gemm', 'ready', 'X').index(name)))
    if AMP == name: A('s_memrealtime s[78:79]\ns_waitcnt lgkmcnt(0)\ns_mov_b32 s97, s78')
def stamp_begin(A):
    if AMP: A('s_memrealtime s[78:79]\ns_waitcnt lgkmcnt(0)\ns_mov_b32 s96, s78\ns_mov_b32 s97, s78')
    if not STAMP and not LIGHT: return
    for i in range(16): A('s_mov_b32 s%d, 0' % (80 + i))
    stamp(A, 14, True); stamp(A, 0)
def stamp_end(A, sWS, sW, vt=3, tr=None):
    if not STAMP and not (LIGHT and tr is None): return
    A('s_waitcnt vmcnt(0)')
    stamp(A, 13); stamp(A, 15, True)
    A('s_nop 4')
    if tr is not None: A('v_mov_b32 v%d, v%d' % (vt, tr))
    for i in range(16): A('v_writelane_b32 v%d, s%d, %d' % (vt, 80 + i, i))
    A('''s_lshl_b32 s78, s2, 3
    s_add_u32 s78, s78, s%d
    s_lshl_b32 s78, s78, 7
    s_add_u32 s78, s78, %s
    v_lshlrev_b32 v%d, 2, v0
    s_mov_b64 exec, 0xffffffff
    buffer_store_dword v%d, v%d, s[%d:%d], s78 offen''' % (sW, hx(STB), vt + 1, vt, vt + 1, sWS, sWS + 3))

PAN, APAN = 4224, 4352
WST = 2 * PAN + APAN
XST = 16 * 1040
L_X = 6 * WST
L_CS = L_X + 4 * XST
L_RS = L_CS + 10 * 256
L_ONES = 131072
L_EX = L_ONES + 7 * 2048 + 1536
assert L_RS + 1024 <= L_EX
L_H = 98304
L_FLAG = L_EX + 16384
L_NON = L_FLAG + 4
LDS_BYTES = L_FLAG + 64
assert LDS_BYTES <= 163840
NT = 8
XB = os.environ.get('MSCHED', '12,15').endswith('16')
BAT = int(os.environ.get('BAT', '3'))
F1N, F1B = [int(t) for t in os.environ.get('F1IT', '2,3').split(',')]
NK1 = int(os.environ.get('NK1', '16'))

sX, sA, sH0, sH1, sWS, sPK, sDBG = 16, 20, 24, 28, 32, 36, 12
sP0, sP1 = 36, 12
sRB, sCG, sW, sHead, sQB = 40, 41, 42, 74, 75

def flag_store(A, soff, vt):
    A(f'''
    s_mov_b64 exec, 1
    buffer_store_dword v{vt}, off, {s(sWS,4)}, {soff} sc1
    s_mov_b64 exec, -1
    ''')

def gen(A):
    K = NAME + '_kernel'
    A(f'.globl {K}\n.p2align 8\n.type {K},@function\n{K}:')
    A('''
    s_cmp_ge_u32 s2, 256
    s_cbranch_scc1 L_end
    ''')
    stamp_begin(A)
    A(f'''
    v_lshrrev_b32 v1, 6, v0
    s_getpc_b64 s[4:5]
L_pc:
    v_readfirstlane_b32 {s(sW)}, v1
    s_and_b32 s47, s2, 0xf8
    s_load_dwordx2 {s(sX,2)}, s[0:1], 0
    s_add_u32 s47, s47, {s(sW)}
    s_lshl_b32 s47, s47, 6
    s_load_dword s6, s[4:5], s47
    s_add_u32 s47, s47, 0x4000
    s_min_u32 s47, s47, L_code_end-L_pc-4
    s_load_dword s7, s[4:5], s47
    s_load_dwordx2 {s(sA,2)}, s[0:1], 8
    s_load_dwordx2 {s(sH0,2)}, s[0:1], 32
    s_load_dwordx2 {s(sH1,2)}, s[0:1], 40
    s_load_dwordx2 {s(sWS,2)}, s[0:1], 72
    v_and_b32 v0, 63, v0
    s_and_b32 s3, s2, 7
    s_lshr_b32 s43, s2, 3
    s_lshr_b32 {s(sRB)}, s3, 2
    s_lshl_b32 {s(sRB)}, {s(sRB)}, 3
    s_and_b32 s70, s43, 7
    s_add_u32 {s(sRB)}, {s(sRB)}, s70
    s_and_b32 {s(sCG)}, s3, 3
    s_lshl_b32 {s(sCG)}, {s(sCG)}, 2
    s_lshr_b32 s71, s43, 3
    s_add_u32 {s(sCG)}, {s(sCG)}, s71
    s_and_b32 s44, {s(sW)}, 3
    s_lshr_b32 s45, s44, 1
    s_and_b32 s46, s44, 1
    s_mov_b32 {s(sWS+2)}, {hx(WS_BYTES)}
    s_mov_b32 {s(sWS+3)}, 0x20000
    s_mov_b32 {s(sX+2)}, 2097152
    s_mov_b32 {s(sX+3)}, 0x20000
    s_mov_b32 {s(sA+2)}, 1572864
    s_mov_b32 {s(sA+3)}, 0x20000
    s_lshl_b32 {s(sHead)}, s3, 2
    s_add_u32 {s(sHead)}, {s(sHead)}, s71
    s_mov_b32 {s(sQB)}, s70
    ''')
    patterns = f'''
    v_bfe_u32 v5, v0, 4, 1
    v_bfe_u32 v6, v0, 2, 2
    v_lshrrev_b32 v7, 5, v0
    v_and_b32 v1, 3, v0
    v_lshlrev_b32 v1, 3, v1
    v_lshl_add_u32 v1, v7, 8, v1
    v_mul_u32_u24 v2, {PAN}, v5
    v_mul_u32_u24 v8, 1056, v6
    v_add3_u32 v2, v2, v8, v1
    v_mul_u32_u24 v8, 1088, v6
    v_lshl_add_u32 v3, v5, 5, v8
    v_add_u32 v3, v3, v1
    v_and_b32 v8, 15, v0
    v_mul_u32_u24 v8, 1040, v8
    v_lshl_add_u32 v4, v5, 8, v8
    v_lshl_add_u32 v4, v7, 4, v4
    s_lshl_b32 s47, s45, 6
    v_add_u32 v2, s47, v2
    s_add_u32 s47, s47, {2*PAN}
    v_add_u32 v3, s47, v3
    '''
    A(f'''
    s_and_b32 s47, {s(sW)}, 6
    s_cmp_eq_u32 s47, 4
    s_cbranch_scc1 L_L
    ''')
    if 'tlb' in EXP:
        A(f'''
        s_cmp_lg_u32 {s(sW)}, 0
        s_cbranch_scc1 L_nt
        s_waitcnt lgkmcnt(0)
        s_load_dword s6, {s(sA,2)}, 0
        s_load_dword s6, {s(sH0,2)}, 0
        s_load_dword s6, {s(sH1,2)}, 0
L_nt:
        ''')
    if 'tlbv' in EXP:
        A(f'''
        s_cmp_lg_u32 {s(sW)}, 0
        s_cbranch_scc1 L_nt
        v_mov_b32 v1, 0
        s_mov_b64 exec, 1
        s_waitcnt lgkmcnt(0)
        global_load_dword v2, v1, {s(sA,2)}
        global_load_dword v2, v1, {s(sH0,2)}
        global_load_dword v2, v1, {s(sH1,2)}
        s_mov_b64 exec, -1
        s_waitcnt vmcnt(0)
L_nt:
        ''')
    A(f'''
    s_cmp_lt_u32 {s(sW)}, 4
    s_cbranch_scc1 L_C
    s_branch L_M
L_L:
    ''')
    gen_H(A, patterns)
    gen_C(A, patterns)
    A('L_end:\ns_endpgm\nL_code_end:')

def gen_H(A, patterns):
    A.shift = 104
    sStrH, sColH = 48, 49
    sRowA, sRowH, sMH, sMA, sMX, sXo, sRot, sG = 50, 51, 52, 53, 54, 55, 59, 60
    ROTM = int(os.environ.get('ROTM', '7'))
    sStr, sRowP, sRowA, sRowB, sMA, sMB, sMX, sXo, sRot, sGA, sGB, sJ = 48, 49, 50, 51, 52, 53, 54, 55, 59, 60, 56, 57
    A(f"""
    v_lshrrev_b32 v8, 3, v0
    v_and_b32 v9, 7, v0
    v_lshlrev_b32 v9, 4, v9
    v_and_b32 v13, 4, v8
    v_bfe_u32 v14, v8, 1, 1
    v_and_b32 v15, 1, v8
    v_lshl_add_u32 v14, v15, 1, v14
    v_add_u32 v13, v13, v14
    v_lshl_add_u32 v13, v13, 14, v9
    s_lshl_b32 s47, {s(sRB)}, 17
    s_lshl_b32 s61, s46, 12
    s_add_u32 s47, s47, s61
    v_add_u32 v13, s47, v13
    s_lshl_b32 s62, s71, 1
    s_add_u32 {s(sRot)}, s70, s62
    s_and_b32 s47, s3, 1
    s_add_u32 {s(sRot)}, {s(sRot)}, s47
    s_and_b32 {s(sRot)}, {s(sRot)}, {os.environ.get('ROTM', '7')}
    s_lshl_b32 {s(sXo)}, {s(sRot)}, 7
    s_lshl_b32 {s(sRot)}, {s(sRot)}, 1
    s_mul_i32 s58, s46, 4160
    s_add_u32 s58, s58, {L_X}
    s_mov_b32 {s(sMX)}, s58
    s_mov_b32 {s(sJ)}, 0
    s_and_b32 s64, s3, 3
    s_mul_i32 s65, s64, 7
    s_add_u32 s65, s65, s62
    s_lshl_b32 s65, s65, 7
    s_add_u32 s66, s65, 128
    s_lshl_b32 s64, s64, 8
    s_add_u32 s64, s64, 2048
    s_cmp_lt_u32 s71, 3
    s_mov_b32 {s(sP0+2)}, 1572864
    s_cmov_b32 {s(sP0+2)}, 1835008
    s_mov_b32 {s(sP1+2)}, {1572864-128}
    s_cmov_b32 {s(sP1+2)}, 1835008
    s_mov_b32 {s(sP0+3)}, 0x20000
    s_mov_b32 {s(sP1+3)}, 0x20000
    s_movk_i32 {s(sStr)}, 3072
    s_cmovk_i32 {s(sStr)}, 3584
    s_cselect_b32 s64, s65, s64
    s_cselect_b32 s65, s66, s65
    s_lshl_b32 s47, s46, 1
    v_lshl_add_u32 v10, v8, 2, s47
    v_mul_u32_u24 v11, 3072, v10
    s_lshl_b32 s47, {s(sCG)}, 7
    v_add3_u32 v11, v11, v9, s47
    v_mul_lo_u32 v18, v10, {s(sStr)}
    v_add3_u32 v18, v18, v9, s64
    v_add_u32 v19, {s(sStr)}, v18
    s_lshl_b32 {s(sStr)}, {s(sStr)}, 5
    s_mul_i32 {s(sRowA)}, {s(sRot)}, {32*3072}
    s_mul_i32 {s(sRowP)}, {s(sRot)}, {s(sStr)}
    s_mul_i32 {s(sMA)}, s46, 2112
    s_add_u32 {s(sMA)}, {s(sMA)}, {2*WST}
    s_lshl_b32 s69, s46, 6
    s_mov_b32 {s(sGA)}, 0
    s_waitcnt lgkmcnt(0)
    """)
    sel = f"""
    s_add_u32 s62, {s(sA)}, 128
    s_addc_u32 s63, {s(sA+1)}, 0
    s_cmp_lt_u32 s71, 3
    s_cselect_b64 {s(sP0,2)}, {s(sH0,2)}, {s(sA,2)}
    s_cselect_b64 {s(sP1,2)}, {s(sH1,2)}, s[62:63]
    """
    setup2 = f"""
    s_mov_b32 {s(sH0+2)}, 1835008
    s_mov_b32 {s(sH1+2)}, 1835008
    s_mov_b32 {s(sH0+3)}, 0x20000
    s_mov_b32 {s(sH1+3)}, 0x20000
    v_mul_u32_u24 v16, 3584, v10
    v_add3_u32 v16, v16, v9, s65
    v_add_u32 v17, 3584, v16
    s_add_u32 s47, {s(sRot)}, 14
    s_and_b32 s47, s47, 15
    s_mul_i32 {s(sRowB)}, s47, {32*3584}
    s_mul_i32 {s(sMB)}, s46, 2112
    s_add_u32 {s(sMB)}, {s(sMB)}, {4*WST}
    s_mov_b32 {s(sGB)}, 0
    """
    ops = []
    def call(tag):
        name = {'X': 'LL_X', 'A': 'LL_A', 'B': 'LL_B', 'p': 'LH_pp'}[tag[0]]
        A(f's_call_b64 s[8:9], {name}')
        ops.extend([tag] * {'LL_X': 4, 'LL_A': 6, 'LL_B': 4, 'LH_pp': 4}[name])
    def bar(*need):
        if need:
            assert all(t in ops for t in need), need
            last = max(i for i, t in enumerate(ops) if t in need)
            if len(ops) - 1 - last < 64: A(f's_waitcnt vmcnt({len(ops) - 1 - last})')
        A('s_barrier')
    RP = os.environ.get('RP', '')
    def bodyX():
        ld = [(f's_add_u32 m0, {s(sMX)}, {16*i}', f'buffer_load_dwordx4 v13, {s(sX,4)}, {s(sXo)} offen offset:{1024*i} {RP} lds') for i in range(4)]
        pre = [f's_add_u32 {s(sJ)}, {s(sJ)}, 1', f's_lshr_b32 s67, {s(sJ)}, 1', 's_sub_u32 s68, 11, s67',
               f's_cmp_lt_u32 {s(sJ)}, 16\ns_cselect_b32 s67, s67, s68']
        post = ['s_and_b32 s68, s67, 3\ns_lshl_b32 s68, s68, 1', f's_and_b32 s62, {s(sJ)}, 1\ns_add_u32 s68, s68, s62',
                f's_mul_i32 s68, s68, {XST//2}\ns_add_u32 {s(sMX)}, s68, s58\ns_lshl_b32 s67, s67, 1',
                f's_add_u32 s67, s67, {s(sRot)}\ns_and_b32 s67, s67, 15\ns_lshl_b32 s67, s67, 6\ns_lshl_b32 s62, s62, 13\ns_add_u32 {s(sXo)}, s67, s62']
        return ld, pre, post
    def bodyA():
        ld = [(f's_add_u32 m0, {s(sMA)}, {hf*PAN+1056*bb}', f'buffer_load_dwordx4 v{18+bb}, {s(sP0 if hf == 0 else sP1,4)}, {s(sRowP)} offen {RP} lds')
              for hf in range(2) for bb in range(2)]
        ld += [(f's_add_u32 m0, s61, {2*PAN+(1088-3072)*bb}', f'buffer_load_dwordx4 v11, {s(sA,4)}, {s(sRowA)} offen offset:{3072*bb} {RP} lds') for bb in range(2)]
        pre = [f's_add_u32 {s(sGA)}, {s(sGA)}, 1', f's_add_u32 s47, {s(sGA)}, {s(sRot)}', 's_and_b32 s47, s47, 15', f's_add_u32 s61, {s(sMA)}, s69',
               f's_mul_i32 {s(sRowP)}, s47, {s(sStr)}\ns_add_u32 {s(sMA)}, {s(sMA)}, {WST}',
               f's_cmp_ge_u32 {s(sMA)}, {4*WST}\ns_cselect_b32 s63, {4*WST}, 0\ns_sub_u32 {s(sMA)}, {s(sMA)}, s63']
        post = [f's_mul_i32 {s(sRowA)}, s47, {32*3072}']
        return ld, pre, post
    def bodyB():
        ld = [(f's_add_u32 m0, {s(sMB)}, {hf*PAN+1056*bb}', f'buffer_load_dwordx4 v{16+bb}, {s(sH0 if hf == 0 else sH1,4)}, {s(sRowB)} offen {RP} lds')
              for hf in range(2) for bb in range(2)]
        pre = [f's_add_u32 {s(sGB)}, {s(sGB)}, 1', f's_xor_b32 s47, {s(sGB)}, 14', f's_add_u32 s47, s47, {s(sRot)}\ns_and_b32 s47, s47, 15',
               f's_bitcmp1_b32 {s(sGB)}, 0\ns_mov_b32 s63, {3*WST}\ns_cmov_b32 s63, {WST}\ns_add_u32 {s(sMB)}, {s(sMB)}, s63\ns_cmp_ge_u32 {s(sMB)}, {6*WST}\ns_cselect_b32 s63, {6*WST}, 0\ns_sub_u32 {s(sMB)}, {s(sMB)}, s63']
        post = [f's_mul_i32 {s(sRowB)}, s47, {32*3584}']
        return ld, pre, post
    def emit(*bodies):
        carry = []
        for ld, pre, post in bodies:
            for i, (m, l) in enumerate(ld):
                A(m); A(pre[i])
                if carry: A(carry.pop(0))
                A(l)
            for t in carry: A(t)
            carry = list(post)
        for t in carry: A(t)
    if 'st0' in EXP: stamp(A, 9)
    call('X0'); A(sel)
    if 'st0' in EXP: stamp(A, 10)
    call('X1')
    if 'st0' in EXP: stamp(A, 7)
    call('A0')
    if 'st0' in EXP: stamp(A, 6)
    if not os.environ.get('PRE'): call('A1')
    if 'st0' in EXP: stamp(A, 11)
    A('s_branch LL_go\nLL_X:')
    emit(bodyX())
    A('s_setpc_b64 s[8:9]\nLL_A:')
    emit(bodyA())
    A('s_setpc_b64 s[8:9]\nLL_go:')
    A(setup2)
    A('s_call_b64 s[8:9], LH_prep')
    if 'st0' in EXP:
        stamp(A, 12); A('s_waitcnt vmcnt(12)'); stamp(A, 8); A('s_waitcnt vmcnt(6)'); stamp(A, 5); EXP.add('frozen')
    if os.environ.get('PRE'):
        A('s_waitcnt vmcnt(%s)' % os.environ.get('PREW', '6'))
        for t in os.environ['PRE'].split(','): call(t)
    def need(c):
        n = [f'A{c}' if c < 16 else f'B{c-16}']
        if c % 2 == 0 and c < 16: n += [f'X{c}', f'X{c+1}']
        if c % 2 == 0 and c >= 24: n += [f'X{c-8}', f'X{c-7}']
        if c == BAT: n += ['B0', 'B1']
        return n
    def dist(c):
        return len(ops) - 1 - max(i for i, t in enumerate(ops) if t in need(c))
    def loop(label, c0, c1, second, cnt, lim):
        A(f's_waitcnt vmcnt({dist(c0)})\n{label}:\ns_barrier')
        emit(bodyX(), second())
        w = 63
        for c in range(c0, c1 + 1):
            ops.extend([f'X{c+4 if c < 16 else c-XO}'] * 4 + ([f'A{c+3}'] * 6 if c < 16 else [f'B{c-BO}'] * 4))
            if c < c1: w = min(w, dist(c + 1))
        A(f's_cmp_lt_u32 {cnt}, {lim}\ns_waitcnt vmcnt({w})\ns_cbranch_scc1 {label}')
    sched = {0: 'X2,X3,A2', 1: 'B0,B1,A3,X4,X5,A4', 12: 'A15', 13: 'B2', 14: 'B3', 15: 'B4', 16: 'B5', 17: 'B6', 26: 'B15'}
    LB = os.environ.get('LB', 'mid')
    if LB == 'early': LB0, LB1, XO, BO = 18, 25, 2, 11
    elif LB == 'mid':
        LB0, LB1, XO, BO = 20, 26, 3, 12
        sched.update({18: 'X16', 19: 'B7', 27: 'B15'}); del sched[26]
    else:
        LB0, LB1, XO, BO = 21, 26, 3, 13
        sched.update({18: 'X16', 19: 'B7', 20: 'X17', 27: 'B14,B15'}); del sched[26]
    if os.environ.get('LS0'): sched[0], sched[1] = os.environ['LS0'].split('/')
    c = 0
    while c < 32:
        if c == 2:
            loop('LL_loopA', 2, 11, bodyA, s(sGA), 15); c = 12; continue
        if c == LB0:
            loop('LL_loopB', LB0, LB1, bodyB, s(sGB), LB1 - BO + 1); c = LB1 + 1; continue
        bar(*need(c))
        amp(A, f'b{c}')
        if LIGHT and c in (0, 12): A(f's_memtime s[78:79]\ns_waitcnt lgkmcnt(0)\ns_mov_b32 s{81 + (c > 0)}, s78')
        if c == 16 and XB: A('s_barrier')
        if c == 28:
            A(f"""
    v_mov_b32 v9, {L_NON}
    ds_read_b32 v3, v9
    s_mov_b32 s52, {hx(FL)}
    s_lshl_b32 s61, {s(sHead)}, 3
    s_add_u32 s61, s61, {s(sQB)}
    s_lshl_b32 s61, s61, 13
    s_lshl_b32 s47, s46, 12
    s_add_u32 s61, s61, s47
    s_lshl_b32 s62, s46, 13
    s_add_u32 s62, s62, {L_ONES+512}
    s_lshl_b32 s63, s46, 10
    s_lshl_b32 s47, {s(sHead)}, 17
    s_add_u32 s47, s47, {hx(KV)}
    s_add_u32 s47, s47, s63
    s_mov_b32 s53, 0
    """)
        if c == int(os.environ.get('EARLYC', '30')):
            A(f"""
    buffer_load_dword v241, v251, {s(sWS,4)}, s52 offen sc1
    """)
            ops.append('poll')
        for t in sched.get(c, '').split(','):
            if t: call(t)
        c += 1
    A(f"""
    s_setprio 2
    s_barrier
LL_f1:
    s_add_u32 s53, s53, 1
    s_waitcnt vmcnt(0) lgkmcnt(0)
    v_cmp_ne_u32 vcc, v3, v241
    s_cbranch_vccz LL_f1ok
    s_sleep 4
    buffer_load_dword v241, v251, {s(sWS,4)}, s52 offen sc1
    s_cmp_lt_u32 s53, {SPIN}
    s_cbranch_scc1 LL_f1
LL_f1ok:
    """)
    stamp(A, 1)
    if STAMP: A('s_add_u32 s82, s53, s80')
    A('s_call_b64 s[8:9], LL_qkv\ns_branch LH_join\nLL_qkv:')
    for i in range(4):
        A(f's_add_u32 m0, s62, {1024*i}\ns_nop 0\nbuffer_load_dwordx4 v1, {s(sWS,4)}, s61 offen offset:{1024*i} sc1 lds')
    A(f"""
    s_mov_b32 m0, s63
    s_nop 0
LL_kv:
    buffer_load_dwordx4 v1, {s(sWS,4)}, s47 offen sc1 lds
    buffer_load_dwordx4 v1, {s(sWS,4)}, s47 offen offset:2048 sc1 lds
    s_add_u32 m0, m0, 4096
    s_add_u32 s47, s47, 4096
    s_cmp_lt_u32 m0, 20480
    s_cbranch_scc1 LL_kv
    s_setpc_b64 s[8:9]
LL_B:
    """)
    emit(bodyB())
    A(f"""
    s_setpc_b64 s[8:9]
    """)
    CS, RS = 16, 24
    WF, XF = 32, 52
    sOne = 73
    A(f"""
L_M:
    s_setprio {os.environ.get('MPRIO', '0')}
    s_mov_b32 s45, s46
    """)
    A(patterns)
    A(f"""
    s_mov_b32 s45, 1
    s_mov_b32 {s(sOne)}, {hx(ONES)}
    s_lshl_b32 s47, s46, 9
    s_add_u32 s47, s47, {L_X}
    v_add_u32 v4, s47, v4
    v_lshlrev_b32 v1, 4, v0
    s_mov_b32 s50, 0
    """)
    for i in range(16, 28, 2): A(f'v_mov_b64 {v(i,2)}, 0')
    A(f's_mov_b32 s47, {hx(NW)}\ns_waitcnt lgkmcnt(0)\nbuffer_load_dword v30, off, {s(sWS,4)}, s47 sc1')
    nb = -1
    def bars(upto):
        nonlocal nb
        while nb < upto:
            A('s_barrier'); nb += 1
    A('s_call_b64 s[8:9], LH_prep')
    if 'st0' in EXP:
        EXP.discard('frozen'); stamp(A, 9); EXP.add('frozen')
    XF = 44
    A(f"""
    v_add_u32 v10, {4*WST}, v2
    v_add_u32 v2, {2*WST}, v2
    v_add_u32 v3, {2*WST}, v3
LM_stat:
    s_bitcmp1_b32 s50, 0
    s_cbranch_scc1 LM_nobar
    s_barrier
LM_nobar:
    ds_read_b128 {v(XF,4)}, v4
    ds_read_b128 {v(XF+4,4)}, v4 offset:128
    ds_read_b64_tr_b16 {v(WF,2)}, v3
    ds_read_b64_tr_b16 {v(WF+2,2)}, v3 offset:128
    """)
    for u in range(2):
        A(f'ds_read_b64_tr_b16 {v(WF+4+4*u,2)}, v2 offset:{u*32}')
        A(f'ds_read_b64_tr_b16 {v(WF+6+4*u,2)}, v2 offset:{u*32+128}')
    A(f"""
    s_movk_i32 s47, 512
    s_cmovk_i32 s47, {WST-512}
    v_add_u32 v2, s47, v2
    v_add_u32 v3, s47, v3
    v_add_u32 v4, 32, v4
    s_add_u32 s50, s50, 1
    s_waitcnt lgkmcnt(6)
    """)
    for j in range(4):
        for T in range(2):
            A(f'v_dot2c_f32_bf16 v{RS+2*T}, {s(sOne)}, v{XF+4*T+j}')
            A(f'v_dot2c_f32_bf16 v{RS+2*T+1}, v{XF+4*T+j}, v{XF+4*T+j}')
    A('s_waitcnt lgkmcnt(0)')
    for j in range(4):
        for i in range(3):
            A(f'v_dot2c_f32_bf16 v{CS+i}, {s(sOne)}, v{WF+4*i+j}')
    A(f"""
    s_cmp_lt_u32 s50, 4
    s_cbranch_scc1 LM_stat
    s_barrier
    """)
    nb = 2
    bars(BAT)
    for q in range(4):
        for u in range(2):
            for rd in range(2):
                A(f'ds_read_b64_tr_b16 {v(WF+8*q+4*u+2*rd,2)}, v10 offset:{(q>>1)*WST+(4*(q&1)+rd)*128+u*32}')
        if q == 2: A('s_waitcnt lgkmcnt(4)')
    A(f"""
    s_lshl_b32 s50, {s(sCG)}, 4
    s_add_u32 s50, s50, {s(sRB)}
    s_lshl_b32 s50, s50, 1
    s_add_u32 s50, s50, s46
    s_lshl_b32 s50, s50, 10
    s_add_u32 s50, s50, {hx(CSP)}
    s_lshl_b32 s51, {s(sRB)}, 4
    s_add_u32 s51, s51, {s(sCG)}
    s_lshl_b32 s51, s51, 1
    s_add_u32 s51, s51, s46
    s_lshl_b32 s51, s51, 10
    s_add_u32 s51, s51, {hx(RSP)}
    s_waitcnt lgkmcnt(0)
    """)
    for hh in range(2):
        for q in (2 * hh, 2 * hh + 1):
            for j in range(4):
                for u in range(2):
                    r = WF + 8 * q + 4 * u + j
                    A(f'v_lshlrev_b32 v28, 16, v{r}\nv_and_b32 v29, 0xffff0000, v{r}\nv_add_f32 v{CS+3+u}, v{CS+3+u}, v28\nv_add_f32 v{CS+5+u}, v{CS+5+u}, v29')
        bars(nb + 1)
    A(f"""
    v_add_f32 v{CS+3}, v{CS+3}, v{CS+5}
    v_add_f32 v{CS+4}, v{CS+4}, v{CS+6}
    s_mov_b32 s47, 1664525
    s_waitcnt vmcnt(0)
    v_mul_lo_u32 v30, v30, s47
    v_add_u32 v30, 1013904223, v30
    """)
    for i in range(5): A(f'v_mov_b32 v{WF+i}, v{CS+i}')
    for i in range(4): A(f'v_mov_b32 v{WF+8+i}, v{RS+i}')
    A('v_cmp_gt_u32 vcc, 32, v0')
    for i in range(5): A(f'v_permlane32_swap_b32 v{CS+i}, v{WF+i}')
    for i in range(4): A(f'v_permlane32_swap_b32 v{RS+i}, v{WF+8+i}')
    for i in range(5): A(f'v_add_f32 v{CS+i}, v{CS+i}, v{WF+i}')
    for i in range(4): A(f'v_add_f32 v{RS+i}, v{RS+i}, v{WF+8+i}')
    A(f"""
    v_cndmask_b32 v{CS}, v{CS+3}, v{CS}, vcc
    v_cndmask_b32 v{CS+1}, v{CS+4}, v{CS+1}, vcc
    v_mov_b32 v{CS+3}, v30
    v_cndmask_b32 v{RS}, v{RS+2}, v{RS}, vcc
    v_cndmask_b32 v{RS+1}, v{RS+3}, v{RS+1}, vcc
    v_mov_b32 v{RS+3}, v30
    buffer_store_dwordx4 {v(CS,4)}, v1, {s(sWS,4)}, s50 offen sc1
    buffer_store_dwordx4 {v(RS,4)}, v1, {s(sWS,4)}, s51 offen sc1
    """)
    bars(nb + 1)
    A(f"""
    s_and_b32 s50, s50, {hx(~0x3800)}
    s_and_b32 s51, s51, {hx(~0x3800)}
    v_lshlrev_b32 v8, 2, v0
    v_mov_b32 v9, {L_FLAG}
    v_mov_b32 v29, 0
    ds_write_b32 v9, v29
    ds_write_b32 v9, v30 offset:4
    v_mov_b32 v28, 0
    ds_write_b64 v9, v[28:29] offset:16
    ds_write_b64 v9, v[28:29] offset:24
    """)
    B_GAT, B_RED = [int(t) for t in os.environ.get('MSCHED', '12,15').split(',')]
    A(f"""
    v_mov_b32 v3, v30
    s_lshl_b32 s54, {s(sQB)}, 3
    s_lshl_b32 s62, s46, 2
    s_add_u32 s54, s54, s62
    s_lshl_b32 s54, s54, 5
    s_add_u32 s54, s54, {s(sHead)}
    s_lshl_b32 s54, s54, 10
    s_add_u32 s54, s54, {hx(OF)}
    """)
    for n in range(4):
        A(f'buffer_store_dwordx4 v[236:239], v1, {s(sWS,4)}, s54 offen sc1\ns_add_u32 s54, s54, 0x8000')
        bars(nb + 1)
    bars(B_GAT)
    GC, GR = 32, 64
    A('s_mov_b32 s53, 0\nLM_gat:\ns_mov_b32 s47, s50\ns_mov_b32 s61, s51')
    for i in range(8):
        A(f'buffer_load_dwordx4 {v(GR+4*i,4)}, v1, {s(sWS,4)}, s61 offen offset:{2048*(i&1)} sc1')
        A(f'buffer_load_dwordx4 {v(GC+4*i,4)}, v1, {s(sWS,4)}, s47 offen offset:{2048*(i&1)} sc1')
        if i & 1 and i < 7: A('s_add_u32 s47, s47, 4096\ns_add_u32 s61, s61, 4096')
    A('s_cmp_lg_u32 s53, 0\ns_cbranch_scc1 LM_chk')
    bars(B_RED - 1)
    A('LM_chk:\ns_waitcnt vmcnt(0)\ns_add_u32 s53, s53, 1')
    A(f'v_xor_b32 v10, v30, v{GC+3}')
    for r in [GC + 4 * i + 3 for i in range(1, 16)]:
        A(f'v_xor_b32 v11, v30, v{r}\nv_or_b32 v10, v10, v11')
    A(f"""
    v_cmp_ne_u32 vcc, 0, v10
    s_cbranch_vccz LM_red
    s_cmp_lt_u32 s53, {SPIN}
    s_cbranch_scc1 LM_gat
LM_red:
    """)
    stamp(A, 1)
    for i in range(1, 8):
        for t in range(3):
            if t < 2: A(f'v_add_f32 v{GR+t}, v{GR+t}, v{GR+4*i+t}')
            A(f'v_add_f32 v{GC+t}, v{GC+t}, v{GC+4*i+t}')
    bars(B_RED)
    SUM, SQ = GR, GR + 1
    A(f"""
    s_mul_i32 s47, s46, {5*256}
    s_add_u32 s47, s47, {L_CS}
    v_add_u32 v10, s47, v8
    s_lshl_b32 s47, s46, 9
    s_add_u32 s47, s47, {L_RS}
    v_lshl_add_u32 v9, v0, 3, s47
    v_cmp_gt_u32 vcc, 32, v0
    v_mul_f32 v{SUM}, {hx(f2u(-1.0/512))}, v{SUM}
    v_mul_f32 v{SQ}, {hx(f2u(1.0/512))}, v{SQ}
    v_fma_f32 v{SQ}, -v{SUM}, v{SUM}, v{SQ}
    v_max_f32 v{SQ}, 0, v{SQ}
    v_cvt_pk_bf16_f32 v{SQ}, v{SQ}, v{SQ}
    v_and_b32 v{SQ}, 0xffff0000, v{SQ}
    v_add_f32 v{SQ}, {hx(f2u(1e-5))}, v{SQ}
    v_cvt_pk_bf16_f32 v{SQ}, v{SQ}, v{SQ}
    v_and_b32 v{SQ}, 0xffff0000, v{SQ}
    v_sqrt_f32 v{SQ}, v{SQ}
    v_cvt_pk_bf16_f32 v{SUM}, v{SUM}, v{SUM}
    v_cvt_pk_bf16_f32 v{SQ}, v{SQ}, v{SQ}
    v_and_b32 v{SQ}, 0xffff0000, v{SQ}
    ds_write_b64 v9, {v(SUM,2)}
    """)
    for t in range(3):
        A(f"""
        v_cvt_pk_bf16_f32 v28, v{GC+t}, v{GC+t}
        v_and_b32 v28, 0xffff0000, v28
        v_sub_f32 v29, v{GC+t}, v28
        v_cvt_pk_bf16_f32 v28, v28, v29
        v_cndmask_b32 v{16+t}, 0, v28, vcc
        ds_write_b32 v10, v{16+t} offset:{t*256}
        """)
        if t < 2: A(f'v_sub_u32 v{20+t}, v28, v{16+t}\nds_write_b32 v10, v{20+t} offset:{(3+t)*256}')
    A('s_waitcnt lgkmcnt(0)')
    stamp(A, 2)
    assert nb <= 15 or XB
    if XB: A('s_barrier')
    A(f"""
    s_lshl_b32 s51, s2, 7
    s_add_u32 s51, s51, {hx(FL)}
    s_cmp_lg_u32 s46, 0
    s_cmov_b32 s51, 0x2000000
    s_mov_b32 s52, 0x2000000
    s_cmp_eq_u32 s71, 3
    s_cselect_b32 s53, s51, s52
    s_cselect_b32 s51, s52, s51
    """)
    bars(16 + 2 * F1N + 1)
    flag_store(A, 's51', 3)
    bars(16 + 2 * F1B + 1)
    flag_store(A, 's53', 3)
    bars(int(os.environ.get('WPF', '28')))
    if 'nowpf' not in EXP:
        A(f"""
        s_load_dwordx2 {s(sH0,2)}, s[0:1], 16
        s_mov_b32 {s(sH0+2)}, 524288
        s_mov_b32 {s(sH0+3)}, 0x20000
        s_lshl_b32 s47, s71, 1
        s_add_u32 s47, s47, s46
        s_lshl_b32 s47, s47, 16
        s_lshl_b32 s61, s70, 7
        s_add_u32 s47, s47, s61
        v_lshlrev_b32 v8, 10, v0
        s_waitcnt lgkmcnt(0)
        buffer_load_dword v241, v8, {s(sH0,4)}, s47 offen
        """)
    bars(32)
    A('s_setprio 2')
    A.shift = 0
    A(f"""
LH_join:
    s_call_b64 s[8:9], LH_prep2
    s_lshl_b32 s61, {s(sRB)}, 2
    s_lshl_b32 s62, s46, 1
    s_add_u32 s61, s61, s62
    s_mul_i32 s61, s61, 112
    s_and_b32 s62, s3, 3
    s_mul_i32 s62, s62, 28
    s_add_u32 s61, s61, s62
    s_lshl_b32 s62, s71, 3
    s_add_u32 s61, s61, s62
    s_lshl_b32 s62, s45, 1
    s_add_u32 s61, s61, s62
    s_lshl_b32 s61, s61, 10
    s_add_u32 s64, s61, {hx(HF)}
    s_add_u32 s66, s64, 4096
    s_cmp_eq_u32 s71, 3
    s_cselect_b32 s66, s64, s66
    s_add_u32 s67, s66, {112*1024}
    s_and_b32 s47, s3, 3
    s_lshl_b32 s47, s47, 2
    s_add_u32 s47, s47, s45
    s_lshl_b32 s47, s47, 7
    s_lshl_b32 s62, s46, 4
    s_add_u32 s47, s47, s62
    s_add_u32 s47, s47, {s(sRB)}
    s_lshl_b32 s47, s47, 11
    s_add_u32 s47, s47, {hx(KV+32*2048+1024)}
    s_cmp_eq_u32 s71, 3
    s_cselect_b32 s4, s47, s64
    s_movk_i32 s5, 1024
    s_cmov_b32 s5, {4*64*2048}
    s_mov_b32 s6, {112*1024}
    s_cmov_b32 s6, {64*2048}
    s_add_u32 s6, s6, s4
    s_add_u32 s7, s6, s5
    s_add_u32 s5, s5, s4
    s_lshl_b32 s63, s2, 7
    s_lshl_b32 s62, s44, 2
    s_add_u32 s61, s63, s62
    s_add_u32 s61, s61, {hx(FH)}
    s_lshl_b32 s50, s3, 3
    s_lshl_b32 s47, s71, 1
    s_add_u32 s50, s50, s47
    s_add_u32 s50, s50, s46
    s_lshl_b32 s51, s70, 1
    s_add_u32 s51, s51, s45
    s_mul_i32 s47, s44, {28*1024}
    s_add_u32 s47, s47, {hx(HF)}
    s_mul_i32 s56, s50, {112*1024}
    s_add_u32 s56, s56, s47
    s_xor_b32 s57, s50, 1
    s_mul_i32 s57, s57, {112*1024}
    s_add_u32 s57, s57, s47
    s_mul_i32 s58, s44, {28*16384}
    s_lshl_b32 s47, s71, 1
    s_add_u32 s59, s70, s47
    s_cmp_ge_u32 s59, 7
    s_cselect_b32 s47, 7, 0
    s_sub_u32 s59, s59, s47
    s_lshl_b32 s59, s59, 12
    s_mov_b32 s49, {hx(FH)}
    s_lshl_b32 s54, s50, 15
    s_lshl_b32 s47, s51, 6
    s_add_u32 s54, s54, s47
    s_load_dwordx2 {s(sA,2)}, s[0:1], 56
    s_load_dwordx2 {s(sPK,2)}, s[0:1], 48
    s_load_dwordx2 {s(sH0,2)}, s[0:1], 16
    s_mov_b32 {s(sA+2)}, 2097152
    s_mov_b32 {s(sPK+2)}, 1835008
    s_mov_b32 {s(sPK+3)}, 0x20000
    s_mov_b32 {s(sH0+2)}, 524288
    s_mov_b32 {s(sH0+3)}, 0x20000
    s_waitcnt vmcnt(0) lgkmcnt(0)
    """)
    A(f"""
    s_lshl_b32 s63, s44, 10
    s_lshl_b32 s47, {s(sHead)}, 17
    s_add_u32 s47, s47, {hx(KV+20480)}
    s_add_u32 s47, s47, s63
    s_add_u32 m0, s63, 20480
    """)
    stamp(A, 3)
    A('s_barrier')
    amp(A, 'B1')
    A(f's_mov_b32 s48, {9*4096}\ns_call_b64 s[8:9], LH_kv')
    A('s_cmp_eq_u32 s71, 3\ns_cbranch_scc1 LH_vr')
    for n in range(4): A(f'ds_read_b128 {v(96+4*n,4)}, v248 offset:{n*4096}')
    A('s_branch LH_hr\nLH_vr:')
    for n in range(4):
        for rd in range(2): A(f'ds_read_b64_tr_b16 {v(96+4*n+2*rd,2)}, v230 offset:{n*4096+64*rd}')
    A('LH_hr:')
    for n in range(4, 8): A(f'ds_read_b128 {v(96+4*n,4)}, v248 offset:{n*4096}')
    PFM = os.environ.get('PFM', 'late')
    PFX = f"""
    s_lshl_b32 s55, s59, 4
    s_add_u32 s55, s55, s58
    s_lshl_b32 s53, s70, 7
    s_add_u32 s55, s55, s53
    v_lshlrev_b32 v110, 6, v1
    buffer_load_dword v111, v110, {s(sPK,4)}, s55 offen
    s_add_u32 s55, s55, 65536
    buffer_load_dword v111, v110, {s(sPK,4)}, s55 offen
    """
    level = lambda n: f'v_mov_b32 v241, {n}\nds_write_b32 v229, v241'
    for n in range(8):
        A(f's_waitcnt lgkmcnt({min(7-n,4)})\nbuffer_store_dwordx4 {v(96+4*n,4)}, v1, {s(sWS,4)}, ' + (f's{4+n} offen sc1' if n < 4 else f's{64+(n>>1)} offen offset:{(n&1)*1024} sc1'))
    A('s_waitcnt vmcnt(8)\n' + level(2))
    A(f's_mov_b32 s48, {17*4096}\ns_call_b64 s[8:9], LH_kv\ns_waitcnt vmcnt(8)')
    stamp(A, 4)
    A(f"""
    s_or_b32 s62, s44, s2
    s_mov_b32 s62, {hx(NW)}
    s_cmov_b32 s62, 0x2000000
    s_mov_b64 exec, 1
    buffer_store_dword v3, off, {s(sWS,4)}, s61 sc1
    buffer_store_dword v3, off, {s(sWS,4)}, s62 sc1
    s_mov_b64 exec, -1
    s_waitcnt vmcnt(2)
    {level(4)}
    s_lshl_b32 s55, s44, 17
LH_wo:
    buffer_load_dwordx4 v242, {s(sH0,4)}, s55 offen lds
    s_add_u32 m0, m0, 4096
    s_add_u32 s55, s55, 8192
    s_cmp_lt_u32 m0, 131072
    s_cbranch_scc1 LH_wo
    s_mov_b32 m0, s60
    s_sub_u32 s62, s63, s60
    buffer_load_dwordx4 v242, {s(sH0,4)}, s55 offen lds
    buffer_load_dwordx4 v[88:91], v249, {s(sX,4)}, s54 offen
    buffer_load_dwordx4 v[92:95], v249, {s(sX,4)}, s54 offen offset:32
{PFX if PFM == 'early' else ''}
    s_add_u32 s62, s62, {17*4096}
    v_add_u32 v72, s62, v244
    v_add_u32 v73, s62, v245
    v_mov_b32 v251, v229
    s_add_u32 m0, s63, {16*4096}
    s_sub_u32 s47, s47, 4096
    s_mov_b32 s48, 131072
    s_mov_b32 s63, 0
    s_waitcnt vmcnt({4 if PFM == 'early' else 2})
    """)
    for k in range(8):
        for b in range(2):
            for rd in range(2):
                A(f'ds_read_b64_tr_b16 {v(176+8*k+4*b+2*rd,2)}, ' + (f'v{72+b} offset:{(2*k+rd)*4096}' if 2 * k + rd < 15 else f'v{244+b}'))
        if k in (2, 5, 7): A('s_waitcnt lgkmcnt(0)')
    stamp(A, 5)
    A(f"""
    s_cmp_lg_u32 s46, 0
    s_cbranch_scc1 LH_fh0
    s_call_b64 s[8:9], LH_kv
LH_fh0:
    buffer_load_dwordx4 v[76:79], v246, {s(sWS,4)}, s49 offen sc1
LH_fh:
    s_add_u32 s63, s63, 1
    s_waitcnt vmcnt(0)
    v_cmp_ne_u64 vcc, v[2:3], v[76:77]
    v_cmp_ne_u64 s[4:5], v[2:3], v[78:79]
    s_or_b64 vcc, vcc, s[4:5]
    s_cbranch_scc0 LH_gemm
    s_sleep 8
    buffer_load_dwordx4 v[76:79], v246, {s(sWS,4)}, s49 offen sc1
    s_cmp_lt_u32 s63, {SPIN}
    s_cbranch_scc1 LH_fh
LH_gemm:
    s_cmp_eq_u32 s46, 0
    s_cbranch_scc1 LH_g0
    s_call_b64 s[8:9], LH_kv
LH_g0:
    s_mov_b32 s61, s59
    s_mov_b32 m0, s60
    v_mov_b32 v241, 8
    """)
    D, G, X, T0, FO, WO = 8, 72, 88, 96, 112, 176
    Dj = lambda a, b: D + 16 * (a + 2 * b)
    adv = f"""
    s_add_u32 s52, s56, s59
    s_add_u32 s53, s57, s59
    s_lshl_b32 s55, s59, 4
    s_add_u32 s55, s55, s58
    s_add_u32 s59, s59, 4096
    s_cmp_ge_u32 s59, {7*4096}
    s_cselect_b32 s59, 0, s59
    s_cmp_eq_u32 s59, s61
    s_cselect_b32 s59, 0x2000000, s59
    """
    def dma(srd, buf):
        A(f"""
        buffer_load_dwordx4 v242, {s(srd,4)}, s55 offen offset:{2048*buf} lds
        buffer_load_dwordx4 v243, {s(srd,4)}, s55 offen offset:{2048*buf+1024} lds
        s_add_u32 s55, s55, {16384+2048*(2*buf-1)}
        """)
    def grp(i):
        if i & 3 == 0: A(adv)
        for a in range(2):
            A(f'buffer_load_dwordx4 {v(FO+8*(i&3)+4*a,4)}, v1, {s(sWS,4)}, s{52+a} offen offset:{(i&3)*1024} sc1')
        dma(sPK, i & 1)
    def trd(dst, buf):
        for b in range(2):
            for rd in range(2):
                A(f'ds_read_b64_tr_b16 {v(dst+4*b+2*rd,2)}, v{244+b} offset:{2048*buf+1024*rd}')
    stamp(A, 6)
    amp(A, 'gemm')
    if PFM == 'late': A(PFX)
    grp(0); grp(1)
    A(f's_waitcnt vmcnt({10 if PFM == "late" else 8})\nds_write_b32 v251, v241\ns_waitcnt vmcnt(4)')
    trd(G, 0)
    A('s_waitcnt lgkmcnt(0)')
    grp(2)
    A(f"s_setprio {os.environ.get('GPRIO', '0')}")
    def gbody(first):
        for i in range(4):
            A(f's_waitcnt vmcnt({4 if not first or i == 0 else 8})')
            trd(G + 8 * ((i + 1) & 1), (i + 1) & 1)
            for a in range(2): A(mfma(Dj(a, 0), G + 8 * (i & 1), FO + 8 * i + 4 * a, Dj(a, 0)))
            if first:
                for k in range(4):
                    A(f's_add_u32 m0, s48, {(4*i+k)*4096}\ns_add_u32 s47, s61, {(4*i+k)*4096}\nbuffer_load_dwordx4 v1, {s(sWS,4)}, s47 offen sc1 lds')
                A('s_mov_b32 m0, s60')
            A('s_waitcnt lgkmcnt(0)')
            grp(i + 3)
            for a in range(2): A(mfma(Dj(a, 1), G + 8 * (i & 1) + 4, FO + 8 * i + 4 * a, Dj(a, 1)))
    A('s_mov_b32 s63, 0\nLH_gloop:')
    gbody(False)
    A(f"""
    s_add_u32 s63, s63, 1
    s_cmp_lt_u32 s63, 7
    s_cbranch_scc1 LH_gloop
    s_setprio {os.environ.get('MEETP', '0')}
    """)
    A(f"""
    s_lshl_b32 s47, s3, 3
    s_lshl_b32 s61, s44, 1
    s_add_u32 s47, s47, s61
    s_lshl_b32 s47, s47, 7
    s_lshl_b32 s61, s71, 2
    s_add_u32 s47, s47, s61
    s_add_u32 s47, s47, {hx(FH)}
    s_mov_b32 s63, 0
LH_fs:
    buffer_load_dword v241, v250, {s(sWS,4)}, s47 offen sc1
    s_add_u32 s63, s63, 1
    s_waitcnt vmcnt(0)
    v_cmp_ne_u32 vcc, v3, v241
    s_cbranch_vccz LH_fsok
    s_sleep 8
    s_cmp_lt_u32 s63, {SPIN}
    s_cbranch_scc1 LH_fs
LH_fsok:
    s_mov_b32 s62, 0
    """)
    if os.environ.get('XW'):
        A(f's_mov_b32 {s(sWS+2)}, 0x4000000\ns_lshl_b32 s47, s2, 2\ns_add_u32 s47, s47, s44\ns_lshl_b32 s47, s47, 13\ns_add_u32 s47, s47, 0x2800000')
        for i in range(8): A(f'buffer_store_dwordx4 v[88:91], v1, {s(sWS,4)}, s47 offen {os.environ["XW"]}\ns_add_u32 s47, s47, 1024')
    for j in range(1, 4):
        A('s_call_b64 s[8:9], LH_meet')
        for q in range(4): A(f'ds_write_b128 v{4+j}, {v(D+16*j+4*q,4)} offset:{q*1024}')
        A('s_call_b64 s[8:9], LH_meet')
        for q in range(4): A(f'ds_read_b128 {v(D+16*j+4*q,4)}, v4 offset:{q*1024}')
    A(f"""
    s_lshl_b32 s52, s50, 5
    s_lshl_b32 s61, s44, 3
    s_add_u32 s52, s52, s61
    s_lshl_b32 s52, s52, 10
    s_add_u32 s58, s52, {hx(OF)}
    s_xor_b32 s56, s58, 0x8000
    s_add_u32 s57, s56, 4096
    s_add_u32 s59, s58, 4096
    s_mov_b32 s63, 0
    """)
    def send():
        for j in (2,):
            for q in range(4): A(f'ds_write_b128 v{252+j}, {v(D+16*j+4*q,4)} offset:{(j-1)*4096+q*1024}')
        A('s_waitcnt lgkmcnt(0)\ns_barrier')
        for j in range(1, 4):
            for q in range(4): A(f'ds_read_b128 {v(D+16*j+4*q,4)}, v252 offset:{(j-1)*4096+q*1024}')
    A(f"""
    s_mov_b32 s52, -1
    s_waitcnt lgkmcnt(0)
    """)
    stamp(A, 7)
    amp(A, 'ready')
    A('s_barrier')
    amp(A, 'X')
    if os.environ.get('XSL'): A('s_sleep ' + os.environ['XSL'])
    stamp(A, 8)
    for g in range(4):
        A(f'LH_o{g}:')
        for k in range(4 * g, 4 * g + 4):
            A(f'buffer_load_dwordx4 {v(FO+4*k,4)}, v1, {s(sWS,4)}, s{56+g} offen offset:{(k&3)*1024} sc1')
    for g in range(4):
        A(f's_cmp_eq_u32 s52, {g}\ns_cbranch_scc1 LH_c{g}')
    A(f's_mov_b32 s4, {hx(f2u(-LOG2E))}\ns_mov_b32 s5, 1.0')
    for j in range(1, 4):
        for p in range(8): A(f'v_pk_add_f32 {v((D if j < 3 else G)+2*p,2)}, {v(D+2*p,2)}, {v(D+16*j+2*p,2)}')
    for p in range(8): A(f'v_pk_mul_f32 {v(D+2*p,2)}, {v(G+2*p,2)}, s[4:5] op_sel_hi:[1,0]')
    for j in range(16): A(f'v_exp_f32 v{D+j}, v{D+j}')
    for p in range(8): A(f'v_pk_add_f32 {v(D+2*p,2)}, {v(D+2*p,2)}, s[4:5] op_sel:[0,1] op_sel_hi:[1,1]')
    for j in range(16): A(f'v_rcp_f32 v{D+j}, v{D+j}')
    for p in range(8): A(f'v_pk_mul_f32 {v(G+2*p,2)}, {v(D+2*p,2)}, {v(G+2*p,2)}')
    for g in range(4):
        f0 = FO + 16 * g
        a, hh = 1 - (g >> 1), g & 1
        A(f"""
LH_c{g}:
        s_mov_b32 s52, {g}
        s_add_u32 s63, s63, 1
        s_waitcnt vmcnt({12-4*g})
        v_max3_u32 v241, v{f0}, v{f0+4}, v{f0+8}
        v_max_u32 v241, v241, v{f0+12}
        v_cmp_eq_u32 vcc, -1, v241
        s_cbranch_vccz LH_m{g}
        s_sleep {os.environ.get('RSL', '4')}
        s_cmp_lt_u32 s63, {SPIN}
        s_cbranch_scc1 LH_o{g}
LH_m{g}:
        """)
        n = 0
        for b in (1, 0):
            for k in range(4):
                A(mfma(Dj(a, b), WO + 8 * (4 * hh + k) + 4 * b, f0 + 4 * k, None if hh == 0 and k == 0 else Dj(a, b)))
                if g == 2:
                    j, q = (3, 1)[n >> 2], n & 3
                    A(f'ds_write_b128 v{252+j}, {v(D+16*j+4*q,4)} offset:{(j-1)*4096+q*1024}')
                if g == 3: A(f'v_lshlrev_b32 v{T0+2*n}, 16, v{X+n}\nv_and_b32 v{T0+2*n+1}, 0xffff0000, v{X+n}')
                n += 1
    if STAMP and 'st0' not in EXP: A('s_add_u32 s89, s63, s80')
    stamp(A, 10)
    send()
    for j in range(1, 3):
        A(f's_waitcnt lgkmcnt({12-4*j})')
        for p in range(8): A(f'v_pk_add_f32 {v(D+2*p,2)}, {v(D+2*p,2)}, {v(D+16*j+2*p,2)}')
    for q in range(4):
        A(f's_waitcnt lgkmcnt({3-q})')
        for p in (2 * q, 2 * q + 1):
            A(f'v_pk_add_f32 {v(D+2*p,2)}, {v(D+2*p,2)}, {v(D+48+2*p,2)}')
            A(f'v_pk_fma_f32 {v(D+2*p,2)}, {v(D+2*p,2)}, {v(G+2*p,2)}, {v(T0+2*p,2)}')
            A(f'v_cvt_pk_bf16_f32 v{X+p}, v{D+2*p}, v{D+2*p+1}')
        if q & 1: A(f'buffer_store_dwordx4 {v(X+4*(q>>1),4)}, v249, {s(sA,4)}, s54 offen offset:{32*(q>>1)} {os.environ.get("OST", "")}')
    stamp(A, 11)
    stamp_end(A, sWS, sW, 2)
    if AMP:
        amp(A, 'end')
        A(f'''
        s_cmp_lg_u32 {s(sW)}, 4
        s_cbranch_scc1 L_end
        s_memrealtime s[78:79]
        s_sub_u32 s97, s97, s96
        s_waitcnt lgkmcnt(0)
        s_mov_b32 s96, s78
LH_amp:
        s_memrealtime s[78:79]
        s_waitcnt lgkmcnt(0)
        s_sub_u32 s78, s78, s96
        s_cmp_lt_u32 s78, s97
        s_cbranch_scc1 LH_amp
        ''')
    A(f"""
    s_endpgm
LH_meet:
    s_add_u32 s62, s62, 4
    s_mov_b32 s63, 0
    s_waitcnt lgkmcnt(0)
    s_mov_b64 exec, 1
    ds_add_u32 v247, v240
    s_mov_b64 exec, -1
LH_meetw:
    ds_read_b32 v241, v247
    s_add_u32 s63, s63, 1
    s_waitcnt lgkmcnt(0)
    v_cmp_gt_u32 vcc, s62, v241
    s_cbranch_vccz LH_meetok
    s_sleep {os.environ.get('MEETS', '4')}
    s_cmp_lt_u32 s63, {SPIN * 16}
    s_cbranch_scc1 LH_meetw
LH_meetok:
    s_setpc_b64 s[8:9]
LH_kv:
    buffer_load_dwordx4 v1, {s(sWS,4)}, s47 offen sc1 lds
    s_add_u32 m0, m0, 4096
    s_add_u32 s47, s47, 4096
    s_cmp_lt_u32 m0, s48
    s_cbranch_scc1 LH_kv
    s_setpc_b64 s[8:9]
LH_prep:
    v_lshlrev_b32 v1, 4, v0
    v_cmp_gt_u32 vcc, 32, v0
    v_and_b32 v200, 15, v0
    v_and_b32 v201, 1, v0
    s_lshl_b32 s47, {s(sQB)}, 1
    v_add_u32 v201, s47, v201
    s_add_u32 s61, s3, 8
    s_lshr_b32 s62, s3, 1
    s_lshl_b32 s62, s62, 2
    s_add_u32 s62, s62, 3
    v_cndmask_b32 v200, v201, v200, vcc
    v_mov_b32 v201, s3
    v_mov_b32 v202, s62
    v_cndmask_b32 v201, v201, v202, vcc
    v_cmp_gt_u32 vcc, 16, v0
    v_mov_b32 v202, s61
    v_lshrrev_b32 v203, 3, v200
    v_cndmask_b32 v201, v201, v202, vcc
    v_and_b32 v200, 7, v200
    v_lshlrev_b32 v200, 3, v200
    v_lshl_add_u32 v200, v203, 2, v200
    v_lshrrev_b32 v203, 2, v201
    v_add_u32 v200, v200, v203
    v_and_b32 v201, 3, v201
    v_lshl_add_u32 v200, v201, 6, v200
    v_lshlrev_b32 v251, 7, v200
    s_lshl_b32 s61, s44, 12
    s_add_u32 s47, s61, {L_ONES}
    s_add_u32 s61, s61, {L_EX}
    v_and_b32 v204, 11, v0
    v_cmp_eq_u32 vcc, 0, v204
    v_mov_b32 v204, {hx(ONES)}
    v_and_b32 v205, 0x1ff, v1
    v_cndmask_b32 v232, 0, v204, vcc
    v_add_u32 v231, s47, v205
    v_mov_b32 v233, v232
    v_mov_b64 v[234:235], v[232:233]
    v_mov_b32 v240, 1
    v_mov_b32 v247, {L_FLAG}
    v_mov_b64 v[236:237], -1
    v_mov_b64 v[238:239], -1
    s_lshl_b32 s47, s44, 10
    s_add_u32 s47, s47, {L_H}
    v_add_u32 v248, s47, v1
    v_lshrrev_b32 v207, 5, v0
    v_bfe_u32 v204, v0, 4, 1
    v_lshl_add_u32 v204, v204, 2, v207
    v_bfe_u32 v205, v0, 2, 2
    v_lshl_add_u32 v204, v204, 2, v205
    v_and_b32 v205, 3, v0
    v_lshlrev_b32 v205, 8, v205
    v_lshl_add_u32 v204, v204, 3, v205
    v_add_u32 v230, s47, v204
    v_lshrrev_b32 v204, 3, v0
    v_and_b32 v205, 7, v0
    v_and_b32 v206, 2, v204
    v_lshlrev_b32 v206, 1, v206
    v_xor_b32 v205, v205, v206
    v_lshlrev_b32 v205, 4, v205
    v_lshl_add_u32 v242, v204, 10, v205
    s_lshl_b32 s47, s70, 7
    v_add_u32 v242, s47, v242
    v_add_u32 v243, 7168, v242
    v_and_b32 v205, 1, v0
    v_bfe_u32 v204, v0, 1, 1
    v_lshl_add_u32 v205, v205, 1, v204
    v_lshlrev_b32 v205, 3, v205
    v_bfe_u32 v204, v0, 4, 1
    v_lshl_add_u32 v205, v204, 5, v205
    v_bfe_u32 v206, v0, 2, 2
    v_lshl_add_u32 v204, v207, 2, v206
    v_lshl_add_u32 v205, v204, 7, v205
    v_bfe_u32 v204, v0, 3, 1
    v_xor_b32 v204, s45, v204
    v_lshl_add_u32 v205, v204, 6, v205
    v_add_u32 v244, s61, v205
    v_xor_b32 v245, 64, v244
    v_and_b32 v205, 3, v0
    v_lshl_add_u32 v246, v206, 6, v205
    s_lshl_b32 s47, s3, 1
    s_lshr_b32 s62, s71, 1
    s_add_u32 s47, s47, s62
    s_and_b32 s62, s47, 7
    s_lshl_b32 s62, s62, 3
    s_lshr_b32 s47, s47, 3
    s_lshl_b32 s47, s47, 2
    s_add_u32 s47, s47, s62
    v_add_lshl_u32 v246, v246, s47, 7
    v_lshrrev_b32 v204, 4, v0
    v_cmp_eq_u32 vcc, 1, v204
    s_lshl_b32 s47, s44, 2
    s_add_u32 s47, s47, {L_FLAG+16}
    v_cndmask_b32 v246, v246, v251, vcc
    v_mov_b32 v229, s47
    v_bfe_u32 v204, v0, 2, 1
    v_lshl_add_u32 v250, v205, 6, v204
    v_lshlrev_b32 v250, 7, v250
    v_and_b32 v204, 31, v0
    v_lshlrev_b32 v204, 10, v204
    v_lshl_add_u32 v249, v207, 4, v204
    v_mov_b64 v[224:225], 0
    v_mov_b64 v[226:227], 0
    """)
    for j in range(4):
        A(f's_xor_b32 s47, s44, {j}\ns_lshl_b32 s47, s47, 14\nv_add_u32 v{252+j}, s47, v1')
        A(mfma(D + 16 * j, 224, 224, None))
    A(f"""
    s_setpc_b64 s[8:9]
LH_prep2:
    ds_write_b128 v231, v[232:235]
    ds_write_b128 v231, v[232:235] offset:2048
    s_lshl_b32 s60, s44, 12
    s_add_u32 s60, s60, {L_EX}
    """)
    for j in range(4):
        A(f's_xor_b32 s47, s44, {j}\ns_lshl_b32 s47, s47, 12\ns_add_u32 s47, s47, {L_EX}\nv_add_u32 v{4+j}, s47, v1')
    A('s_waitcnt lgkmcnt(0)\nv_mov_b32 v2, v3\ns_setpc_b64 s[8:9]')

def gen_C(A, patterns):
    sDW, sXs, sIt, sF1, sF3, sOne = 48, 49, 50, 72, 73, 76
    A(f"""
L_C:
    v_mov_b64 v[64:65], 0
    v_mov_b64 v[66:67], 0
    """)
    A(patterns)
    A(f"""
    s_waitcnt lgkmcnt(0)
    s_lshl_b32 s47, s46, 9
    s_add_u32 s47, s47, {L_X}
    v_add_u32 v4, s47, v4
    v_mov_b32 v1, v4
    v_add_u32 v2, {2*WST}, v2
    v_add_u32 v3, {2*WST}, v3
    s_mov_b32 {s(sDW)}, {hx(-2*WST)}
    s_mov_b32 {s(sXs)}, 0
    s_mov_b32 {s(sIt)}, 0
    s_lshl_b32 s53, {s(sRB)}, 2
    s_lshl_b32 s47, s46, 1
    s_add_u32 s53, s53, s47
    s_and_b32 s47, {s(sCG)}, 7
    s_lshl_b32 s47, s47, 2
    s_lshl_b32 s61, s45, 1
    s_add_u32 s47, s47, s61
    s_lshl_b32 s47, s47, 6
    s_lshl_b32 s59, s46, 4
    s_add_u32 s59, s59, {s(sRB)}
    s_cmp_lt_u32 {s(sCG)}, 8
    s_cselect_b32 s52, 10, 11
    s_cselect_b32 s61, {hx(QF)}, {hx(KV)}
    s_cselect_b32 s58, {hx(f2u(0.25*LOG2E))}, 1.0
    s_cselect_b32 s53, s53, s59
    s_cselect_b32 s60, 1, 32
    s_add_u32 s47, s47, s53
    s_lshl_b32 s47, s47, s52
    s_add_u32 s62, s47, s61
    s_lshl_b32 s47, s60, s52
    s_add_u32 s64, s62, s47
    s_lshl_b32 s47, 64, s52
    s_add_u32 s63, s62, s47
    s_add_u32 s65, s64, s47
    s_mul_i32 s47, s45, {5*256}
    s_add_u32 s47, s47, {L_CS}
    v_lshl_add_u32 v60, v0, 2, s47
    s_lshl_b32 s47, s46, 9
    s_add_u32 s47, s47, {L_RS}
    v_and_b32 v61, 31, v0
    v_lshl_add_u32 v61, v61, 3, s47
    v_lshlrev_b32 v63, 4, v0
    v_and_b32 v72, 15, v0
    v_and_b32 v73, 16, v0
    v_cmp_eq_u32 vcc, 0, v73
    v_lshlrev_b32 v72, 4, v72
    v_add_u32 v72, {L_ONES-1024}, v72
    v_mov_b32 v73, {NT*2048}
    v_cndmask_b32 v72, v72, v63, vcc
    v_cndmask_b32 v73, 0, v73, vcc
    s_lshl_b32 s47, s44, 12
    s_add_u32 s47, s47, {L_ONES}
    v_add_u32 v74, s47, v63
    s_lshl_b32 s66, {s(sQB)}, 3
    s_lshl_b32 s47, s44, 1
    s_add_u32 s66, s66, s47
    s_lshl_b32 s66, s66, 5
    s_add_u32 s66, s66, {s(sHead)}
    s_lshl_b32 s66, s66, 10
    s_add_u32 s66, s66, {hx(OF)}
    s_mov_b32 s54, {hx(f2u(2.0**126))}
    s_mov_b32 s55, {hx(f2u(2.0**-106))}
    s_mov_b32 s56, {hx(f2u(2.0**120))}
    s_mov_b32 s57, 0
    """)
    acc = lambda T, i: 96 + (i * 2 + T) * 16
    for i in range(5):
        for T in range(2): A(mfma(acc(T, i), 64, 64, None))
    FB = lambda f: 8 + 20 * f
    Wf = lambda f, i: FB(f) + 4 * i
    Xf = lambda f, T: FB(f) + 12 + 4 * T
    def reads(f, q, withA):
        st, ks = (q >> 1) & 1, q & 1
        r = [f'ds_read_b128 {v(Xf(f,T),4)}, v1 offset:{T*128+(q&3)*32}' for T in range(2)]
        for u in range(2):
            for rd in range(2):
                r.append(f'ds_read_b64_tr_b16 {v(Wf(f,1+u)+2*rd,2)}, v2 offset:{st*WST+(4*ks+rd)*128+u*32}')
        if withA:
            for rd in range(2):
                r.append(f'ds_read_b64_tr_b16 {v(Wf(f,0)+2*rd,2)}, v3 offset:{st*WST+(4*ks+rd)*128}')
        return r
    def kloop(label, withA, adv, lim, tr0):
        for r in reads(0, 0, withA): A(r)
        A(label + ':')
        for q in range(4):
            f = q & 1
            rr = reads(f ^ 1, q + 1, withA)
            A('s_waitcnt lgkmcnt(0)')
            if q & 1: A('s_barrier')
            tiles = [(1, 1), (2, 2), (0, 0)] if withA else [(1, 3), (2, 4)]
            ms = [mfma(acc(T, ai), Wf(f, wi), Xf(f, T), acc(T, ai)) for (wi, ai) in tiles for T in range(2)]
            k = 0
            for m in range(len(ms)):
                A(ms[m])
                for _ in range(3):
                    if k < len(rr): A(rr[k]); k += 1
                if q == 2 and m == len(ms) - 1: A(adv)
                if q == 3 and m == len(ms) - 2: A(f's_add_u32 {s(sIt)}, {s(sIt)}, 1')
                if q == 3 and m == len(ms) - 1 and not STAMP: A(f's_cmp_lt_u32 {s(sIt)}, {lim}')
            assert k == len(rr)
        if STAMP:
            A(f'{TM} s[78:79]\ns_add_u32 m0, {s(sIt)}, {tr0}\ns_waitcnt lgkmcnt(0)\nv_writelane_b32 v79, s78, m0\ns_cmp_lt_u32 {s(sIt)}, {lim}')
        A(f's_cbranch_scc1 {label}')
    A(f"""
    s_mul_i32 s47, s44, {WST}
    s_add_u32 s47, s47, {2*WST+2*PAN}
    v_and_b32 v75, 31, v0
    v_mul_u32_u24 v76, 288, v7
    v_lshl_add_u32 v75, v75, 3, v76
    v_add_u32 v75, s47, v75
    v_lshlrev_b32 v76, 2, v5
    v_add_u32 v76, v76, v7
    v_lshl_add_u32 v76, v76, 2, v6
    v_and_b32 v77, 3, v0
    v_mul_u32_u24 v77, 288, v77
    v_lshl_add_u32 v76, v76, 3, v77
    v_add_u32 v76, s47, v76
    s_and_b32 s47, s3, 3
    s_lshl_b32 s47, s47, 2
    s_add_u32 s47, s47, s45
    s_lshl_b32 s47, s47, 7
    s_add_u32 s47, s47, s59
    s_lshl_b32 s47, s47, 11
    s_add_u32 s8, s47, {hx(KV)}
    s_add_u32 s9, s8, {4*64*2048}
    s_add_u32 s10, s8, {64*2048}
    s_add_u32 s11, s8, {5*64*2048}
    s_lshl_b32 s47, s44, 10
    s_add_u32 s47, s47, {L_H}
    v_add_u32 v77, s47, v63
    v_subrev_u32 v62, {2*WST}, v2
    v_mov_b32 v49, 0
    v_mov_b64 v[50:51], 0
    """)
    stamp(A, 1)
    A('s_barrier')
    stamp(A, 2)
    kloop('LC_loopA', True, f"""
        v_add_u32 v2, {s(sDW)}, v2
        v_add_u32 v3, {s(sDW)}, v3
        s_add_u32 {s(sXs)}, {s(sXs)}, {XST}
        s_cmp_ge_u32 {s(sXs)}, {4*XST}
        s_cselect_b32 {s(sXs)}, 0, {s(sXs)}
        s_sub_u32 {s(sDW)}, 0, {s(sDW)}
        v_add_u32 v1, {s(sXs)}, v4
        """, '8', 15)
    if XB: A('s_barrier')
    A("""
    s_waitcnt lgkmcnt(0)
    ds_read_b64 v[68:69], v61
    ds_read_b64 v[70:71], v61 offset:256
    """)
    CO = lambda i: 8 + 4 * i
    for i in range(5): A(f'ds_read_b32 v{CO(i)}, v60 offset:{i*256}')
    for i in range(5): A(f'v_mov_b32 v{CO(i)+1}, 0\nv_mov_b64 {v(CO(i)+2,2)}, 0')
    A('s_waitcnt lgkmcnt(5)\nv_mov_b32 v64, v68\nv_mov_b32 v48, v70')
    K0 = -2.0 * math.sqrt(2.0 / math.pi) * LOG2E
    K1c = K0 * 0.044715
    A('v_rcp_f32 v84, v69\nv_rcp_f32 v92, v71\ns_waitcnt lgkmcnt(0)')
    def readsB(q):
        f, it = (q + 1) & 1, q >> 2
        wo = ((4 - 2 * (it % 3)) + ((q >> 1) & 1)) * WST + 4 * (q & 1) * 128
        r = [f'ds_read_b128 {v(Xf(f,T),4)}, v4 offset:{((3-it)&3)*XST+T*128+(q&3)*32}' for T in range(2)]
        for u in range(2):
            for rd in range(2):
                r.append(f'ds_read_b64_tr_b16 {v(Wf(f,1+u)+2*rd,2)}, v62 offset:{wo+rd*128+u*32}')
        return r
    cst = []
    for T in range(2):
        b = 80 + 8 * T
        cst += [f'v_mul_f32 v{b+3}, s58, v{b+4}', f'v_mul_f32 v{b+2}, v{69+2*T}, v{69+2*T}', f'v_mul_f32 v{b+1}, {hx(f2u(K0))}, v{b+4}',
                f'v_mul_f32 v{b}, v{b+4}, v{b+4}', f'v_mul_f32 v{b}, v{b}, v{b+4}', f'v_mul_f32 v{b}, {hx(f2u(K1c))}, v{b}']
    def atile(T, hd):
        a = acc(T, 0) + 8 * hd
        return ([f'v_mul_f32 v{a+j}, v{83+8*T}, v{a+j}' for j in range(8)] + [f'v_cvt_pk_bf16_f32 v{a+p}, v{a+2*p}, v{a+2*p+1}' for p in range(4)]
                + [f'buffer_store_dwordx4 {v(a,4)}, v63, {s(sWS,4)}, s{62+2*T+hd} offen sc1'])
    fill = readsB(0) + cst + atile(0, 0) + atile(0, 1)
    for i in range(5):
        for T in range(2):
            A(mfma(acc(T, i), CO(i), (64, 48)[T], acc(T, i)))
            for _ in range(5 if i or T else 6):
                if fill: A(fill.pop(0))
    assert not fill
    def geglu_plain(T, u):
        a, b, t, r = acc(T, 1 + u), 80 + 8 * T, 52, []
        for h4 in (0, 4):
            J = range(h4, h4 + 4)
            r += [f'v_mul_f32 v{t+j}, v{a+j}, v{a+j}' for j in J] + [f'v_fma_f32 v{t+j}, v{t+j}, v{b}, v{b+1}' for j in J]
            r += [f'v_mul_f32 v{t+j}, v{t+j}, v{a+j}' for j in J] + [f'v_exp_f32 v{t+j}, v{t+j}' for j in J]
            r += [f'v_mul_f32 v{a+j}, v{a+j}, v{a+8+j}' for j in J] + [f'v_fma_f32 v{t+j}, v{t+j}, v{b+2}, v{b+2}' for j in J]
            r += [f'v_rcp_f32 v{t+j}, v{t+j}' for j in J] + [f'v_mul_f32 v{a+j}, v{a+j}, v{t+j}' for j in J]
            r += [f'v_cvt_pk_bf16_f32 v{a+8+p}, v{a+2*p}, v{a+2*p+1}' for p in (h4 // 2, h4 // 2 + 1)]
        return r
    def vtile(T, u):
        a = acc(T, 1 + u)
        r = [f'v_mul_f32 v{a+j}, v{84+8*T}, v{a+j}' for j in range(16)]
        r += [f'v_cvt_pk_bf16_f32 v{a+p}, v{a+2*p}, v{a+2*p+1}' for p in range(8)]
        wr, rd, st = [], [], []
        for hd in range(2):
            o = hd * 1152
            wr.append(f'ds_write2_b64 v75, {v(a+4*hd,2)}, {v(a+4*hd+2,2)} offset0:{o//8} offset1:{(o+576)//8}')
            rd += [f'ds_read_b64_tr_b16 {v(a+8+4*hd,2)}, v76 offset:{o}', f'ds_read_b64_tr_b16 {v(a+8+4*hd+2,2)}, v76 offset:{o+64}']
            st.append((f's_add_u32 s{8+2*u+hd}, s{8+2*u+hd}, 65536\n' if T else '') +
                      f'buffer_store_dwordx4 {v(a+8+4*hd,4)}, v63, {s(sWS,4)}, s{8+2*u+hd} offen offset:1024 sc1')
        return r + [('lds', wr + rd, st)]
    cost = lambda t: 8 if t.startswith(('v_exp', 'v_rcp')) else 4
    STM = int(os.environ.get('STM', '3'))
    STN, STH = [int(t) for t in os.environ.get('STV', '1,0').split(',')]
    def passB(side, ack, budget, late=()):
        side = list(side)
        stores, lds, pend = [], [], 0
        for q in range(32):
            f = (q + 1) & 1
            rr = readsB(q + 1) if q < 31 else []
            if q == 4 * ack - 1: assert not stores and not lds and not any(isinstance(t, tuple) or t.startswith('buffer') for t in side), q
            A(f's_waitcnt lgkmcnt({pend})' + (' vmcnt(0)' if q == 4 * ack + 1 else ''))
            pend = 0
            if q == 4 * ack - 1: side += late
            if q & 1: A('s_barrier')
            for m in range(4):
                A(mfma(acc(m & 1, 3 + (m >> 1)), Wf(f, 1 + (m >> 1)), Xf(f, m & 1), acc(m & 1, 3 + (m >> 1))))
                for _ in range(3):
                    if rr: A(rr.pop(0))
                left = budget[m]
                if m == 2 and lds:
                    _, ops_, st = lds.pop(0)
                    if 'xds' in EXP: ops_ = []
                    for t in ops_: A(t)
                    pend = len(ops_); left = 0
                    stores += [(q + 2, t) for t in st]
                for _ in range(STN if late else 1):
                    if m == STM and (q >= STH or not late):
                        rdy = [x for x in stores if x[0] <= q]
                        if rdy:
                            stores.remove(rdy[0])
                            if 'xst' not in EXP: A(rdy[0][1])
                            left -= 12
                while side and (isinstance(side[0], tuple) or side[0].startswith('buffer') or left >= cost(side[0])):
                    t = side.pop(0)
                    if isinstance(t, tuple): lds.append(t)
                    elif t.startswith('buffer'): stores.append((q + (m >= STM), t))
                    else: left -= cost(t); A(t)
            if STAMP and 'trb' in EXP and q & 3 == 3:
                A(f'{TM} s[78:79]\ns_waitcnt lgkmcnt(0)\nv_writelane_b32 v79, s78, {24+(q>>2)}')
        assert not side and not stores and not lds, len(side)
    BUD = [int(t) for t in os.environ.get('BUD', '8,8,16,16').split(',')]
    stamp(A, 3)
    A(f's_cmp_eq_u32 s71, {os.environ.get("VJ", "3")}\ns_cbranch_scc1 LC_Bv')
    passB(atile(1, 0) + atile(1, 1) + sum((geglu_plain(T, u) for T in range(2) for u in range(2)), []), F1N, BUD)
    for n in range(4): A(f'ds_write_b128 v77, {v(acc(n>>1,1+(n&1))+8,4)} offset:{n*4096}')
    A('LC_g4:\nv_mov_b32 v1, v63\ns_nop 6')
    stamp(A, 4)
    for u in range(2):
        TT = [(acc(T, 3 + u), 80 + 8 * T, 8 + 8 * T) for T in range(2)]
        for a, b, t in TT:
            for p in range(4): A(f'v_pk_mul_f32 {v(t+2*p,2)}, {v(a+2*p,2)}, {v(a+2*p,2)}')
        for a, b, t in TT:
            for p in range(4): A(f'v_pk_fma_f32 {v(t+2*p,2)}, {v(t+2*p,2)}, {v(b,2)}, {v(b,2)} op_sel:[0,0,1] op_sel_hi:[1,0,1]')
        for a, b, t in TT:
            for p in range(4): A(f'v_pk_mul_f32 {v(t+2*p,2)}, {v(t+2*p,2)}, {v(a+2*p,2)}')
        for a, b, t in TT:
            for j in range(8): A(f'v_exp_f32 v{t+j}, v{t+j}')
        for a, b, t in TT:
            for p in range(4): A(f'v_pk_mul_f32 {v(a+2*p,2)}, {v(a+2*p,2)}, {v(a+8+2*p,2)}')
        for a, b, t in TT:
            for p in range(4): A(f'v_pk_fma_f32 {v(t+2*p,2)}, {v(t+2*p,2)}, {v(b+2,2)}, {v(b+2,2)} op_sel:[0,0,0] op_sel_hi:[1,0,0]')
        for a, b, t in TT:
            for j in range(8): A(f'v_rcp_f32 v{t+j}, v{t+j}')
        for a, b, t in TT:
            for p in range(4): A(f'v_pk_mul_f32 {v(a+2*p,2)}, {v(a+2*p,2)}, {v(t+2*p,2)}')
        for T, (a, b, t) in enumerate(TT):
            for p in range(4): A(f'v_cvt_pk_bf16_f32 v{a+8+p}, v{a+2*p}, v{a+2*p+1}')
            A(f'ds_write_b128 v77, {v(a+8,4)} offset:{(4+2*T+u)*4096}')
    def vvariant():
        A('LC_Bv:')
        passB({'a': vtile(0, 0) + atile(1, 0) + vtile(0, 1) + atile(1, 1), 'b': vtile(0, 0) + vtile(0, 1) + atile(1, 0) + atile(1, 1)}[os.environ.get('VORD', 'a')], F1B, [int(t) for t in os.environ.get('BUDV', '12,12,24,24').split(',')], vtile(1, 0)[:-1] + vtile(1, 1)[:-1])
        A('v_lshrrev_b32 v75, 1, v63\nv_sub_u32 v75, v77, v75')
        for n in range(4):
            a = acc(1, 1 + (n >> 1)) + 4 * (n & 1)
            A(f'ds_write2st64_b64 v75, {v(a,2)}, {v(a+2,2)} offset0:{n*8} offset1:{n*8+1}')
        A('s_branch LC_g4')
    QA, QB, CA, CB, OA, OB, SA, SB, PA, PB = 8, 12, 16, 32, 48, 64, 80, 96, 112, 120
    KF = lambda b: 128 + 4 * b
    VF = lambda j: 136 + 4 * j
    A('LC_att:')
    if STAMP: A('v_mov_b32 v144, v79')
    stamp(A, 5)
    A('s_waitcnt lgkmcnt(0)')
    stamp(A, 6)
    A('s_barrier')
    stamp(A, 7)
    A(f"""
    ds_read_b128 {v(QA,4)}, v74 offset:512
    ds_read_b128 {v(KF(0),4)}, v1
    ds_read_b128 {v(KF(1),4)}, v1 offset:2048
    ds_read_b128 {v(QB,4)}, v74 offset:2560
    v_mov_b32 v2, v1
    v_mov_b32 v3, v72
    v_mov_b32 v4, v73
    s_mov_b32 {s(sIt)}, 0
    v_mov_b32 v5, {L_FLAG+16}
    """)
    for j in range(0, 8, 2): A(f'v_mov_b64 {v(VF(0)+j,2)}, 0')
    for j in range(0, 8, 2): A(f'v_mov_b64 {v(PB+j,2)}, 0')
    A('s_waitcnt lgkmcnt(2)')
    A(mfma(SA, KF(0), QA, None))
    A('s_waitcnt lgkmcnt(1)')
    A(mfma(OA, KF(1), QA, None))
    A('s_waitcnt lgkmcnt(0)')
    A(mfma(SB, KF(0), QB, None))
    A(mfma(OB, KF(1), QB, None))
    A('s_nop 6')
    for (S, O, C) in ((SA, OA, CA), (SB, OB, CB)):
        A(f'v_max3_f32 v{C}, v{S}, v{S+1}, v{S+2}\nv_max3_f32 v{C+1}, v{S+3}, v{S+4}, v{S+5}')
        src = [S + j for j in range(6, 16)] + [O + j for j in range(16)]
        for i in range(0, 26, 2): A(f'v_max3_f32 v{C+((i>>1)&1)}, v{C+((i>>1)&1)}, v{src[i]}, v{src[i+1]}')
        A(f'v_mov_b64 {v(O,2)}, 0')
        A(f'v_max_f32 v{C}, v{C}, v{C+1}')
        A(f'v_mov_b32 v{C+1}, v{C}')
        A(f'v_mov_b64 {v(O+2,2)}, 0\nv_mov_b64 {v(O+4,2)}, 0')
        A(f'v_permlane32_swap_b32 v{C}, v{C+1}')
        A(f'v_max_f32 v{C}, v{C}, v{C+1}')
        A(f'v_sub_f32 v{C+1}, {hx(f2u(-BIAS))}, v{C}')
        A(f'v_sub_f32 v{C}, {hx(f2u(-BIAS))}, v{C}')
        for j in range(2, 16, 2): A(f'v_mov_b64 {v(C+j,2)}, {v(C,2)}')
        A(f'v_mov_b64 {v(O+6,2)}, 0\nv_mov_b64 {v(O+8,2)}, 0')
        if S == SA: A(mfma(SA, KF(0), QA, CA))
    stamp(A, 8)
    if 'clk' in EXP: stamp(A, 9, True)
    E = lambda S, j: A(f'v_exp_f32 v{S+j}, v{S+j}')
    Cv = lambda S, P, p: A(f'v_cvt_pk_bf16_f32 v{P+p}, v{S+2*p}, v{S+2*p+1}')
    ORD = {'even': 'm0 e0 e1 e2 e3 e4 c0 c1 m1 e5 e6 c2 e7 e8 c3 e9 e10 c4 m2 e11 e12 c5 e13 e14 e15 c6 c7',
           'tight': 'm0 e0 e1 e2 m1 e3 e4 e5 m2 c0 c1 c2 e6 e7 e8 c3 e9 e10 c4 e11 e12 c5 e13 e14 e15 c6 c7',
           'mid': 'm0 e0 e1 e2 c0 m1 e3 e4 e5 c1 m2 c2 e6 e7 e8 c3 e9 e10 c4 e11 e12 c5 e13 e14 e15 c6 c7',
           'two': 'm0 e0 e1 e2 m1 e3 e4 e5 c0 c1 e6 e7 c2 e8 e9 c3 m2 e10 c4 e11 e12 c5 e13 e14 e15 c6 c7'}[os.environ.get('ORD', 'tight')].split()
    def phase(S, P, *m):
        for t in ORD:
            if t[0] == 'm':
                mm = m[int(t[1])]
                if ('nopv' in EXP and t[1] != '0') or ('noqk' in EXP and t[1] == '0'): mm = 's_nop 0\ns_nop 0\n' + '\n'.join(mm.split('\n')[1:])
                A(mm)
            elif t[0] == 'e' and 'noexp' in EXP: A('s_nop 1')
            elif t[0] == 'e': E(S, int(t[1:]))
            else: Cv(S, P, int(t[1:]))
    if os.environ.get('CPRIO'): A('s_setprio ' + os.environ['CPRIO'])
    if 'smf' in EXP:
        A('v_mov_b32 v152, 0x44444444\nv_and_b32 v153, 12, v0\nv_cmp_eq_u32 vcc, 0, v153\nv_mov_b32 v153, 0x3f803f80\ns_nop 1')
        for j in range(4): A(f'v_cndmask_b32 v{VF(1)+j}, 0, v153, vcc\nv_mov_b32 v{156+j}, 0\nv_mov_b32 v{160+j}, 0')
    A('s_nop 0\n.p2align 3\nLA_loop:')
    for t in range(NT):
        kb = t & 1
        o = t * 2048
        if 'smf' in EXP:
            sm = lambda O, P: f'v_smfmac_f32_32x32x32_bf16 {v(O,16)}, {v(VF(0),4)}, {v(P,8)}, v152'
            sl = lambda L, P: f'v_smfmac_f32_16x16x64_bf16 {v(L,4)}, {v(VF(1),4)}, {v(P,8)}, v152' if 'smf1' not in EXP else 's_nop 0'
            tail = ''
            if t == NT - 3: tail = f'\ns_add_u32 {s(sIt)}, {s(sIt)}, 1'
            if t == NT - 2: tail = '\nds_read_b128 v[148:151], v5'
            if t == NT - 1: tail = (f'\nv_add_u32 v2, {NT*2048}, v2\nv_min3_u32 v148, v148, v149, v150\nv_min_u32 v148, v148, v151'
                                    f'\nv_cmp_lt_u32 vcc, {s(sIt)}, v148')
            phase(SA, PA, mfma(SB, KF(kb), QB, CB) + f'\nds_read_b128 {v(KF(kb),4)}, v2 offset:{o+4096}',
                  sm(OB, PB) + f'\nds_read_b128 {v(VF(0),4)}, v2 offset:{o+1024}', sl(156, PB))
            phase(SB, PB, mfma(SA, KF(kb ^ 1), QA, CA) + '\ns_waitcnt lgkmcnt(0)', sm(OA, PA), sl(160, PA) + tail)
            continue
        phase(SA, PA,
              mfma(SB, KF(kb), QB, CB) + f'\nds_read_b128 {v(KF(kb),4)}, v2 offset:{o+4096}',
              mfma(OB, VF(0), PB, OB) + f'\nds_read_b128 {v(VF(0),4)}, v3 offset:{o+1024}',
              mfma(OB, VF(1), PB + 4, OB) + f'\nds_read_b128 {v(VF(1),4)}, v3 offset:{o+1280}')
        tail = ''
        if t == NT - 3: tail = f'\ns_add_u32 {s(sIt)}, {s(sIt)}, 1'
        if t == NT - 2: tail = '\nds_read_b128 v[148:151], v5'
        if t == NT - 1: tail = (f'\nv_add_u32 v2, {NT*2048}, v2\nv_add_u32 v3, v4, v3\nv_min3_u32 v148, v148, v149, v150\nv_min_u32 v148, v148, v151'
                                f'\nv_cmp_lt_u32 vcc, {s(sIt)}, v148')
        phase(SB, PB,
              mfma(SA, KF(kb ^ 1), QA, CA) + '\ns_waitcnt lgkmcnt(1)',
              mfma(OA, VF(0), PA, OA) + '\ns_waitcnt lgkmcnt(0)',
              mfma(OA, VF(1), PA + 4, OA) + tail)
    if STAMP and 'atr' in EXP:
        A(f's_memtime s[78:79]\ns_add_u32 m0, {s(sIt)}, 15\ns_waitcnt lgkmcnt(0)\nv_writelane_b32 v144, s78, m0')
    A(f'''
    s_cbranch_vccnz LA_loop
    s_cmp_eq_u32 {s(sIt)}, {64//NT}
    s_cbranch_scc1 LA_fini
    s_mov_b32 s47, 0
LA_kvw:
    ds_read_b128 v[148:151], v5
    s_add_u32 s47, s47, 1
    s_waitcnt lgkmcnt(0)
    v_min3_u32 v148, v148, v149, v150
    v_min_u32 v148, v148, v151
    v_cmp_lt_u32 vcc, {s(sIt)}, v148
    s_cbranch_vccnz LA_loop
    s_cmp_lt_u32 s47, {SPIN * 16}
    s_cbranch_scc1 LA_kvw
    s_branch LA_loop
LA_fini:''')
    A(mfma(OB, VF(0), PB, OB))
    A(mfma(OB, VF(1), PB + 4, OB))
    stamp(A, 11)
    if 'clk' in EXP:
        stamp(A, 10, True)
        A('s_sub_u32 s90, s90, s89\ns_add_u32 s90, s90, s80\ns_mov_b32 s89, 0')
    A('LA_fin:')
    A(f'v_add_f32 v{SA}, |v{OA}|, |v{OA+1}|')
    for j in range(2, 8): A(f'v_add_f32 v{SA}, v{SA}, |v{OA+j}|')
    A(f'''
    v_cmp_gt_f32 vcc, s54, v{SA}
    v_cmp_lt_f32 s[58:59], s55, v{SA}
    v_cmp_gt_f32 s[60:61], s56, v{OA+8}
    s_and_b64 vcc, vcc, s[58:59]
    s_and_b64 vcc, vcc, s[60:61]
    s_cmp_eq_u64 vcc, -1
    s_cbranch_scc0 LA_fallback
LA_norm:
    v_rcp_f32 v{OA+8}, v{OA+8}
    s_nop 0
    ''')
    for j in range(8): A(f'v_mul_f32 v{OA+j}, v{OA+j}, v{OA+8}')
    for p in range(4): A(f'v_cvt_pk_bf16_f32 v{PA+p}, v{OA+2*p}, v{OA+2*p+1}')
    A(f'''
    v_min_u32 v{PA}, -2, v{PA}
    buffer_store_dwordx4 {v(PA,4)}, v1, {s(sWS,4)}, s66 offen sc1
    s_cmp_eq_u32 s57, 1
    s_cbranch_scc1 LA_done
    s_mov_b32 s57, 1
    s_add_u32 s66, s66, 0x8000
    ''')
    for j in range(0, 10, 2): A(f'v_mov_b64 {v(OA+j,2)}, {v(OB+j,2)}')
    for j in range(0, 4, 2): A(f'v_mov_b64 {v(QA+j,2)}, {v(QB+j,2)}')
    A('s_branch LA_fin\nLA_done:')
    if 'noxb' not in EXP: A('s_barrier')
    stamp(A, 12)
    stamp_end(A, sWS, sW, tr=144)
    A('s_endpgm')
    A(f'''
LA_fallback:
    v_mov_b32 v{CA}, 0xff800000
    v_mov_b32 v2, v1
    s_mov_b32 {s(sIt)}, 0
LA_fb1:
    ds_read_b128 {v(KF(0),4)}, v2
    v_add_u32 v2, 0x800, v2
    s_waitcnt lgkmcnt(0)
    ''')
    A(mfma(SA, KF(0), QA, None))
    A('s_nop 11')
    for j in range(0, 16, 2): A(f'v_max3_f32 v{CA}, v{CA}, v{SA+j}, v{SA+j+1}')
    A(f'''
    s_add_u32 {s(sIt)}, {s(sIt)}, 1
    s_cmp_lt_u32 {s(sIt)}, 64
    s_cbranch_scc1 LA_fb1
    v_mov_b32 v{CA+1}, v{CA}
    v_cmp_eq_u32 vcc, 0, v4
    v_lshrrev_b32 v6, {NT.bit_length()-1}, v4
    v_permlane32_swap_b32 v{CA}, v{CA+1}
    v_max_f32 v{CA}, v{CA}, v{CA+1}
    v_sub_f32 v{CA}, 0, v{CA}
    v_cndmask_b32 v3, v1, v3, vcc
    ''')
    for j in range(1, 16): A(f'v_mov_b32 v{CA+j}, v{CA}')
    for j in range(0, 16, 2): A(f'v_mov_b64 {v(OA+j,2)}, 0')
    A(f'''
    v_mov_b32 v2, v1
    s_mov_b32 {s(sIt)}, 0
LA_fb2:
    ds_read_b128 {v(KF(0),4)}, v2
    ds_read_b128 {v(VF(0),4)}, v3 offset:1024
    ds_read_b128 {v(VF(1),4)}, v3 offset:1280
    v_add_u32 v2, 0x800, v2
    v_add_u32 v3, v6, v3
    s_waitcnt lgkmcnt(0)
    ''')
    A(mfma(SA, KF(0), QA, CA))
    A('s_nop 11')
    for j in range(16): E(SA, j)
    A('s_nop 0')
    for p in range(8): Cv(SA, PA, p)
    A('s_nop 1')
    A(mfma(OA, VF(0), PA, OA)); A(mfma(OA, VF(1), PA + 4, OA))
    A(f'''
    s_add_u32 {s(sIt)}, {s(sIt)}, 1
    s_cmp_lt_u32 {s(sIt)}, 64
    s_cbranch_scc1 LA_fb2
    s_nop 11
    s_branch LA_norm
    ''')
    vvariant()

def main(out):
    A = Asm()
    top = f'''; out = x + (MHA(LN x) @ wo) * silu(GEGLU-FFN(LN x)); one persistent launch, 256 workgroups (generated by gen/gen7.py)
; kernarg: x 0, wqkv 8, wo 16, (B_x 24 unused), gate 32, up 40, down 48, out 56, debug 64, ws 72
; @launch grid=(256,1,1) block=(512,1,1) lds={LDS_BYTES}
.amdgcn_target "amdgcn-amd-amdhsa--gfx950"
.text
'''
    gen(A)
    tail = f'''.section .rodata,"a"
.p2align 6
.amdhsa_kernel {NAME}_kernel
  .amdhsa_next_free_vgpr 256
  .amdhsa_next_free_sgpr 100
  .amdhsa_accum_offset 256
  .amdhsa_group_segment_fixed_size 0
  .amdhsa_kernarg_size 80
  .amdhsa_user_sgpr_count 2
  .amdhsa_user_sgpr_kernarg_segment_ptr 1
  .amdhsa_system_sgpr_workgroup_id_x 1
.end_amdhsa_kernel
'''
    open(out, 'w').write(top + A.text() + tail)

if __name__ == '__main__':
    main(sys.argv[1] if len(sys.argv) > 1 else 'cdna_kernels/%s.s' % NAME)
```

```python
import struct, sys, math, os, re

NOTES = {'L_L': 'waves 4,5: LDS-DMA loaders of x / weight tiles (pass A: q|k unit + one line pair, pass B: second pair, K walked backwards)', 'L_M': 'waves 6,7: LayerNorm statistics (row sums, weight column sums): partials exchanged between workgroups as nonce-tagged 16B granules', 'LH_join': 'waves 4-7 during attention: publish h, stream K/V into LDS, down projection (K quarter per wave), then o @ wo and the output', 'L_C': 'waves 0-3: x @ [wqkv|gate|up] on MFMA, LayerNorm folded in as rstd*(acc - mean*colsum), GEGLU, then attention', 'LC_att': 'softmax reference = max over the first 64 keys + 104 (log2 units); checked at the end, exact two-pass redo with the true max if unsafe', 'LA_fin': 'guard: row sum and |o| must be finite, below 2^120 / 2^126 and clear of underflow, else redo with the true row max', 'LA_fallback': 'exact path: pass 1 true row max over all keys, pass 2 exp2(s - max) and P@V'}
NAME = 'recurrent_scan__mha_block__glu_gated_geglu__prompt'
def f2u(x): return struct.unpack('<I', struct.pack('<f', x))[0]
def hx(x): return '0x%x' % (x & 0xffffffff)
class Asm:
    def __init__(self): self.l = []; self.shift = 0
    def __call__(self, s):
        if self.shift:
            f = lambda n: str(int(n) + self.shift) if 8 <= int(n) < 100 else n
            s = re.sub(r'\bv(\d+)\b', lambda m: 'v' + f(m.group(1)), s)
            s = re.sub(r'\bv\[(\d+):(\d+)\]', lambda m: 'v[%s:%s]' % (f(m.group(1)), f(m.group(2))), s)
        for line in s.split('\n'):
            line = line.strip()
            if not line: continue
            self.l.append(line if line.endswith(':') or line.startswith('.') else '    ' + line)
    def text(self):
        return '\n'.join(('; ' + NOTES[x[:-1]] + '\n' + x) if x[:-1] in NOTES else x for x in self.l) + '\n'
def v(a, n=1): return 'v%d' % a if n == 1 else 'v[%d:%d]' % (a, a + n - 1)
def s(a, n=1): return 's%d' % a if n == 1 else 's[%d:%d]' % (a, a + n - 1)
def mfma(d, a, b, c):
    return 'v_mfma_f32_32x32x16_bf16 %s, %s, %s, %s' % (v(d, 16), v(a, 4), v(b, 4), '0' if c is None else v(c, 16))

QF  = 0x000000
KV  = 0x200000
HF  = 0x600000
OF  = 0xD00000
CSP = 0x1200000
RSP = 0x1280000
FL  = 0x13C0000
FH  = 0x13C8000
NW  = 0x13D0000
STB = 0x1400000
WS_BYTES = 0x1500000
LOG2E = 1.4426950408889634
ONES = 0x3f803f80
VSC = 12
VONE = ((127 + VSC) << 7) * 0x10001
SPIN = 1 << 18

LIGHT = os.environ.get('STAMP') == '2'
STAMP = os.environ.get('STAMP') == '1'
EXP = set(os.environ.get('EXP', '').split(','))
BIAS = float(os.environ.get('BIAS', '104'))
NFL = int(os.environ.get('NFL', '4'))

TM = 's_memrealtime' if os.environ.get('RT') else 's_memtime'
_seen = set()
def stamp(A, idx, real=False):
    if 'frozen' in EXP and idx in (5, 6, 7, 8, 9, 10, 11, 12) and not any('L_C:' == x for x in A.l): return
    if not STAMP and not (LIGHT and idx in (0, 13, 14, 15)): return
    if 'e1' in EXP and A.l and any('L_C:' == x for x in A.l):
        if idx in _seen: return
        _seen.add(idx)
    A('%s s[78:79]\ns_waitcnt lgkmcnt(0)\ns_mov_b32 s%d, s78' % ('s_memrealtime' if real or os.environ.get('RT') else 's_memtime', 80 + idx))
AMP = os.environ.get('AMP')
def amp(A, name):
    if LIGHT and name in ('b17', 'B1', 'gemm', 'ready', 'X'):
        A('s_memtime s[78:79]\ns_waitcnt lgkmcnt(0)\ns_mov_b32 s%d, s78' % (83 + ('b17', 'B1', 'gemm', 'ready', 'X').index(name)))
    if AMP == name: A('s_memrealtime s[78:79]\ns_waitcnt lgkmcnt(0)\ns_mov_b32 s97, s78')
def stamp_begin(A):
    if AMP: A('s_memrealtime s[78:79]\ns_waitcnt lgkmcnt(0)\ns_mov_b32 s96, s78\ns_mov_b32 s97, s78')
    if not STAMP and not LIGHT: return
    for i in range(16): A('s_mov_b32 s%d, 0' % (80 + i))
    stamp(A, 14, True); stamp(A, 0)
def stamp_end(A, sWS, sW, vt=3, tr=None):
    if not STAMP and not (LIGHT and tr is None): return
    A('s_waitcnt vmcnt(0)')
    stamp(A, 13); stamp(A, 15, True)
    A('s_nop 4')
    if tr is not None: A('v_mov_b32 v%d, v%d' % (vt, tr))
    for i in range(16): A('v_writelane_b32 v%d, s%d, %d' % (vt, 80 + i, i))
    A('''s_lshl_b32 s78, s2, 3
    s_add_u32 s78, s78, s%d
    s_lshl_b32 s78, s78, 7
    s_add_u32 s78, s78, %s
    v_lshlrev_b32 v%d, 2, v0
    s_mov_b64 exec, 0xffffffff
    buffer_store_dword v%d, v%d, s[%d:%d], s78 offen''' % (sW, hx(STB), vt + 1, vt, vt + 1, sWS, sWS + 3))

PAN, APAN = 4224, 4352
WST = 2 * PAN + APAN
XST = 16 * 1040
L_X = 6 * WST
L_CS = L_X + 4 * XST
L_RS = L_CS + 10 * 256
L_ONES = 131072
L_EX = L_ONES + 7 * 2048 + 1536
assert L_RS + 1024 <= L_EX
L_H = 98304
L_FLAG = L_EX + 16384
L_NON = L_FLAG + 4
LDS_BYTES = L_FLAG + 64
assert LDS_BYTES <= 163840
NT = 8
XB = os.environ.get('MSCHED', '12,15').endswith('16')
NB = 30
F1N, F1B = [int(t) for t in os.environ.get('F1IT', '2,3').split(',')]
NK1 = int(os.environ.get('NK1', '16'))

sX, sA, sH0, sH1, sWS, sPK, sDBG = 16, 20, 24, 28, 32, 36, 12
sP0, sP1 = 36, 12
sRB, sCG, sW, sHead, sQB = 40, 41, 42, 74, 75

def flag_store(A, soff, vt):
    A(f'''
    s_mov_b64 exec, 1
    buffer_store_dword v{vt}, off, {s(sWS,4)}, {soff} sc1
    s_mov_b64 exec, -1
    ''')

def gen(A):
    K = NAME + '_kernel'
    A(f'.globl {K}\n.p2align 8\n.type {K},@function\n{K}:')
    A('''
    s_cmp_ge_u32 s2, 256
    s_cbranch_scc1 L_end
    ''')
    stamp_begin(A)
    A(f'''
    v_lshrrev_b32 v1, 6, v0
    s_getpc_b64 s[4:5]
L_pc:
    v_readfirstlane_b32 {s(sW)}, v1
    s_and_b32 s47, s2, 0xf8
    s_load_dwordx2 {s(sX,2)}, s[0:1], 0
    s_add_u32 s47, s47, {s(sW)}
    s_lshl_b32 s47, s47, 6
    s_load_dword s6, s[4:5], s47
    s_add_u32 s47, s47, 0x4000
    s_min_u32 s47, s47, L_code_end-L_pc-4
    s_load_dword s7, s[4:5], s47
    s_load_dwordx2 {s(sA,2)}, s[0:1], 8
    s_load_dwordx2 {s(sH0,2)}, s[0:1], 32
    s_load_dwordx2 {s(sH1,2)}, s[0:1], 40
    s_load_dwordx2 {s(sWS,2)}, s[0:1], 72
    v_and_b32 v0, 63, v0
    s_and_b32 s3, s2, 7
    s_lshr_b32 s43, s2, 3
    s_lshr_b32 {s(sRB)}, s3, 2
    s_lshl_b32 {s(sRB)}, {s(sRB)}, 3
    s_and_b32 s70, s43, 7
    s_add_u32 {s(sRB)}, {s(sRB)}, s70
    s_and_b32 {s(sCG)}, s3, 3
    s_lshl_b32 {s(sCG)}, {s(sCG)}, 2
    s_lshr_b32 s71, s43, 3
    s_add_u32 {s(sCG)}, {s(sCG)}, s71
    s_and_b32 s44, {s(sW)}, 3
    s_lshr_b32 s45, s44, 1
    s_and_b32 s46, s44, 1
    s_mov_b32 {s(sWS+2)}, {hx(WS_BYTES)}
    s_mov_b32 {s(sWS+3)}, 0x20000
    s_mov_b32 {s(sX+2)}, 2097152
    s_mov_b32 {s(sX+3)}, 0x20000
    s_mov_b32 {s(sA+2)}, 1572864
    s_mov_b32 {s(sA+3)}, 0x20000
    s_lshl_b32 {s(sHead)}, s3, 2
    s_add_u32 {s(sHead)}, {s(sHead)}, s71
    s_mov_b32 {s(sQB)}, s70
    ''')
    patterns = f'''
    v_bfe_u32 v5, v0, 4, 1
    v_bfe_u32 v6, v0, 2, 2
    v_lshrrev_b32 v7, 5, v0
    v_and_b32 v1, 3, v0
    v_lshlrev_b32 v1, 3, v1
    v_lshl_add_u32 v1, v7, 8, v1
    v_mul_u32_u24 v2, {PAN}, v5
    v_mul_u32_u24 v8, 1056, v6
    v_add3_u32 v2, v2, v8, v1
    v_mul_u32_u24 v8, 1088, v6
    v_lshl_add_u32 v3, v5, 5, v8
    v_add_u32 v3, v3, v1
    v_and_b32 v8, 15, v0
    v_mul_u32_u24 v8, 1040, v8
    v_lshl_add_u32 v4, v5, 8, v8
    v_lshl_add_u32 v4, v7, 4, v4
    s_lshl_b32 s47, s45, 6
    v_add_u32 v2, s47, v2
    s_add_u32 s47, s47, {2*PAN}
    v_add_u32 v3, s47, v3
    '''
    A(f'''
    s_and_b32 s47, {s(sW)}, 6
    s_cmp_eq_u32 s47, 4
    s_cbranch_scc1 L_L
    ''')
    if 'tlb' in EXP:
        A(f'''
        s_cmp_lg_u32 {s(sW)}, 0
        s_cbranch_scc1 L_nt
        s_waitcnt lgkmcnt(0)
        s_load_dword s6, {s(sA,2)}, 0
        s_load_dword s6, {s(sH0,2)}, 0
        s_load_dword s6, {s(sH1,2)}, 0
L_nt:
        ''')
    if 'tlbv' in EXP:
        A(f'''
        s_cmp_lg_u32 {s(sW)}, 0
        s_cbranch_scc1 L_nt
        v_mov_b32 v1, 0
        s_mov_b64 exec, 1
        s_waitcnt lgkmcnt(0)
        global_load_dword v2, v1, {s(sA,2)}
        global_load_dword v2, v1, {s(sH0,2)}
        global_load_dword v2, v1, {s(sH1,2)}
        s_mov_b64 exec, -1
        s_waitcnt vmcnt(0)
L_nt:
        ''')
    A(f'''
    s_cmp_lt_u32 {s(sW)}, 4
    s_cbranch_scc1 L_C
    s_branch L_M
L_L:
    ''')
    gen_H(A, patterns)
    gen_C(A, patterns)
    A('L_end:\ns_endpgm\nL_code_end:')

def gen_H(A, patterns):
    A.shift = 104
    sStrH, sColH = 48, 49
    sRowA, sRowH, sMH, sMA, sMX, sXo, sRot, sG = 50, 51, 52, 53, 54, 55, 59, 60
    ROTM = int(os.environ.get('ROTM', '7'))
    sStr, sRowP, sRowA, sRowB, sMA, sMB, sMX, sXo, sRot, sGA, sGB, sJ = 48, 49, 50, 51, 52, 53, 54, 55, 59, 60, 56, 57
    A(f"""
    v_lshrrev_b32 v8, 3, v0
    v_and_b32 v9, 7, v0
    v_lshlrev_b32 v9, 4, v9
    v_and_b32 v13, 4, v8
    v_bfe_u32 v14, v8, 1, 1
    v_and_b32 v15, 1, v8
    v_lshl_add_u32 v14, v15, 1, v14
    v_add_u32 v13, v13, v14
    v_lshl_add_u32 v13, v13, 14, v9
    s_lshl_b32 s47, {s(sRB)}, 17
    s_lshl_b32 s61, s46, 12
    s_add_u32 s47, s47, s61
    v_add_u32 v13, s47, v13
    s_lshl_b32 s62, s71, 1
    s_add_u32 {s(sRot)}, s70, s62
    s_and_b32 s47, s3, 1
    s_add_u32 {s(sRot)}, {s(sRot)}, s47
    s_and_b32 {s(sRot)}, {s(sRot)}, {os.environ.get('ROTM', '7')}
    s_lshl_b32 {s(sXo)}, {s(sRot)}, 7
    s_lshl_b32 {s(sRot)}, {s(sRot)}, 1
    s_mul_i32 s58, s46, 4160
    s_add_u32 s58, s58, {L_X}
    s_mov_b32 {s(sMX)}, s58
    s_mov_b32 {s(sJ)}, 0
    s_and_b32 s64, s3, 3
    s_mul_i32 s65, s64, 7
    s_add_u32 s65, s65, s62
    s_lshl_b32 s65, s65, 7
    s_add_u32 s66, s65, 128
    s_lshl_b32 s64, s64, 8
    s_add_u32 s64, s64, 2048
    s_cmp_lt_u32 s71, 3
    s_mov_b32 {s(sP0+2)}, 1572864
    s_cmov_b32 {s(sP0+2)}, 1835008
    s_mov_b32 {s(sP1+2)}, {1572864-128}
    s_cmov_b32 {s(sP1+2)}, 1835008
    s_mov_b32 {s(sP0+3)}, 0x20000
    s_mov_b32 {s(sP1+3)}, 0x20000
    s_movk_i32 {s(sStr)}, 3072
    s_cmovk_i32 {s(sStr)}, 3584
    s_cselect_b32 s64, s65, s64
    s_cselect_b32 s65, s66, s65
    s_lshl_b32 s47, s46, 1
    v_lshl_add_u32 v10, v8, 2, s47
    v_mul_u32_u24 v11, 3072, v10
    s_lshl_b32 s47, {s(sCG)}, 7
    v_add3_u32 v11, v11, v9, s47
    v_mul_lo_u32 v18, v10, {s(sStr)}
    v_add3_u32 v18, v18, v9, s64
    v_add_u32 v19, {s(sStr)}, v18
    s_lshl_b32 {s(sStr)}, {s(sStr)}, 5
    s_mul_i32 {s(sRowA)}, {s(sRot)}, {32*3072}
    s_mul_i32 {s(sRowP)}, {s(sRot)}, {s(sStr)}
    s_mul_i32 {s(sMA)}, s46, 2112
    s_add_u32 {s(sMA)}, {s(sMA)}, {2*WST}
    s_lshl_b32 s69, s46, 6
    s_mov_b32 {s(sGA)}, 0
    s_waitcnt lgkmcnt(0)
    """)
    sel = f"""
    s_add_u32 s62, {s(sA)}, 128
    s_addc_u32 s63, {s(sA+1)}, 0
    s_cmp_lt_u32 s71, 3
    s_cselect_b64 {s(sP0,2)}, {s(sH0,2)}, {s(sA,2)}
    s_cselect_b64 {s(sP1,2)}, {s(sH1,2)}, s[62:63]
    """
    setup2 = f"""
    s_mov_b32 {s(sH0+2)}, 1835008
    s_mov_b32 {s(sH1+2)}, 1835008
    s_mov_b32 {s(sH0+3)}, 0x20000
    s_mov_b32 {s(sH1+3)}, 0x20000
    v_mul_u32_u24 v16, 3584, v10
    v_add3_u32 v16, v16, v9, s65
    v_add_u32 v17, 3584, v16
    s_mul_i32 {s(sRowB)}, {s(sRot)}, {32*3584}
    s_mul_i32 {s(sMB)}, s46, 2112
    s_add_u32 {s(sMB)}, {s(sMB)}, {4*WST}
    s_mov_b32 {s(sGB)}, 0
    """
    ops = []
    def call(tag):
        name = {'X': 'LL_X', 'A': 'LL_A', 'B': 'LL_B', 'E': 'LL_B'}[tag[0]]
        A(f's_call_b64 s[8:9], {name}')
        ops.extend([tag] * {'LL_X': 4, 'LL_A': 6, 'LL_B': 4}[name])
        if tag == 'E0': A(f's_add_u32 s47, {s(sRot)}, 1\ns_mul_i32 {s(sRowB)}, s47, {32*3584}')
        if tag == 'E1': A(f's_add_u32 s47, {s(sRot)}, 14\ns_and_b32 s47, s47, 15\ns_mul_i32 {s(sRowB)}, s47, {32*3584}\n'
                          f's_add_u32 {s(sMB)}, {s(sMB)}, {2*WST}\ns_mov_b32 {s(sGB)}, 0')
    def bar(*need):
        if need:
            assert all(t in ops for t in need), need
            last = max(i for i, t in enumerate(ops) if t in need)
            if len(ops) - 1 - last < 64: A(f's_waitcnt vmcnt({len(ops) - 1 - last})')
        A('s_barrier')
    RP = os.environ.get('RP', '')
    def bodyX():
        ld = [(f's_add_u32 m0, {s(sMX)}, {16*i}', f'buffer_load_dwordx4 v13, {s(sX,4)}, {s(sXo)} offen offset:{1024*i} {RP} lds') for i in range(4)]
        pre = [f's_add_u32 {s(sJ)}, {s(sJ)}, 1', f's_lshr_b32 s67, {s(sJ)}, 1', 's_sub_u32 s68, 11, s67',
               f's_cmp_lt_u32 {s(sJ)}, 16\ns_cselect_b32 s67, s67, s68']
        post = ['s_and_b32 s68, s67, 3\ns_lshl_b32 s68, s68, 1', f's_and_b32 s62, {s(sJ)}, 1\ns_add_u32 s68, s68, s62',
                f's_mul_i32 s68, s68, {XST//2}\ns_add_u32 {s(sMX)}, s68, s58\ns_lshl_b32 s67, s67, 1',
                f's_add_u32 s67, s67, {s(sRot)}\ns_and_b32 s67, s67, 15\ns_lshl_b32 s67, s67, 6\ns_lshl_b32 s62, s62, 13\ns_add_u32 {s(sXo)}, s67, s62']
        return ld, pre, post
    def bodyA():
        ld = [(f's_add_u32 m0, {s(sMA)}, {hf*PAN+1056*bb}', f'buffer_load_dwordx4 v{18+bb}, {s(sP0 if hf == 0 else sP1,4)}, {s(sRowP)} offen {RP} lds')
              for hf in range(2) for bb in range(2)]
        ld += [(f's_add_u32 m0, s61, {2*PAN+(1088-3072)*bb}', f'buffer_load_dwordx4 v11, {s(sA,4)}, {s(sRowA)} offen offset:{3072*bb} {RP} lds') for bb in range(2)]
        pre = [f's_add_u32 {s(sGA)}, {s(sGA)}, 1', f's_add_u32 s47, {s(sGA)}, {s(sRot)}', 's_and_b32 s47, s47, 15', f's_add_u32 s61, {s(sMA)}, s69',
               f's_mul_i32 {s(sRowP)}, s47, {s(sStr)}\ns_add_u32 {s(sMA)}, {s(sMA)}, {WST}',
               f's_cmp_ge_u32 {s(sMA)}, {4*WST}\ns_cselect_b32 s63, {4*WST}, 0\ns_sub_u32 {s(sMA)}, {s(sMA)}, s63']
        post = [f's_mul_i32 {s(sRowA)}, s47, {32*3072}']
        return ld, pre, post
    def bodyB():
        ld = [(f's_add_u32 m0, {s(sMB)}, {hf*PAN+1056*bb}', f'buffer_load_dwordx4 v{16+bb}, {s(sH0 if hf == 0 else sH1,4)}, {s(sRowB)} offen {RP} lds')
              for hf in range(2) for bb in range(2)]
        pre = [f's_add_u32 {s(sGB)}, {s(sGB)}, 1', f's_xor_b32 s47, {s(sGB)}, 14', f's_add_u32 s47, s47, {s(sRot)}\ns_and_b32 s47, s47, 15',
               f's_bitcmp1_b32 {s(sGB)}, 0\ns_mov_b32 s63, {3*WST}\ns_cmov_b32 s63, {WST}\ns_add_u32 {s(sMB)}, {s(sMB)}, s63\ns_cmp_ge_u32 {s(sMB)}, {6*WST}\ns_cselect_b32 s63, {6*WST}, 0\ns_sub_u32 {s(sMB)}, {s(sMB)}, s63']
        post = [f's_mul_i32 {s(sRowB)}, s47, {32*3584}']
        return ld, pre, post
    def emit(*bodies):
        carry = []
        for ld, pre, post in bodies:
            for i, (m, l) in enumerate(ld):
                A(m); A(pre[i])
                if carry: A(carry.pop(0))
                A(l)
            for t in carry: A(t)
            carry = list(post)
        for t in carry: A(t)
    if 'st0' in EXP: stamp(A, 9)
    call('X0'); A(sel)
    if 'st0' in EXP: stamp(A, 10)
    call('X1')
    if 'st0' in EXP: stamp(A, 7)
    call('A0')
    if 'st0' in EXP: stamp(A, 6)
    if not os.environ.get('PRE'): call('A1')
    if 'st0' in EXP: stamp(A, 11)
    A('s_branch LL_go\nLL_X:')
    emit(bodyX())
    A('s_setpc_b64 s[8:9]\nLL_A:')
    emit(bodyA())
    A('s_setpc_b64 s[8:9]\nLL_go:')
    A(setup2)
    A('s_call_b64 s[8:9], LH_prep')
    if 'st0' in EXP:
        stamp(A, 12); A('s_waitcnt vmcnt(12)'); stamp(A, 8); A('s_waitcnt vmcnt(6)'); stamp(A, 5); EXP.add('frozen')
    if os.environ.get('PRE'):
        A('s_waitcnt vmcnt(%s)' % os.environ.get('PREW', '6'))
        for t in os.environ['PRE'].split(','): call(t)
    def need(c):
        n = [f'A{c}' if c < 16 else f'B{c-16}']
        if c % 2 == 0 and c < 16: n += [f'X{c}', f'X{c+1}']
        if c % 2 == 0 and c >= 24: n += [f'X{c-8}', f'X{c-7}']
        return n
    def dist(c):
        return len(ops) - 1 - max(i for i, t in enumerate(ops) if t in need(c))
    def loop(label, c0, c1, second, cnt, lim):
        A(f's_waitcnt vmcnt({dist(c0)})\n{label}:\ns_barrier')
        emit(bodyX(), second())
        w = 63
        for c in range(c0, c1 + 1):
            ops.extend([f'X{c+4 if c < 16 else c-XO}'] * 4 + ([f'A{c+3}'] * 6 if c < 16 else [f'B{c-BO}'] * 4))
            if c < c1: w = min(w, dist(c + 1))
        A(f's_cmp_lt_u32 {cnt}, {lim}\ns_waitcnt vmcnt({w})\ns_cbranch_scc1 {label}')
    sched = {0: 'E0,E1,X2,X3', 1: 'A2,|,A3,X4,X5,A4', 12: 'A15,B0', 13: 'B1,B2', 14: 'B3', 15: 'B4', 16: 'B5', 17: 'B6', 18: 'X16', 19: 'B7', 25: 'B13'}
    LB0, LB1, XO, BO = 20, 24, 3, 12
    if os.environ.get('LS0'): sched[0], sched[1] = os.environ['LS0'].split('/')
    c = 0
    while c < NB:
        if c == 2:
            loop('LL_loopA', 2, 11, bodyA, s(sGA), 15); c = 12; continue
        if c == LB0:
            loop('LL_loopB', LB0, LB1, bodyB, s(sGB), LB1 - BO + 1); c = LB1 + 1; continue
        bar(*need(c))
        amp(A, f'b{c}')
        if LIGHT and c in (0, 12): A(f's_memtime s[78:79]\ns_waitcnt lgkmcnt(0)\ns_mov_b32 s{81 + (c > 0)}, s78')
        if c == 16 and XB: A('s_barrier')
        if c == 26:
            A(f"""
    v_mov_b32 v9, {L_NON}
    ds_read_b32 v3, v9
    s_mov_b32 s52, {hx(FL)}
    s_lshl_b32 s61, {s(sHead)}, 3
    s_add_u32 s61, s61, {s(sQB)}
    s_lshl_b32 s61, s61, 13
    s_lshl_b32 s47, s46, 12
    s_add_u32 s61, s61, s47
    s_lshl_b32 s62, s46, 13
    s_add_u32 s62, s62, {L_ONES+512}
    s_lshl_b32 s63, s46, 10
    s_lshl_b32 s47, {s(sHead)}, 17
    s_add_u32 s47, s47, {hx(KV)}
    s_add_u32 s47, s47, s63
    s_mov_b32 s53, 0
    """)
        if c == int(os.environ.get('EARLYC', '29')):
            A(f"""
    buffer_load_dword v241, v251, {s(sWS,4)}, s52 offen sc1
    """)
            ops.append('poll')
        for t in sched.get(c, '').split(','):
            if t == '|': bar('E0', 'E1')
            elif t: call(t)
        c += 1
    A(f"""
    s_setprio 2
    s_barrier
LL_f1:
    s_add_u32 s53, s53, 1
    s_waitcnt vmcnt(0) lgkmcnt(0)
    v_cmp_ne_u32 vcc, v3, v241
    s_cbranch_vccz LL_f1ok
    s_sleep 4
    buffer_load_dword v241, v251, {s(sWS,4)}, s52 offen sc1
    s_cmp_lt_u32 s53, {SPIN}
    s_cbranch_scc1 LL_f1
LL_f1ok:
    """)
    stamp(A, 1)
    if STAMP: A('s_add_u32 s82, s53, s80')
    A('s_call_b64 s[8:9], LL_qkv\ns_branch LH_join\nLL_qkv:')
    for i in range(4):
        A(f's_add_u32 m0, s62, {1024*i}\ns_nop 0\nbuffer_load_dwordx4 v1, {s(sWS,4)}, s61 offen offset:{1024*i} sc1 lds')
    A(f"""
    s_mov_b32 m0, s63
    s_nop 0
LL_kv:
    buffer_load_dwordx4 v1, {s(sWS,4)}, s47 offen sc1 lds
    buffer_load_dwordx4 v1, {s(sWS,4)}, s47 offen offset:2048 sc1 lds
    s_add_u32 m0, m0, 4096
    s_add_u32 s47, s47, 4096
    s_cmp_lt_u32 m0, 20480
    s_cbranch_scc1 LL_kv
    s_setpc_b64 s[8:9]
LL_B:
    """)
    emit(bodyB())
    A(f"""
    s_setpc_b64 s[8:9]
    """)
    CS, RS = 16, 24
    WF, XF = 32, 52
    sOne = 73
    A(f"""
L_M:
    s_setprio {os.environ.get('MPRIO', '3')}
    s_mov_b32 s45, s46
    """)
    A(patterns)
    A(f"""
    s_mov_b32 s45, 1
    s_mov_b32 {s(sOne)}, {hx(ONES)}
    s_lshl_b32 s47, s46, 9
    s_add_u32 s47, s47, {L_X}
    v_add_u32 v4, s47, v4
    v_lshlrev_b32 v1, 4, v0
    s_mov_b32 s50, 0
    """)
    for i in range(16, 28, 2): A(f'v_mov_b64 {v(i,2)}, 0')
    A(f's_mov_b32 s47, {hx(NW)}\ns_waitcnt lgkmcnt(0)\nbuffer_load_dword v30, off, {s(sWS,4)}, s47 sc1')
    nb = -1
    def bars(upto):
        nonlocal nb
        while nb < upto:
            A('s_barrier'); nb += 1
    A('s_call_b64 s[8:9], LH_prep')
    if 'st0' in EXP:
        EXP.discard('frozen'); stamp(A, 9); EXP.add('frozen')
    XF = 44
    A(f"""
    v_add_u32 v10, {4*WST}, v2
    v_add_u32 v2, {2*WST}, v2
    v_add_u32 v3, {2*WST}, v3
LM_stat:
    s_bitcmp1_b32 s50, 0
    s_cbranch_scc1 LM_nobar
    s_barrier
LM_nobar:
    ds_read_b128 {v(XF,4)}, v4
    ds_read_b128 {v(XF+4,4)}, v4 offset:128
    ds_read_b64_tr_b16 {v(WF,2)}, v3
    ds_read_b64_tr_b16 {v(WF+2,2)}, v3 offset:128
    """)
    for u in range(2):
        A(f'ds_read_b64_tr_b16 {v(WF+4+4*u,2)}, v2 offset:{u*32}')
        A(f'ds_read_b64_tr_b16 {v(WF+6+4*u,2)}, v2 offset:{u*32+128}')
    A(f"""
    s_movk_i32 s47, 512
    s_cmovk_i32 s47, {WST-512}
    v_add_u32 v2, s47, v2
    v_add_u32 v3, s47, v3
    v_add_u32 v4, 32, v4
    s_add_u32 s50, s50, 1
    s_waitcnt lgkmcnt(6)
    """)
    for j in range(4):
        for T in range(2):
            if 'nodot' not in EXP: A(f'v_dot2c_f32_bf16 v{RS+2*T}, {s(sOne)}, v{XF+4*T+j}')
            if 'nodot' not in EXP: A(f'v_dot2c_f32_bf16 v{RS+2*T+1}, v{XF+4*T+j}, v{XF+4*T+j}')
    A('s_waitcnt lgkmcnt(0)')
    for j in range(4):
        for i in range(3):
            if 'nodot' not in EXP: A(f'v_dot2c_f32_bf16 v{CS+i}, {s(sOne)}, v{WF+4*i+j}')
    A(f"""
    s_cmp_lt_u32 s50, 4
    s_cbranch_scc1 LM_stat
    s_barrier
    """)
    nb = 1
    for q in range(4):
        for u in range(2):
            for rd in range(2):
                A(f'ds_read_b64_tr_b16 {v(WF+8*q+4*u+2*rd,2)}, v10 offset:{(q>>1)*WST+(4*(q&1)+rd)*128+u*32}')
        if q == 2: A('s_waitcnt lgkmcnt(4)')
    A(f"""
    s_lshl_b32 s50, {s(sCG)}, 4
    s_add_u32 s50, s50, {s(sRB)}
    s_lshl_b32 s50, s50, 1
    s_add_u32 s50, s50, s46
    s_lshl_b32 s50, s50, 10
    s_add_u32 s50, s50, {hx(CSP)}
    s_lshl_b32 s51, {s(sRB)}, 4
    s_add_u32 s51, s51, {s(sCG)}
    s_lshl_b32 s51, s51, 1
    s_add_u32 s51, s51, s46
    s_lshl_b32 s51, s51, 10
    s_add_u32 s51, s51, {hx(RSP)}
    s_waitcnt lgkmcnt(0)
    """)
    for hh in range(2):
        for q in (2 * hh, 2 * hh + 1):
            for j in range(4):
                for u in range(2):
                    r = WF + 8 * q + 4 * u + j
                    A(f'v_lshlrev_b32 v28, 16, v{r}\nv_and_b32 v29, 0xffff0000, v{r}\nv_add_f32 v{CS+3+u}, v{CS+3+u}, v28\nv_add_f32 v{CS+5+u}, v{CS+5+u}, v29')
        bars(nb + 1)
    A(f"""
    v_add_f32 v{CS+3}, v{CS+3}, v{CS+5}
    v_add_f32 v{CS+4}, v{CS+4}, v{CS+6}
    s_mov_b32 s47, 1664525
    s_waitcnt vmcnt(0)
    v_mul_lo_u32 v30, v30, s47
    v_add_u32 v30, 1013904223, v30
    """)
    for i in range(5): A(f'v_mov_b32 v{WF+i}, v{CS+i}')
    for i in range(4): A(f'v_mov_b32 v{WF+8+i}, v{RS+i}')
    A('v_cmp_gt_u32 vcc, 32, v0')
    for i in range(5): A(f'v_permlane32_swap_b32 v{CS+i}, v{WF+i}')
    for i in range(4): A(f'v_permlane32_swap_b32 v{RS+i}, v{WF+8+i}')
    for i in range(5): A(f'v_add_f32 v{CS+i}, v{CS+i}, v{WF+i}')
    for i in range(4): A(f'v_add_f32 v{RS+i}, v{RS+i}, v{WF+8+i}')
    A(f"""
    v_cndmask_b32 v{CS}, v{CS+3}, v{CS}, vcc
    v_cndmask_b32 v{CS+1}, v{CS+4}, v{CS+1}, vcc
    v_mov_b32 v{CS+3}, v30
    v_cndmask_b32 v{RS}, v{RS+2}, v{RS}, vcc
    v_cndmask_b32 v{RS+1}, v{RS+3}, v{RS+1}, vcc
    v_mov_b32 v{RS+3}, v30
    buffer_store_dwordx4 {v(CS,4)}, v1, {s(sWS,4)}, s50 offen sc1
    buffer_store_dwordx4 {v(RS,4)}, v1, {s(sWS,4)}, s51 offen sc1
    """)
    bars(nb + 1)
    A(f"""
    s_and_b32 s50, s50, {hx(~0x3800)}
    s_and_b32 s51, s51, {hx(~0x3800)}
    v_lshlrev_b32 v8, 2, v0
    v_mov_b32 v9, {L_FLAG}
    v_mov_b32 v29, 0
    ds_write_b32 v9, v29
    ds_write_b32 v9, v30 offset:4
    v_mov_b32 v28, 0
    ds_write_b64 v9, v[28:29] offset:16
    ds_write_b64 v9, v[28:29] offset:24
    """)
    B_GAT, B_RED = [int(t) for t in os.environ.get('MSCHED', '12,15').split(',')]
    A(f"""
    v_mov_b32 v3, v30
    s_lshl_b32 s54, {s(sQB)}, 3
    s_lshl_b32 s62, s46, 2
    s_add_u32 s54, s54, s62
    s_lshl_b32 s54, s54, 5
    s_add_u32 s54, s54, {s(sHead)}
    s_lshl_b32 s54, s54, 10
    s_add_u32 s54, s54, {hx(OF)}
    """)
    for n in range(4):
        A(f'buffer_store_dwordx4 v[236:239], v1, {s(sWS,4)}, s54 offen sc1\ns_add_u32 s54, s54, 0x8000')
        bars(nb + 1)
    bars(B_GAT)
    GC, GR = 32, 64
    A('s_mov_b32 s53, 0\nLM_gat:\ns_mov_b32 s47, s50\ns_mov_b32 s61, s51')
    for i in range(8):
        A(f'buffer_load_dwordx4 {v(GR+4*i,4)}, v1, {s(sWS,4)}, s61 offen offset:{2048*(i&1)} sc1')
        A(f'buffer_load_dwordx4 {v(GC+4*i,4)}, v1, {s(sWS,4)}, s47 offen offset:{2048*(i&1)} sc1')
        if i & 1 and i < 7: A('s_add_u32 s47, s47, 4096\ns_add_u32 s61, s61, 4096')
    A('s_cmp_lg_u32 s53, 0\ns_cbranch_scc1 LM_chk')
    bars(B_RED - 1)
    A('LM_chk:\ns_waitcnt vmcnt(0)\ns_add_u32 s53, s53, 1')
    A(f'v_xor_b32 v10, v30, v{GC+3}')
    for r in [GC + 4 * i + 3 for i in range(1, 16)]:
        A(f'v_xor_b32 v11, v30, v{r}\nv_or_b32 v10, v10, v11')
    A(f"""
    v_cmp_ne_u32 vcc, 0, v10
    s_cbranch_vccz LM_red
    s_cmp_lt_u32 s53, {SPIN}
    s_cbranch_scc1 LM_gat
LM_red:
    """)
    stamp(A, 1)
    for i in range(1, 8):
        for t in range(3):
            if t < 2: A(f'v_add_f32 v{GR+t}, v{GR+t}, v{GR+4*i+t}')
            A(f'v_add_f32 v{GC+t}, v{GC+t}, v{GC+4*i+t}')
    bars(B_RED)
    SUM, SQ = GR, GR + 1
    A(f"""
    s_mul_i32 s47, s46, {5*256}
    s_add_u32 s47, s47, {L_CS}
    v_add_u32 v10, s47, v8
    s_lshl_b32 s47, s46, 9
    s_add_u32 s47, s47, {L_RS}
    v_lshl_add_u32 v9, v0, 3, s47
    v_cmp_gt_u32 vcc, 32, v0
    v_mul_f32 v{SUM}, {hx(f2u(-1.0/512))}, v{SUM}
    v_mul_f32 v{SQ}, {hx(f2u(1.0/512))}, v{SQ}
    v_fma_f32 v{SQ}, -v{SUM}, v{SUM}, v{SQ}
    v_max_f32 v{SQ}, 0, v{SQ}
    v_cvt_pk_bf16_f32 v{SQ}, v{SQ}, v{SQ}
    v_and_b32 v{SQ}, 0xffff0000, v{SQ}
    v_add_f32 v{SQ}, {hx(f2u(1e-5))}, v{SQ}
    v_cvt_pk_bf16_f32 v{SQ}, v{SQ}, v{SQ}
    v_and_b32 v{SQ}, 0xffff0000, v{SQ}
    v_sqrt_f32 v{SQ}, v{SQ}
    v_cvt_pk_bf16_f32 v{SUM}, v{SUM}, v{SUM}
    v_cvt_pk_bf16_f32 v{SQ}, v{SQ}, v{SQ}
    v_and_b32 v{SQ}, 0xffff0000, v{SQ}
    ds_write_b64 v9, {v(SUM,2)}
    """)
    for t in range(3):
        A(f"""
        v_cvt_pk_bf16_f32 v28, v{GC+t}, v{GC+t}
        v_and_b32 v28, 0xffff0000, v28
        v_sub_f32 v29, v{GC+t}, v28
        v_cvt_pk_bf16_f32 v28, v28, v29
        v_cndmask_b32 v{16+t}, 0, v28, vcc
        ds_write_b32 v10, v{16+t} offset:{t*256}
        """)
        if t < 2: A(f'v_sub_u32 v{20+t}, v28, v{16+t}\nds_write_b32 v10, v{20+t} offset:{(3+t)*256}')
    A('s_waitcnt lgkmcnt(0)')
    stamp(A, 2)
    assert nb <= 15 or XB
    if XB: A('s_barrier')
    A(f"""
    s_lshl_b32 s51, s2, 7
    s_add_u32 s51, s51, {hx(FL)}
    s_cmp_lg_u32 s46, 0
    s_cmov_b32 s51, 0x2000000
    s_mov_b32 s52, 0x2000000
    s_cmp_eq_u32 s71, 3
    s_cselect_b32 s53, s51, s52
    s_cselect_b32 s51, s52, s51
    """)
    bars(16 + 2 * F1N + 1)
    flag_store(A, 's51', 3)
    bars(16 + 2 * F1B + 1)
    flag_store(A, 's53', 3)
    bars(int(os.environ.get('WPF', '26')))
    if 'nowpf' not in EXP:
        A(f"""
        s_load_dwordx2 {s(sH0,2)}, s[0:1], 16
        s_mov_b32 {s(sH0+2)}, 524288
        s_mov_b32 {s(sH0+3)}, 0x20000
        s_lshl_b32 s47, s71, 1
        s_add_u32 s47, s47, s46
        s_lshl_b32 s47, s47, 16
        s_lshl_b32 s61, s70, 7
        s_add_u32 s47, s47, s61
        v_lshlrev_b32 v8, 10, v0
        s_waitcnt lgkmcnt(0)
        buffer_load_dword v241, v8, {s(sH0,4)}, s47 offen
        """)
    bars(NB)
    A('s_setprio 2')
    A.shift = 0
    A(f"""
LH_join:
    s_call_b64 s[8:9], LH_prep2
    s_lshl_b32 s61, {s(sRB)}, 2
    s_lshl_b32 s62, s46, 1
    s_add_u32 s61, s61, s62
    s_mul_i32 s61, s61, 112
    s_and_b32 s62, s3, 3
    s_mul_i32 s62, s62, 28
    s_add_u32 s61, s61, s62
    s_lshl_b32 s62, s71, 3
    s_add_u32 s61, s61, s62
    s_lshl_b32 s62, s45, 1
    s_add_u32 s61, s61, s62
    s_lshl_b32 s61, s61, 10
    s_add_u32 s64, s61, {hx(HF)}
    s_add_u32 s66, s64, 4096
    s_cmp_eq_u32 s71, 3
    s_cselect_b32 s66, s64, s66
    s_add_u32 s67, s66, {112*1024}
    s_and_b32 s47, s3, 3
    s_lshl_b32 s47, s47, 2
    s_add_u32 s47, s47, s45
    s_lshl_b32 s47, s47, 7
    s_lshl_b32 s62, s46, 4
    s_add_u32 s47, s47, s62
    s_add_u32 s47, s47, {s(sRB)}
    s_lshl_b32 s47, s47, 11
    s_add_u32 s47, s47, {hx(KV+32*2048+1024)}
    s_cmp_eq_u32 s71, 3
    s_cselect_b32 s4, s47, s64
    s_movk_i32 s5, 1024
    s_cmov_b32 s5, {4*64*2048}
    s_mov_b32 s6, {112*1024}
    s_cmov_b32 s6, {64*2048}
    s_add_u32 s6, s6, s4
    s_add_u32 s7, s6, s5
    s_add_u32 s5, s5, s4
    s_lshl_b32 s63, s2, 7
    s_lshl_b32 s62, s44, 2
    s_add_u32 s61, s63, s62
    s_add_u32 s61, s61, {hx(FH)}
    s_lshl_b32 s50, s3, 3
    s_lshl_b32 s47, s71, 1
    s_add_u32 s50, s50, s47
    s_add_u32 s50, s50, s46
    s_lshl_b32 s51, s70, 1
    s_add_u32 s51, s51, s45
    s_mul_i32 s47, s44, {28*1024}
    s_add_u32 s47, s47, {hx(HF)}
    s_mul_i32 s56, s50, {112*1024}
    s_add_u32 s56, s56, s47
    s_xor_b32 s57, s50, 1
    s_mul_i32 s57, s57, {112*1024}
    s_add_u32 s57, s57, s47
    s_mul_i32 s58, s44, {28*16384}
    s_lshl_b32 s47, s71, 1
    s_add_u32 s59, s70, s47
    s_cmp_ge_u32 s59, 7
    s_cselect_b32 s47, 7, 0
    s_sub_u32 s59, s59, s47
    s_lshl_b32 s59, s59, 12
    s_mov_b32 s49, {hx(FH)}
    s_lshl_b32 s54, s50, 15
    s_lshl_b32 s47, s51, 6
    s_add_u32 s54, s54, s47
    s_load_dwordx2 {s(sA,2)}, s[0:1], 56
    s_load_dwordx2 {s(sPK,2)}, s[0:1], 48
    s_load_dwordx2 {s(sH0,2)}, s[0:1], 16
    s_mov_b32 {s(sA+2)}, 2097152
    s_mov_b32 {s(sPK+2)}, 1835008
    s_mov_b32 {s(sPK+3)}, 0x20000
    s_mov_b32 {s(sH0+2)}, 524288
    s_mov_b32 {s(sH0+3)}, 0x20000
    s_waitcnt vmcnt(0) lgkmcnt(0)
    """)
    A(f"""
    s_lshl_b32 s63, s44, 10
    s_lshl_b32 s47, {s(sHead)}, 17
    s_add_u32 s47, s47, {hx(KV+20480)}
    s_add_u32 s47, s47, s63
    s_add_u32 m0, s63, 20480
    """)
    stamp(A, 3)
    A('s_barrier')
    amp(A, 'B1')
    A(f's_mov_b32 s48, {9*4096}\ns_call_b64 s[8:9], LH_kv')
    A('s_cmp_eq_u32 s71, 3\ns_cbranch_scc1 LH_vr')
    for n in range(4): A(f'ds_read_b128 {v(96+4*n,4)}, v248 offset:{n*4096}')
    A('s_branch LH_hr\nLH_vr:')
    for n in range(4):
        for rd in range(2): A(f'ds_read_b64_tr_b16 {v(96+4*n+2*rd,2)}, v230 offset:{n*4096+64*rd}')
    A('LH_hr:')
    for n in range(4, 8): A(f'ds_read_b128 {v(96+4*n,4)}, v248 offset:{n*4096}')
    PFM = os.environ.get('PFM', 'late')
    PFX = f"""
    s_lshl_b32 s55, s59, 4
    s_add_u32 s55, s55, s58
    s_lshl_b32 s53, s70, 7
    s_add_u32 s55, s55, s53
    v_lshlrev_b32 v110, 6, v1
    buffer_load_dword v111, v110, {s(sPK,4)}, s55 offen
    s_add_u32 s55, s55, 65536
    buffer_load_dword v111, v110, {s(sPK,4)}, s55 offen
    """
    level = lambda n: f'v_mov_b32 v241, {n}\nds_write_b32 v229, v241'
    for n in range(8):
        A(f's_waitcnt lgkmcnt({min(7-n,4)})\nbuffer_store_dwordx4 {v(96+4*n,4)}, v1, {s(sWS,4)}, ' + (f's{4+n} offen sc1' if n < 4 else f's{64+(n>>1)} offen offset:{(n&1)*1024} sc1'))
    A('s_waitcnt vmcnt(8)\n' + level(2))
    A(f's_mov_b32 s48, {17*4096}\ns_call_b64 s[8:9], LH_kv\ns_waitcnt vmcnt(8)')
    stamp(A, 4)
    A(f"""
    s_or_b32 s62, s44, s2
    s_mov_b32 s62, {hx(NW)}
    s_cmov_b32 s62, 0x2000000
    s_mov_b64 exec, 1
    buffer_store_dword v3, off, {s(sWS,4)}, s61 sc1
    buffer_store_dword v3, off, {s(sWS,4)}, s62 sc1
    s_mov_b64 exec, -1
    s_waitcnt vmcnt(2)
    {level(4)}
    s_lshl_b32 s55, s44, 17
LH_wo:
    buffer_load_dwordx4 v242, {s(sH0,4)}, s55 offen lds
    s_add_u32 m0, m0, 4096
    s_add_u32 s55, s55, 8192
    s_cmp_lt_u32 m0, 131072
    s_cbranch_scc1 LH_wo
    s_mov_b32 m0, s60
    s_sub_u32 s62, s63, s60
    buffer_load_dwordx4 v242, {s(sH0,4)}, s55 offen lds
    buffer_load_dwordx4 v[88:91], v249, {s(sX,4)}, s54 offen
    buffer_load_dwordx4 v[92:95], v249, {s(sX,4)}, s54 offen offset:32
{PFX if PFM == 'early' else ''}
    s_add_u32 s62, s62, {17*4096}
    v_add_u32 v72, s62, v244
    v_add_u32 v73, s62, v245
    v_mov_b32 v251, v229
    s_add_u32 m0, s63, {16*4096}
    s_sub_u32 s47, s47, 4096
    s_mov_b32 s48, 131072
    s_mov_b32 s63, 0
    s_waitcnt vmcnt({4 if PFM == 'early' else 2})
    """)
    for k in range(8):
        for b in range(2):
            for rd in range(2):
                A(f'ds_read_b64_tr_b16 {v(176+8*k+4*b+2*rd,2)}, ' + (f'v{72+b} offset:{(2*k+rd)*4096}' if 2 * k + rd < 15 else f'v{244+b}'))
        if k in (2, 5, 7): A('s_waitcnt lgkmcnt(0)')
    stamp(A, 5)
    A(f"""
    s_cmp_lg_u32 s46, 0
    s_cbranch_scc1 LH_fh0
    s_call_b64 s[8:9], LH_kv
LH_fh0:
    buffer_load_dwordx4 v[76:79], v246, {s(sWS,4)}, s49 offen sc1
LH_fh:
    s_add_u32 s63, s63, 1
    s_waitcnt vmcnt(0)
    v_cmp_ne_u64 vcc, v[2:3], v[76:77]
    v_cmp_ne_u64 s[4:5], v[2:3], v[78:79]
    s_or_b64 vcc, vcc, s[4:5]
    s_cbranch_scc0 LH_gemm
    s_sleep 8
    buffer_load_dwordx4 v[76:79], v246, {s(sWS,4)}, s49 offen sc1
    s_cmp_lt_u32 s63, {SPIN}
    s_cbranch_scc1 LH_fh
LH_gemm:
    s_cmp_eq_u32 s46, 0
    s_cbranch_scc1 LH_g0
    s_call_b64 s[8:9], LH_kv
LH_g0:
    s_mov_b32 s61, s59
    s_mov_b32 m0, s60
    v_mov_b32 v241, 8
    """)
    D, G, X, T0, FO, WO = 8, 72, 88, 96, 112, 176
    Dj = lambda a, b: D + 16 * (a + 2 * b)
    adv = f"""
    s_add_u32 s52, s56, s59
    s_add_u32 s53, s57, s59
    s_lshl_b32 s55, s59, 4
    s_add_u32 s55, s55, s58
    s_add_u32 s59, s59, 4096
    s_cmp_ge_u32 s59, {7*4096}
    s_cselect_b32 s59, 0, s59
    s_cmp_eq_u32 s59, s61
    s_cselect_b32 s59, 0x2000000, s59
    """
    def dma(srd, buf):
        A(f"""
        buffer_load_dwordx4 v242, {s(srd,4)}, s55 offen offset:{2048*buf} lds
        buffer_load_dwordx4 v243, {s(srd,4)}, s55 offen offset:{2048*buf+1024} lds
        s_add_u32 s55, s55, {16384+2048*(2*buf-1)}
        """)
    def grp(i):
        if i & 3 == 0: A(adv)
        for a in range(2):
            A(f'buffer_load_dwordx4 {v(FO+8*(i&3)+4*a,4)}, v1, {s(sWS,4)}, s{52+a} offen offset:{(i&3)*1024} sc1')
        dma(sPK, i & 1)
    def trd(dst, buf):
        for b in range(2):
            for rd in range(2):
                A(f'ds_read_b64_tr_b16 {v(dst+4*b+2*rd,2)}, v{244+b} offset:{2048*buf+1024*rd}')
    stamp(A, 6)
    amp(A, 'gemm')
    if PFM == 'late': A(PFX)
    grp(0); grp(1)
    A(f's_waitcnt vmcnt({10 if PFM == "late" else 8})\nds_write_b32 v251, v241\ns_waitcnt vmcnt(4)')
    trd(G, 0)
    A('s_waitcnt lgkmcnt(0)')
    grp(2)
    A(f"s_setprio {os.environ.get('GPRIO', '0')}")
    def gbody(first):
        for i in range(4):
            A(f's_waitcnt vmcnt({4 if not first or i == 0 else 8})')
            trd(G + 8 * ((i + 1) & 1), (i + 1) & 1)
            for a in range(2): A(mfma(Dj(a, 0), G + 8 * (i & 1), FO + 8 * i + 4 * a, Dj(a, 0)))
            if first:
                for k in range(4):
                    A(f's_add_u32 m0, s48, {(4*i+k)*4096}\ns_add_u32 s47, s61, {(4*i+k)*4096}\nbuffer_load_dwordx4 v1, {s(sWS,4)}, s47 offen sc1 lds')
                A('s_mov_b32 m0, s60')
            A('s_waitcnt lgkmcnt(0)')
            grp(i + 3)
            for a in range(2): A(mfma(Dj(a, 1), G + 8 * (i & 1) + 4, FO + 8 * i + 4 * a, Dj(a, 1)))
    A('s_mov_b32 s63, 0\nLH_gloop:')
    gbody(False)
    A(f"""
    s_add_u32 s63, s63, 1
    s_cmp_lt_u32 s63, 7
    s_cbranch_scc1 LH_gloop
    s_setprio {os.environ.get('MEETP', '0')}
    """)
    A(f"""
    s_lshl_b32 s47, s3, 3
    s_lshl_b32 s61, s44, 1
    s_add_u32 s47, s47, s61
    s_lshl_b32 s47, s47, 7
    s_lshl_b32 s61, s71, 2
    s_add_u32 s47, s47, s61
    s_add_u32 s47, s47, {hx(FH)}
    s_mov_b32 s63, 0
LH_fs:
    buffer_load_dword v241, v250, {s(sWS,4)}, s47 offen sc1
    s_add_u32 s63, s63, 1
    s_waitcnt vmcnt(0)
    v_cmp_ne_u32 vcc, v3, v241
    s_cbranch_vccz LH_fsok
    s_sleep 8
    s_cmp_lt_u32 s63, {SPIN}
    s_cbranch_scc1 LH_fs
LH_fsok:
    s_mov_b32 s62, 0
    """)
    if os.environ.get('XW'):
        A(f's_mov_b32 {s(sWS+2)}, 0x4000000\ns_lshl_b32 s47, s2, 2\ns_add_u32 s47, s47, s44\ns_lshl_b32 s47, s47, 13\ns_add_u32 s47, s47, 0x2800000')
        for i in range(8): A(f'buffer_store_dwordx4 v[88:91], v1, {s(sWS,4)}, s47 offen {os.environ["XW"]}\ns_add_u32 s47, s47, 1024')
    for j in range(1, 4):
        A('s_call_b64 s[8:9], LH_meet')
        for q in range(4): A(f'ds_write_b128 v{4+j}, {v(D+16*j+4*q,4)} offset:{q*1024}')
        A('s_call_b64 s[8:9], LH_meet')
        for q in range(4): A(f'ds_read_b128 {v(D+16*j+4*q,4)}, v4 offset:{q*1024}')
    A(f"""
    s_lshl_b32 s52, s50, 5
    s_lshl_b32 s61, s44, 3
    s_add_u32 s52, s52, s61
    s_lshl_b32 s52, s52, 10
    s_add_u32 s58, s52, {hx(OF)}
    s_xor_b32 s56, s58, 0x8000
    s_add_u32 s57, s56, 4096
    s_add_u32 s59, s58, 4096
    s_mov_b32 s63, 0
    """)
    def send():
        for j in (2,):
            for q in range(4): A(f'ds_write_b128 v{252+j}, {v(D+16*j+4*q,4)} offset:{(j-1)*4096+q*1024}')
        A('s_waitcnt lgkmcnt(0)\ns_barrier')
        for j in range(1, 4):
            for q in range(4): A(f'ds_read_b128 {v(D+16*j+4*q,4)}, v252 offset:{(j-1)*4096+q*1024}')
    A(f"""
    s_mov_b32 s52, -1
    s_waitcnt lgkmcnt(0)
    """)
    stamp(A, 7)
    amp(A, 'ready')
    A('s_barrier')
    amp(A, 'X')
    if os.environ.get('XSL'): A('s_sleep ' + os.environ['XSL'])
    stamp(A, 8)
    for g in range(4):
        A(f'LH_o{g}:')
        for k in range(4 * g, 4 * g + 4):
            A(f'buffer_load_dwordx4 {v(FO+4*k,4)}, v1, {s(sWS,4)}, s{56+g} offen offset:{(k&3)*1024} sc1')
    for g in range(4):
        A(f's_cmp_eq_u32 s52, {g}\ns_cbranch_scc1 LH_c{g}')
    A(f's_mov_b32 s4, {hx(f2u(-LOG2E))}\ns_mov_b32 s5, 1.0')
    for j in range(1, 4):
        for p in range(8): A(f'v_pk_add_f32 {v((D if j < 3 else G)+2*p,2)}, {v(D+2*p,2)}, {v(D+16*j+2*p,2)}')
    for p in range(8): A(f'v_pk_mul_f32 {v(D+2*p,2)}, {v(G+2*p,2)}, s[4:5] op_sel_hi:[1,0]')
    for j in range(16): A(f'v_exp_f32 v{D+j}, v{D+j}')
    for p in range(8): A(f'v_pk_add_f32 {v(D+2*p,2)}, {v(D+2*p,2)}, s[4:5] op_sel:[0,1] op_sel_hi:[1,1]')
    for j in range(16): A(f'v_rcp_f32 v{D+j}, v{D+j}')
    for p in range(8): A(f'v_pk_mul_f32 {v(G+2*p,2)}, {v(D+2*p,2)}, {v(G+2*p,2)}')
    for g in range(4):
        f0 = FO + 16 * g
        a, hh = 1 - (g >> 1), g & 1
        A(f"""
LH_c{g}:
        s_mov_b32 s52, {g}
        s_add_u32 s63, s63, 1
        s_waitcnt vmcnt({12-4*g})
        v_max3_u32 v241, v{f0}, v{f0+4}, v{f0+8}
        v_max_u32 v241, v241, v{f0+12}
        v_cmp_eq_u32 vcc, -1, v241
        s_cbranch_vccz LH_m{g}
        s_sleep {os.environ.get('RSL', '4')}
        s_cmp_lt_u32 s63, {SPIN}
        s_cbranch_scc1 LH_o{g}
LH_m{g}:
        """)
        n = 0
        for b in (1, 0):
            for k in range(4):
                A(mfma(Dj(a, b), WO + 8 * (4 * hh + k) + 4 * b, f0 + 4 * k, None if hh == 0 and k == 0 else Dj(a, b)))
                if g == 2:
                    j, q = (3, 1)[n >> 2], n & 3
                    A(f'ds_write_b128 v{252+j}, {v(D+16*j+4*q,4)} offset:{(j-1)*4096+q*1024}')
                if g == 3: A(f'v_lshlrev_b32 v{T0+2*n}, 16, v{X+n}\nv_and_b32 v{T0+2*n+1}, 0xffff0000, v{X+n}')
                n += 1
    if STAMP and 'st0' not in EXP: A('s_add_u32 s89, s63, s80')
    stamp(A, 10)
    send()
    for j in range(1, 3):
        A(f's_waitcnt lgkmcnt({12-4*j})')
        for p in range(8): A(f'v_pk_add_f32 {v(D+2*p,2)}, {v(D+2*p,2)}, {v(D+16*j+2*p,2)}')
    for q in range(4):
        A(f's_waitcnt lgkmcnt({3-q})')
        for p in (2 * q, 2 * q + 1):
            A(f'v_pk_add_f32 {v(D+2*p,2)}, {v(D+2*p,2)}, {v(D+48+2*p,2)}')
            A(f'v_pk_fma_f32 {v(D+2*p,2)}, {v(D+2*p,2)}, {v(G+2*p,2)}, {v(T0+2*p,2)}')
            A(f'v_cvt_pk_bf16_f32 v{X+p}, v{D+2*p}, v{D+2*p+1}')
        if q & 1: A(f'buffer_store_dwordx4 {v(X+4*(q>>1),4)}, v249, {s(sA,4)}, s54 offen offset:{32*(q>>1)} {os.environ.get("OST", "")}')
    stamp(A, 11)
    stamp_end(A, sWS, sW, 2)
    if AMP:
        amp(A, 'end')
        A(f'''
        s_cmp_lg_u32 {s(sW)}, 4
        s_cbranch_scc1 L_end
        s_memrealtime s[78:79]
        s_sub_u32 s97, s97, s96
        s_waitcnt lgkmcnt(0)
        s_mov_b32 s96, s78
LH_amp:
        s_memrealtime s[78:79]
        s_waitcnt lgkmcnt(0)
        s_sub_u32 s78, s78, s96
        s_cmp_lt_u32 s78, s97
        s_cbranch_scc1 LH_amp
        ''')
    A(f"""
    s_endpgm
LH_meet:
    s_add_u32 s62, s62, 4
    s_mov_b32 s63, 0
    s_waitcnt lgkmcnt(0)
    s_mov_b64 exec, 1
    ds_add_u32 v247, v240
    s_mov_b64 exec, -1
LH_meetw:
    ds_read_b32 v241, v247
    s_add_u32 s63, s63, 1
    s_waitcnt lgkmcnt(0)
    v_cmp_gt_u32 vcc, s62, v241
    s_cbranch_vccz LH_meetok
    s_sleep {os.environ.get('MEETS', '4')}
    s_cmp_lt_u32 s63, {SPIN * 16}
    s_cbranch_scc1 LH_meetw
LH_meetok:
    s_setpc_b64 s[8:9]
LH_kv:
    buffer_load_dwordx4 v1, {s(sWS,4)}, s47 offen sc1 lds
    s_add_u32 m0, m0, 4096
    s_add_u32 s47, s47, 4096
    s_cmp_lt_u32 m0, s48
    s_cbranch_scc1 LH_kv
    s_setpc_b64 s[8:9]
LH_prep:
    v_lshlrev_b32 v1, 4, v0
    v_cmp_gt_u32 vcc, 32, v0
    v_and_b32 v200, 15, v0
    v_and_b32 v201, 1, v0
    s_lshl_b32 s47, {s(sQB)}, 1
    v_add_u32 v201, s47, v201
    s_add_u32 s61, s3, 8
    s_lshr_b32 s62, s3, 1
    s_lshl_b32 s62, s62, 2
    s_add_u32 s62, s62, 3
    v_cndmask_b32 v200, v201, v200, vcc
    v_mov_b32 v201, s3
    v_mov_b32 v202, s62
    v_cndmask_b32 v201, v201, v202, vcc
    v_cmp_gt_u32 vcc, 16, v0
    v_mov_b32 v202, s61
    v_lshrrev_b32 v203, 3, v200
    v_cndmask_b32 v201, v201, v202, vcc
    v_and_b32 v200, 7, v200
    v_lshlrev_b32 v200, 3, v200
    v_lshl_add_u32 v200, v203, 2, v200
    v_lshrrev_b32 v203, 2, v201
    v_add_u32 v200, v200, v203
    v_and_b32 v201, 3, v201
    v_lshl_add_u32 v200, v201, 6, v200
    v_lshlrev_b32 v251, 7, v200
    s_lshl_b32 s61, s44, 12
    s_add_u32 s47, s61, {L_ONES}
    s_add_u32 s61, s61, {L_EX}
    v_and_b32 v204, 11, v0
    v_cmp_eq_u32 vcc, 0, v204
    v_mov_b32 v204, {hx(VONE)}
    v_and_b32 v205, 0x1ff, v1
    v_cndmask_b32 v232, 0, v204, vcc
    v_add_u32 v231, s47, v205
    v_mov_b32 v233, v232
    v_mov_b64 v[234:235], v[232:233]
    v_mov_b32 v240, 1
    v_mov_b32 v247, {L_FLAG}
    v_mov_b64 v[236:237], -1
    v_mov_b64 v[238:239], -1
    s_lshl_b32 s47, s44, 10
    s_add_u32 s47, s47, {L_H}
    v_add_u32 v248, s47, v1
    v_lshrrev_b32 v207, 5, v0
    v_bfe_u32 v204, v0, 4, 1
    v_lshl_add_u32 v204, v204, 2, v207
    v_bfe_u32 v205, v0, 2, 2
    v_lshl_add_u32 v204, v204, 2, v205
    v_and_b32 v205, 3, v0
    v_lshlrev_b32 v205, 8, v205
    v_lshl_add_u32 v204, v204, 3, v205
    v_add_u32 v230, s47, v204
    v_lshrrev_b32 v204, 3, v0
    v_and_b32 v205, 7, v0
    v_and_b32 v206, 2, v204
    v_lshlrev_b32 v206, 1, v206
    v_xor_b32 v205, v205, v206
    v_lshlrev_b32 v205, 4, v205
    v_lshl_add_u32 v242, v204, 10, v205
    s_lshl_b32 s47, s70, 7
    v_add_u32 v242, s47, v242
    v_add_u32 v243, 7168, v242
    v_and_b32 v205, 1, v0
    v_bfe_u32 v204, v0, 1, 1
    v_lshl_add_u32 v205, v205, 1, v204
    v_lshlrev_b32 v205, 3, v205
    v_bfe_u32 v204, v0, 4, 1
    v_lshl_add_u32 v205, v204, 5, v205
    v_bfe_u32 v206, v0, 2, 2
    v_lshl_add_u32 v204, v207, 2, v206
    v_lshl_add_u32 v205, v204, 7, v205
    v_bfe_u32 v204, v0, 3, 1
    v_xor_b32 v204, s45, v204
    v_lshl_add_u32 v205, v204, 6, v205
    v_add_u32 v244, s61, v205
    v_xor_b32 v245, 64, v244
    v_and_b32 v205, 3, v0
    v_lshl_add_u32 v246, v206, 6, v205
    s_lshl_b32 s47, s3, 1
    s_lshr_b32 s62, s71, 1
    s_add_u32 s47, s47, s62
    s_and_b32 s62, s47, 7
    s_lshl_b32 s62, s62, 3
    s_lshr_b32 s47, s47, 3
    s_lshl_b32 s47, s47, 2
    s_add_u32 s47, s47, s62
    v_add_lshl_u32 v246, v246, s47, 7
    v_lshrrev_b32 v204, 4, v0
    v_cmp_eq_u32 vcc, 1, v204
    s_lshl_b32 s47, s44, 2
    s_add_u32 s47, s47, {L_FLAG+16}
    v_cndmask_b32 v246, v246, v251, vcc
    v_mov_b32 v229, s47
    v_bfe_u32 v204, v0, 2, 1
    v_lshl_add_u32 v250, v205, 6, v204
    v_lshlrev_b32 v250, 7, v250
    v_and_b32 v204, 31, v0
    v_lshlrev_b32 v204, 10, v204
    v_lshl_add_u32 v249, v207, 4, v204
    v_mov_b64 v[224:225], 0
    v_mov_b64 v[226:227], 0
    """)
    for j in range(4):
        A(f's_xor_b32 s47, s44, {j}\ns_lshl_b32 s47, s47, 14\nv_add_u32 v{252+j}, s47, v1')
        A(mfma(D + 16 * j, 224, 224, None))
    A(f"""
    s_setpc_b64 s[8:9]
LH_prep2:
    ds_write_b128 v231, v[232:235]
    ds_write_b128 v231, v[232:235] offset:2048
    s_lshl_b32 s60, s44, 12
    s_add_u32 s60, s60, {L_EX}
    """)
    for j in range(4):
        A(f's_xor_b32 s47, s44, {j}\ns_lshl_b32 s47, s47, 12\ns_add_u32 s47, s47, {L_EX}\nv_add_u32 v{4+j}, s47, v1')
    A('s_waitcnt lgkmcnt(0)\nv_mov_b32 v2, v3\ns_setpc_b64 s[8:9]')

def gen_C(A, patterns):
    sDW, sXs, sIt, sF1, sF3, sOne = 48, 49, 50, 72, 73, 76
    A(f"""
L_C:
    v_mov_b64 v[64:65], 0
    v_mov_b64 v[66:67], 0
    """)
    A(patterns)
    A(f"""
    s_waitcnt lgkmcnt(0)
    s_lshl_b32 s47, s46, 9
    s_add_u32 s47, s47, {L_X}
    v_add_u32 v4, s47, v4
    v_mov_b32 v1, v4
    v_add_u32 v2, {2*WST}, v2
    v_add_u32 v3, {2*WST}, v3
    s_mov_b32 {s(sDW)}, {hx(-2*WST)}
    s_mov_b32 {s(sXs)}, 0
    s_mov_b32 {s(sIt)}, 0
    s_lshl_b32 s53, {s(sRB)}, 2
    s_lshl_b32 s47, s46, 1
    s_add_u32 s53, s53, s47
    s_and_b32 s47, {s(sCG)}, 7
    s_lshl_b32 s47, s47, 2
    s_lshl_b32 s61, s45, 1
    s_add_u32 s47, s47, s61
    s_lshl_b32 s47, s47, 6
    s_lshl_b32 s59, s46, 4
    s_add_u32 s59, s59, {s(sRB)}
    s_cmp_lt_u32 {s(sCG)}, 8
    s_cselect_b32 s52, 10, 11
    s_cselect_b32 s61, {hx(QF)}, {hx(KV)}
    s_cselect_b32 s58, {hx(f2u(0.25*LOG2E))}, 1.0
    s_cselect_b32 s53, s53, s59
    s_cselect_b32 s60, 1, 32
    s_add_u32 s47, s47, s53
    s_lshl_b32 s47, s47, s52
    s_add_u32 s62, s47, s61
    s_lshl_b32 s47, s60, s52
    s_add_u32 s64, s62, s47
    s_lshl_b32 s47, 64, s52
    s_add_u32 s63, s62, s47
    s_add_u32 s65, s64, s47
    s_mul_i32 s47, s45, {5*256}
    s_add_u32 s47, s47, {L_CS}
    v_lshl_add_u32 v60, v0, 2, s47
    s_lshl_b32 s47, s46, 9
    s_add_u32 s47, s47, {L_RS}
    v_and_b32 v61, 31, v0
    v_lshl_add_u32 v61, v61, 3, s47
    v_lshlrev_b32 v63, 4, v0
    v_and_b32 v72, 15, v0
    v_and_b32 v73, 16, v0
    v_cmp_eq_u32 vcc, 0, v73
    v_lshlrev_b32 v72, 4, v72
    v_add_u32 v72, {L_ONES-1024}, v72
    v_mov_b32 v73, {NT*2048}
    v_cndmask_b32 v72, v72, v63, vcc
    v_cndmask_b32 v73, 0, v73, vcc
    s_lshl_b32 s47, s44, 12
    s_add_u32 s47, s47, {L_ONES}
    v_add_u32 v74, s47, v63
    s_lshl_b32 s66, {s(sQB)}, 3
    s_lshl_b32 s47, s44, 1
    s_add_u32 s66, s66, s47
    s_lshl_b32 s66, s66, 5
    s_add_u32 s66, s66, {s(sHead)}
    s_lshl_b32 s66, s66, 10
    s_add_u32 s66, s66, {hx(OF)}
    s_mov_b32 s54, {hx(f2u(2.0**126))}
    s_mov_b32 s55, {hx(f2u(2.0**-106))}
    s_mov_b32 s56, {hx(f2u(2.0**120))}
    s_mov_b32 s57, 0
    """)
    acc = lambda T, i: 96 + (i * 2 + T) * 16
    for i in range(5):
        for T in range(2): A(mfma(acc(T, i), 64, 64, None))
    FB = lambda f: 8 + 20 * f
    Wf = lambda f, i: FB(f) + 4 * i
    Xf = lambda f, T: FB(f) + 12 + 4 * T
    def reads(f, q, withA):
        st, ks = (q >> 1) & 1, q & 1
        r = [f'ds_read_b128 {v(Xf(f,T),4)}, v1 offset:{T*128+(q&3)*32}' for T in range(2)]
        for u in range(2):
            for rd in range(2):
                r.append(f'ds_read_b64_tr_b16 {v(Wf(f,1+u)+2*rd,2)}, v2 offset:{st*WST+(4*ks+rd)*128+u*32}')
        if withA:
            for rd in range(2):
                r.append(f'ds_read_b64_tr_b16 {v(Wf(f,0)+2*rd,2)}, v3 offset:{st*WST+(4*ks+rd)*128}')
        return r
    def kloop(label, withA, adv, lim, tr0):
        for r in reads(0, 0, withA): A(r)
        A(label + ':')
        for q in range(4):
            f = q & 1
            rr = reads(f ^ 1, q + 1, withA)
            A('s_waitcnt lgkmcnt(0)')
            if q & 1: A('s_barrier')
            tiles = [(1, 1), (2, 2), (0, 0)] if withA else [(1, 3), (2, 4)]
            ms = [mfma(acc(T, ai), Wf(f, wi), Xf(f, T), acc(T, ai)) for (wi, ai) in tiles for T in range(2)]
            k = 0
            for m in range(len(ms)):
                A(ms[m])
                for _ in range(3):
                    if k < len(rr): A(rr[k]); k += 1
                if q == 2 and m == len(ms) - 1: A(adv)
                if q == 3 and m == len(ms) - 2: A(f's_add_u32 {s(sIt)}, {s(sIt)}, 1')
                if q == 3 and m == len(ms) - 1 and not STAMP: A(f's_cmp_lt_u32 {s(sIt)}, {lim}')
            assert k == len(rr)
        if STAMP:
            A(f'{TM} s[78:79]\ns_add_u32 m0, {s(sIt)}, {tr0}\ns_waitcnt lgkmcnt(0)\nv_writelane_b32 v79, s78, m0\ns_cmp_lt_u32 {s(sIt)}, {lim}')
        A(f's_cbranch_scc1 {label}')
    A(f"""
    s_mul_i32 s47, s44, {WST}
    s_add_u32 s47, s47, {2*WST+2*PAN}
    v_and_b32 v75, 31, v0
    v_mul_u32_u24 v76, 288, v7
    v_lshl_add_u32 v75, v75, 3, v76
    v_add_u32 v75, s47, v75
    v_lshlrev_b32 v76, 2, v5
    v_add_u32 v76, v76, v7
    v_lshl_add_u32 v76, v76, 2, v6
    v_and_b32 v77, 3, v0
    v_mul_u32_u24 v77, 288, v77
    v_lshl_add_u32 v76, v76, 3, v77
    v_add_u32 v76, s47, v76
    s_and_b32 s47, s3, 3
    s_lshl_b32 s47, s47, 2
    s_add_u32 s47, s47, s45
    s_lshl_b32 s47, s47, 7
    s_add_u32 s47, s47, s59
    s_lshl_b32 s47, s47, 11
    s_add_u32 s8, s47, {hx(KV)}
    s_add_u32 s9, s8, {4*64*2048}
    s_add_u32 s10, s8, {64*2048}
    s_add_u32 s11, s8, {5*64*2048}
    s_lshl_b32 s47, s44, 10
    s_add_u32 s47, s47, {L_H}
    v_add_u32 v77, s47, v63
    v_subrev_u32 v62, {2*WST}, v2
    v_mov_b32 v49, 0
    v_mov_b64 v[50:51], 0
    """)
    stamp(A, 1)
    A('s_barrier')
    stamp(A, 2)
    for r in reads(0, 0, True): A(r)
    eread = lambda q: ([f'ds_read_b128 {v(Xf(q&1,T),4)}, v4 offset:{T*128+q*32}' for T in range(2)] +
                       [f'ds_read_b64_tr_b16 {v(Wf(q&1,1+u)+2*rd,2)}, v62 offset:{(4+(q>>1))*WST+(4*(q&1)+rd)*128+u*32}' for u in range(2) for rd in range(2)])
    for q in range(8):
        f = q & 1
        rr = reads(f ^ 1, q + 1, True) if q < 3 else eread(q - 3) if 3 < q < 7 else []
        if q == 4:
            A('s_barrier')
            for r in eread(0): A(r)
        A('s_waitcnt lgkmcnt(0)')
        if q == 1: A('s_barrier')
        for wi, ai in ([(1, 1), (2, 2), (0, 0)] if q < 4 else [(1, 3), (2, 4)]):
            for T in range(2):
                A(mfma(acc(T, ai), Wf(f, wi), Xf(f, T), acc(T, ai)))
                for _ in range(3):
                    if rr: A(rr.pop(0))
    A(f"""
    v_add_u32 v2, {s(sDW)}, v2
    v_add_u32 v3, {s(sDW)}, v3
    s_mov_b32 {s(sXs)}, {XST}
    s_sub_u32 {s(sDW)}, 0, {s(sDW)}
    v_add_u32 v1, {s(sXs)}, v4
    s_mov_b32 {s(sIt)}, 1
    s_barrier
    """)
    kloop('LC_loopA', True, f"""
        v_add_u32 v2, {s(sDW)}, v2
        v_add_u32 v3, {s(sDW)}, v3
        s_add_u32 {s(sXs)}, {s(sXs)}, {XST}
        s_cmp_ge_u32 {s(sXs)}, {4*XST}
        s_cselect_b32 {s(sXs)}, 0, {s(sXs)}
        s_sub_u32 {s(sDW)}, 0, {s(sDW)}
        v_add_u32 v1, {s(sXs)}, v4
        """, '8', 15)
    if XB: A('s_barrier')
    A("""
    s_waitcnt lgkmcnt(0)
    ds_read_b64 v[68:69], v61
    ds_read_b64 v[70:71], v61 offset:256
    """)
    CO = lambda i: 8 + 4 * i
    for i in range(5): A(f'ds_read_b32 v{CO(i)}, v60 offset:{i*256}')
    for i in range(5): A(f'v_mov_b32 v{CO(i)+1}, 0\nv_mov_b64 {v(CO(i)+2,2)}, 0')
    A('s_waitcnt lgkmcnt(5)\nv_mov_b32 v64, v68\nv_mov_b32 v48, v70')
    K0 = -2.0 * math.sqrt(2.0 / math.pi) * LOG2E
    K1c = K0 * 0.044715
    A('v_rcp_f32 v84, v69\nv_rcp_f32 v92, v71\ns_waitcnt lgkmcnt(0)')
    def readsB(q):
        f, it = (q + 1) & 1, q >> 2
        wo = ((4 - 2 * (it % 3)) + ((q >> 1) & 1)) * WST + 4 * (q & 1) * 128
        r = [f'ds_read_b128 {v(Xf(f,T),4)}, v4 offset:{((3-it)&3)*XST+T*128+(q&3)*32}' for T in range(2)]
        for u in range(2):
            for rd in range(2):
                r.append(f'ds_read_b64_tr_b16 {v(Wf(f,1+u)+2*rd,2)}, v62 offset:{wo+rd*128+u*32}')
        return r
    cst = []
    for T in range(2):
        b = 80 + 8 * T
        cst += [f'v_mul_f32 v{b+3}, s58, v{b+4}', f'v_mul_f32 v{b+2}, v{69+2*T}, v{69+2*T}', f'v_mul_f32 v{b+1}, {hx(f2u(K0))}, v{b+4}',
                f'v_mul_f32 v{b}, v{b+4}, v{b+4}', f'v_mul_f32 v{b}, v{b}, v{b+4}', f'v_mul_f32 v{b}, {hx(f2u(K1c))}, v{b}',
                f'v_mul_f32 v{b+5}, {hx(f2u(2.0**VSC))}, v{b+4}']
    def atile(T, hd):
        a = acc(T, 0) + 8 * hd
        return ([f'v_mul_f32 v{a+j}, v{83+8*T}, v{a+j}' for j in range(8)] + [f'v_cvt_pk_bf16_f32 v{a+p}, v{a+2*p}, v{a+2*p+1}' for p in range(4)]
                + [f'buffer_store_dwordx4 {v(a,4)}, v63, {s(sWS,4)}, s{62+2*T+hd} offen sc1'])
    fill = readsB(0) + cst + atile(0, 0) + atile(0, 1)
    for i in range(5):
        for T in range(2):
            A(mfma(acc(T, i), CO(i), (64, 48)[T], acc(T, i)))
            for _ in range(5 if i or T else 6):
                if fill: A(fill.pop(0))
    assert not fill
    def geglu_plain(T, u):
        a, b, t, r = acc(T, 1 + u), 80 + 8 * T, 52, []
        for h4 in (0, 4):
            J = range(h4, h4 + 4)
            r += [f'v_mul_f32 v{t+j}, v{a+j}, v{a+j}' for j in J] + [f'v_fma_f32 v{t+j}, v{t+j}, v{b}, v{b+1}' for j in J]
            r += [f'v_mul_f32 v{t+j}, v{t+j}, v{a+j}' for j in J] + [f'v_exp_f32 v{t+j}, v{t+j}' for j in J]
            r += [f'v_mul_f32 v{a+j}, v{a+j}, v{a+8+j}' for j in J] + [f'v_fma_f32 v{t+j}, v{t+j}, v{b+2}, v{b+2}' for j in J]
            r += [f'v_rcp_f32 v{t+j}, v{t+j}' for j in J] + [f'v_mul_f32 v{a+j}, v{a+j}, v{t+j}' for j in J]
            r += [f'v_cvt_pk_bf16_f32 v{a+8+p}, v{a+2*p}, v{a+2*p+1}' for p in (h4 // 2, h4 // 2 + 1)]
        return r
    def vtile(T, u):
        a = acc(T, 1 + u)
        r = [f'v_mul_f32 v{a+j}, v{85+8*T}, v{a+j}' for j in range(16)]
        r += [f'v_cvt_pk_bf16_f32 v{a+p}, v{a+2*p}, v{a+2*p+1}' for p in range(8)]
        wr, rd, st = [], [], []
        for hd in range(2):
            o = hd * 1152
            wr.append(f'ds_write2_b64 v75, {v(a+4*hd,2)}, {v(a+4*hd+2,2)} offset0:{o//8} offset1:{(o+576)//8}')
            rd += [f'ds_read_b64_tr_b16 {v(a+8+4*hd,2)}, v76 offset:{o}', f'ds_read_b64_tr_b16 {v(a+8+4*hd+2,2)}, v76 offset:{o+64}']
            st.append((f's_add_u32 s{8+2*u+hd}, s{8+2*u+hd}, 65536\n' if T else '') +
                      f'buffer_store_dwordx4 {v(a+8+4*hd,4)}, v63, {s(sWS,4)}, s{8+2*u+hd} offen offset:1024 sc1')
        return r + [('lds', wr + rd, st)]
    cost = lambda t: 8 if t.startswith(('v_exp', 'v_rcp')) else 4
    STM = int(os.environ.get('STM', '3'))
    STN, STH = [int(t) for t in os.environ.get('STV', '1,0').split(',')]
    def passB(side, ack, budget, late=()):
        side = list(side)
        stores, lds, pend = [], [], 0
        for q in range(28):
            f = (q + 1) & 1
            rr = readsB(q + 1) if q < 27 else []
            if q == 4 * ack - 1: assert not stores and not lds and not any(isinstance(t, tuple) or t.startswith('buffer') for t in side), q
            A(f's_waitcnt lgkmcnt({pend})' + (' vmcnt(0)' if q == 4 * ack + 1 else ''))
            pend = 0
            if q == 4 * ack - 1: side += late
            if q & 1: A('s_barrier')
            for m in range(4):
                A(mfma(acc(m & 1, 3 + (m >> 1)), Wf(f, 1 + (m >> 1)), Xf(f, m & 1), acc(m & 1, 3 + (m >> 1))))
                for _ in range(3):
                    if rr: A(rr.pop(0))
                left = budget[m]
                if m == 2 and lds:
                    _, ops_, st = lds.pop(0)
                    if 'xds' in EXP: ops_ = []
                    for t in ops_: A(t)
                    pend = len(ops_); left = 0
                    stores += [(q + 2, t) for t in st]
                for _ in range(STN if late else 1):
                    if m == STM and (q >= STH or not late):
                        rdy = [x for x in stores if x[0] <= q]
                        if rdy:
                            stores.remove(rdy[0])
                            if 'xst' not in EXP: A(rdy[0][1])
                            left -= 12
                while side and (isinstance(side[0], tuple) or side[0].startswith('buffer') or left >= cost(side[0])):
                    t = side.pop(0)
                    if isinstance(t, tuple): lds.append(t)
                    elif t.startswith('buffer'): stores.append((q + (m >= STM), t))
                    else: left -= cost(t); A(t)
            if STAMP and 'trb' in EXP and q & 3 == 3:
                A(f'{TM} s[78:79]\ns_waitcnt lgkmcnt(0)\nv_writelane_b32 v79, s78, {24+(q>>2)}')
        assert not side and not stores and not lds, len(side)
    BUD = [int(t) for t in os.environ.get('BUD', '8,8,20,20').split(',')]
    stamp(A, 3)
    A(f's_cmp_eq_u32 s71, {os.environ.get("VJ", "3")}\ns_cbranch_scc1 LC_Bv')
    passB(atile(1, 0) + atile(1, 1) + sum((geglu_plain(T, u) for T in range(2) for u in range(2)), []), F1N, BUD)
    for n in range(4): A(f'ds_write_b128 v77, {v(acc(n>>1,1+(n&1))+8,4)} offset:{n*4096}')
    A('LC_g4:\nv_mov_b32 v1, v63\ns_nop 6')
    stamp(A, 4)
    for u in range(2):
        TT = [(acc(T, 3 + u), 80 + 8 * T, 8 + 8 * T) for T in range(2)]
        for a, b, t in TT:
            for p in range(4): A(f'v_pk_mul_f32 {v(t+2*p,2)}, {v(a+2*p,2)}, {v(a+2*p,2)}')
        for a, b, t in TT:
            for p in range(4): A(f'v_pk_fma_f32 {v(t+2*p,2)}, {v(t+2*p,2)}, {v(b,2)}, {v(b,2)} op_sel:[0,0,1] op_sel_hi:[1,0,1]')
        for a, b, t in TT:
            for p in range(4): A(f'v_pk_mul_f32 {v(t+2*p,2)}, {v(t+2*p,2)}, {v(a+2*p,2)}')
        for a, b, t in TT:
            for j in range(8): A(f'v_exp_f32 v{t+j}, v{t+j}')
        for a, b, t in TT:
            for p in range(4): A(f'v_pk_mul_f32 {v(a+2*p,2)}, {v(a+2*p,2)}, {v(a+8+2*p,2)}')
        for a, b, t in TT:
            for p in range(4): A(f'v_pk_fma_f32 {v(t+2*p,2)}, {v(t+2*p,2)}, {v(b+2,2)}, {v(b+2,2)} op_sel:[0,0,0] op_sel_hi:[1,0,0]')
        for a, b, t in TT:
            for j in range(8): A(f'v_rcp_f32 v{t+j}, v{t+j}')
        for a, b, t in TT:
            for p in range(4): A(f'v_pk_mul_f32 {v(a+2*p,2)}, {v(a+2*p,2)}, {v(t+2*p,2)}')
        for T, (a, b, t) in enumerate(TT):
            for p in range(4): A(f'v_cvt_pk_bf16_f32 v{a+8+p}, v{a+2*p}, v{a+2*p+1}')
            A(f'ds_write_b128 v77, {v(a+8,4)} offset:{(4+2*T+u)*4096}')
    def vvariant():
        A('LC_Bv:')
        passB({'a': vtile(0, 0) + atile(1, 0) + vtile(0, 1) + atile(1, 1), 'b': vtile(0, 0) + vtile(0, 1) + atile(1, 0) + atile(1, 1)}[os.environ.get('VORD', 'a')], F1B, [int(t) for t in os.environ.get('BUDV', '12,12,24,24').split(',')], vtile(1, 0)[:-1] + vtile(1, 1)[:-1])
        A('v_lshrrev_b32 v75, 1, v63\nv_sub_u32 v75, v77, v75')
        for n in range(4):
            a = acc(1, 1 + (n >> 1)) + 4 * (n & 1)
            A(f'ds_write2st64_b64 v75, {v(a,2)}, {v(a+2,2)} offset0:{n*8} offset1:{n*8+1}')
        A('s_branch LC_g4')
    QA, QB, CA, CB, OA, OB, SA, SB, PA, PB = 8, 12, 16, 32, 48, 64, 80, 96, 112, 120
    KF = lambda b: 128 + 4 * b
    VF = lambda j: 136 + 4 * j
    A('LC_att:')
    if STAMP: A('v_mov_b32 v144, v79')
    stamp(A, 5)
    A('s_waitcnt lgkmcnt(0)')
    stamp(A, 6)
    A('s_barrier')
    stamp(A, 7)
    A(f"""
    ds_read_b128 {v(QA,4)}, v74 offset:512
    ds_read_b128 {v(KF(0),4)}, v1
    ds_read_b128 {v(KF(1),4)}, v1 offset:2048
    ds_read_b128 {v(QB,4)}, v74 offset:2560
    v_mov_b32 v2, v1
    v_mov_b32 v3, v72
    v_mov_b32 v4, v73
    s_mov_b32 {s(sIt)}, 0
    v_mov_b32 v5, {L_FLAG+16}
    """)
    for j in range(0, 8, 2): A(f'v_mov_b64 {v(VF(0)+j,2)}, 0')
    for j in range(0, 8, 2): A(f'v_mov_b64 {v(PB+j,2)}, 0')
    A('s_waitcnt lgkmcnt(2)')
    A(mfma(SA, KF(0), QA, None))
    A('s_waitcnt lgkmcnt(1)')
    A(mfma(OA, KF(1), QA, None))
    A('s_waitcnt lgkmcnt(0)')
    A(mfma(SB, KF(0), QB, None))
    A(mfma(OB, KF(1), QB, None))
    A('s_nop 6')
    for (S, O, C) in ((SA, OA, CA), (SB, OB, CB)):
        A(f'v_max3_f32 v{C}, v{S}, v{S+1}, v{S+2}\nv_max3_f32 v{C+1}, v{S+3}, v{S+4}, v{S+5}')
        src = [S + j for j in range(6, 16)] + [O + j for j in range(16)]
        for i in range(0, 26, 2): A(f'v_max3_f32 v{C+((i>>1)&1)}, v{C+((i>>1)&1)}, v{src[i]}, v{src[i+1]}')
        A(f'v_mov_b64 {v(O,2)}, 0')
        A(f'v_max_f32 v{C}, v{C}, v{C+1}')
        A(f'v_mov_b32 v{C+1}, v{C}')
        A(f'v_mov_b64 {v(O+2,2)}, 0\nv_mov_b64 {v(O+4,2)}, 0')
        A(f'v_permlane32_swap_b32 v{C}, v{C+1}')
        A(f'v_max_f32 v{C}, v{C}, v{C+1}')
        A(f'v_sub_f32 v{C+1}, {hx(f2u(-BIAS))}, v{C}')
        A(f'v_sub_f32 v{C}, {hx(f2u(-BIAS))}, v{C}')
        for j in range(2, 16, 2): A(f'v_mov_b64 {v(C+j,2)}, {v(C,2)}')
        A(f'v_mov_b64 {v(O+6,2)}, 0\nv_mov_b64 {v(O+8,2)}, 0')
        if S == SA: A(mfma(SA, KF(0), QA, CA))
    stamp(A, 8)
    if 'clk' in EXP: stamp(A, 9, True)
    E = lambda S, j: A(f'v_exp_f32 v{S+j}, v{S+j}')
    Cv = lambda S, P, p: A(f'v_cvt_pk_bf16_f32 v{P+p}, v{S+2*p}, v{S+2*p+1}')
    ORD = {'even': 'm0 e0 e1 e2 e3 e4 c0 c1 m1 e5 e6 c2 e7 e8 c3 e9 e10 c4 m2 e11 e12 c5 e13 e14 e15 c6 c7',
           'tight': 'm0 e0 e1 e2 m1 e3 e4 e5 m2 c0 c1 c2 e6 e7 e8 c3 e9 e10 c4 e11 e12 c5 e13 e14 e15 c6 c7',
           'mid': 'm0 e0 e1 e2 c0 m1 e3 e4 e5 c1 m2 c2 e6 e7 e8 c3 e9 e10 c4 e11 e12 c5 e13 e14 e15 c6 c7',
           'two': 'm0 e0 e1 e2 m1 e3 e4 e5 c0 c1 e6 e7 c2 e8 e9 c3 m2 e10 c4 e11 e12 c5 e13 e14 e15 c6 c7'}[os.environ.get('ORD', 'tight')].split()
    def phase(S, P, *m):
        for t in ORD:
            if t[0] == 'm':
                mm = m[int(t[1])]
                if ('nopv' in EXP and t[1] != '0') or ('noqk' in EXP and t[1] == '0'): mm = 's_nop 0\ns_nop 0\n' + '\n'.join(mm.split('\n')[1:])
                A(mm)
            elif t[0] == 'e' and 'noexp' in EXP: A('s_nop 1')
            elif t[0] == 'e': E(S, int(t[1:]))
            else: Cv(S, P, int(t[1:]))
    if os.environ.get('CPRIO'): A('s_setprio ' + os.environ['CPRIO'])
    if 'smf' in EXP:
        A('v_mov_b32 v152, 0x44444444\nv_and_b32 v153, 12, v0\nv_cmp_eq_u32 vcc, 0, v153\nv_mov_b32 v153, 0x3f803f80\ns_nop 1')
        for j in range(4): A(f'v_cndmask_b32 v{VF(1)+j}, 0, v153, vcc\nv_mov_b32 v{156+j}, 0\nv_mov_b32 v{160+j}, 0')
    A('s_nop 0\n.p2align 3\nLA_loop:')
    for t in range(NT):
        kb = t & 1
        o = t * 2048
        if 'smf' in EXP:
            sm = lambda O, P: f'v_smfmac_f32_32x32x32_bf16 {v(O,16)}, {v(VF(0),4)}, {v(P,8)}, v152'
            sl = lambda L, P: f'v_smfmac_f32_16x16x64_bf16 {v(L,4)}, {v(VF(1),4)}, {v(P,8)}, v152' if 'smf1' not in EXP else 's_nop 0'
            tail = ''
            if t == NT - 3: tail = f'\ns_add_u32 {s(sIt)}, {s(sIt)}, 1'
            if t == NT - 2: tail = '\nds_read_b128 v[148:151], v5'
            if t == NT - 1: tail = (f'\nv_add_u32 v2, {NT*2048}, v2\nv_min3_u32 v148, v148, v149, v150\nv_min_u32 v148, v148, v151'
                                    f'\nv_cmp_lt_u32 vcc, {s(sIt)}, v148')
            phase(SA, PA, mfma(SB, KF(kb), QB, CB) + f'\nds_read_b128 {v(KF(kb),4)}, v2 offset:{o+4096}',
                  sm(OB, PB) + f'\nds_read_b128 {v(VF(0),4)}, v2 offset:{o+1024}', sl(156, PB))
            phase(SB, PB, mfma(SA, KF(kb ^ 1), QA, CA) + '\ns_waitcnt lgkmcnt(0)', sm(OA, PA), sl(160, PA) + tail)
            continue
        phase(SA, PA,
              mfma(SB, KF(kb), QB, CB) + f'\nds_read_b128 {v(KF(kb),4)}, v2 offset:{o+4096}',
              mfma(OB, VF(0), PB, OB) + f'\nds_read_b128 {v(VF(0),4)}, v3 offset:{o+1024}',
              mfma(OB, VF(1), PB + 4, OB) + f'\nds_read_b128 {v(VF(1),4)}, v3 offset:{o+1280}')
        tail = ''
        if t == NT - 3: tail = f'\ns_add_u32 {s(sIt)}, {s(sIt)}, 1'
        if t == NT - 2: tail = '\nds_read_b128 v[148:151], v5'
        if t == NT - 1: tail = (f'\nv_add_u32 v2, {NT*2048}, v2\nv_add_u32 v3, v4, v3\nv_min3_u32 v148, v148, v149, v150\nv_min_u32 v148, v148, v151'
                                f'\nv_cmp_lt_u32 vcc, {s(sIt)}, v148')
        phase(SB, PB,
              mfma(SA, KF(kb ^ 1), QA, CA) + '\ns_waitcnt lgkmcnt(1)',
              mfma(OA, VF(0), PA, OA) + '\ns_waitcnt lgkmcnt(0)',
              mfma(OA, VF(1), PA + 4, OA) + tail)
    if STAMP and 'atr' in EXP:
        A(f's_memtime s[78:79]\ns_add_u32 m0, {s(sIt)}, 15\ns_waitcnt lgkmcnt(0)\nv_writelane_b32 v144, s78, m0')
    A(f'''
    s_cbranch_vccnz LA_loop
    s_cmp_eq_u32 {s(sIt)}, {64//NT}
    s_cbranch_scc1 LA_fini
    s_mov_b32 s47, 0
LA_kvw:
    ds_read_b128 v[148:151], v5
    s_add_u32 s47, s47, 1
    s_waitcnt lgkmcnt(0)
    v_min3_u32 v148, v148, v149, v150
    v_min_u32 v148, v148, v151
    v_cmp_lt_u32 vcc, {s(sIt)}, v148
    s_cbranch_vccnz LA_loop
    s_cmp_lt_u32 s47, {SPIN * 16}
    s_cbranch_scc1 LA_kvw
    s_branch LA_loop
LA_fini:''')
    A(mfma(OB, VF(0), PB, OB))
    A(mfma(OB, VF(1), PB + 4, OB))
    stamp(A, 11)
    if 'clk' in EXP:
        stamp(A, 10, True)
        A('s_sub_u32 s90, s90, s89\ns_add_u32 s90, s90, s80\ns_mov_b32 s89, 0')
    A('LA_fin:')
    A(f'v_add_f32 v{SA}, |v{OA}|, |v{OA+1}|')
    for j in range(2, 8): A(f'v_add_f32 v{SA}, v{SA}, |v{OA+j}|')
    A(f'''
    v_cmp_gt_f32 vcc, s54, v{SA}
    v_cmp_lt_f32 s[58:59], s55, v{SA}
    v_cmp_gt_f32 s[60:61], s56, v{OA+8}
    s_and_b64 vcc, vcc, s[58:59]
    s_and_b64 vcc, vcc, s[60:61]
    s_cmp_eq_u64 vcc, -1
    s_cbranch_scc0 LA_fallback
LA_norm:
    v_rcp_f32 v{OA+8}, v{OA+8}
    s_nop 0
    ''')
    for j in range(8): A(f'v_mul_f32 v{OA+j}, v{OA+j}, v{OA+8}')
    for p in range(4): A(f'v_cvt_pk_bf16_f32 v{PA+p}, v{OA+2*p}, v{OA+2*p+1}')
    A(f'''
    v_min_u32 v{PA}, -2, v{PA}
    buffer_store_dwordx4 {v(PA,4)}, v1, {s(sWS,4)}, s66 offen sc1
    s_cmp_eq_u32 s57, 1
    s_cbranch_scc1 LA_done
    s_mov_b32 s57, 1
    s_add_u32 s66, s66, 0x8000
    ''')
    for j in range(0, 10, 2): A(f'v_mov_b64 {v(OA+j,2)}, {v(OB+j,2)}')
    for j in range(0, 4, 2): A(f'v_mov_b64 {v(QA+j,2)}, {v(QB+j,2)}')
    A('s_branch LA_fin\nLA_done:')
    if 'noxb' not in EXP: A('s_barrier')
    stamp(A, 12)
    stamp_end(A, sWS, sW, tr=144)
    A('s_endpgm')
    A(f'''
LA_fallback:
    v_mov_b32 v{CA}, 0xff800000
    v_mov_b32 v2, v1
    s_mov_b32 {s(sIt)}, 0
LA_fb1:
    ds_read_b128 {v(KF(0),4)}, v2
    v_add_u32 v2, 0x800, v2
    s_waitcnt lgkmcnt(0)
    ''')
    A(mfma(SA, KF(0), QA, None))
    A('s_nop 11')
    for j in range(0, 16, 2): A(f'v_max3_f32 v{CA}, v{CA}, v{SA+j}, v{SA+j+1}')
    A(f'''
    s_add_u32 {s(sIt)}, {s(sIt)}, 1
    s_cmp_lt_u32 {s(sIt)}, 64
    s_cbranch_scc1 LA_fb1
    v_mov_b32 v{CA+1}, v{CA}
    v_cmp_eq_u32 vcc, 0, v4
    v_lshrrev_b32 v6, {NT.bit_length()-1}, v4
    v_permlane32_swap_b32 v{CA}, v{CA+1}
    v_max_f32 v{CA}, v{CA}, v{CA+1}
    v_sub_f32 v{CA}, 0, v{CA}
    v_cndmask_b32 v3, v1, v3, vcc
    ''')
    for j in range(1, 16): A(f'v_mov_b32 v{CA+j}, v{CA}')
    for j in range(0, 16, 2): A(f'v_mov_b64 {v(OA+j,2)}, 0')
    A(f'''
    v_mov_b32 v2, v1
    s_mov_b32 {s(sIt)}, 0
LA_fb2:
    ds_read_b128 {v(KF(0),4)}, v2
    ds_read_b128 {v(VF(0),4)}, v3 offset:1024
    ds_read_b128 {v(VF(1),4)}, v3 offset:1280
    v_add_u32 v2, 0x800, v2
    v_add_u32 v3, v6, v3
    s_waitcnt lgkmcnt(0)
    ''')
    A(mfma(SA, KF(0), QA, CA))
    A('s_nop 11')
    for j in range(16): E(SA, j)
    A('s_nop 0')
    for p in range(8): Cv(SA, PA, p)
    A('s_nop 1')
    A(mfma(OA, VF(0), PA, OA)); A(mfma(OA, VF(1), PA + 4, OA))
    A(f'''
    s_add_u32 {s(sIt)}, {s(sIt)}, 1
    s_cmp_lt_u32 {s(sIt)}, 64
    s_cbranch_scc1 LA_fb2
    s_nop 11
    s_branch LA_norm
    ''')
    vvariant()

def main(out):
    A = Asm()
    top = f'''; out = x + (MHA(LN x) @ wo) * silu(GEGLU-FFN(LN x)); one persistent launch, 256 workgroups (generated by gen/gen9.py)
; kernarg: x 0, wqkv 8, wo 16, (B_x 24 unused), gate 32, up 40, down 48, out 56, debug 64, ws 72
; @launch grid=(256,1,1) block=(512,1,1) lds={LDS_BYTES}
.amdgcn_target "amdgcn-amd-amdhsa--gfx950"
.text
'''
    gen(A)
    tail = f'''.section .rodata,"a"
.p2align 6
.amdhsa_kernel {NAME}_kernel
  .amdhsa_next_free_vgpr 256
  .amdhsa_next_free_sgpr 100
  .amdhsa_accum_offset 256
  .amdhsa_group_segment_fixed_size 0
  .amdhsa_kernarg_size 80
  .amdhsa_user_sgpr_count 2
  .amdhsa_user_sgpr_kernarg_segment_ptr 1
  .amdhsa_system_sgpr_workgroup_id_x 1
.end_amdhsa_kernel
'''
    open(out, 'w').write(top + A.text() + tail)

if __name__ == '__main__':
    main(sys.argv[1] if len(sys.argv) > 1 else 'cdna_kernels/%s.s' % NAME)
```

```python
import struct, sys, math, os, re

NOTES = {'L_L': 'waves 4,5: LDS-DMA loaders of x / weight tiles (pass A: q|k unit + one line pair, pass B: second pair, K walked backwards)', 'L_M': 'waves 6,7: LayerNorm statistics (row sums, weight column sums): partials exchanged between workgroups as nonce-tagged 16B granules', 'LH_join': 'waves 4-7 during attention: publish h, stream K/V into LDS, down projection (K quarter per wave), then o @ wo and the output', 'L_C': 'waves 0-3: x @ [wqkv|gate|up] on MFMA, LayerNorm folded in as rstd*(acc - mean*colsum), GEGLU, then attention', 'LC_att': 'softmax reference = max over the first 64 keys + 104 (log2 units); checked at the end, exact two-pass redo with the true max if unsafe', 'LA_fin': 'guard: row sum and |o| must be finite, below 2^120 / 2^126 and clear of underflow, else redo with the true row max', 'LA_fallback': 'exact path: pass 1 true row max over all keys, pass 2 exp2(s - max) and P@V'}
NAME = 'recurrent_scan__mha_block__glu_gated_geglu__prompt'
def f2u(x): return struct.unpack('<I', struct.pack('<f', x))[0]
def hx(x): return '0x%x' % (x & 0xffffffff)
class Asm:
    def __init__(self): self.l = []; self.shift = 0
    def __call__(self, s):
        if self.shift:
            f = lambda n: str(int(n) + self.shift) if 8 <= int(n) < 100 else n
            s = re.sub(r'\bv(\d+)\b', lambda m: 'v' + f(m.group(1)), s)
            s = re.sub(r'\bv\[(\d+):(\d+)\]', lambda m: 'v[%s:%s]' % (f(m.group(1)), f(m.group(2))), s)
        for line in s.split('\n'):
            line = line.strip()
            if not line: continue
            self.l.append(line if line.endswith(':') or line.startswith('.') else '    ' + line)
    def text(self):
        return '\n'.join(('; ' + NOTES[x[:-1]] + '\n' + x) if x[:-1] in NOTES else x for x in self.l) + '\n'
def v(a, n=1): return 'v%d' % a if n == 1 else 'v[%d:%d]' % (a, a + n - 1)
def s(a, n=1): return 's%d' % a if n == 1 else 's[%d:%d]' % (a, a + n - 1)
def mfma(d, a, b, c):
    return 'v_mfma_f32_32x32x16_bf16 %s, %s, %s, %s' % (v(d, 16), v(a, 4), v(b, 4), '0' if c is None else v(c, 16))

QF  = 0x000000
KV  = 0x200000
HF  = 0x600000
OF  = 0xD00000
CSP = 0x1200000
RSP = 0x1280000
FL  = 0x13C0000
FH  = 0x13C8000
NW  = 0x13D0000
STB = 0x1400000
WS_BYTES = 0x1500000
LOG2E = 1.4426950408889634
ONES = 0x3f803f80
VSC = 12
VONE = ((127 + VSC) << 7) * 0x10001
SPIN = 1 << 18

LIGHT = os.environ.get('STAMP') == '2'
STAMP = os.environ.get('STAMP') == '1'
EXP = set(os.environ.get('EXP', '').split(','))
BIAS = float(os.environ.get('BIAS', '104'))
NFL = int(os.environ.get('NFL', '4'))

TM = 's_memrealtime' if os.environ.get('RT') else 's_memtime'
_seen = set()
def stamp(A, idx, real=False):
    if 'frozen' in EXP and idx in (5, 6, 7, 8, 9, 10, 11, 12) and not any('L_C:' == x for x in A.l): return
    if not STAMP and not (LIGHT and idx in (0, 13, 14, 15)): return
    if 'e1' in EXP and A.l and any('L_C:' == x for x in A.l):
        if idx in _seen: return
        _seen.add(idx)
    A('%s s[78:79]\ns_waitcnt lgkmcnt(0)\ns_mov_b32 s%d, s78' % ('s_memrealtime' if real or os.environ.get('RT') else 's_memtime', 80 + idx))
AMP = os.environ.get('AMP')
def amp(A, name):
    if LIGHT and name in ('b17', 'B1', 'gemm', 'ready', 'X'):
        A('s_memtime s[78:79]\ns_waitcnt lgkmcnt(0)\ns_mov_b32 s%d, s78' % (83 + ('b17', 'B1', 'gemm', 'ready', 'X').index(name)))
    if AMP == name: A('s_memrealtime s[78:79]\ns_waitcnt lgkmcnt(0)\ns_mov_b32 s97, s78')
def stamp_begin(A):
    if AMP: A('s_memrealtime s[78:79]\ns_waitcnt lgkmcnt(0)\ns_mov_b32 s96, s78\ns_mov_b32 s97, s78')
    if not STAMP and not LIGHT: return
    for i in range(16): A('s_mov_b32 s%d, 0' % (80 + i))
    stamp(A, 14, True); stamp(A, 0)
def stamp_end(A, sWS, sW, vt=3, tr=None):
    if not STAMP and not (LIGHT and tr is None): return
    A('s_waitcnt vmcnt(0)')
    stamp(A, 13); stamp(A, 15, True)
    A('s_nop 4')
    if tr is not None: A('v_mov_b32 v%d, v%d' % (vt, tr))
    for i in range(16): A('v_writelane_b32 v%d, s%d, %d' % (vt, 80 + i, i))
    A('''s_lshl_b32 s78, s2, 3
    s_add_u32 s78, s78, s%d
    s_lshl_b32 s78, s78, 7
    s_add_u32 s78, s78, %s
    v_lshlrev_b32 v%d, 2, v0
    s_mov_b64 exec, 0xffffffff
    buffer_store_dword v%d, v%d, s[%d:%d], s78 offen''' % (sW, hx(STB), vt + 1, vt, vt + 1, sWS, sWS + 3))

PAN, APAN = 4224, 4352
WST = 2 * PAN + APAN
XST = 16 * 1040
L_X = 6 * WST
L_CS = L_X + 4 * XST
L_RS = L_CS + 10 * 256
L_ONES = 131072
L_EX = L_ONES + 7 * 2048 + 1536
assert L_RS + 1024 <= L_EX
L_H = 98304
L_FLAG = L_EX + 16384
L_NON = L_FLAG + 4
LDS_BYTES = L_FLAG + 64
assert LDS_BYTES <= 163840
NT = 8
XB = os.environ.get('MSCHED', '12,15').endswith('16')
NB = 30
F1N, F1B = [int(t) for t in os.environ.get('F1IT', '2,3').split(',')]
NK1 = int(os.environ.get('NK1', '16'))

sX, sA, sH0, sH1, sWS, sPK, sDBG = 16, 20, 24, 28, 32, 36, 12
sP0, sP1 = 36, 12
sRB, sCG, sW, sHead, sQB = 40, 41, 42, 74, 75

def flag_store(A, soff, vt):
    A(f'''
    s_mov_b64 exec, 1
    buffer_store_dword v{vt}, off, {s(sWS,4)}, {soff} sc1
    s_mov_b64 exec, -1
    ''')

def gen(A):
    K = NAME + '_kernel'
    A(f'.globl {K}\n.p2align 8\n.type {K},@function\n{K}:')
    A('''
    s_cmp_ge_u32 s2, 256
    s_cbranch_scc1 L_end
    ''')
    stamp_begin(A)
    A(f'''
    v_lshrrev_b32 v1, 6, v0
    s_getpc_b64 s[4:5]
L_pc:
    v_readfirstlane_b32 {s(sW)}, v1
    s_and_b32 s47, s2, 0xf8
    s_load_dwordx2 {s(sX,2)}, s[0:1], 0
    s_add_u32 s47, s47, {s(sW)}
    s_lshl_b32 s47, s47, 6
    s_load_dword s6, s[4:5], s47
    s_add_u32 s47, s47, 0x4000
    s_min_u32 s47, s47, L_code_end-L_pc-4
    s_load_dword s7, s[4:5], s47
    s_load_dwordx2 {s(sA,2)}, s[0:1], 8
    s_load_dwordx2 {s(sH0,2)}, s[0:1], 32
    s_load_dwordx2 {s(sH1,2)}, s[0:1], 40
    s_load_dwordx2 {s(sWS,2)}, s[0:1], 72
    v_and_b32 v0, 63, v0
    s_and_b32 s3, s2, 7
    s_lshr_b32 s43, s2, 3
    s_lshr_b32 {s(sRB)}, s3, 2
    s_lshl_b32 {s(sRB)}, {s(sRB)}, 3
    s_and_b32 s70, s43, 7
    s_add_u32 {s(sRB)}, {s(sRB)}, s70
    s_and_b32 {s(sCG)}, s3, 3
    s_lshl_b32 {s(sCG)}, {s(sCG)}, 2
    s_lshr_b32 s71, s43, 3
    s_add_u32 {s(sCG)}, {s(sCG)}, s71
    s_and_b32 s44, {s(sW)}, 3
    s_lshr_b32 s45, s44, 1
    s_and_b32 s46, s44, 1
    s_mov_b32 {s(sWS+2)}, {hx(WS_BYTES)}
    s_mov_b32 {s(sWS+3)}, 0x20000
    s_mov_b32 {s(sX+2)}, 2097152
    s_mov_b32 {s(sX+3)}, 0x20000
    s_mov_b32 {s(sA+2)}, 1572864
    s_mov_b32 {s(sA+3)}, 0x20000
    s_lshl_b32 {s(sHead)}, s3, 2
    s_add_u32 {s(sHead)}, {s(sHead)}, s71
    s_mov_b32 {s(sQB)}, s70
    ''')
    patterns = f'''
    v_bfe_u32 v5, v0, 4, 1
    v_bfe_u32 v6, v0, 2, 2
    v_lshrrev_b32 v7, 5, v0
    v_and_b32 v1, 3, v0
    v_lshlrev_b32 v1, 3, v1
    v_lshl_add_u32 v1, v7, 8, v1
    v_mul_u32_u24 v2, {PAN}, v5
    v_mul_u32_u24 v8, 1056, v6
    v_add3_u32 v2, v2, v8, v1
    v_mul_u32_u24 v8, 1088, v6
    v_lshl_add_u32 v3, v5, 5, v8
    v_add_u32 v3, v3, v1
    v_and_b32 v8, 15, v0
    v_mul_u32_u24 v8, 1040, v8
    v_lshl_add_u32 v4, v5, 8, v8
    v_lshl_add_u32 v4, v7, 4, v4
    s_lshl_b32 s47, s45, 6
    v_add_u32 v2, s47, v2
    s_add_u32 s47, s47, {2*PAN}
    v_add_u32 v3, s47, v3
    '''
    A(f'''
    s_and_b32 s47, {s(sW)}, 6
    s_cmp_eq_u32 s47, 4
    s_cbranch_scc1 L_L
    ''')
    if 'tlb' in EXP:
        A(f'''
        s_cmp_lg_u32 {s(sW)}, 0
        s_cbranch_scc1 L_nt
        s_waitcnt lgkmcnt(0)
        s_load_dword s6, {s(sA,2)}, 0
        s_load_dword s6, {s(sH0,2)}, 0
        s_load_dword s6, {s(sH1,2)}, 0
L_nt:
        ''')
    if 'tlbv' in EXP:
        A(f'''
        s_cmp_lg_u32 {s(sW)}, 0
        s_cbranch_scc1 L_nt
        v_mov_b32 v1, 0
        s_mov_b64 exec, 1
        s_waitcnt lgkmcnt(0)
        global_load_dword v2, v1, {s(sA,2)}
        global_load_dword v2, v1, {s(sH0,2)}
        global_load_dword v2, v1, {s(sH1,2)}
        s_mov_b64 exec, -1
        s_waitcnt vmcnt(0)
L_nt:
        ''')
    A(f'''
    s_cmp_lt_u32 {s(sW)}, 4
    s_cbranch_scc1 L_C
    s_branch L_M
L_L:
    ''')
    gen_H(A, patterns)
    gen_C(A, patterns)
    A('L_end:\ns_endpgm\nL_code_end:')

def gen_H(A, patterns):
    A.shift = 104
    sStrH, sColH = 48, 49
    sRowA, sRowH, sMH, sMA, sMX, sXo, sRot, sG = 50, 51, 52, 53, 54, 55, 59, 60
    ROTM = int(os.environ.get('ROTM', '7'))
    sStr, sRowP, sRowA, sRowB, sMA, sMB, sMX, sXo, sRot, sGA, sGB, sJ = 48, 49, 50, 51, 52, 53, 54, 55, 59, 60, 56, 57
    A(f"""
    v_lshrrev_b32 v8, 3, v0
    v_and_b32 v9, 7, v0
    v_lshlrev_b32 v9, 4, v9
    v_and_b32 v13, 4, v8
    v_bfe_u32 v14, v8, 1, 1
    v_and_b32 v15, 1, v8
    v_lshl_add_u32 v14, v15, 1, v14
    v_add_u32 v13, v13, v14
    v_lshl_add_u32 v13, v13, 14, v9
    s_lshl_b32 s47, {s(sRB)}, 17
    s_lshl_b32 s61, s46, 12
    s_add_u32 s47, s47, s61
    v_add_u32 v13, s47, v13
    s_lshl_b32 s62, s71, 1
    s_add_u32 {s(sRot)}, s70, s62
    s_and_b32 s47, s3, 1
    s_add_u32 {s(sRot)}, {s(sRot)}, s47
    s_and_b32 {s(sRot)}, {s(sRot)}, {os.environ.get('ROTM', '7')}
    s_lshl_b32 {s(sXo)}, {s(sRot)}, 7
    s_lshl_b32 {s(sRot)}, {s(sRot)}, 1
    s_mul_i32 s58, s46, 4160
    s_add_u32 s58, s58, {L_X}
    s_mov_b32 {s(sMX)}, s58
    s_mov_b32 {s(sJ)}, 0
    s_and_b32 s64, s3, 3
    s_mul_i32 s65, s64, 7
    s_add_u32 s65, s65, s62
    s_lshl_b32 s65, s65, 7
    s_add_u32 s66, s65, 128
    s_lshl_b32 s64, s64, 8
    s_add_u32 s64, s64, 2048
    s_cmp_lt_u32 s71, 3
    s_mov_b32 {s(sP0+2)}, 1572864
    s_cmov_b32 {s(sP0+2)}, 1835008
    s_mov_b32 {s(sP1+2)}, {1572864-128}
    s_cmov_b32 {s(sP1+2)}, 1835008
    s_mov_b32 {s(sP0+3)}, 0x20000
    s_mov_b32 {s(sP1+3)}, 0x20000
    s_movk_i32 {s(sStr)}, 3072
    s_cmovk_i32 {s(sStr)}, 3584
    s_cselect_b32 s64, s65, s64
    s_cselect_b32 s65, s66, s65
    s_lshl_b32 s47, s46, 1
    v_lshl_add_u32 v10, v8, 2, s47
    v_mul_u32_u24 v11, 3072, v10
    s_lshl_b32 s47, {s(sCG)}, 7
    v_add3_u32 v11, v11, v9, s47
    v_mul_lo_u32 v18, v10, {s(sStr)}
    v_add3_u32 v18, v18, v9, s64
    v_add_u32 v19, {s(sStr)}, v18
    s_lshl_b32 {s(sStr)}, {s(sStr)}, 5
    s_mul_i32 {s(sRowA)}, {s(sRot)}, {32*3072}
    s_mul_i32 {s(sRowP)}, {s(sRot)}, {s(sStr)}
    s_mul_i32 {s(sMA)}, s46, 2112
    s_add_u32 {s(sMA)}, {s(sMA)}, {2*WST}
    s_lshl_b32 s69, s46, 6
    s_mov_b32 {s(sGA)}, 0
    s_waitcnt lgkmcnt(0)
    """)
    sel = f"""
    s_add_u32 s62, {s(sA)}, 128
    s_addc_u32 s63, {s(sA+1)}, 0
    s_cmp_lt_u32 s71, 3
    s_cselect_b64 {s(sP0,2)}, {s(sH0,2)}, {s(sA,2)}
    s_cselect_b64 {s(sP1,2)}, {s(sH1,2)}, s[62:63]
    """
    setup2 = f"""
    s_mov_b32 {s(sH0+2)}, 1835008
    s_mov_b32 {s(sH1+2)}, 1835008
    s_mov_b32 {s(sH0+3)}, 0x20000
    s_mov_b32 {s(sH1+3)}, 0x20000
    v_mul_u32_u24 v16, 3584, v10
    v_add3_u32 v16, v16, v9, s65
    v_add_u32 v17, 3584, v16
    s_mul_i32 {s(sRowB)}, {s(sRot)}, {32*3584}
    s_mul_i32 {s(sMB)}, s46, 2112
    s_add_u32 {s(sMB)}, {s(sMB)}, {4*WST}
    s_mov_b32 {s(sGB)}, 0
    """
    ops = []
    def call(tag):
        name = {'X': 'LL_X', 'A': 'LL_A', 'B': 'LL_B', 'E': 'LL_B'}[tag[0]]
        A(f's_call_b64 s[8:9], {name}')
        ops.extend([tag] * {'LL_X': 4, 'LL_A': 6, 'LL_B': 4}[name])
        if tag == 'E0': A(f's_add_u32 s47, {s(sRot)}, 1\ns_mul_i32 {s(sRowB)}, s47, {32*3584}')
        if tag == 'E1': A(f's_add_u32 s47, {s(sRot)}, 14\ns_and_b32 s47, s47, 15\ns_mul_i32 {s(sRowB)}, s47, {32*3584}\n'
                          f's_add_u32 {s(sMB)}, {s(sMB)}, {2*WST}\ns_mov_b32 {s(sGB)}, 0')
    def bar(*need):
        if need:
            assert all(t in ops for t in need), need
            last = max(i for i, t in enumerate(ops) if t in need)
            if len(ops) - 1 - last < 64: A(f's_waitcnt vmcnt({len(ops) - 1 - last})')
        A('s_barrier')
    RP = os.environ.get('RP', '')
    def bodyX():
        ld = [(f's_add_u32 m0, {s(sMX)}, {16*i}', f'buffer_load_dwordx4 v13, {s(sX,4)}, {s(sXo)} offen offset:{1024*i} {RP} lds') for i in range(4)]
        pre = [f's_add_u32 {s(sJ)}, {s(sJ)}, 1', f's_lshr_b32 s67, {s(sJ)}, 1', 's_sub_u32 s68, 11, s67',
               f's_cmp_lt_u32 {s(sJ)}, 16\ns_cselect_b32 s67, s67, s68']
        post = ['s_and_b32 s68, s67, 3\ns_lshl_b32 s68, s68, 1', f's_and_b32 s62, {s(sJ)}, 1\ns_add_u32 s68, s68, s62',
                f's_mul_i32 s68, s68, {XST//2}\ns_add_u32 {s(sMX)}, s68, s58\ns_lshl_b32 s67, s67, 1',
                f's_add_u32 s67, s67, {s(sRot)}\ns_and_b32 s67, s67, 15\ns_lshl_b32 s67, s67, 6\ns_lshl_b32 s62, s62, 13\ns_add_u32 {s(sXo)}, s67, s62']
        return ld, pre, post
    def bodyA():
        ld = [(f's_add_u32 m0, {s(sMA)}, {hf*PAN+1056*bb}', f'buffer_load_dwordx4 v{18+bb}, {s(sP0 if hf == 0 else sP1,4)}, {s(sRowP)} offen {RP} lds')
              for hf in range(2) for bb in range(2)]
        ld += [(f's_add_u32 m0, s61, {2*PAN+(1088-3072)*bb}', f'buffer_load_dwordx4 v11, {s(sA,4)}, {s(sRowA)} offen offset:{3072*bb} {RP} lds') for bb in range(2)]
        pre = [f's_add_u32 {s(sGA)}, {s(sGA)}, 1', f's_add_u32 s47, {s(sGA)}, {s(sRot)}', 's_and_b32 s47, s47, 15', f's_add_u32 s61, {s(sMA)}, s69',
               f's_mul_i32 {s(sRowP)}, s47, {s(sStr)}\ns_add_u32 {s(sMA)}, {s(sMA)}, {WST}',
               f's_cmp_ge_u32 {s(sMA)}, {4*WST}\ns_cselect_b32 s63, {4*WST}, 0\ns_sub_u32 {s(sMA)}, {s(sMA)}, s63']
        post = [f's_mul_i32 {s(sRowA)}, s47, {32*3072}']
        return ld, pre, post
    def bodyB():
        ld = [(f's_add_u32 m0, {s(sMB)}, {hf*PAN+1056*bb}', f'buffer_load_dwordx4 v{16+bb}, {s(sH0 if hf == 0 else sH1,4)}, {s(sRowB)} offen {RP} lds')
              for hf in range(2) for bb in range(2)]
        pre = [f's_add_u32 {s(sGB)}, {s(sGB)}, 1', f's_xor_b32 s47, {s(sGB)}, 14', f's_add_u32 s47, s47, {s(sRot)}\ns_and_b32 s47, s47, 15',
               f's_bitcmp1_b32 {s(sGB)}, 0\ns_mov_b32 s63, {3*WST}\ns_cmov_b32 s63, {WST}\ns_add_u32 {s(sMB)}, {s(sMB)}, s63\ns_cmp_ge_u32 {s(sMB)}, {6*WST}\ns_cselect_b32 s63, {6*WST}, 0\ns_sub_u32 {s(sMB)}, {s(sMB)}, s63']
        post = [f's_mul_i32 {s(sRowB)}, s47, {32*3584}']
        return ld, pre, post
    def emit(*bodies):
        carry = []
        for ld, pre, post in bodies:
            for i, (m, l) in enumerate(ld):
                A(m); A(pre[i])
                if carry: A(carry.pop(0))
                A(l)
            for t in carry: A(t)
            carry = list(post)
        for t in carry: A(t)
    if 'st0' in EXP: stamp(A, 9)
    call('X0'); A(sel)
    if 'st0' in EXP: stamp(A, 10)
    call('X1')
    if 'st0' in EXP: stamp(A, 7)
    call('A0')
    if 'st0' in EXP: stamp(A, 6)
    if not os.environ.get('PRE'): call('A1')
    if 'st0' in EXP: stamp(A, 11)
    A('s_branch LL_go\nLL_X:')
    emit(bodyX())
    A('s_setpc_b64 s[8:9]\nLL_A:')
    emit(bodyA())
    A('s_setpc_b64 s[8:9]\nLL_go:')
    A(setup2)
    A('s_call_b64 s[8:9], LH_prep')
    if 'st0' in EXP:
        stamp(A, 12); A('s_waitcnt vmcnt(12)'); stamp(A, 8); A('s_waitcnt vmcnt(6)'); stamp(A, 5); EXP.add('frozen')
    if os.environ.get('PRE'):
        A('s_waitcnt vmcnt(%s)' % os.environ.get('PREW', '6'))
        for t in os.environ['PRE'].split(','): call(t)
    def need(c):
        n = [f'A{c}' if c < 16 else f'B{c-16}']
        if c % 2 == 0 and c < 16: n += [f'X{c}', f'X{c+1}']
        if c % 2 == 0 and c >= 24: n += [f'X{c-8}', f'X{c-7}']
        return n
    def dist(c):
        return len(ops) - 1 - max(i for i, t in enumerate(ops) if t in need(c))
    def loop(label, c0, c1, second, cnt, lim):
        A(f's_waitcnt vmcnt({dist(c0)})\n{label}:\ns_barrier')
        emit(bodyX(), second())
        w = 63
        for c in range(c0, c1 + 1):
            ops.extend([f'X{c+4 if c < 16 else c-XO}'] * 4 + ([f'A{c+3}'] * 6 if c < 16 else [f'B{c-BO}'] * 4))
            if c < c1: w = min(w, dist(c + 1))
        A(f's_cmp_lt_u32 {cnt}, {lim}\ns_waitcnt vmcnt({w})\ns_cbranch_scc1 {label}')
    sched = {0: 'E0,E1,X2,X3', 1: 'A2,|,A3,X4,X5,A4', 12: 'A15,B0', 13: 'B1,B2', 14: 'B3', 15: 'B4', 16: 'B5', 17: 'B6', 18: 'X16', 19: 'B7', 25: 'B13'}
    LB0, LB1, XO, BO = 20, 24, 3, 12
    if os.environ.get('LS0'): sched[0], sched[1] = os.environ['LS0'].split('/')
    c = 0
    while c < NB:
        if c == 2:
            loop('LL_loopA', 2, 11, bodyA, s(sGA), 15); c = 12; continue
        if c == LB0:
            loop('LL_loopB', LB0, LB1, bodyB, s(sGB), LB1 - BO + 1); c = LB1 + 1; continue
        bar(*need(c))
        amp(A, f'b{c}')
        if LIGHT and c in (0, 12): A(f's_memtime s[78:79]\ns_waitcnt lgkmcnt(0)\ns_mov_b32 s{81 + (c > 0)}, s78')
        if c == 16 and XB: A('s_barrier')
        if c == 26:
            A(f"""
    v_mov_b32 v9, {L_NON}
    ds_read_b32 v3, v9
    s_mov_b32 s52, {hx(FL)}
    s_lshl_b32 s61, {s(sHead)}, 3
    s_add_u32 s61, s61, {s(sQB)}
    s_lshl_b32 s61, s61, 13
    s_lshl_b32 s47, s46, 12
    s_add_u32 s61, s61, s47
    s_lshl_b32 s62, s46, 13
    s_add_u32 s62, s62, {L_ONES+512}
    s_lshl_b32 s63, s46, 10
    s_lshl_b32 s47, {s(sHead)}, 17
    s_add_u32 s47, s47, {hx(KV)}
    s_add_u32 s47, s47, s63
    s_mov_b32 s53, 0
    """)
        if c == int(os.environ.get('EARLYC', '29')):
            A(f"""
    buffer_load_dword v241, v251, {s(sWS,4)}, s52 offen sc1
    """)
            ops.append('poll')
        for t in sched.get(c, '').split(','):
            if t == '|': bar('E0', 'E1')
            elif t: call(t)
        c += 1
    A(f"""
    s_setprio 2
    s_barrier
LL_f1:
    s_add_u32 s53, s53, 1
    s_waitcnt vmcnt(0) lgkmcnt(0)
    v_cmp_ne_u32 vcc, v3, v241
    s_cbranch_vccz LL_f1ok
    s_sleep 4
    buffer_load_dword v241, v251, {s(sWS,4)}, s52 offen sc1
    s_cmp_lt_u32 s53, {SPIN}
    s_cbranch_scc1 LL_f1
LL_f1ok:
    """)
    stamp(A, 1)
    if STAMP: A('s_add_u32 s82, s53, s80')
    A('s_call_b64 s[8:9], LL_qkv\ns_branch LH_join\nLL_qkv:')
    for i in range(4):
        A(f's_add_u32 m0, s62, {1024*i}\ns_nop 0\nbuffer_load_dwordx4 v1, {s(sWS,4)}, s61 offen offset:{1024*i} sc1 lds')
    A(f"""
    s_mov_b32 m0, s63
    s_nop 0
LL_kv:
    buffer_load_dwordx4 v1, {s(sWS,4)}, s47 offen sc1 lds
    buffer_load_dwordx4 v1, {s(sWS,4)}, s47 offen offset:2048 sc1 lds
    s_add_u32 m0, m0, 4096
    s_add_u32 s47, s47, 4096
    s_cmp_lt_u32 m0, 20480
    s_cbranch_scc1 LL_kv
    s_setpc_b64 s[8:9]
LL_B:
    """)
    emit(bodyB())
    A(f"""
    s_setpc_b64 s[8:9]
    """)
    CS, RS = 16, 24
    WF, XF = 32, 52
    sOne = 73
    A(f"""
L_M:
    s_setprio {os.environ.get('MPRIO', '3')}
    s_mov_b32 s45, s46
    """)
    A(patterns)
    A(f"""
    s_mov_b32 s45, 1
    s_mov_b32 {s(sOne)}, {hx(ONES)}
    s_lshl_b32 s47, s46, 9
    s_add_u32 s47, s47, {L_X}
    v_add_u32 v4, s47, v4
    v_lshlrev_b32 v1, 4, v0
    s_mov_b32 s50, 0
    """)
    for i in range(16, 28, 2): A(f'v_mov_b64 {v(i,2)}, 0')
    A(f's_mov_b32 s47, {hx(NW)}\ns_waitcnt lgkmcnt(0)\nbuffer_load_dword v30, off, {s(sWS,4)}, s47 sc1')
    nb = -1
    def bars(upto):
        nonlocal nb
        while nb < upto:
            A('s_barrier'); nb += 1
    A('s_call_b64 s[8:9], LH_prep')
    if 'st0' in EXP:
        EXP.discard('frozen'); stamp(A, 9); EXP.add('frozen')
    XF = 44
    A(f"""
    v_add_u32 v10, {4*WST}, v2
    v_add_u32 v2, {2*WST}, v2
    v_add_u32 v3, {2*WST}, v3
LM_stat:
    s_bitcmp1_b32 s50, 0
    s_cbranch_scc1 LM_nobar
    s_barrier
LM_nobar:
    ds_read_b128 {v(XF,4)}, v4
    ds_read_b128 {v(XF+4,4)}, v4 offset:128
    ds_read_b64_tr_b16 {v(WF,2)}, v3
    ds_read_b64_tr_b16 {v(WF+2,2)}, v3 offset:128
    """)
    for u in range(2):
        A(f'ds_read_b64_tr_b16 {v(WF+4+4*u,2)}, v2 offset:{u*32}')
        A(f'ds_read_b64_tr_b16 {v(WF+6+4*u,2)}, v2 offset:{u*32+128}')
    A(f"""
    s_movk_i32 s47, 512
    s_cmovk_i32 s47, {WST-512}
    v_add_u32 v2, s47, v2
    v_add_u32 v3, s47, v3
    v_add_u32 v4, 32, v4
    s_add_u32 s50, s50, 1
    s_waitcnt lgkmcnt(6)
    """)
    for j in range(4):
        for T in range(2):
            if 'nodot' not in EXP: A(f'v_dot2c_f32_bf16 v{RS+2*T}, {s(sOne)}, v{XF+4*T+j}')
            if 'nodot' not in EXP: A(f'v_dot2c_f32_bf16 v{RS+2*T+1}, v{XF+4*T+j}, v{XF+4*T+j}')
    A('s_waitcnt lgkmcnt(0)')
    for j in range(4):
        for i in range(3):
            if 'nodot' not in EXP: A(f'v_dot2c_f32_bf16 v{CS+i}, {s(sOne)}, v{WF+4*i+j}')
    A(f"""
    s_cmp_lt_u32 s50, 4
    s_cbranch_scc1 LM_stat
    s_barrier
    """)
    nb = 1
    for q in range(4):
        for u in range(2):
            for rd in range(2):
                A(f'ds_read_b64_tr_b16 {v(WF+8*q+4*u+2*rd,2)}, v10 offset:{(q>>1)*WST+(4*(q&1)+rd)*128+u*32}')
        if q == 2: A('s_waitcnt lgkmcnt(4)')
    A(f"""
    s_lshl_b32 s50, {s(sCG)}, 4
    s_add_u32 s50, s50, {s(sRB)}
    s_lshl_b32 s50, s50, 1
    s_add_u32 s50, s50, s46
    s_lshl_b32 s50, s50, 10
    s_add_u32 s50, s50, {hx(CSP)}
    s_lshl_b32 s51, {s(sRB)}, 4
    s_add_u32 s51, s51, {s(sCG)}
    s_lshl_b32 s51, s51, 1
    s_add_u32 s51, s51, s46
    s_lshl_b32 s51, s51, 10
    s_add_u32 s51, s51, {hx(RSP)}
    s_waitcnt lgkmcnt(0)
    """)
    for hh in range(2):
        for q in (2 * hh, 2 * hh + 1):
            for j in range(4):
                for u in range(2):
                    r = WF + 8 * q + 4 * u + j
                    A(f'v_lshlrev_b32 v28, 16, v{r}\nv_and_b32 v29, 0xffff0000, v{r}\nv_add_f32 v{CS+3+u}, v{CS+3+u}, v28\nv_add_f32 v{CS+5+u}, v{CS+5+u}, v29')
        bars(nb + 1)
    A(f"""
    v_add_f32 v{CS+3}, v{CS+3}, v{CS+5}
    v_add_f32 v{CS+4}, v{CS+4}, v{CS+6}
    s_mov_b32 s47, 1664525
    s_waitcnt vmcnt(0)
    v_mul_lo_u32 v30, v30, s47
    v_add_u32 v30, 1013904223, v30
    """)
    for i in range(5): A(f'v_mov_b32 v{WF+i}, v{CS+i}')
    for i in range(4): A(f'v_mov_b32 v{WF+8+i}, v{RS+i}')
    A('v_cmp_gt_u32 vcc, 32, v0')
    for i in range(5): A(f'v_permlane32_swap_b32 v{CS+i}, v{WF+i}')
    for i in range(4): A(f'v_permlane32_swap_b32 v{RS+i}, v{WF+8+i}')
    for i in range(5): A(f'v_add_f32 v{CS+i}, v{CS+i}, v{WF+i}')
    for i in range(4): A(f'v_add_f32 v{RS+i}, v{RS+i}, v{WF+8+i}')
    A(f"""
    v_cndmask_b32 v{CS}, v{CS+3}, v{CS}, vcc
    v_cndmask_b32 v{CS+1}, v{CS+4}, v{CS+1}, vcc
    v_mov_b32 v{CS+3}, v30
    v_cndmask_b32 v{RS}, v{RS+2}, v{RS}, vcc
    v_cndmask_b32 v{RS+1}, v{RS+3}, v{RS+1}, vcc
    v_mov_b32 v{RS+3}, v30
    buffer_store_dwordx4 {v(CS,4)}, v1, {s(sWS,4)}, s50 offen sc1
    buffer_store_dwordx4 {v(RS,4)}, v1, {s(sWS,4)}, s51 offen sc1
    """)
    bars(nb + 1)
    A(f"""
    s_and_b32 s50, s50, {hx(~0x3800)}
    s_and_b32 s51, s51, {hx(~0x3800)}
    v_lshlrev_b32 v8, 2, v0
    v_mov_b32 v9, {L_FLAG}
    v_mov_b32 v29, 0
    ds_write_b32 v9, v29
    ds_write_b32 v9, v30 offset:4
    v_mov_b32 v28, 0
    ds_write_b64 v9, v[28:29] offset:16
    ds_write_b64 v9, v[28:29] offset:24
    """)
    B_GAT, B_RED = [int(t) for t in os.environ.get('MSCHED', '12,15').split(',')]
    A(f"""
    v_mov_b32 v3, v30
    s_lshl_b32 s54, {s(sQB)}, 3
    s_lshl_b32 s62, s46, 2
    s_add_u32 s54, s54, s62
    s_lshl_b32 s54, s54, 5
    s_add_u32 s54, s54, {s(sHead)}
    s_lshl_b32 s54, s54, 10
    s_add_u32 s54, s54, {hx(OF)}
    """)
    for n in range(4):
        A(f'buffer_store_dwordx4 v[236:239], v1, {s(sWS,4)}, s54 offen sc1\ns_add_u32 s54, s54, 0x8000')
        bars(nb + 1)
    bars(B_GAT)
    GC, GR = 32, 64
    A('s_mov_b32 s53, 0\nLM_gat:\ns_mov_b32 s47, s50\ns_mov_b32 s61, s51')
    for i in range(8):
        A(f'buffer_load_dwordx4 {v(GR+4*i,4)}, v1, {s(sWS,4)}, s61 offen offset:{2048*(i&1)} sc1')
        A(f'buffer_load_dwordx4 {v(GC+4*i,4)}, v1, {s(sWS,4)}, s47 offen offset:{2048*(i&1)} sc1')
        if i & 1 and i < 7: A('s_add_u32 s47, s47, 4096\ns_add_u32 s61, s61, 4096')
    A('s_cmp_lg_u32 s53, 0\ns_cbranch_scc1 LM_chk')
    bars(B_RED - 1)
    A('LM_chk:\ns_waitcnt vmcnt(0)\ns_add_u32 s53, s53, 1')
    A(f'v_xor_b32 v10, v30, v{GC+3}')
    for r in [GC + 4 * i + 3 for i in range(1, 16)]:
        A(f'v_xor_b32 v11, v30, v{r}\nv_or_b32 v10, v10, v11')
    A(f"""
    v_cmp_ne_u32 vcc, 0, v10
    s_cbranch_vccz LM_red
    s_sleep 4
    s_cmp_lt_u32 s53, {SPIN}
    s_cbranch_scc1 LM_gat
LM_red:
    """)
    stamp(A, 1)
    for i in range(1, 8):
        for t in range(3):
            if t < 2: A(f'v_add_f32 v{GR+t}, v{GR+t}, v{GR+4*i+t}')
            A(f'v_add_f32 v{GC+t}, v{GC+t}, v{GC+4*i+t}')
    bars(B_RED)
    SUM, SQ = GR, GR + 1
    A(f"""
    s_mul_i32 s47, s46, {5*256}
    s_add_u32 s47, s47, {L_CS}
    v_add_u32 v10, s47, v8
    s_lshl_b32 s47, s46, 9
    s_add_u32 s47, s47, {L_RS}
    v_lshl_add_u32 v9, v0, 3, s47
    v_cmp_gt_u32 vcc, 32, v0
    v_mul_f32 v{SUM}, {hx(f2u(-1.0/512))}, v{SUM}
    v_mul_f32 v{SQ}, {hx(f2u(1.0/512))}, v{SQ}
    v_fma_f32 v{SQ}, -v{SUM}, v{SUM}, v{SQ}
    v_max_f32 v{SQ}, 0, v{SQ}
    v_cvt_pk_bf16_f32 v{SQ}, v{SQ}, v{SQ}
    v_and_b32 v{SQ}, 0xffff0000, v{SQ}
    v_add_f32 v{SQ}, {hx(f2u(1e-5))}, v{SQ}
    v_cvt_pk_bf16_f32 v{SQ}, v{SQ}, v{SQ}
    v_and_b32 v{SQ}, 0xffff0000, v{SQ}
    v_sqrt_f32 v{SQ}, v{SQ}
    v_cvt_pk_bf16_f32 v{SUM}, v{SUM}, v{SUM}
    v_cvt_pk_bf16_f32 v{SQ}, v{SQ}, v{SQ}
    v_and_b32 v{SQ}, 0xffff0000, v{SQ}
    ds_write_b64 v9, {v(SUM,2)}
    """)
    for t in range(3):
        A(f"""
        v_cvt_pk_bf16_f32 v28, v{GC+t}, v{GC+t}
        v_and_b32 v28, 0xffff0000, v28
        v_sub_f32 v29, v{GC+t}, v28
        v_cvt_pk_bf16_f32 v28, v28, v29
        v_cndmask_b32 v{16+t}, 0, v28, vcc
        ds_write_b32 v10, v{16+t} offset:{t*256}
        """)
        if t < 2: A(f'v_sub_u32 v{20+t}, v28, v{16+t}\nds_write_b32 v10, v{20+t} offset:{(3+t)*256}')
    A('s_waitcnt lgkmcnt(0)')
    stamp(A, 2)
    assert nb <= 15 or XB
    if XB: A('s_barrier')
    A(f"""
    s_lshl_b32 s51, s2, 7
    s_add_u32 s51, s51, {hx(FL)}
    s_cmp_lg_u32 s46, 0
    s_cmov_b32 s51, 0x2000000
    s_mov_b32 s52, 0x2000000
    s_cmp_eq_u32 s71, 3
    s_cselect_b32 s53, s51, s52
    s_cselect_b32 s51, s52, s51
    """)
    bars(16 + 2 * F1N + 1)
    flag_store(A, 's51', 3)
    bars(16 + 2 * F1B + 1)
    flag_store(A, 's53', 3)
    bars(int(os.environ.get('WPF', '26')))
    if 'nowpf' not in EXP:
        A(f"""
        s_load_dwordx2 {s(sH0,2)}, s[0:1], 16
        s_mov_b32 {s(sH0+2)}, 524288
        s_mov_b32 {s(sH0+3)}, 0x20000
        s_lshl_b32 s47, s71, 1
        s_add_u32 s47, s47, s46
        s_lshl_b32 s47, s47, 16
        s_lshl_b32 s61, s70, 7
        s_add_u32 s47, s47, s61
        v_lshlrev_b32 v8, 10, v0
        s_waitcnt lgkmcnt(0)
        buffer_load_dword v241, v8, {s(sH0,4)}, s47 offen
        """)
    bars(NB)
    A('s_setprio 2')
    A.shift = 0
    A(f"""
LH_join:
    s_call_b64 s[8:9], LH_prep2
    s_lshl_b32 s61, {s(sRB)}, 2
    s_lshl_b32 s62, s46, 1
    s_add_u32 s61, s61, s62
    s_mul_i32 s61, s61, 112
    s_and_b32 s62, s3, 3
    s_mul_i32 s62, s62, 28
    s_add_u32 s61, s61, s62
    s_lshl_b32 s62, s71, 3
    s_add_u32 s61, s61, s62
    s_lshl_b32 s62, s45, 1
    s_add_u32 s61, s61, s62
    s_lshl_b32 s61, s61, 10
    s_add_u32 s64, s61, {hx(HF)}
    s_add_u32 s66, s64, 4096
    s_cmp_eq_u32 s71, 3
    s_cselect_b32 s66, s64, s66
    s_add_u32 s67, s66, {112*1024}
    s_and_b32 s47, s3, 3
    s_lshl_b32 s47, s47, 2
    s_add_u32 s47, s47, s45
    s_lshl_b32 s47, s47, 7
    s_lshl_b32 s62, s46, 4
    s_add_u32 s47, s47, s62
    s_add_u32 s47, s47, {s(sRB)}
    s_lshl_b32 s47, s47, 11
    s_add_u32 s47, s47, {hx(KV+32*2048+1024)}
    s_cmp_eq_u32 s71, 3
    s_cselect_b32 s4, s47, s64
    s_movk_i32 s5, 1024
    s_cmov_b32 s5, {4*64*2048}
    s_mov_b32 s6, {112*1024}
    s_cmov_b32 s6, {64*2048}
    s_add_u32 s6, s6, s4
    s_add_u32 s7, s6, s5
    s_add_u32 s5, s5, s4
    s_lshl_b32 s63, s2, 7
    s_lshl_b32 s62, s44, 2
    s_add_u32 s61, s63, s62
    s_add_u32 s61, s61, {hx(FH)}
    s_lshl_b32 s50, s3, 3
    s_lshl_b32 s47, s71, 1
    s_add_u32 s50, s50, s47
    s_add_u32 s50, s50, s46
    s_lshl_b32 s51, s70, 1
    s_add_u32 s51, s51, s45
    s_mul_i32 s47, s44, {28*1024}
    s_add_u32 s47, s47, {hx(HF)}
    s_mul_i32 s56, s50, {112*1024}
    s_add_u32 s56, s56, s47
    s_xor_b32 s57, s50, 1
    s_mul_i32 s57, s57, {112*1024}
    s_add_u32 s57, s57, s47
    s_mul_i32 s58, s44, {28*16384}
    s_lshl_b32 s47, s71, 1
    s_add_u32 s59, s70, s47
    s_cmp_ge_u32 s59, 7
    s_cselect_b32 s47, 7, 0
    s_sub_u32 s59, s59, s47
    s_lshl_b32 s59, s59, 12
    s_mov_b32 s49, {hx(FH)}
    s_lshl_b32 s54, s50, 15
    s_lshl_b32 s47, s51, 6
    s_add_u32 s54, s54, s47
    s_load_dwordx2 {s(sA,2)}, s[0:1], 56
    s_load_dwordx2 {s(sPK,2)}, s[0:1], 48
    s_load_dwordx2 {s(sH0,2)}, s[0:1], 16
    s_mov_b32 {s(sA+2)}, 2097152
    s_mov_b32 {s(sPK+2)}, 1835008
    s_mov_b32 {s(sPK+3)}, 0x20000
    s_mov_b32 {s(sH0+2)}, 524288
    s_mov_b32 {s(sH0+3)}, 0x20000
    s_waitcnt vmcnt(0) lgkmcnt(0)
    """)
    A(f"""
    s_lshl_b32 s63, s44, 10
    s_lshl_b32 s47, {s(sHead)}, 17
    s_add_u32 s47, s47, {hx(KV+20480)}
    s_add_u32 s47, s47, s63
    s_add_u32 m0, s63, 20480
    """)
    stamp(A, 3)
    A('s_barrier')
    amp(A, 'B1')
    A(f's_mov_b32 s48, {9*4096}\ns_call_b64 s[8:9], LH_kv')
    A('s_cmp_eq_u32 s71, 3\ns_cbranch_scc1 LH_vr')
    for n in range(4): A(f'ds_read_b128 {v(96+4*n,4)}, v248 offset:{n*4096}')
    A('s_branch LH_hr\nLH_vr:')
    for n in range(4):
        for rd in range(2): A(f'ds_read_b64_tr_b16 {v(96+4*n+2*rd,2)}, v230 offset:{n*4096+64*rd}')
    A('LH_hr:')
    for n in range(4, 8): A(f'ds_read_b128 {v(96+4*n,4)}, v248 offset:{n*4096}')
    PFM = os.environ.get('PFM', 'late')
    PFX = f"""
    s_lshl_b32 s55, s59, 4
    s_add_u32 s55, s55, s58
    s_lshl_b32 s53, s70, 7
    s_add_u32 s55, s55, s53
    v_lshlrev_b32 v110, 6, v1
    buffer_load_dword v111, v110, {s(sPK,4)}, s55 offen
    s_add_u32 s55, s55, 65536
    buffer_load_dword v111, v110, {s(sPK,4)}, s55 offen
    """
    level = lambda n: f'v_mov_b32 v241, {n}\nds_write_b32 v229, v241'
    for n in range(8):
        A(f's_waitcnt lgkmcnt({min(7-n,4)})\nbuffer_store_dwordx4 {v(96+4*n,4)}, v1, {s(sWS,4)}, ' + (f's{4+n} offen sc1' if n < 4 else f's{64+(n>>1)} offen offset:{(n&1)*1024} sc1'))
    A('s_waitcnt vmcnt(8)\n' + level(2))
    A(f's_mov_b32 s48, {17*4096}\ns_call_b64 s[8:9], LH_kv\ns_waitcnt vmcnt(8)')
    stamp(A, 4)
    A(f"""
    s_or_b32 s62, s44, s2
    s_mov_b32 s62, {hx(NW)}
    s_cmov_b32 s62, 0x2000000
    s_mov_b64 exec, 1
    buffer_store_dword v3, off, {s(sWS,4)}, s61 sc1
    buffer_store_dword v3, off, {s(sWS,4)}, s62 sc1
    s_mov_b64 exec, -1
    s_waitcnt vmcnt(2)
    {level(4)}
    s_lshl_b32 s55, s44, 17
LH_wo:
    buffer_load_dwordx4 v242, {s(sH0,4)}, s55 offen lds
    s_add_u32 m0, m0, 4096
    s_add_u32 s55, s55, 8192
    s_cmp_lt_u32 m0, 131072
    s_cbranch_scc1 LH_wo
    s_mov_b32 m0, s60
    s_sub_u32 s62, s63, s60
    buffer_load_dwordx4 v242, {s(sH0,4)}, s55 offen lds
    buffer_load_dwordx4 v[88:91], v249, {s(sX,4)}, s54 offen
    buffer_load_dwordx4 v[92:95], v249, {s(sX,4)}, s54 offen offset:32
{PFX if PFM == 'early' else ''}
    s_add_u32 s62, s62, {17*4096}
    v_add_u32 v72, s62, v244
    v_add_u32 v73, s62, v245
    v_mov_b32 v251, v229
    s_add_u32 m0, s63, {16*4096}
    s_sub_u32 s47, s47, 4096
    s_mov_b32 s48, 131072
    s_mov_b32 s63, 0
    s_waitcnt vmcnt({4 if PFM == 'early' else 2})
    """)
    for k in range(8):
        for b in range(2):
            for rd in range(2):
                A(f'ds_read_b64_tr_b16 {v(176+8*k+4*b+2*rd,2)}, ' + (f'v{72+b} offset:{(2*k+rd)*4096}' if 2 * k + rd < 15 else f'v{244+b}'))
        if k in (2, 5, 7): A('s_waitcnt lgkmcnt(0)')
    stamp(A, 5)
    A(f"""
    s_cmp_lg_u32 s46, 0
    s_cbranch_scc1 LH_fh0
    s_call_b64 s[8:9], LH_kv
LH_fh0:
    buffer_load_dwordx4 v[76:79], v246, {s(sWS,4)}, s49 offen sc1
LH_fh:
    s_add_u32 s63, s63, 1
    s_waitcnt vmcnt(0)
    v_cmp_ne_u64 vcc, v[2:3], v[76:77]
    v_cmp_ne_u64 s[4:5], v[2:3], v[78:79]
    s_or_b64 vcc, vcc, s[4:5]
    s_cbranch_scc0 LH_gemm
    s_sleep 8
    buffer_load_dwordx4 v[76:79], v246, {s(sWS,4)}, s49 offen sc1
    s_cmp_lt_u32 s63, {SPIN}
    s_cbranch_scc1 LH_fh
LH_gemm:
    s_cmp_eq_u32 s46, 0
    s_cbranch_scc1 LH_g0
    s_call_b64 s[8:9], LH_kv
LH_g0:
    s_mov_b32 s61, s59
    s_mov_b32 m0, s60
    v_mov_b32 v241, 8
    """)
    D, G, X, T0, FO, WO = 8, 72, 88, 96, 112, 176
    Dj = lambda a, b: D + 16 * (a + 2 * b)
    adv = f"""
    s_add_u32 s52, s56, s59
    s_add_u32 s53, s57, s59
    s_lshl_b32 s55, s59, 4
    s_add_u32 s55, s55, s58
    s_add_u32 s59, s59, 4096
    s_cmp_ge_u32 s59, {7*4096}
    s_cselect_b32 s59, 0, s59
    s_cmp_eq_u32 s59, s61
    s_cselect_b32 s59, 0x2000000, s59
    """
    def dma(srd, buf):
        A(f"""
        buffer_load_dwordx4 v242, {s(srd,4)}, s55 offen offset:{2048*buf} lds
        buffer_load_dwordx4 v243, {s(srd,4)}, s55 offen offset:{2048*buf+1024} lds
        s_add_u32 s55, s55, {16384+2048*(2*buf-1)}
        """)
    def grp(i):
        if i & 3 == 0: A(adv)
        for a in range(2):
            A(f'buffer_load_dwordx4 {v(FO+8*(i&3)+4*a,4)}, v1, {s(sWS,4)}, s{52+a} offen offset:{(i&3)*1024} sc1')
        dma(sPK, i & 1)
    def trd(dst, buf):
        for b in range(2):
            for rd in range(2):
                A(f'ds_read_b64_tr_b16 {v(dst+4*b+2*rd,2)}, v{244+b} offset:{2048*buf+1024*rd}')
    stamp(A, 6)
    amp(A, 'gemm')
    if PFM == 'late': A(PFX)
    grp(0); grp(1)
    A(f's_waitcnt vmcnt({10 if PFM == "late" else 8})\nds_write_b32 v251, v241\ns_waitcnt vmcnt(4)')
    trd(G, 0)
    A('s_waitcnt lgkmcnt(0)')
    grp(2)
    A(f"s_setprio {os.environ.get('GPRIO', '0')}")
    def gbody(first):
        for i in range(4):
            A(f's_waitcnt vmcnt({4 if not first or i == 0 else 8})')
            trd(G + 8 * ((i + 1) & 1), (i + 1) & 1)
            for a in range(2): A(mfma(Dj(a, 0), G + 8 * (i & 1), FO + 8 * i + 4 * a, Dj(a, 0)))
            if first:
                for k in range(4):
                    A(f's_add_u32 m0, s48, {(4*i+k)*4096}\ns_add_u32 s47, s61, {(4*i+k)*4096}\nbuffer_load_dwordx4 v1, {s(sWS,4)}, s47 offen sc1 lds')
                A('s_mov_b32 m0, s60')
            A('s_waitcnt lgkmcnt(0)')
            grp(i + 3)
            for a in range(2): A(mfma(Dj(a, 1), G + 8 * (i & 1) + 4, FO + 8 * i + 4 * a, Dj(a, 1)))
    A('s_mov_b32 s63, 0\nLH_gloop:')
    gbody(False)
    A(f"""
    s_add_u32 s63, s63, 1
    s_cmp_lt_u32 s63, 7
    s_cbranch_scc1 LH_gloop
    s_setprio {os.environ.get('MEETP', '0')}
    """)
    A(f"""
    s_lshl_b32 s47, s3, 3
    s_lshl_b32 s61, s44, 1
    s_add_u32 s47, s47, s61
    s_lshl_b32 s47, s47, 7
    s_lshl_b32 s61, s71, 2
    s_add_u32 s47, s47, s61
    s_add_u32 s47, s47, {hx(FH)}
    s_mov_b32 s63, 0
LH_fs:
    buffer_load_dword v241, v250, {s(sWS,4)}, s47 offen sc1
    s_add_u32 s63, s63, 1
    s_waitcnt vmcnt(0)
    v_cmp_ne_u32 vcc, v3, v241
    s_cbranch_vccz LH_fsok
    s_sleep 8
    s_cmp_lt_u32 s63, {SPIN}
    s_cbranch_scc1 LH_fs
LH_fsok:
    s_mov_b32 s62, 0
    """)
    if os.environ.get('XW'):
        A(f's_mov_b32 {s(sWS+2)}, 0x4000000\ns_lshl_b32 s47, s2, 2\ns_add_u32 s47, s47, s44\ns_lshl_b32 s47, s47, 13\ns_add_u32 s47, s47, 0x2800000')
        for i in range(8): A(f'buffer_store_dwordx4 v[88:91], v1, {s(sWS,4)}, s47 offen {os.environ["XW"]}\ns_add_u32 s47, s47, 1024')
    for j in range(1, 4):
        A('s_call_b64 s[8:9], LH_meet')
        for q in range(4): A(f'ds_write_b128 v{4+j}, {v(D+16*j+4*q,4)} offset:{q*1024}')
        A('s_call_b64 s[8:9], LH_meet')
        for q in range(4): A(f'ds_read_b128 {v(D+16*j+4*q,4)}, v4 offset:{q*1024}')
    A(f"""
    s_lshl_b32 s52, s50, 5
    s_lshl_b32 s61, s44, 3
    s_add_u32 s52, s52, s61
    s_lshl_b32 s52, s52, 10
    s_add_u32 s58, s52, {hx(OF)}
    s_xor_b32 s56, s58, 0x8000
    s_add_u32 s57, s56, 4096
    s_add_u32 s59, s58, 4096
    s_mov_b32 s63, 0
    """)
    def send():
        for j in (2,):
            for q in range(4): A(f'ds_write_b128 v{252+j}, {v(D+16*j+4*q,4)} offset:{(j-1)*4096+q*1024}')
        A('s_waitcnt lgkmcnt(0)\ns_barrier')
        for j in range(1, 4):
            for q in range(4): A(f'ds_read_b128 {v(D+16*j+4*q,4)}, v252 offset:{(j-1)*4096+q*1024}')
    A(f"""
    s_mov_b32 s52, -1
    s_waitcnt lgkmcnt(0)
    """)
    stamp(A, 7)
    amp(A, 'ready')
    A('s_barrier')
    amp(A, 'X')
    if os.environ.get('XSL'): A('s_sleep ' + os.environ['XSL'])
    stamp(A, 8)
    for g in range(4):
        A(f'LH_o{g}:')
        for k in range(4 * g, 4 * g + 4):
            A(f'buffer_load_dwordx4 {v(FO+4*k,4)}, v1, {s(sWS,4)}, s{56+g} offen offset:{(k&3)*1024} sc1')
    for g in range(4):
        A(f's_cmp_eq_u32 s52, {g}\ns_cbranch_scc1 LH_c{g}')
    A(f's_mov_b32 s4, {hx(f2u(-LOG2E))}\ns_mov_b32 s5, 1.0')
    for j in range(1, 4):
        for p in range(8): A(f'v_pk_add_f32 {v((D if j < 3 else G)+2*p,2)}, {v(D+2*p,2)}, {v(D+16*j+2*p,2)}')
    for p in range(8): A(f'v_pk_mul_f32 {v(D+2*p,2)}, {v(G+2*p,2)}, s[4:5] op_sel_hi:[1,0]')
    for j in range(16): A(f'v_exp_f32 v{D+j}, v{D+j}')
    for p in range(8): A(f'v_pk_add_f32 {v(D+2*p,2)}, {v(D+2*p,2)}, s[4:5] op_sel:[0,1] op_sel_hi:[1,1]')
    for j in range(16): A(f'v_rcp_f32 v{D+j}, v{D+j}')
    for p in range(8): A(f'v_pk_mul_f32 {v(G+2*p,2)}, {v(D+2*p,2)}, {v(G+2*p,2)}')
    for g in range(4):
        f0 = FO + 16 * g
        a, hh = 1 - (g >> 1), g & 1
        A(f"""
LH_c{g}:
        s_mov_b32 s52, {g}
        s_add_u32 s63, s63, 1
        s_waitcnt vmcnt({12-4*g})
        v_max3_u32 v241, v{f0}, v{f0+4}, v{f0+8}
        v_max_u32 v241, v241, v{f0+12}
        v_cmp_eq_u32 vcc, -1, v241
        s_cbranch_vccz LH_m{g}
        s_sleep {os.environ.get('RSL', '4')}
        s_cmp_lt_u32 s63, {SPIN}
        s_cbranch_scc1 LH_o{g}
LH_m{g}:
        """)
        n = 0
        for b in (1, 0):
            for k in range(4):
                A(mfma(Dj(a, b), WO + 8 * (4 * hh + k) + 4 * b, f0 + 4 * k, None if hh == 0 and k == 0 else Dj(a, b)))
                if g == 2:
                    j, q = (3, 1)[n >> 2], n & 3
                    A(f'ds_write_b128 v{252+j}, {v(D+16*j+4*q,4)} offset:{(j-1)*4096+q*1024}')
                if g == 3: A(f'v_lshlrev_b32 v{T0+2*n}, 16, v{X+n}\nv_and_b32 v{T0+2*n+1}, 0xffff0000, v{X+n}')
                n += 1
    if STAMP and 'st0' not in EXP: A('s_add_u32 s89, s63, s80')
    stamp(A, 10)
    send()
    for j in range(1, 3):
        A(f's_waitcnt lgkmcnt({12-4*j})')
        for p in range(8): A(f'v_pk_add_f32 {v(D+2*p,2)}, {v(D+2*p,2)}, {v(D+16*j+2*p,2)}')
    for q in range(4):
        A(f's_waitcnt lgkmcnt({3-q})')
        for p in (2 * q, 2 * q + 1):
            A(f'v_pk_add_f32 {v(D+2*p,2)}, {v(D+2*p,2)}, {v(D+48+2*p,2)}')
            A(f'v_pk_fma_f32 {v(D+2*p,2)}, {v(D+2*p,2)}, {v(G+2*p,2)}, {v(T0+2*p,2)}')
            A(f'v_cvt_pk_bf16_f32 v{X+p}, v{D+2*p}, v{D+2*p+1}')
        if q & 1: A(f'buffer_store_dwordx4 {v(X+4*(q>>1),4)}, v249, {s(sA,4)}, s54 offen offset:{32*(q>>1)} {os.environ.get("OST", "")}')
    stamp(A, 11)
    stamp_end(A, sWS, sW, 2)
    if AMP:
        amp(A, 'end')
        A(f'''
        s_cmp_lg_u32 {s(sW)}, 4
        s_cbranch_scc1 L_end
        s_memrealtime s[78:79]
        {'s_mov_b32 s97, ' + AMP[3:] if AMP.startswith('fix') else 's_sub_u32 s97, s97, s96'}
        s_waitcnt lgkmcnt(0)
        s_mov_b32 s96, s78
LH_amp:
        s_memrealtime s[78:79]
        s_waitcnt lgkmcnt(0)
        s_sub_u32 s78, s78, s96
        s_cmp_lt_u32 s78, s97
        s_cbranch_scc1 LH_amp
        ''')
    A(f"""
    s_endpgm
LH_meet:
    s_add_u32 s62, s62, 4
    s_mov_b32 s63, 0
    s_waitcnt lgkmcnt(0)
    s_mov_b64 exec, 1
    ds_add_u32 v247, v240
    s_mov_b64 exec, -1
LH_meetw:
    ds_read_b32 v241, v247
    s_add_u32 s63, s63, 1
    s_waitcnt lgkmcnt(0)
    v_cmp_gt_u32 vcc, s62, v241
    s_cbranch_vccz LH_meetok
    s_sleep {os.environ.get('MEETS', '4')}
    s_cmp_lt_u32 s63, {SPIN * 16}
    s_cbranch_scc1 LH_meetw
LH_meetok:
    s_setpc_b64 s[8:9]
LH_kv:
    buffer_load_dwordx4 v1, {s(sWS,4)}, s47 offen sc1 lds
    s_add_u32 m0, m0, 4096
    s_add_u32 s47, s47, 4096
    s_cmp_lt_u32 m0, s48
    s_cbranch_scc1 LH_kv
    s_setpc_b64 s[8:9]
LH_prep:
    v_lshlrev_b32 v1, 4, v0
    v_cmp_gt_u32 vcc, 32, v0
    v_and_b32 v200, 15, v0
    v_and_b32 v201, 1, v0
    s_lshl_b32 s47, {s(sQB)}, 1
    v_add_u32 v201, s47, v201
    s_add_u32 s61, s3, 8
    s_lshr_b32 s62, s3, 1
    s_lshl_b32 s62, s62, 2
    s_add_u32 s62, s62, 3
    v_cndmask_b32 v200, v201, v200, vcc
    v_mov_b32 v201, s3
    v_mov_b32 v202, s62
    v_cndmask_b32 v201, v201, v202, vcc
    v_cmp_gt_u32 vcc, 16, v0
    v_mov_b32 v202, s61
    v_lshrrev_b32 v203, 3, v200
    v_cndmask_b32 v201, v201, v202, vcc
    v_and_b32 v200, 7, v200
    v_lshlrev_b32 v200, 3, v200
    v_lshl_add_u32 v200, v203, 2, v200
    v_lshrrev_b32 v203, 2, v201
    v_add_u32 v200, v200, v203
    v_and_b32 v201, 3, v201
    v_lshl_add_u32 v200, v201, 6, v200
    v_lshlrev_b32 v251, 7, v200
    s_lshl_b32 s61, s44, 12
    s_add_u32 s47, s61, {L_ONES}
    s_add_u32 s61, s61, {L_EX}
    v_and_b32 v204, 11, v0
    v_cmp_eq_u32 vcc, 0, v204
    v_mov_b32 v204, {hx(VONE)}
    v_and_b32 v205, 0x1ff, v1
    v_cndmask_b32 v232, 0, v204, vcc
    v_add_u32 v231, s47, v205
    v_mov_b32 v233, v232
    v_mov_b64 v[234:235], v[232:233]
    v_mov_b32 v240, 1
    v_mov_b32 v247, {L_FLAG}
    v_mov_b64 v[236:237], -1
    v_mov_b64 v[238:239], -1
    s_lshl_b32 s47, s44, 10
    s_add_u32 s47, s47, {L_H}
    v_add_u32 v248, s47, v1
    v_lshrrev_b32 v207, 5, v0
    v_bfe_u32 v204, v0, 4, 1
    v_lshl_add_u32 v204, v204, 2, v207
    v_bfe_u32 v205, v0, 2, 2
    v_lshl_add_u32 v204, v204, 2, v205
    v_and_b32 v205, 3, v0
    v_lshlrev_b32 v205, 8, v205
    v_lshl_add_u32 v204, v204, 3, v205
    v_add_u32 v230, s47, v204
    v_lshrrev_b32 v204, 3, v0
    v_and_b32 v205, 7, v0
    v_and_b32 v206, 2, v204
    v_lshlrev_b32 v206, 1, v206
    v_xor_b32 v205, v205, v206
    v_lshlrev_b32 v205, 4, v205
    v_lshl_add_u32 v242, v204, 10, v205
    s_lshl_b32 s47, s70, 7
    v_add_u32 v242, s47, v242
    v_add_u32 v243, 7168, v242
    v_and_b32 v205, 1, v0
    v_bfe_u32 v204, v0, 1, 1
    v_lshl_add_u32 v205, v205, 1, v204
    v_lshlrev_b32 v205, 3, v205
    v_bfe_u32 v204, v0, 4, 1
    v_lshl_add_u32 v205, v204, 5, v205
    v_bfe_u32 v206, v0, 2, 2
    v_lshl_add_u32 v204, v207, 2, v206
    v_lshl_add_u32 v205, v204, 7, v205
    v_bfe_u32 v204, v0, 3, 1
    v_xor_b32 v204, s45, v204
    v_lshl_add_u32 v205, v204, 6, v205
    v_add_u32 v244, s61, v205
    v_xor_b32 v245, 64, v244
    v_and_b32 v205, 3, v0
    v_lshl_add_u32 v246, v206, 6, v205
    s_lshl_b32 s47, s3, 1
    s_lshr_b32 s62, s71, 1
    s_add_u32 s47, s47, s62
    s_and_b32 s62, s47, 7
    s_lshl_b32 s62, s62, 3
    s_lshr_b32 s47, s47, 3
    s_lshl_b32 s47, s47, 2
    s_add_u32 s47, s47, s62
    v_add_lshl_u32 v246, v246, s47, 7
    v_lshrrev_b32 v204, 4, v0
    v_cmp_eq_u32 vcc, 1, v204
    s_lshl_b32 s47, s44, 2
    s_add_u32 s47, s47, {L_FLAG+16}
    v_cndmask_b32 v246, v246, v251, vcc
    v_mov_b32 v229, s47
    v_bfe_u32 v204, v0, 2, 1
    v_lshl_add_u32 v250, v205, 6, v204
    v_lshlrev_b32 v250, 7, v250
    v_and_b32 v204, 31, v0
    v_lshlrev_b32 v204, 10, v204
    v_lshl_add_u32 v249, v207, 4, v204
    v_mov_b64 v[224:225], 0
    v_mov_b64 v[226:227], 0
    """)
    for j in range(4):
        A(f's_xor_b32 s47, s44, {j}\ns_lshl_b32 s47, s47, 14\nv_add_u32 v{252+j}, s47, v1')
        A(mfma(D + 16 * j, 224, 224, None))
    A(f"""
    s_setpc_b64 s[8:9]
LH_prep2:
    ds_write_b128 v231, v[232:235]
    ds_write_b128 v231, v[232:235] offset:2048
    s_lshl_b32 s60, s44, 12
    s_add_u32 s60, s60, {L_EX}
    """)
    for j in range(4):
        A(f's_xor_b32 s47, s44, {j}\ns_lshl_b32 s47, s47, 12\ns_add_u32 s47, s47, {L_EX}\nv_add_u32 v{4+j}, s47, v1')
    A('s_waitcnt lgkmcnt(0)\nv_mov_b32 v2, v3\ns_setpc_b64 s[8:9]')

def gen_C(A, patterns):
    sDW, sXs, sIt, sF1, sF3, sOne = 48, 49, 50, 72, 73, 76
    A(f"""
L_C:
    v_mov_b64 v[64:65], 0
    v_mov_b64 v[66:67], 0
    """)
    A(patterns)
    A(f"""
    s_waitcnt lgkmcnt(0)
    s_lshl_b32 s47, s46, 9
    s_add_u32 s47, s47, {L_X}
    v_add_u32 v4, s47, v4
    v_mov_b32 v1, v4
    v_add_u32 v2, {2*WST}, v2
    v_add_u32 v3, {2*WST}, v3
    s_mov_b32 {s(sDW)}, {hx(-2*WST)}
    s_mov_b32 {s(sXs)}, 0
    s_mov_b32 {s(sIt)}, 0
    s_lshl_b32 s53, {s(sRB)}, 2
    s_lshl_b32 s47, s46, 1
    s_add_u32 s53, s53, s47
    s_and_b32 s47, {s(sCG)}, 7
    s_lshl_b32 s47, s47, 2
    s_lshl_b32 s61, s45, 1
    s_add_u32 s47, s47, s61
    s_lshl_b32 s47, s47, 6
    s_lshl_b32 s59, s46, 4
    s_add_u32 s59, s59, {s(sRB)}
    s_cmp_lt_u32 {s(sCG)}, 8
    s_cselect_b32 s52, 10, 11
    s_cselect_b32 s61, {hx(QF)}, {hx(KV)}
    s_cselect_b32 s58, {hx(f2u(0.25*LOG2E))}, 1.0
    s_cselect_b32 s53, s53, s59
    s_cselect_b32 s60, 1, 32
    s_add_u32 s47, s47, s53
    s_lshl_b32 s47, s47, s52
    s_add_u32 s62, s47, s61
    s_lshl_b32 s47, s60, s52
    s_add_u32 s64, s62, s47
    s_lshl_b32 s47, 64, s52
    s_add_u32 s63, s62, s47
    s_add_u32 s65, s64, s47
    s_mul_i32 s47, s45, {5*256}
    s_add_u32 s47, s47, {L_CS}
    v_lshl_add_u32 v60, v0, 2, s47
    s_lshl_b32 s47, s46, 9
    s_add_u32 s47, s47, {L_RS}
    v_and_b32 v61, 31, v0
    v_lshl_add_u32 v61, v61, 3, s47
    v_lshlrev_b32 v63, 4, v0
    v_and_b32 v72, 15, v0
    v_and_b32 v73, 16, v0
    v_cmp_eq_u32 vcc, 0, v73
    v_lshlrev_b32 v72, 4, v72
    v_add_u32 v72, {L_ONES-1024}, v72
    v_mov_b32 v73, {NT*2048}
    v_cndmask_b32 v72, v72, v63, vcc
    v_cndmask_b32 v73, 0, v73, vcc
    s_lshl_b32 s47, s44, 12
    s_add_u32 s47, s47, {L_ONES}
    v_add_u32 v74, s47, v63
    s_lshl_b32 s66, {s(sQB)}, 3
    s_lshl_b32 s47, s44, 1
    s_add_u32 s66, s66, s47
    s_lshl_b32 s66, s66, 5
    s_add_u32 s66, s66, {s(sHead)}
    s_lshl_b32 s66, s66, 10
    s_add_u32 s66, s66, {hx(OF)}
    s_add_u32 s67, s66, 0x8000
    s_mov_b32 s54, {hx(f2u(2.0**126))}
    s_mov_b32 s55, {hx(f2u(2.0**-106))}
    s_mov_b32 s56, {hx(f2u(2.0**120))}
    s_mov_b32 s57, 0
    """)
    acc = lambda T, i: 96 + (i * 2 + T) * 16
    for i in range(5):
        for T in range(2): A(mfma(acc(T, i), 64, 64, None))
    FB = lambda f: 8 + 20 * f
    Wf = lambda f, i: FB(f) + 4 * i
    Xf = lambda f, T: FB(f) + 12 + 4 * T
    def reads(f, q, withA):
        st, ks = (q >> 1) & 1, q & 1
        r = [f'ds_read_b128 {v(Xf(f,T),4)}, v1 offset:{T*128+(q&3)*32}' for T in range(2)]
        for u in range(2):
            for rd in range(2):
                r.append(f'ds_read_b64_tr_b16 {v(Wf(f,1+u)+2*rd,2)}, v2 offset:{st*WST+(4*ks+rd)*128+u*32}')
        if withA:
            for rd in range(2):
                r.append(f'ds_read_b64_tr_b16 {v(Wf(f,0)+2*rd,2)}, v3 offset:{st*WST+(4*ks+rd)*128}')
        return r
    def kloop(label, withA, adv, lim, tr0):
        for r in reads(0, 0, withA): A(r)
        A(label + ':')
        for q in range(4):
            f = q & 1
            rr = reads(f ^ 1, q + 1, withA)
            A('s_waitcnt lgkmcnt(0)')
            if q & 1: A('s_barrier')
            tiles = [(1, 1), (2, 2), (0, 0)] if withA else [(1, 3), (2, 4)]
            ms = [mfma(acc(T, ai), Wf(f, wi), Xf(f, T), acc(T, ai)) for (wi, ai) in tiles for T in range(2)]
            k = 0
            for m in range(len(ms)):
                A(ms[m])
                for _ in range(3):
                    if k < len(rr): A(rr[k]); k += 1
                if q == 2 and m == len(ms) - 1: A(adv)
                if q == 3 and m == len(ms) - 2: A(f's_add_u32 {s(sIt)}, {s(sIt)}, 1')
                if q == 3 and m == len(ms) - 1 and not STAMP: A(f's_cmp_lt_u32 {s(sIt)}, {lim}')
            assert k == len(rr)
        if STAMP:
            A(f'{TM} s[78:79]\ns_add_u32 m0, {s(sIt)}, {tr0}\ns_waitcnt lgkmcnt(0)\nv_writelane_b32 v79, s78, m0\ns_cmp_lt_u32 {s(sIt)}, {lim}')
        A(f's_cbranch_scc1 {label}')
    A(f"""
    s_mul_i32 s47, s44, {WST}
    s_add_u32 s47, s47, {2*WST+2*PAN}
    v_and_b32 v75, 31, v0
    v_mul_u32_u24 v76, 288, v7
    v_lshl_add_u32 v75, v75, 3, v76
    v_add_u32 v75, s47, v75
    v_lshlrev_b32 v76, 2, v5
    v_add_u32 v76, v76, v7
    v_lshl_add_u32 v76, v76, 2, v6
    v_and_b32 v77, 3, v0
    v_mul_u32_u24 v77, 288, v77
    v_lshl_add_u32 v76, v76, 3, v77
    v_add_u32 v76, s47, v76
    s_and_b32 s47, s3, 3
    s_lshl_b32 s47, s47, 2
    s_add_u32 s47, s47, s45
    s_lshl_b32 s47, s47, 7
    s_add_u32 s47, s47, s59
    s_lshl_b32 s47, s47, 11
    s_add_u32 s8, s47, {hx(KV)}
    s_add_u32 s9, s8, {4*64*2048}
    s_add_u32 s10, s8, {64*2048}
    s_add_u32 s11, s8, {5*64*2048}
    s_lshl_b32 s47, s44, 10
    s_add_u32 s47, s47, {L_H}
    v_add_u32 v77, s47, v63
    v_subrev_u32 v62, {2*WST}, v2
    v_mov_b32 v49, 0
    v_mov_b64 v[50:51], 0
    """)
    stamp(A, 1)
    A('s_barrier')
    stamp(A, 2)
    for r in reads(0, 0, True): A(r)
    eread = lambda q: ([f'ds_read_b128 {v(Xf(q&1,T),4)}, v4 offset:{T*128+q*32}' for T in range(2)] +
                       [f'ds_read_b64_tr_b16 {v(Wf(q&1,1+u)+2*rd,2)}, v62 offset:{(4+(q>>1))*WST+(4*(q&1)+rd)*128+u*32}' for u in range(2) for rd in range(2)])
    for q in range(8):
        f = q & 1
        rr = reads(f ^ 1, q + 1, True) if q < 3 else eread(q - 3) if 3 < q < 7 else []
        if q == 4:
            A('s_barrier')
            for r in eread(0): A(r)
        A('s_waitcnt lgkmcnt(0)')
        if q == 1: A('s_barrier')
        for wi, ai in ([(1, 1), (2, 2), (0, 0)] if q < 4 else [(1, 3), (2, 4)]):
            for T in range(2):
                A(mfma(acc(T, ai), Wf(f, wi), Xf(f, T), acc(T, ai)))
                for _ in range(3):
                    if rr: A(rr.pop(0))
    A(f"""
    v_add_u32 v2, {s(sDW)}, v2
    v_add_u32 v3, {s(sDW)}, v3
    s_mov_b32 {s(sXs)}, {XST}
    s_sub_u32 {s(sDW)}, 0, {s(sDW)}
    v_add_u32 v1, {s(sXs)}, v4
    s_mov_b32 {s(sIt)}, 1
    s_barrier
    """)
    kloop('LC_loopA', True, f"""
        v_add_u32 v2, {s(sDW)}, v2
        v_add_u32 v3, {s(sDW)}, v3
        s_add_u32 {s(sXs)}, {s(sXs)}, {XST}
        s_cmp_ge_u32 {s(sXs)}, {4*XST}
        s_cselect_b32 {s(sXs)}, 0, {s(sXs)}
        s_sub_u32 {s(sDW)}, 0, {s(sDW)}
        v_add_u32 v1, {s(sXs)}, v4
        """, '8', 15)
    if XB: A('s_barrier')
    A("""
    s_waitcnt lgkmcnt(0)
    ds_read_b64 v[68:69], v61
    ds_read_b64 v[70:71], v61 offset:256
    """)
    CO = lambda i: 8 + 4 * i
    for i in range(5): A(f'ds_read_b32 v{CO(i)}, v60 offset:{i*256}')
    for i in range(5): A(f'v_mov_b32 v{CO(i)+1}, 0\nv_mov_b64 {v(CO(i)+2,2)}, 0')
    A('s_waitcnt lgkmcnt(5)\nv_mov_b32 v64, v68\nv_mov_b32 v48, v70')
    K0 = -2.0 * math.sqrt(2.0 / math.pi) * LOG2E
    K1c = K0 * 0.044715
    A('v_rcp_f32 v84, v69\nv_rcp_f32 v92, v71\ns_waitcnt lgkmcnt(0)')
    def readsB(q):
        f, it = (q + 1) & 1, q >> 2
        wo = ((4 - 2 * (it % 3)) + ((q >> 1) & 1)) * WST + 4 * (q & 1) * 128
        r = [f'ds_read_b128 {v(Xf(f,T),4)}, v4 offset:{((3-it)&3)*XST+T*128+(q&3)*32}' for T in range(2)]
        for u in range(2):
            for rd in range(2):
                r.append(f'ds_read_b64_tr_b16 {v(Wf(f,1+u)+2*rd,2)}, v62 offset:{wo+rd*128+u*32}')
        return r
    cst = []
    for T in range(2):
        b = 80 + 8 * T
        cst += [f'v_mul_f32 v{b+3}, s58, v{b+4}', f'v_mul_f32 v{b+2}, v{69+2*T}, v{69+2*T}', f'v_mul_f32 v{b+1}, {hx(f2u(K0))}, v{b+4}',
                f'v_mul_f32 v{b}, v{b+4}, v{b+4}', f'v_mul_f32 v{b}, v{b}, v{b+4}', f'v_mul_f32 v{b}, {hx(f2u(K1c))}, v{b}',
                f'v_mul_f32 v{b+5}, {hx(f2u(2.0**VSC))}, v{b+4}']
    def atile(T, hd):
        a = acc(T, 0) + 8 * hd
        return ([f'v_mul_f32 v{a+j}, v{83+8*T}, v{a+j}' for j in range(8)] + [f'v_cvt_pk_bf16_f32 v{a+p}, v{a+2*p}, v{a+2*p+1}' for p in range(4)]
                + [f'buffer_store_dwordx4 {v(a,4)}, v63, {s(sWS,4)}, s{62+2*T+hd} offen sc1'])
    fill = readsB(0) + cst + atile(0, 0) + atile(0, 1)
    for i in range(5):
        for T in range(2):
            A(mfma(acc(T, i), CO(i), (64, 48)[T], acc(T, i)))
            for _ in range(5 if i or T else 6):
                if fill: A(fill.pop(0))
    assert not fill
    def geglu_plain(T, u):
        a, b, t, r = acc(T, 1 + u), 80 + 8 * T, 52, []
        for h4 in (0, 4):
            J = range(h4, h4 + 4)
            r += [f'v_mul_f32 v{t+j}, v{a+j}, v{a+j}' for j in J] + [f'v_fma_f32 v{t+j}, v{t+j}, v{b}, v{b+1}' for j in J]
            r += [f'v_mul_f32 v{t+j}, v{t+j}, v{a+j}' for j in J] + [f'v_exp_f32 v{t+j}, v{t+j}' for j in J]
            r += [f'v_mul_f32 v{a+j}, v{a+j}, v{a+8+j}' for j in J] + [f'v_fma_f32 v{t+j}, v{t+j}, v{b+2}, v{b+2}' for j in J]
            r += [f'v_rcp_f32 v{t+j}, v{t+j}' for j in J] + [f'v_mul_f32 v{a+j}, v{a+j}, v{t+j}' for j in J]
            r += [f'v_cvt_pk_bf16_f32 v{a+8+p}, v{a+2*p}, v{a+2*p+1}' for p in (h4 // 2, h4 // 2 + 1)]
        return r
    def vtile(T, u):
        a = acc(T, 1 + u)
        r = [f'v_mul_f32 v{a+j}, v{85+8*T}, v{a+j}' for j in range(16)]
        r += [f'v_cvt_pk_bf16_f32 v{a+p}, v{a+2*p}, v{a+2*p+1}' for p in range(8)]
        wr, rd, st = [], [], []
        for hd in range(2):
            o = hd * 1152
            wr.append(f'ds_write2_b64 v75, {v(a+4*hd,2)}, {v(a+4*hd+2,2)} offset0:{o//8} offset1:{(o+576)//8}')
            rd += [f'ds_read_b64_tr_b16 {v(a+8+4*hd,2)}, v76 offset:{o}', f'ds_read_b64_tr_b16 {v(a+8+4*hd+2,2)}, v76 offset:{o+64}']
            st.append((f's_add_u32 s{8+2*u+hd}, s{8+2*u+hd}, 65536\n' if T else '') +
                      f'buffer_store_dwordx4 {v(a+8+4*hd,4)}, v63, {s(sWS,4)}, s{8+2*u+hd} offen offset:1024 sc1')
        return r + [('lds', wr + rd, st)]
    cost = lambda t: 8 if t.startswith(('v_exp', 'v_rcp')) else 4
    STM = int(os.environ.get('STM', '3'))
    STN, STH = [int(t) for t in os.environ.get('STV', '1,0').split(',')]
    def passB(side, ack, budget, late=()):
        side = list(side)
        stores, lds, pend = [], [], 0
        for q in range(28):
            f = (q + 1) & 1
            rr = readsB(q + 1) if q < 27 else []
            if q == 4 * ack - 1: assert not stores and not lds and not any(isinstance(t, tuple) or t.startswith('buffer') for t in side), q
            A(f's_waitcnt lgkmcnt({pend})' + (' vmcnt(0)' if q == 4 * ack + 1 else ''))
            pend = 0
            if q == 4 * ack - 1: side += late
            if q & 1: A('s_barrier')
            for m in range(4):
                A(mfma(acc(m & 1, 3 + (m >> 1)), Wf(f, 1 + (m >> 1)), Xf(f, m & 1), acc(m & 1, 3 + (m >> 1))))
                for _ in range(3):
                    if rr: A(rr.pop(0))
                left = budget[m]
                if m == 2 and lds:
                    _, ops_, st = lds.pop(0)
                    if 'xds' in EXP: ops_ = []
                    for t in ops_: A(t)
                    pend = len(ops_); left = 0
                    stores += [(q + 2, t) for t in st]
                for _ in range(STN if late else 1):
                    if m == STM and (q >= STH or not late):
                        rdy = [x for x in stores if x[0] <= q]
                        if rdy:
                            stores.remove(rdy[0])
                            if 'xst' not in EXP: A(rdy[0][1])
                            left -= 12
                while side and (isinstance(side[0], tuple) or side[0].startswith('buffer') or left >= cost(side[0])):
                    t = side.pop(0)
                    if isinstance(t, tuple): lds.append(t)
                    elif t.startswith('buffer'): stores.append((q + (m >= STM), t))
                    else: left -= cost(t); A(t)
            if STAMP and 'trb' in EXP and q & 3 == 3:
                A(f'{TM} s[78:79]\ns_waitcnt lgkmcnt(0)\nv_writelane_b32 v79, s78, {24+(q>>2)}')
        assert not side and not stores and not lds, len(side)
    BUD = [int(t) for t in os.environ.get('BUD', '8,8,20,20').split(',')]
    stamp(A, 3)
    A(f's_cmp_eq_u32 s71, {os.environ.get("VJ", "3")}\ns_cbranch_scc1 LC_Bv')
    passB(atile(1, 0) + atile(1, 1) + sum((geglu_plain(T, u) for T in range(2) for u in range(2)), []), F1N, BUD)
    for n in range(4): A(f'ds_write_b128 v77, {v(acc(n>>1,1+(n&1))+8,4)} offset:{n*4096}')
    A('LC_g4:\nv_mov_b32 v1, v63\ns_nop 6')
    stamp(A, 4)
    for u in range(2):
        TT = [(acc(T, 3 + u), 80 + 8 * T, 8 + 8 * T) for T in range(2)]
        for a, b, t in TT:
            for p in range(4): A(f'v_pk_mul_f32 {v(t+2*p,2)}, {v(a+2*p,2)}, {v(a+2*p,2)}')
        for a, b, t in TT:
            for p in range(4): A(f'v_pk_fma_f32 {v(t+2*p,2)}, {v(t+2*p,2)}, {v(b,2)}, {v(b,2)} op_sel:[0,0,1] op_sel_hi:[1,0,1]')
        for a, b, t in TT:
            for p in range(4): A(f'v_pk_mul_f32 {v(t+2*p,2)}, {v(t+2*p,2)}, {v(a+2*p,2)}')
        for a, b, t in TT:
            for j in range(8): A(f'v_exp_f32 v{t+j}, v{t+j}')
        for a, b, t in TT:
            for p in range(4): A(f'v_pk_mul_f32 {v(a+2*p,2)}, {v(a+2*p,2)}, {v(a+8+2*p,2)}')
        for a, b, t in TT:
            for p in range(4): A(f'v_pk_fma_f32 {v(t+2*p,2)}, {v(t+2*p,2)}, {v(b+2,2)}, {v(b+2,2)} op_sel:[0,0,0] op_sel_hi:[1,0,0]')
        for a, b, t in TT:
            for j in range(8): A(f'v_rcp_f32 v{t+j}, v{t+j}')
        for a, b, t in TT:
            for p in range(4): A(f'v_pk_mul_f32 {v(a+2*p,2)}, {v(a+2*p,2)}, {v(t+2*p,2)}')
        for T, (a, b, t) in enumerate(TT):
            for p in range(4): A(f'v_cvt_pk_bf16_f32 v{a+8+p}, v{a+2*p}, v{a+2*p+1}')
            A(f'ds_write_b128 v77, {v(a+8,4)} offset:{(4+2*T+u)*4096}')
    def vvariant():
        A('LC_Bv:')
        passB({'a': vtile(0, 0) + atile(1, 0) + vtile(0, 1) + atile(1, 1), 'b': vtile(0, 0) + vtile(0, 1) + atile(1, 0) + atile(1, 1)}[os.environ.get('VORD', 'a')], F1B, [int(t) for t in os.environ.get('BUDV', '12,12,24,24').split(',')], vtile(1, 0)[:-1] + vtile(1, 1)[:-1])
        A('v_lshrrev_b32 v75, 1, v63\nv_sub_u32 v75, v77, v75')
        for n in range(4):
            a = acc(1, 1 + (n >> 1)) + 4 * (n & 1)
            A(f'ds_write2st64_b64 v75, {v(a,2)}, {v(a+2,2)} offset0:{n*8} offset1:{n*8+1}')
        A('s_branch LC_g4')
    QA, QB, CA, CB, OA, OB, SA, SB, PA, PB = 8, 12, 16, 32, 48, 64, 80, 96, 112, 120
    KF = lambda b: 128 + 4 * b
    VF = lambda j: 136 + 4 * j
    A('LC_att:')
    if STAMP: A('v_mov_b32 v144, v79')
    stamp(A, 5)
    A('s_waitcnt lgkmcnt(0)')
    stamp(A, 6)
    A('s_barrier')
    stamp(A, 7)
    A(f"""
    ds_read_b128 {v(QA,4)}, v74 offset:512
    ds_read_b128 {v(KF(0),4)}, v1
    ds_read_b128 {v(KF(1),4)}, v1 offset:2048
    ds_read_b128 {v(QB,4)}, v74 offset:2560
    v_mov_b32 v2, v1
    v_mov_b32 v3, v72
    v_mov_b32 v4, v73
    s_mov_b32 {s(sIt)}, 0
    v_mov_b32 v5, {L_FLAG+16}
    """)
    for j in range(0, 8, 2): A(f'v_mov_b64 {v(VF(0)+j,2)}, 0')
    for j in range(0, 8, 2): A(f'v_mov_b64 {v(PB+j,2)}, 0')
    A('s_waitcnt lgkmcnt(2)')
    A(mfma(SA, KF(0), QA, None))
    A('s_waitcnt lgkmcnt(1)')
    A(mfma(OA, KF(1), QA, None))
    A('s_waitcnt lgkmcnt(0)')
    A(mfma(SB, KF(0), QB, None))
    A(mfma(OB, KF(1), QB, None))
    A('s_nop 6')
    for (S, O, C) in ((SA, OA, CA), (SB, OB, CB)):
        A(f'v_max3_f32 v{C}, v{S}, v{S+1}, v{S+2}\nv_max3_f32 v{C+1}, v{S+3}, v{S+4}, v{S+5}')
        src = [S + j for j in range(6, 16)] + [O + j for j in range(16)]
        for i in range(0, 26, 2): A(f'v_max3_f32 v{C+((i>>1)&1)}, v{C+((i>>1)&1)}, v{src[i]}, v{src[i+1]}')
        A(f'v_mov_b64 {v(O,2)}, 0')
        A(f'v_max_f32 v{C}, v{C}, v{C+1}')
        A(f'v_mov_b32 v{C+1}, v{C}')
        A(f'v_mov_b64 {v(O+2,2)}, 0\nv_mov_b64 {v(O+4,2)}, 0')
        A(f'v_permlane32_swap_b32 v{C}, v{C+1}')
        A(f'v_max_f32 v{C}, v{C}, v{C+1}')
        A(f'v_sub_f32 v{C+1}, {hx(f2u(-BIAS))}, v{C}')
        A(f'v_sub_f32 v{C}, {hx(f2u(-BIAS))}, v{C}')
        for j in range(2, 16, 2): A(f'v_mov_b64 {v(C+j,2)}, {v(C,2)}')
        A(f'v_mov_b64 {v(O+6,2)}, 0\nv_mov_b64 {v(O+8,2)}, 0')
        if S == SA: A(mfma(SA, KF(0), QA, CA))
    stamp(A, 8)
    if 'clk' in EXP: stamp(A, 9, True)
    E = lambda S, j: A(f'v_exp_f32 v{S+j}, v{S+j}')
    Cv = lambda S, P, p: A(f'v_cvt_pk_bf16_f32 v{P+p}, v{S+2*p}, v{S+2*p+1}')
    ORD = {'even': 'm0 e0 e1 e2 e3 e4 c0 c1 m1 e5 e6 c2 e7 e8 c3 e9 e10 c4 m2 e11 e12 c5 e13 e14 e15 c6 c7',
           'tight': 'm0 e0 e1 e2 m1 e3 e4 e5 m2 c0 c1 c2 e6 e7 e8 c3 e9 e10 c4 e11 e12 c5 e13 e14 e15 c6 c7',
           'mid': 'm0 e0 e1 e2 c0 m1 e3 e4 e5 c1 m2 c2 e6 e7 e8 c3 e9 e10 c4 e11 e12 c5 e13 e14 e15 c6 c7',
           'two': 'm0 e0 e1 e2 m1 e3 e4 e5 c0 c1 e6 e7 c2 e8 e9 c3 m2 e10 c4 e11 e12 c5 e13 e14 e15 c6 c7'}[os.environ.get('ORD', 'tight')].split()
    def phase(S, P, *m):
        for t in ORD:
            if t[0] == 'm':
                mm = m[int(t[1])]
                if ('nopv' in EXP and t[1] != '0') or ('noqk' in EXP and t[1] == '0'): mm = 's_nop 0\ns_nop 0\n' + '\n'.join(mm.split('\n')[1:])
                A(mm)
            elif t[0] == 'e' and 'noexp' in EXP: A('s_nop 1')
            elif t[0] == 'e': E(S, int(t[1:]))
            else: Cv(S, P, int(t[1:]))
    if os.environ.get('CPRIO'): A('s_setprio ' + os.environ['CPRIO'])
    if 'smf' in EXP:
        A('v_mov_b32 v152, 0x44444444\nv_and_b32 v153, 12, v0\nv_cmp_eq_u32 vcc, 0, v153\nv_mov_b32 v153, 0x3f803f80\ns_nop 1')
        for j in range(4): A(f'v_cndmask_b32 v{VF(1)+j}, 0, v153, vcc\nv_mov_b32 v{156+j}, 0\nv_mov_b32 v{160+j}, 0')
    A('s_nop 0\n.p2align 3\nLA_loop:')
    for t in range(NT):
        kb = t & 1
        o = t * 2048
        if 'smf' in EXP:
            sm = lambda O, P: f'v_smfmac_f32_32x32x32_bf16 {v(O,16)}, {v(VF(0),4)}, {v(P,8)}, v152'
            sl = lambda L, P: f'v_smfmac_f32_16x16x64_bf16 {v(L,4)}, {v(VF(1),4)}, {v(P,8)}, v152' if 'smf1' not in EXP else 's_nop 0'
            tail = ''
            if t == NT - 3: tail = f'\ns_add_u32 {s(sIt)}, {s(sIt)}, 1'
            if t == NT - 2: tail = '\nds_read_b128 v[148:151], v5'
            if t == NT - 1: tail = (f'\nv_add_u32 v2, {NT*2048}, v2\nv_min3_u32 v148, v148, v149, v150\nv_min_u32 v148, v148, v151'
                                    f'\nv_cmp_lt_u32 vcc, {s(sIt)}, v148')
            phase(SA, PA, mfma(SB, KF(kb), QB, CB) + f'\nds_read_b128 {v(KF(kb),4)}, v2 offset:{o+4096}',
                  sm(OB, PB) + f'\nds_read_b128 {v(VF(0),4)}, v2 offset:{o+1024}', sl(156, PB))
            phase(SB, PB, mfma(SA, KF(kb ^ 1), QA, CA) + '\ns_waitcnt lgkmcnt(0)', sm(OA, PA), sl(160, PA) + tail)
            continue
        phase(SA, PA,
              mfma(SB, KF(kb), QB, CB) + f'\nds_read_b128 {v(KF(kb),4)}, v2 offset:{o+4096}',
              mfma(OB, VF(0), PB, OB) + f'\nds_read_b128 {v(VF(0),4)}, v3 offset:{o+1024}',
              mfma(OB, VF(1), PB + 4, OB) + f'\nds_read_b128 {v(VF(1),4)}, v3 offset:{o+1280}')
        tail = ''
        if t == NT - 3: tail = f'\ns_add_u32 {s(sIt)}, {s(sIt)}, 1'
        if t == NT - 2: tail = '\nds_read_b128 v[148:151], v5'
        if t == NT - 1: tail = (f'\nv_add_u32 v2, {NT*2048}, v2\nv_add_u32 v3, v4, v3\nv_min3_u32 v148, v148, v149, v150\nv_min_u32 v148, v148, v151'
                                f'\nv_cmp_lt_u32 vcc, {s(sIt)}, v148')
        phase(SB, PB,
              mfma(SA, KF(kb ^ 1), QA, CA) + '\ns_waitcnt lgkmcnt(1)',
              mfma(OA, VF(0), PA, OA) + '\ns_waitcnt lgkmcnt(0)',
              mfma(OA, VF(1), PA + 4, OA) + tail)
    if STAMP and 'atr' in EXP:
        A(f's_memtime s[78:79]\ns_add_u32 m0, {s(sIt)}, 15\ns_waitcnt lgkmcnt(0)\nv_writelane_b32 v144, s78, m0')
    A(f'''
    s_cbranch_vccnz LA_loop
    s_cmp_eq_u32 {s(sIt)}, {64//NT}
    s_cbranch_scc1 LA_fini
    s_mov_b32 s47, 0
LA_kvw:
    ds_read_b128 v[148:151], v5
    s_add_u32 s47, s47, 1
    s_waitcnt lgkmcnt(0)
    v_min3_u32 v148, v148, v149, v150
    v_min_u32 v148, v148, v151
    v_cmp_lt_u32 vcc, {s(sIt)}, v148
    s_cbranch_vccnz LA_loop
    s_cmp_lt_u32 s47, {SPIN * 16}
    s_cbranch_scc1 LA_kvw
    s_branch LA_loop
LA_fini:''')
    A(mfma(OB, VF(0), PB, OB))
    A(mfma(OB, VF(1), PB + 4, OB))
    stamp(A, 11)
    if 'clk' in EXP:
        stamp(A, 10, True)
        A('s_sub_u32 s90, s90, s89\ns_add_u32 s90, s90, s80\ns_mov_b32 s89, 0')
    def fin(O, P, T, off, bad):
        A(f'v_rcp_f32 v{T+8}, v{O+8}')
        A(f'v_add_f32 v{T+9}, |v{O}|, |v{O+1}|\nv_add_f32 v{T+10}, |v{O+2}|, |v{O+3}|\nv_add_f32 v{T+11}, |v{O+4}|, |v{O+5}|\nv_add_f32 v{T+12}, |v{O+6}|, |v{O+7}|')
        A(f'v_cmp_gt_f32 s[60:61], s56, v{O+8}')
        A(f'v_add_f32 v{T+9}, v{T+9}, v{T+10}\nv_add_f32 v{T+11}, v{T+11}, v{T+12}')
        A(f'v_mul_f32 v{T}, v{O}, v{T+8}\nv_add_f32 v{T+9}, v{T+9}, v{T+11}\nv_mul_f32 v{T+1}, v{O+1}, v{T+8}')
        A(f'v_cmp_gt_f32 vcc, s54, v{T+9}\nv_cmp_lt_f32 s[58:59], s55, v{T+9}')
        for j in range(2, 8): A(f'v_mul_f32 v{T+j}, v{O+j}, v{T+8}')
        A('s_and_b64 vcc, vcc, s[60:61]')
        for p in range(4): A(f'v_cvt_pk_bf16_f32 v{P+p}, v{T+2*p}, v{T+2*p+1}')
        A(f"""
        s_and_b64 vcc, vcc, s[58:59]
        v_min_u32 v{P}, -2, v{P}
        s_cmp_eq_u64 vcc, -1
        s_cbranch_scc0 {bad}
        buffer_store_dwordx4 {v(P,4)}, v1, {s(sWS,4)}, {off} offen sc1
        """)
    A('LA_fin:')
    fin(OA, PA, SA, 's66', 'LA_fallback')
    A('LA_finb:')
    fin(OB, PB, SB, 's67', 'LA_fallb')
    A('LA_done:')
    if 'noxb' not in EXP: A('s_barrier')
    stamp(A, 12)
    stamp_end(A, sWS, sW, tr=144)
    A('s_endpgm')
    A('LA_fallb:\ns_mov_b32 s57, 1\ns_mov_b32 s66, s67')
    for j in range(0, 4, 2): A(f'v_mov_b64 {v(QA+j,2)}, {v(QB+j,2)}')
    A(f'''
LA_fallback:
    v_mov_b32 v{CA}, 0xff800000
    v_mov_b32 v2, v1
    s_mov_b32 {s(sIt)}, 0
LA_fb1:
    ds_read_b128 {v(KF(0),4)}, v2
    v_add_u32 v2, 0x800, v2
    s_waitcnt lgkmcnt(0)
    ''')
    A(mfma(SA, KF(0), QA, None))
    A('s_nop 11')
    for j in range(0, 16, 2): A(f'v_max3_f32 v{CA}, v{CA}, v{SA+j}, v{SA+j+1}')
    A(f'''
    s_add_u32 {s(sIt)}, {s(sIt)}, 1
    s_cmp_lt_u32 {s(sIt)}, 64
    s_cbranch_scc1 LA_fb1
    v_mov_b32 v{CA+1}, v{CA}
    v_cmp_eq_u32 vcc, 0, v4
    v_lshrrev_b32 v6, {NT.bit_length()-1}, v4
    v_permlane32_swap_b32 v{CA}, v{CA+1}
    v_max_f32 v{CA}, v{CA}, v{CA+1}
    v_sub_f32 v{CA}, 0, v{CA}
    v_cndmask_b32 v3, v1, v3, vcc
    ''')
    for j in range(1, 16): A(f'v_mov_b32 v{CA+j}, v{CA}')
    for j in range(0, 16, 2): A(f'v_mov_b64 {v(OA+j,2)}, 0')
    A(f'''
    v_mov_b32 v2, v1
    s_mov_b32 {s(sIt)}, 0
LA_fb2:
    ds_read_b128 {v(KF(0),4)}, v2
    ds_read_b128 {v(VF(0),4)}, v3 offset:1024
    ds_read_b128 {v(VF(1),4)}, v3 offset:1280
    v_add_u32 v2, 0x800, v2
    v_add_u32 v3, v6, v3
    s_waitcnt lgkmcnt(0)
    ''')
    A(mfma(SA, KF(0), QA, CA))
    A('s_nop 11')
    for j in range(16): E(SA, j)
    A('s_nop 0')
    for p in range(8): Cv(SA, PA, p)
    A('s_nop 1')
    A(mfma(OA, VF(0), PA, OA)); A(mfma(OA, VF(1), PA + 4, OA))
    A(f'''
    s_add_u32 {s(sIt)}, {s(sIt)}, 1
    s_cmp_lt_u32 {s(sIt)}, 64
    s_cbranch_scc1 LA_fb2
    s_nop 11
    v_rcp_f32 v{OA+8}, v{OA+8}
    s_nop 0
    ''')
    for j in range(8): A(f'v_mul_f32 v{OA+j}, v{OA+j}, v{OA+8}')
    for p in range(4): A(f'v_cvt_pk_bf16_f32 v{PA+p}, v{OA+2*p}, v{OA+2*p+1}')
    A(f'''
    v_min_u32 v{PA}, -2, v{PA}
    buffer_store_dwordx4 {v(PA,4)}, v1, {s(sWS,4)}, s66 offen sc1
    s_cmp_eq_u32 s57, 1
    s_cbranch_scc1 LA_done
    s_branch LA_finb
    ''')
    vvariant()

def main(out):
    A = Asm()
    top = f'''; out = x + (MHA(LN x) @ wo) * silu(GEGLU-FFN(LN x)); one persistent launch, 256 workgroups (generated by gen/gen9.py)
; kernarg: x 0, wqkv 8, wo 16, (B_x 24 unused), gate 32, up 40, down 48, out 56, debug 64, ws 72
; @launch grid=(256,1,1) block=(512,1,1) lds={LDS_BYTES}
.amdgcn_target "amdgcn-amd-amdhsa--gfx950"
.text
'''
    gen(A)
    tail = f'''.section .rodata,"a"
.p2align 6
.amdhsa_kernel {NAME}_kernel
  .amdhsa_next_free_vgpr 256
  .amdhsa_next_free_sgpr 100
  .amdhsa_accum_offset 256
  .amdhsa_group_segment_fixed_size 0
  .amdhsa_kernarg_size 80
  .amdhsa_user_sgpr_count 2
  .amdhsa_user_sgpr_kernarg_segment_ptr 1
  .amdhsa_system_sgpr_workgroup_id_x 1
.end_amdhsa_kernel
'''
    open(out, 'w').write(top + A.text() + tail)

if __name__ == '__main__':
    main(sys.argv[1] if len(sys.argv) > 1 else 'cdna_kernels/%s.s' % NAME)
```

```python
import struct, sys, math, os, re

NOTES = {'L_L': 'waves 4,5: LDS-DMA loaders of x / weight tiles (pass A: q|k unit + one line pair, pass B: second pair, K walked backwards)', 'L_M': 'waves 6,7: LayerNorm statistics (row sums, weight column sums): partials exchanged between workgroups as nonce-tagged 16B granules', 'LH_join': 'waves 4-7 during attention: publish h, stream K/V into LDS, down projection (K quarter per wave), then o @ wo and the output', 'L_C': 'waves 0-3: x @ [wqkv|gate|up] on MFMA, LayerNorm folded in as rstd*(acc - mean*colsum), GEGLU, then attention', 'LC_att': 'softmax reference = max over the first 64 keys + 104 (log2 units); checked at the end, exact two-pass redo with the true max if unsafe', 'LA_fin': 'guard: row sum and |o| must be finite, below 2^120 / 2^126 and clear of underflow, else redo with the true row max', 'LA_fallback': 'exact path: pass 1 true row max over all keys, pass 2 exp2(s - max) and P@V'}
NAME = 'recurrent_scan__mha_block__glu_gated_geglu__prompt'
def f2u(x): return struct.unpack('<I', struct.pack('<f', x))[0]
def hx(x): return '0x%x' % (x & 0xffffffff)
class Asm:
    def __init__(self): self.l = []; self.shift = 0
    def __call__(self, s):
        if self.shift:
            f = lambda n: str(int(n) + self.shift) if 8 <= int(n) < 100 else n
            s = re.sub(r'\bv(\d+)\b', lambda m: 'v' + f(m.group(1)), s)
            s = re.sub(r'\bv\[(\d+):(\d+)\]', lambda m: 'v[%s:%s]' % (f(m.group(1)), f(m.group(2))), s)
        for line in s.split('\n'):
            line = line.strip()
            if not line: continue
            self.l.append(line if line.endswith(':') or line.startswith('.') else '    ' + line)
    def text(self):
        return '\n'.join(('; ' + NOTES[x[:-1]] + '\n' + x) if x[:-1] in NOTES else x for x in self.l) + '\n'
def v(a, n=1): return 'v%d' % a if n == 1 else 'v[%d:%d]' % (a, a + n - 1)
def s(a, n=1): return 's%d' % a if n == 1 else 's[%d:%d]' % (a, a + n - 1)
def mfma(d, a, b, c):
    return 'v_mfma_f32_32x32x16_bf16 %s, %s, %s, %s' % (v(d, 16), v(a, 4), v(b, 4), '0' if c is None else v(c, 16))

QF  = 0x000000
KV  = 0x200000
HF  = 0x600000
OF  = 0xD00000
CSP = 0x1200000
RSP = 0x1280000
FL  = 0x13C0000
FH  = 0x13C8000
NW  = 0x13D0000
STB = 0x1400000
WS_BYTES = 0x1500000
LOG2E = 1.4426950408889634
ONES = 0x3f803f80
VSC = 12
VONE = ((127 + VSC) << 7) * 0x10001
SPIN = 1 << 18

LIGHT = os.environ.get('STAMP') == '2'
STAMP = os.environ.get('STAMP') == '1'
EXP = set(os.environ.get('EXP', '').split(','))
BIAS = float(os.environ.get('BIAS', '104'))
NFL = int(os.environ.get('NFL', '4'))

TM = 's_memrealtime' if os.environ.get('RT') else 's_memtime'
_seen = set()
def stamp(A, idx, real=False):
    if 'frozen' in EXP and idx in (5, 6, 7, 8, 9, 10, 11, 12) and not any('L_C:' == x for x in A.l): return
    if not STAMP and not (LIGHT and idx in (0, 13, 14, 15)): return
    if 'e1' in EXP and A.l and any('L_C:' == x for x in A.l):
        if idx in _seen: return
        _seen.add(idx)
    A('%s s[78:79]\ns_waitcnt lgkmcnt(0)\ns_mov_b32 s%d, s78' % ('s_memrealtime' if real or os.environ.get('RT') else 's_memtime', 80 + idx))
AMP = os.environ.get('AMP')
def amp(A, name):
    if LIGHT and name in ('b17', 'B1', 'gemm', 'ready', 'X'):
        A('s_memtime s[78:79]\ns_waitcnt lgkmcnt(0)\ns_mov_b32 s%d, s78' % (83 + ('b17', 'B1', 'gemm', 'ready', 'X').index(name)))
    if AMP == name: A('s_memrealtime s[78:79]\ns_waitcnt lgkmcnt(0)\ns_mov_b32 s97, s78')
def stamp_begin(A):
    if AMP: A('s_memrealtime s[78:79]\ns_waitcnt lgkmcnt(0)\ns_mov_b32 s96, s78\ns_mov_b32 s97, s78')
    if not STAMP and not LIGHT: return
    for i in range(16): A('s_mov_b32 s%d, 0' % (80 + i))
    stamp(A, 14, True); stamp(A, 0)
def stamp_end(A, sWS, sW, vt=3, tr=None):
    if not STAMP and not (LIGHT and tr is None): return
    A('s_waitcnt vmcnt(0)')
    stamp(A, 13); stamp(A, 15, True)
    A('s_nop 4')
    if tr is not None: A('v_mov_b32 v%d, v%d' % (vt, tr))
    for i in range(16): A('v_writelane_b32 v%d, s%d, %d' % (vt, 80 + i, i))
    A('''s_lshl_b32 s78, s2, 3
    s_add_u32 s78, s78, s%d
    s_lshl_b32 s78, s78, 7
    s_add_u32 s78, s78, %s
    v_lshlrev_b32 v%d, 2, v0
    s_mov_b64 exec, 0xffffffff
    buffer_store_dword v%d, v%d, s[%d:%d], s78 offen''' % (sW, hx(STB), vt + 1, vt, vt + 1, sWS, sWS + 3))

PAN, APAN = 4224, 4352
WST = 2 * PAN + APAN
XST = 16 * 1040
L_X = 6 * WST
L_CS = L_X + 4 * XST
L_RS = L_CS + 10 * 256
L_ONES = 131072
L_EX = L_ONES + 7 * 2048 + 1536
assert L_RS + 1024 <= L_EX
L_H = 98304
L_FLAG = L_EX + 16384
L_NON = L_FLAG + 4
LDS_BYTES = L_FLAG + 64
assert LDS_BYTES <= 163840
NT = 8
XB = os.environ.get('MSCHED', '12,15').endswith('16')
NB = 30
F1N, F1B = [int(t) for t in os.environ.get('F1IT', '2,3').split(',')]
NK1 = int(os.environ.get('NK1', '16'))

sX, sA, sH0, sH1, sWS, sPK, sDBG = 16, 20, 24, 28, 32, 36, 12
sP0, sP1 = 36, 12
sRB, sCG, sW, sHead, sQB = 40, 41, 42, 74, 75

def flag_store(A, soff, vt):
    A(f'''
    s_mov_b64 exec, 1
    buffer_store_dword v{vt}, off, {s(sWS,4)}, {soff} sc1
    s_mov_b64 exec, -1
    ''')

def gen(A):
    K = NAME + '_kernel'
    A(f'.globl {K}\n.p2align 8\n.type {K},@function\n{K}:')
    A('''
    s_cmp_ge_u32 s2, 256
    s_cbranch_scc1 L_end
    ''')
    stamp_begin(A)
    A(f'''
    v_lshrrev_b32 v1, 6, v0
    s_getpc_b64 s[4:5]
L_pc:
    v_readfirstlane_b32 {s(sW)}, v1
    s_and_b32 s47, s2, 0xf8
    s_load_dwordx2 {s(sX,2)}, s[0:1], 0
    s_add_u32 s47, s47, {s(sW)}
    s_lshl_b32 s47, s47, 6
    s_load_dword s6, s[4:5], s47
    s_add_u32 s47, s47, 0x4000
    s_min_u32 s47, s47, L_code_end-L_pc-4
    s_load_dword s7, s[4:5], s47
    s_load_dwordx2 {s(sA,2)}, s[0:1], 8
    s_load_dwordx2 {s(sH0,2)}, s[0:1], 32
    s_load_dwordx2 {s(sH1,2)}, s[0:1], 40
    s_load_dwordx2 {s(sWS,2)}, s[0:1], 72
    v_and_b32 v0, 63, v0
    s_and_b32 s3, s2, 7
    s_lshr_b32 s43, s2, 3
    s_lshr_b32 {s(sRB)}, s3, 2
    s_lshl_b32 {s(sRB)}, {s(sRB)}, 3
    s_and_b32 s70, s43, 7
    s_add_u32 {s(sRB)}, {s(sRB)}, s70
    s_and_b32 {s(sCG)}, s3, 3
    s_lshl_b32 {s(sCG)}, {s(sCG)}, 2
    s_lshr_b32 s71, s43, 3
    s_add_u32 {s(sCG)}, {s(sCG)}, s71
    s_and_b32 s44, {s(sW)}, 3
    s_lshr_b32 s45, s44, 1
    s_and_b32 s46, s44, 1
    s_mov_b32 {s(sWS+2)}, {hx(WS_BYTES)}
    s_mov_b32 {s(sWS+3)}, 0x20000
    s_mov_b32 {s(sX+2)}, 2097152
    s_mov_b32 {s(sX+3)}, 0x20000
    s_mov_b32 {s(sA+2)}, 1572864
    s_mov_b32 {s(sA+3)}, 0x20000
    s_lshl_b32 {s(sHead)}, s3, 2
    s_add_u32 {s(sHead)}, {s(sHead)}, s71
    s_mov_b32 {s(sQB)}, s70
    ''')
    patterns = f'''
    v_bfe_u32 v5, v0, 4, 1
    v_bfe_u32 v6, v0, 2, 2
    v_lshrrev_b32 v7, 5, v0
    v_and_b32 v1, 3, v0
    v_lshlrev_b32 v1, 3, v1
    v_lshl_add_u32 v1, v7, 8, v1
    v_mul_u32_u24 v2, {PAN}, v5
    v_mul_u32_u24 v8, 1056, v6
    v_add3_u32 v2, v2, v8, v1
    v_mul_u32_u24 v8, 1088, v6
    v_lshl_add_u32 v3, v5, 5, v8
    v_add_u32 v3, v3, v1
    v_and_b32 v8, 15, v0
    v_mul_u32_u24 v8, 1040, v8
    v_lshl_add_u32 v4, v5, 8, v8
    v_lshl_add_u32 v4, v7, 4, v4
    s_lshl_b32 s47, s45, 6
    v_add_u32 v2, s47, v2
    s_add_u32 s47, s47, {2*PAN}
    v_add_u32 v3, s47, v3
    '''
    A(f'''
    s_and_b32 s47, {s(sW)}, 6
    s_cmp_eq_u32 s47, 4
    s_cbranch_scc1 L_L
    ''')
    if 'tlb' in EXP:
        A(f'''
        s_cmp_lg_u32 {s(sW)}, 0
        s_cbranch_scc1 L_nt
        s_waitcnt lgkmcnt(0)
        s_load_dword s6, {s(sA,2)}, 0
        s_load_dword s6, {s(sH0,2)}, 0
        s_load_dword s6, {s(sH1,2)}, 0
L_nt:
        ''')
    if 'tlbv' in EXP:
        A(f'''
        s_cmp_lg_u32 {s(sW)}, 0
        s_cbranch_scc1 L_nt
        v_mov_b32 v1, 0
        s_mov_b64 exec, 1
        s_waitcnt lgkmcnt(0)
        global_load_dword v2, v1, {s(sA,2)}
        global_load_dword v2, v1, {s(sH0,2)}
        global_load_dword v2, v1, {s(sH1,2)}
        s_mov_b64 exec, -1
        s_waitcnt vmcnt(0)
L_nt:
        ''')
    A(f'''
    s_cmp_lt_u32 {s(sW)}, 4
    s_cbranch_scc1 L_C
    s_branch L_M
L_L:
    ''')
    gen_H(A, patterns)
    gen_C(A, patterns)
    A('L_end:\ns_endpgm\nL_code_end:')

def gen_H(A, patterns):
    A.shift = 104
    sStrH, sColH = 48, 49
    sRowA, sRowH, sMH, sMA, sMX, sXo, sRot, sG = 50, 51, 52, 53, 54, 55, 59, 60
    ROTM = int(os.environ.get('ROTM', '7'))
    sStr, sRowP, sRowA, sRowB, sMA, sMB, sMX, sXo, sRot, sGA, sGB, sJ = 48, 49, 50, 51, 52, 53, 54, 55, 59, 60, 56, 57
    A(f"""
    v_lshrrev_b32 v8, 3, v0
    v_and_b32 v9, 7, v0
    v_lshlrev_b32 v9, 4, v9
    v_and_b32 v13, 4, v8
    v_bfe_u32 v14, v8, 1, 1
    v_and_b32 v15, 1, v8
    v_lshl_add_u32 v14, v15, 1, v14
    v_add_u32 v13, v13, v14
    v_lshl_add_u32 v13, v13, 14, v9
    s_lshl_b32 s47, {s(sRB)}, 17
    s_lshl_b32 s61, s46, 12
    s_add_u32 s47, s47, s61
    v_add_u32 v13, s47, v13
    s_lshl_b32 s62, s71, 1
    s_add_u32 {s(sRot)}, s70, s62
    s_and_b32 s47, s3, 1
    s_add_u32 {s(sRot)}, {s(sRot)}, s47
    s_and_b32 {s(sRot)}, {s(sRot)}, {os.environ.get('ROTM', '7')}
    s_lshl_b32 {s(sXo)}, {s(sRot)}, 7
    s_lshl_b32 {s(sRot)}, {s(sRot)}, 1
    s_mul_i32 s58, s46, 4160
    s_add_u32 s58, s58, {L_X}
    s_mov_b32 {s(sMX)}, s58
    s_mov_b32 {s(sJ)}, 0
    s_and_b32 s64, s3, 3
    s_mul_i32 s65, s64, 7
    s_add_u32 s65, s65, s62
    s_lshl_b32 s65, s65, 7
    s_add_u32 s66, s65, 128
    s_lshl_b32 s64, s64, 8
    s_add_u32 s64, s64, 2048
    s_cmp_lt_u32 s71, 3
    s_mov_b32 {s(sP0+2)}, 1572864
    s_cmov_b32 {s(sP0+2)}, 1835008
    s_mov_b32 {s(sP1+2)}, {1572864-128}
    s_cmov_b32 {s(sP1+2)}, 1835008
    s_mov_b32 {s(sP0+3)}, 0x20000
    s_mov_b32 {s(sP1+3)}, 0x20000
    s_movk_i32 {s(sStr)}, 3072
    s_cmovk_i32 {s(sStr)}, 3584
    s_cselect_b32 s64, s65, s64
    s_cselect_b32 s65, s66, s65
    s_lshl_b32 s47, s46, 1
    v_lshl_add_u32 v10, v8, 2, s47
    v_mul_u32_u24 v11, 3072, v10
    s_lshl_b32 s47, {s(sCG)}, 7
    v_add3_u32 v11, v11, v9, s47
    v_mul_lo_u32 v18, v10, {s(sStr)}
    v_add3_u32 v18, v18, v9, s64
    v_add_u32 v19, {s(sStr)}, v18
    s_lshl_b32 {s(sStr)}, {s(sStr)}, 5
    s_mul_i32 {s(sRowA)}, {s(sRot)}, {32*3072}
    s_mul_i32 {s(sRowP)}, {s(sRot)}, {s(sStr)}
    s_mul_i32 {s(sMA)}, s46, 2112
    s_add_u32 {s(sMA)}, {s(sMA)}, {2*WST}
    s_lshl_b32 s69, s46, 6
    s_mov_b32 {s(sGA)}, 0
    s_waitcnt lgkmcnt(0)
    """)
    sel = f"""
    s_add_u32 s62, {s(sA)}, 128
    s_addc_u32 s63, {s(sA+1)}, 0
    s_cmp_lt_u32 s71, 3
    s_cselect_b64 {s(sP0,2)}, {s(sH0,2)}, {s(sA,2)}
    s_cselect_b64 {s(sP1,2)}, {s(sH1,2)}, s[62:63]
    """
    setup2 = f"""
    s_mov_b32 {s(sH0+2)}, 1835008
    s_mov_b32 {s(sH1+2)}, 1835008
    s_mov_b32 {s(sH0+3)}, 0x20000
    s_mov_b32 {s(sH1+3)}, 0x20000
    v_mul_u32_u24 v16, 3584, v10
    v_add3_u32 v16, v16, v9, s65
    v_add_u32 v17, 3584, v16
    s_mul_i32 {s(sRowB)}, {s(sRot)}, {32*3584}
    s_mul_i32 {s(sMB)}, s46, 2112
    s_add_u32 {s(sMB)}, {s(sMB)}, {4*WST}
    s_mov_b32 {s(sGB)}, 0
    """
    ops = []
    def call(tag):
        name = {'X': 'LL_X', 'A': 'LL_A', 'B': 'LL_B', 'E': 'LL_B'}[tag[0]]
        A(f's_call_b64 s[8:9], {name}')
        ops.extend([tag] * {'LL_X': 4, 'LL_A': 6, 'LL_B': 4}[name])
        if tag == 'E0': A(f's_add_u32 s47, {s(sRot)}, 1\ns_mul_i32 {s(sRowB)}, s47, {32*3584}')
        if tag == 'E1': A(f's_add_u32 s47, {s(sRot)}, 14\ns_and_b32 s47, s47, 15\ns_mul_i32 {s(sRowB)}, s47, {32*3584}\n'
                          f's_add_u32 {s(sMB)}, {s(sMB)}, {2*WST}\ns_mov_b32 {s(sGB)}, 0')
    def bar(*need):
        if need:
            assert all(t in ops for t in need), need
            last = max(i for i, t in enumerate(ops) if t in need)
            if len(ops) - 1 - last < 64: A(f's_waitcnt vmcnt({len(ops) - 1 - last})')
        A('s_barrier')
    RP = os.environ.get('RP', '')
    def bodyX():
        ld = [(f's_add_u32 m0, {s(sMX)}, {16*i}', f'buffer_load_dwordx4 v13, {s(sX,4)}, {s(sXo)} offen offset:{1024*i} {RP} lds') for i in range(4)]
        pre = [f's_add_u32 {s(sJ)}, {s(sJ)}, 1', f's_lshr_b32 s67, {s(sJ)}, 1', 's_sub_u32 s68, 11, s67',
               f's_cmp_lt_u32 {s(sJ)}, 16\ns_cselect_b32 s67, s67, s68']
        post = ['s_and_b32 s68, s67, 3\ns_lshl_b32 s68, s68, 1', f's_and_b32 s62, {s(sJ)}, 1\ns_add_u32 s68, s68, s62',
                f's_mul_i32 s68, s68, {XST//2}\ns_add_u32 {s(sMX)}, s68, s58\ns_lshl_b32 s67, s67, 1',
                f's_add_u32 s67, s67, {s(sRot)}\ns_and_b32 s67, s67, 15\ns_lshl_b32 s67, s67, 6\ns_lshl_b32 s62, s62, 13\ns_add_u32 {s(sXo)}, s67, s62']
        return ld, pre, post
    def bodyA():
        ld = [(f's_add_u32 m0, {s(sMA)}, {hf*PAN+1056*bb}', f'buffer_load_dwordx4 v{18+bb}, {s(sP0 if hf == 0 else sP1,4)}, {s(sRowP)} offen {RP} lds')
              for hf in range(2) for bb in range(2)]
        ld += [(f's_add_u32 m0, s61, {2*PAN+(1088-3072)*bb}', f'buffer_load_dwordx4 v11, {s(sA,4)}, {s(sRowA)} offen offset:{3072*bb} {RP} lds') for bb in range(2)]
        pre = [f's_add_u32 {s(sGA)}, {s(sGA)}, 1', f's_add_u32 s47, {s(sGA)}, {s(sRot)}', 's_and_b32 s47, s47, 15', f's_add_u32 s61, {s(sMA)}, s69',
               f's_mul_i32 {s(sRowP)}, s47, {s(sStr)}\ns_add_u32 {s(sMA)}, {s(sMA)}, {WST}',
               f's_cmp_ge_u32 {s(sMA)}, {4*WST}\ns_cselect_b32 s63, {4*WST}, 0\ns_sub_u32 {s(sMA)}, {s(sMA)}, s63']
        post = [f's_mul_i32 {s(sRowA)}, s47, {32*3072}']
        return ld, pre, post
    def bodyB():
        ld = [(f's_add_u32 m0, {s(sMB)}, {hf*PAN+1056*bb}', f'buffer_load_dwordx4 v{16+bb}, {s(sH0 if hf == 0 else sH1,4)}, {s(sRowB)} offen {RP} lds')
              for hf in range(2) for bb in range(2)]
        pre = [f's_add_u32 {s(sGB)}, {s(sGB)}, 1', f's_xor_b32 s47, {s(sGB)}, 14', f's_add_u32 s47, s47, {s(sRot)}\ns_and_b32 s47, s47, 15',
               f's_bitcmp1_b32 {s(sGB)}, 0\ns_mov_b32 s63, {3*WST}\ns_cmov_b32 s63, {WST}\ns_add_u32 {s(sMB)}, {s(sMB)}, s63\ns_cmp_ge_u32 {s(sMB)}, {6*WST}\ns_cselect_b32 s63, {6*WST}, 0\ns_sub_u32 {s(sMB)}, {s(sMB)}, s63']
        post = [f's_mul_i32 {s(sRowB)}, s47, {32*3584}']
        return ld, pre, post
    def emit(*bodies):
        carry = []
        for ld, pre, post in bodies:
            for i, (m, l) in enumerate(ld):
                A(m); A(pre[i])
                if carry: A(carry.pop(0))
                A(l)
            for t in carry: A(t)
            carry = list(post)
        for t in carry: A(t)
    if 'st0' in EXP: stamp(A, 9)
    call('X0'); A(sel)
    if 'st0' in EXP: stamp(A, 10)
    call('X1')
    if 'st0' in EXP: stamp(A, 7)
    call('A0')
    if 'st0' in EXP: stamp(A, 6)
    if not os.environ.get('PRE'): call('A1')
    if 'st0' in EXP: stamp(A, 11)
    A('s_branch LL_go\nLL_X:')
    emit(bodyX())
    A('s_setpc_b64 s[8:9]\nLL_A:')
    emit(bodyA())
    A('s_setpc_b64 s[8:9]\nLL_go:')
    A(setup2)
    A('s_call_b64 s[8:9], LH_prep')
    if 'st0' in EXP:
        stamp(A, 12); A('s_waitcnt vmcnt(12)'); stamp(A, 8); A('s_waitcnt vmcnt(6)'); stamp(A, 5); EXP.add('frozen')
    if os.environ.get('PRE'):
        A('s_waitcnt vmcnt(%s)' % os.environ.get('PREW', '6'))
        for t in os.environ['PRE'].split(','): call(t)
    def need(c):
        n = [f'A{c}' if c < 16 else f'B{c-16}']
        if c % 2 == 0 and c < 16: n += [f'X{c}', f'X{c+1}']
        if c % 2 == 0 and c >= 24: n += [f'X{c-8}', f'X{c-7}']
        return n
    def dist(c):
        return len(ops) - 1 - max(i for i, t in enumerate(ops) if t in need(c))
    def loop(label, c0, c1, second, cnt, lim):
        A(f's_waitcnt vmcnt({dist(c0)})\n{label}:\ns_barrier')
        emit(bodyX(), second())
        w = 63
        for c in range(c0, c1 + 1):
            ops.extend([f'X{c+4 if c < 16 else c-XO}'] * 4 + ([f'A{c+3}'] * 6 if c < 16 else [f'B{c-BO}'] * 4))
            if c < c1: w = min(w, dist(c + 1))
        A(f's_cmp_lt_u32 {cnt}, {lim}\ns_waitcnt vmcnt({w})\ns_cbranch_scc1 {label}')
    sched = {0: 'E0,E1,X2,X3', 1: 'A2,|,A3,X4,X5,A4', 12: 'A15,B0', 13: 'B1,B2', 14: 'B3', 15: 'B4', 16: 'B5', 17: 'B6', 18: 'X16', 19: 'B7', 25: 'B13'}
    LB0, LB1, XO, BO = 20, 24, 3, 12
    if os.environ.get('LS0'): sched[0], sched[1] = os.environ['LS0'].split('/')
    c = 0
    while c < NB:
        if c == 2:
            loop('LL_loopA', 2, 11, bodyA, s(sGA), 15); c = 12; continue
        if c == LB0:
            loop('LL_loopB', LB0, LB1, bodyB, s(sGB), LB1 - BO + 1); c = LB1 + 1; continue
        bar(*need(c))
        amp(A, f'b{c}')
        if LIGHT and c in (0, 12): A(f's_memtime s[78:79]\ns_waitcnt lgkmcnt(0)\ns_mov_b32 s{81 + (c > 0)}, s78')
        if c == 16 and XB: A('s_barrier')
        if c == 26:
            A(f"""
    v_mov_b32 v9, {L_NON}
    ds_read_b32 v3, v9
    s_mov_b32 s52, {hx(FL)}
    s_lshl_b32 s61, {s(sHead)}, 3
    s_add_u32 s61, s61, {s(sQB)}
    s_lshl_b32 s61, s61, 13
    s_lshl_b32 s47, s46, 12
    s_add_u32 s61, s61, s47
    s_lshl_b32 s62, s46, 13
    s_add_u32 s62, s62, {L_ONES+512}
    s_lshl_b32 s63, s46, 10
    s_lshl_b32 s47, {s(sHead)}, 17
    s_add_u32 s47, s47, {hx(KV)}
    s_add_u32 s47, s47, s63
    s_mov_b32 s53, 0
    """)
        if c == int(os.environ.get('EARLYC', '29')):
            A(f"""
    buffer_load_dword v241, v251, {s(sWS,4)}, s52 offen sc1
    """)
            ops.append('poll')
        for t in sched.get(c, '').split(','):
            if t == '|': bar('E0', 'E1')
            elif t: call(t)
        c += 1
    A(f"""
    s_setprio 2
    s_barrier
LL_f1:
    s_add_u32 s53, s53, 1
    s_waitcnt vmcnt(0) lgkmcnt(0)
    v_cmp_ne_u32 vcc, v3, v241
    s_cbranch_vccz LL_f1ok
    s_sleep 4
    buffer_load_dword v241, v251, {s(sWS,4)}, s52 offen sc1
    s_cmp_lt_u32 s53, {SPIN}
    s_cbranch_scc1 LL_f1
LL_f1ok:
    """)
    stamp(A, 1)
    if STAMP: A('s_add_u32 s82, s53, s80')
    A('s_call_b64 s[8:9], LL_qkv\ns_branch LH_join\nLL_qkv:')
    for i in range(4):
        A(f's_add_u32 m0, s62, {1024*i}\ns_nop 0\nbuffer_load_dwordx4 v1, {s(sWS,4)}, s61 offen offset:{1024*i} sc1 lds')
    A(f"""
    s_mov_b32 m0, s63
    s_nop 0
LL_kv:
    buffer_load_dwordx4 v1, {s(sWS,4)}, s47 offen sc1 lds
    buffer_load_dwordx4 v1, {s(sWS,4)}, s47 offen offset:2048 sc1 lds
    s_add_u32 m0, m0, 4096
    s_add_u32 s47, s47, 4096
    s_cmp_lt_u32 m0, 20480
    s_cbranch_scc1 LL_kv
    s_setpc_b64 s[8:9]
LL_B:
    """)
    emit(bodyB())
    A(f"""
    s_setpc_b64 s[8:9]
    """)
    CS, RS = 16, 24
    WF, XF = 32, 52
    sOne = 73
    A(f"""
L_M:
    s_setprio {os.environ.get('MPRIO', '3')}
    s_mov_b32 s45, s46
    """)
    A(patterns)
    A(f"""
    s_mov_b32 s45, 1
    s_mov_b32 {s(sOne)}, {hx(ONES)}
    s_lshl_b32 s47, s46, 9
    s_add_u32 s47, s47, {L_X}
    v_add_u32 v4, s47, v4
    v_lshlrev_b32 v1, 4, v0
    s_mov_b32 s50, 0
    """)
    for i in range(16, 28, 2): A(f'v_mov_b64 {v(i,2)}, 0')
    A(f's_mov_b32 s47, {hx(NW)}\ns_waitcnt lgkmcnt(0)\nbuffer_load_dword v30, off, {s(sWS,4)}, s47 sc1')
    nb = -1
    def bars(upto):
        nonlocal nb
        while nb < upto:
            A('s_barrier'); nb += 1
    A('s_call_b64 s[8:9], LH_prep')
    if 'st0' in EXP:
        EXP.discard('frozen'); stamp(A, 9); EXP.add('frozen')
    XF = 44
    A(f"""
    v_add_u32 v10, {4*WST}, v2
    v_add_u32 v2, {2*WST}, v2
    v_add_u32 v3, {2*WST}, v3
LM_stat:
    s_bitcmp1_b32 s50, 0
    s_cbranch_scc1 LM_nobar
    s_barrier
LM_nobar:
    ds_read_b128 {v(XF,4)}, v4
    ds_read_b128 {v(XF+4,4)}, v4 offset:128
    ds_read_b64_tr_b16 {v(WF,2)}, v3
    ds_read_b64_tr_b16 {v(WF+2,2)}, v3 offset:128
    """)
    for u in range(2):
        A(f'ds_read_b64_tr_b16 {v(WF+4+4*u,2)}, v2 offset:{u*32}')
        A(f'ds_read_b64_tr_b16 {v(WF+6+4*u,2)}, v2 offset:{u*32+128}')
    A(f"""
    s_movk_i32 s47, 512
    s_cmovk_i32 s47, {WST-512}
    v_add_u32 v2, s47, v2
    v_add_u32 v3, s47, v3
    v_add_u32 v4, 32, v4
    s_add_u32 s50, s50, 1
    s_waitcnt lgkmcnt(6)
    """)
    for j in range(4):
        for T in range(2):
            if 'nodot' not in EXP: A(f'v_dot2c_f32_bf16 v{RS+2*T}, {s(sOne)}, v{XF+4*T+j}')
            if 'nodot' not in EXP: A(f'v_dot2c_f32_bf16 v{RS+2*T+1}, v{XF+4*T+j}, v{XF+4*T+j}')
    A('s_waitcnt lgkmcnt(0)')
    for j in range(4):
        for i in range(3):
            if 'nodot' not in EXP: A(f'v_dot2c_f32_bf16 v{CS+i}, {s(sOne)}, v{WF+4*i+j}')
    A(f"""
    s_cmp_lt_u32 s50, 4
    s_cbranch_scc1 LM_stat
    s_barrier
    """)
    nb = 1
    for q in range(4):
        for u in range(2):
            for rd in range(2):
                A(f'ds_read_b64_tr_b16 {v(WF+8*q+4*u+2*rd,2)}, v10 offset:{(q>>1)*WST+(4*(q&1)+rd)*128+u*32}')
        if q == 2: A('s_waitcnt lgkmcnt(4)')
    A(f"""
    s_lshl_b32 s50, {s(sCG)}, 4
    s_add_u32 s50, s50, {s(sRB)}
    s_lshl_b32 s50, s50, 1
    s_add_u32 s50, s50, s46
    s_lshl_b32 s50, s50, 10
    s_add_u32 s50, s50, {hx(CSP)}
    s_lshl_b32 s51, {s(sRB)}, 4
    s_add_u32 s51, s51, {s(sCG)}
    s_lshl_b32 s51, s51, 1
    s_add_u32 s51, s51, s46
    s_lshl_b32 s51, s51, 10
    s_add_u32 s51, s51, {hx(RSP)}
    s_waitcnt lgkmcnt(0)
    """)
    for hh in range(2):
        for q in (2 * hh, 2 * hh + 1):
            for j in range(4):
                for u in range(2):
                    r = WF + 8 * q + 4 * u + j
                    A(f'v_lshlrev_b32 v28, 16, v{r}\nv_and_b32 v29, 0xffff0000, v{r}\nv_add_f32 v{CS+3+u}, v{CS+3+u}, v28\nv_add_f32 v{CS+5+u}, v{CS+5+u}, v29')
        bars(nb + 1)
    A(f"""
    v_add_f32 v{CS+3}, v{CS+3}, v{CS+5}
    v_add_f32 v{CS+4}, v{CS+4}, v{CS+6}
    s_mov_b32 s47, 1664525
    s_waitcnt vmcnt(0)
    v_mul_lo_u32 v30, v30, s47
    v_add_u32 v30, 1013904223, v30
    """)
    for i in range(5): A(f'v_mov_b32 v{WF+i}, v{CS+i}')
    for i in range(4): A(f'v_mov_b32 v{WF+8+i}, v{RS+i}')
    A('v_cmp_gt_u32 vcc, 32, v0')
    for i in range(5): A(f'v_permlane32_swap_b32 v{CS+i}, v{WF+i}')
    for i in range(4): A(f'v_permlane32_swap_b32 v{RS+i}, v{WF+8+i}')
    for i in range(5): A(f'v_add_f32 v{CS+i}, v{CS+i}, v{WF+i}')
    for i in range(4): A(f'v_add_f32 v{RS+i}, v{RS+i}, v{WF+8+i}')
    A(f"""
    v_cndmask_b32 v{CS}, v{CS+3}, v{CS}, vcc
    v_cndmask_b32 v{CS+1}, v{CS+4}, v{CS+1}, vcc
    v_mov_b32 v{CS+3}, v30
    v_cndmask_b32 v{RS}, v{RS+2}, v{RS}, vcc
    v_cndmask_b32 v{RS+1}, v{RS+3}, v{RS+1}, vcc
    v_mov_b32 v{RS+3}, v30
    buffer_store_dwordx4 {v(CS,4)}, v1, {s(sWS,4)}, s50 offen sc1
    buffer_store_dwordx4 {v(RS,4)}, v1, {s(sWS,4)}, s51 offen sc1
    """)
    bars(nb + 1)
    A(f"""
    s_and_b32 s50, s50, {hx(~0x3800)}
    s_and_b32 s51, s51, {hx(~0x3800)}
    v_lshlrev_b32 v8, 2, v0
    v_mov_b32 v9, {L_FLAG}
    v_mov_b32 v29, 0
    ds_write_b32 v9, v29
    ds_write_b32 v9, v30 offset:4
    v_mov_b32 v28, 0
    ds_write_b64 v9, v[28:29] offset:16
    ds_write_b64 v9, v[28:29] offset:24
    """)
    B_GAT, B_RED = [int(t) for t in os.environ.get('MSCHED', '12,15').split(',')]
    A(f"""
    v_mov_b32 v3, v30
    s_lshl_b32 s54, {s(sQB)}, 3
    s_lshl_b32 s62, s46, 2
    s_add_u32 s54, s54, s62
    s_lshl_b32 s54, s54, 5
    s_add_u32 s54, s54, {s(sHead)}
    s_lshl_b32 s54, s54, 10
    s_add_u32 s54, s54, {hx(OF)}
    """)
    for n in range(4):
        A(f'buffer_store_dwordx4 v[236:239], v1, {s(sWS,4)}, s54 offen sc1\ns_add_u32 s54, s54, 0x8000')
        bars(nb + 1)
    bars(B_GAT)
    GC, GR = 32, 64
    A('s_mov_b32 s53, 0\nLM_gat:\ns_mov_b32 s47, s50\ns_mov_b32 s61, s51')
    for i in range(8):
        A(f'buffer_load_dwordx4 {v(GR+4*i,4)}, v1, {s(sWS,4)}, s61 offen offset:{2048*(i&1)} sc1')
        A(f'buffer_load_dwordx4 {v(GC+4*i,4)}, v1, {s(sWS,4)}, s47 offen offset:{2048*(i&1)} sc1')
        if i & 1 and i < 7: A('s_add_u32 s47, s47, 4096\ns_add_u32 s61, s61, 4096')
    A('s_cmp_lg_u32 s53, 0\ns_cbranch_scc1 LM_chk')
    bars(B_RED - 1)
    A('LM_chk:\ns_waitcnt vmcnt(0)\ns_add_u32 s53, s53, 1')
    A(f'v_xor_b32 v10, v30, v{GC+3}')
    for r in [GC + 4 * i + 3 for i in range(1, 16)]:
        A(f'v_xor_b32 v11, v30, v{r}\nv_or_b32 v10, v10, v11')
    A(f"""
    v_cmp_ne_u32 vcc, 0, v10
    s_cbranch_vccz LM_red
    s_sleep 4
    s_cmp_lt_u32 s53, {SPIN}
    s_cbranch_scc1 LM_gat
LM_red:
    """)
    stamp(A, 1)
    for i in range(1, 8):
        for t in range(3):
            if t < 2: A(f'v_add_f32 v{GR+t}, v{GR+t}, v{GR+4*i+t}')
            A(f'v_add_f32 v{GC+t}, v{GC+t}, v{GC+4*i+t}')
    bars(B_RED)
    SUM, SQ = GR, GR + 1
    A(f"""
    s_mul_i32 s47, s46, {5*256}
    s_add_u32 s47, s47, {L_CS}
    v_add_u32 v10, s47, v8
    s_lshl_b32 s47, s46, 9
    s_add_u32 s47, s47, {L_RS}
    v_lshl_add_u32 v9, v0, 3, s47
    v_cmp_gt_u32 vcc, 32, v0
    v_mul_f32 v{SUM}, {hx(f2u(-1.0/512))}, v{SUM}
    v_mul_f32 v{SQ}, {hx(f2u(1.0/512))}, v{SQ}
    v_fma_f32 v{SQ}, -v{SUM}, v{SUM}, v{SQ}
    v_max_f32 v{SQ}, 0, v{SQ}
    v_cvt_pk_bf16_f32 v{SQ}, v{SQ}, v{SQ}
    v_and_b32 v{SQ}, 0xffff0000, v{SQ}
    v_add_f32 v{SQ}, {hx(f2u(1e-5))}, v{SQ}
    v_cvt_pk_bf16_f32 v{SQ}, v{SQ}, v{SQ}
    v_and_b32 v{SQ}, 0xffff0000, v{SQ}
    v_sqrt_f32 v{SQ}, v{SQ}
    v_cvt_pk_bf16_f32 v{SUM}, v{SUM}, v{SUM}
    v_cvt_pk_bf16_f32 v{SQ}, v{SQ}, v{SQ}
    v_and_b32 v{SQ}, 0xffff0000, v{SQ}
    ds_write_b64 v9, {v(SUM,2)}
    """)
    for t in range(3):
        A(f"""
        v_cvt_pk_bf16_f32 v28, v{GC+t}, v{GC+t}
        v_and_b32 v28, 0xffff0000, v28
        v_sub_f32 v29, v{GC+t}, v28
        v_cvt_pk_bf16_f32 v28, v28, v29
        v_cndmask_b32 v{16+t}, 0, v28, vcc
        ds_write_b32 v10, v{16+t} offset:{t*256}
        """)
        if t < 2: A(f'v_sub_u32 v{20+t}, v28, v{16+t}\nds_write_b32 v10, v{20+t} offset:{(3+t)*256}')
    A('s_waitcnt lgkmcnt(0)')
    stamp(A, 2)
    assert nb <= 15 or XB
    if XB: A('s_barrier')
    A(f"""
    s_lshl_b32 s51, s2, 7
    s_add_u32 s51, s51, {hx(FL)}
    s_cmp_lg_u32 s46, 0
    s_cmov_b32 s51, 0x2000000
    s_mov_b32 s52, 0x2000000
    s_cmp_eq_u32 s71, 3
    s_cselect_b32 s53, s51, s52
    s_cselect_b32 s51, s52, s51
    """)
    bars(16 + 2 * F1N + 1)
    flag_store(A, 's51', 3)
    bars(16 + 2 * F1B + 1)
    flag_store(A, 's53', 3)
    bars(int(os.environ.get('WPF', '26')))
    if 'nowpf' not in EXP:
        A(f"""
        s_load_dwordx2 {s(sH0,2)}, s[0:1], 16
        s_mov_b32 {s(sH0+2)}, 524288
        s_mov_b32 {s(sH0+3)}, 0x20000
        s_lshl_b32 s47, s71, 1
        s_add_u32 s47, s47, s46
        s_lshl_b32 s47, s47, 16
        s_lshl_b32 s61, s70, 7
        s_add_u32 s47, s47, s61
        v_lshlrev_b32 v8, 10, v0
        s_waitcnt lgkmcnt(0)
        buffer_load_dword v241, v8, {s(sH0,4)}, s47 offen
        """)
    bars(NB)
    A('s_setprio 2')
    A.shift = 0
    A(f"""
LH_join:
    s_call_b64 s[8:9], LH_prep2
    s_lshl_b32 s61, {s(sRB)}, 2
    s_lshl_b32 s62, s46, 1
    s_add_u32 s61, s61, s62
    s_mul_i32 s61, s61, 112
    s_and_b32 s62, s3, 3
    s_mul_i32 s62, s62, 28
    s_add_u32 s61, s61, s62
    s_lshl_b32 s62, s71, 3
    s_add_u32 s61, s61, s62
    s_lshl_b32 s62, s45, 1
    s_add_u32 s61, s61, s62
    s_lshl_b32 s61, s61, 10
    s_add_u32 s64, s61, {hx(HF)}
    s_add_u32 s66, s64, 4096
    s_cmp_eq_u32 s71, 3
    s_cselect_b32 s66, s64, s66
    s_add_u32 s67, s66, {112*1024}
    s_and_b32 s47, s3, 3
    s_lshl_b32 s47, s47, 2
    s_add_u32 s47, s47, s45
    s_lshl_b32 s47, s47, 7
    s_lshl_b32 s62, s46, 4
    s_add_u32 s47, s47, s62
    s_add_u32 s47, s47, {s(sRB)}
    s_lshl_b32 s47, s47, 11
    s_add_u32 s47, s47, {hx(KV+32*2048+1024)}
    s_cmp_eq_u32 s71, 3
    s_cselect_b32 s4, s47, s64
    s_movk_i32 s5, 1024
    s_cmov_b32 s5, {4*64*2048}
    s_mov_b32 s6, {112*1024}
    s_cmov_b32 s6, {64*2048}
    s_add_u32 s6, s6, s4
    s_add_u32 s7, s6, s5
    s_add_u32 s5, s5, s4
    s_lshl_b32 s63, s2, 7
    s_lshl_b32 s62, s44, 2
    s_add_u32 s61, s63, s62
    s_add_u32 s61, s61, {hx(FH)}
    s_lshl_b32 s50, s3, 3
    s_lshl_b32 s47, s71, 1
    s_add_u32 s50, s50, s47
    s_add_u32 s50, s50, s46
    s_lshl_b32 s51, s70, 1
    s_add_u32 s51, s51, s45
    s_mul_i32 s47, s44, {28*1024}
    s_add_u32 s47, s47, {hx(HF)}
    s_mul_i32 s56, s50, {112*1024}
    s_add_u32 s56, s56, s47
    s_xor_b32 s57, s50, 1
    s_mul_i32 s57, s57, {112*1024}
    s_add_u32 s57, s57, s47
    s_mul_i32 s58, s44, {28*16384}
    s_lshl_b32 s47, s71, 1
    s_add_u32 s59, s70, s47
    s_cmp_ge_u32 s59, 7
    s_cselect_b32 s47, 7, 0
    s_sub_u32 s59, s59, s47
    s_lshl_b32 s59, s59, 12
    s_mov_b32 s49, {hx(FH)}
    s_lshl_b32 s54, s50, 15
    s_lshl_b32 s47, s51, 6
    s_add_u32 s54, s54, s47
    s_load_dwordx2 {s(sA,2)}, s[0:1], 56
    s_load_dwordx2 {s(sPK,2)}, s[0:1], 48
    s_load_dwordx2 {s(sH0,2)}, s[0:1], 16
    s_mov_b32 {s(sA+2)}, 2097152
    s_mov_b32 {s(sPK+2)}, 1835008
    s_mov_b32 {s(sPK+3)}, 0x20000
    s_mov_b32 {s(sH0+2)}, 524288
    s_mov_b32 {s(sH0+3)}, 0x20000
    s_waitcnt vmcnt(0) lgkmcnt(0)
    """)
    A(f"""
    s_lshl_b32 s63, s44, 10
    s_lshl_b32 s47, {s(sHead)}, 17
    s_add_u32 s47, s47, {hx(KV+20480)}
    s_add_u32 s47, s47, s63
    s_add_u32 m0, s63, 20480
    """)
    stamp(A, 3)
    A('s_barrier')
    amp(A, 'B1')
    A(f's_mov_b32 s48, {9*4096}\ns_call_b64 s[8:9], LH_kv')
    A('s_cmp_eq_u32 s71, 3\ns_cbranch_scc1 LH_vr')
    for n in range(4): A(f'ds_read_b128 {v(96+4*n,4)}, v248 offset:{n*4096}')
    A('s_branch LH_hr\nLH_vr:')
    for n in range(4):
        for rd in range(2): A(f'ds_read_b64_tr_b16 {v(96+4*n+2*rd,2)}, v230 offset:{n*4096+64*rd}')
    A('LH_hr:')
    for n in range(4, 8): A(f'ds_read_b128 {v(96+4*n,4)}, v248 offset:{n*4096}')
    PFM = os.environ.get('PFM', 'late')
    PFX = f"""
    s_lshl_b32 s55, s59, 4
    s_add_u32 s55, s55, s58
    s_lshl_b32 s53, s70, 7
    s_add_u32 s55, s55, s53
    v_lshlrev_b32 v110, 6, v1
    buffer_load_dword v111, v110, {s(sPK,4)}, s55 offen
    s_add_u32 s55, s55, 65536
    buffer_load_dword v111, v110, {s(sPK,4)}, s55 offen
    """
    level = lambda n: f'v_mov_b32 v241, {n}\nds_write_b32 v229, v241'
    for n in range(8):
        A(f's_waitcnt lgkmcnt({min(7-n,4)})\nbuffer_store_dwordx4 {v(96+4*n,4)}, v1, {s(sWS,4)}, ' + (f's{4+n} offen sc1' if n < 4 else f's{64+(n>>1)} offen offset:{(n&1)*1024} sc1'))
    A('s_waitcnt vmcnt(8)\n' + level(2))
    A(f's_mov_b32 s48, {17*4096}\ns_call_b64 s[8:9], LH_kv\ns_waitcnt vmcnt(8)')
    stamp(A, 4)
    A(f"""
    s_or_b32 s62, s44, s2
    s_mov_b32 s62, {hx(NW)}
    s_cmov_b32 s62, 0x2000000
    s_mov_b64 exec, 1
    buffer_store_dword v3, off, {s(sWS,4)}, s61 sc1
    buffer_store_dword v3, off, {s(sWS,4)}, s62 sc1
    s_mov_b64 exec, -1
    s_waitcnt vmcnt(2)
    {level(4)}
    s_lshl_b32 s55, s44, 17
LH_wo:
    buffer_load_dwordx4 v242, {s(sH0,4)}, s55 offen lds
    s_add_u32 m0, m0, 4096
    s_add_u32 s55, s55, 8192
    s_cmp_lt_u32 m0, 131072
    s_cbranch_scc1 LH_wo
    s_mov_b32 m0, s60
    s_sub_u32 s62, s63, s60
    buffer_load_dwordx4 v242, {s(sH0,4)}, s55 offen lds
    buffer_load_dwordx4 v[88:91], v249, {s(sX,4)}, s54 offen
    buffer_load_dwordx4 v[92:95], v249, {s(sX,4)}, s54 offen offset:32
{PFX if PFM == 'early' else ''}
    s_add_u32 s62, s62, {17*4096}
    v_add_u32 v72, s62, v244
    v_add_u32 v73, s62, v245
    v_mov_b32 v251, v229
    s_add_u32 m0, s63, {16*4096}
    s_sub_u32 s47, s47, 4096
    s_mov_b32 s48, 131072
    s_mov_b32 s63, 0
    s_waitcnt vmcnt({4 if PFM == 'early' else 2})
    """)
    for k in range(8):
        for b in range(2):
            for rd in range(2):
                A(f'ds_read_b64_tr_b16 {v(176+8*k+4*b+2*rd,2)}, ' + (f'v{72+b} offset:{(2*k+rd)*4096}' if 2 * k + rd < 15 else f'v{244+b}'))
        if k in (2, 5, 7): A('s_waitcnt lgkmcnt(0)')
    stamp(A, 5)
    A(f"""
    s_cmp_lg_u32 s46, 0
    s_cbranch_scc1 LH_fh0
    s_call_b64 s[8:9], LH_kv
LH_fh0:
    buffer_load_dwordx4 v[76:79], v246, {s(sWS,4)}, s49 offen sc1
LH_fh:
    s_add_u32 s63, s63, 1
    s_waitcnt vmcnt(0)
    v_cmp_ne_u64 vcc, v[2:3], v[76:77]
    v_cmp_ne_u64 s[4:5], v[2:3], v[78:79]
    s_or_b64 vcc, vcc, s[4:5]
    s_cbranch_scc0 LH_gemm
    s_sleep 8
    buffer_load_dwordx4 v[76:79], v246, {s(sWS,4)}, s49 offen sc1
    s_cmp_lt_u32 s63, {SPIN}
    s_cbranch_scc1 LH_fh
LH_gemm:
    s_cmp_eq_u32 s46, 0
    s_cbranch_scc1 LH_g0
    s_call_b64 s[8:9], LH_kv
LH_g0:
    s_mov_b32 s61, s59
    s_mov_b32 m0, s60
    v_mov_b32 v241, 8
    """)
    D, G, X, T0, FO, WO = 8, 72, 88, 96, 112, 176
    Dj = lambda a, b: D + 16 * (a + 2 * b)
    adv = f"""
    s_add_u32 s52, s56, s59
    s_add_u32 s53, s57, s59
    s_lshl_b32 s55, s59, 4
    s_add_u32 s55, s55, s58
    s_add_u32 s59, s59, 4096
    s_cmp_ge_u32 s59, {7*4096}
    s_cselect_b32 s59, 0, s59
    s_cmp_eq_u32 s59, s61
    s_cselect_b32 s59, 0x2000000, s59
    """
    def dma(srd, buf):
        A(f"""
        buffer_load_dwordx4 v242, {s(srd,4)}, s55 offen offset:{2048*buf} lds
        buffer_load_dwordx4 v243, {s(srd,4)}, s55 offen offset:{2048*buf+1024} lds
        s_add_u32 s55, s55, {16384+2048*(2*buf-1)}
        """)
    def grp(i):
        if i & 3 == 0: A(adv)
        for a in range(2):
            A(f'buffer_load_dwordx4 {v(FO+8*(i&3)+4*a,4)}, v1, {s(sWS,4)}, s{52+a} offen offset:{(i&3)*1024} sc1')
        dma(sPK, i & 1)
    def trd(dst, buf):
        for b in range(2):
            for rd in range(2):
                A(f'ds_read_b64_tr_b16 {v(dst+4*b+2*rd,2)}, v{244+b} offset:{2048*buf+1024*rd}')
    stamp(A, 6)
    amp(A, 'gemm')
    if PFM == 'late': A(PFX)
    grp(0); grp(1)
    A(f's_waitcnt vmcnt({10 if PFM == "late" else 8})\nds_write_b32 v251, v241\ns_waitcnt vmcnt(4)')
    trd(G, 0)
    A('s_waitcnt lgkmcnt(0)')
    grp(2)
    A(f"s_setprio {os.environ.get('GPRIO', '0')}")
    def gbody(first):
        for i in range(4):
            A(f's_waitcnt vmcnt({4 if not first or i == 0 else 8})')
            trd(G + 8 * ((i + 1) & 1), (i + 1) & 1)
            for a in range(2): A(mfma(Dj(a, 0), G + 8 * (i & 1), FO + 8 * i + 4 * a, Dj(a, 0)))
            if first:
                for k in range(4):
                    A(f's_add_u32 m0, s48, {(4*i+k)*4096}\ns_add_u32 s47, s61, {(4*i+k)*4096}\nbuffer_load_dwordx4 v1, {s(sWS,4)}, s47 offen sc1 lds')
                A('s_mov_b32 m0, s60')
            A('s_waitcnt lgkmcnt(0)')
            grp(i + 3)
            for a in range(2): A(mfma(Dj(a, 1), G + 8 * (i & 1) + 4, FO + 8 * i + 4 * a, Dj(a, 1)))
    A('s_mov_b32 s63, 0\nLH_gloop:')
    gbody(False)
    A(f"""
    s_add_u32 s63, s63, 1
    s_cmp_lt_u32 s63, 7
    s_cbranch_scc1 LH_gloop
    s_setprio {os.environ.get('MEETP', '0')}
    """)
    A(f"""
    s_lshl_b32 s47, s3, 3
    s_lshl_b32 s61, s44, 1
    s_add_u32 s47, s47, s61
    s_lshl_b32 s47, s47, 7
    s_lshl_b32 s61, s71, 2
    s_add_u32 s47, s47, s61
    s_add_u32 s47, s47, {hx(FH)}
    s_mov_b32 s63, 0
LH_fs:
    buffer_load_dword v241, v250, {s(sWS,4)}, s47 offen sc1
    s_add_u32 s63, s63, 1
    s_waitcnt vmcnt(0)
    v_cmp_ne_u32 vcc, v3, v241
    s_cbranch_vccz LH_fsok
    s_sleep 8
    s_cmp_lt_u32 s63, {SPIN}
    s_cbranch_scc1 LH_fs
LH_fsok:
    s_mov_b32 s62, 0
    """)
    if os.environ.get('XW'):
        A(f's_mov_b32 {s(sWS+2)}, 0x4000000\ns_lshl_b32 s47, s2, 2\ns_add_u32 s47, s47, s44\ns_lshl_b32 s47, s47, 13\ns_add_u32 s47, s47, 0x2800000')
        for i in range(8): A(f'buffer_store_dwordx4 v[88:91], v1, {s(sWS,4)}, s47 offen {os.environ["XW"]}\ns_add_u32 s47, s47, 1024')
    for j in range(1, 4):
        A('s_call_b64 s[8:9], LH_meet')
        for q in range(4): A(f'ds_write_b128 v{4+j}, {v(D+16*j+4*q,4)} offset:{q*1024}')
        A('s_call_b64 s[8:9], LH_meet')
        for q in range(4): A(f'ds_read_b128 {v(D+16*j+4*q,4)}, v4 offset:{q*1024}')
    A(f"""
    s_lshl_b32 s52, s50, 5
    s_lshl_b32 s61, s44, 3
    s_add_u32 s52, s52, s61
    s_lshl_b32 s52, s52, 10
    s_add_u32 s58, s52, {hx(OF)}
    s_xor_b32 s56, s58, 0x8000
    s_add_u32 s57, s56, 4096
    s_add_u32 s59, s58, 4096
    s_mov_b32 s63, 0
    """)
    def send():
        for j in (2,):
            for q in range(4): A(f'ds_write_b128 v{252+j}, {v(D+16*j+4*q,4)} offset:{(j-1)*4096+q*1024}')
        A('s_waitcnt lgkmcnt(0)\ns_barrier')
        for j in range(1, 4):
            for q in range(4): A(f'ds_read_b128 {v(D+16*j+4*q,4)}, v252 offset:{(j-1)*4096+q*1024}')
    A(f"""
    s_mov_b32 s52, -1
    s_waitcnt lgkmcnt(0)
    """)
    stamp(A, 7)
    amp(A, 'ready')
    A('s_barrier')
    amp(A, 'X')
    if os.environ.get('XSL'): A('s_sleep ' + os.environ['XSL'])
    stamp(A, 8)
    for g in range(4):
        A(f'LH_o{g}:')
        for k in range(4 * g, 4 * g + 4):
            A(f'buffer_load_dwordx4 {v(FO+4*k,4)}, v1, {s(sWS,4)}, s{56+g} offen offset:{(k&3)*1024} sc1')
    for g in range(4):
        A(f's_cmp_eq_u32 s52, {g}\ns_cbranch_scc1 LH_c{g}')
    A(f's_mov_b32 s4, {hx(f2u(-LOG2E))}\ns_mov_b32 s5, 1.0')
    for j in range(1, 4):
        for p in range(8): A(f'v_pk_add_f32 {v((D if j < 3 else G)+2*p,2)}, {v(D+2*p,2)}, {v(D+16*j+2*p,2)}')
    for p in range(8): A(f'v_pk_mul_f32 {v(D+2*p,2)}, {v(G+2*p,2)}, s[4:5] op_sel_hi:[1,0]')
    for j in range(16): A(f'v_exp_f32 v{D+j}, v{D+j}')
    for p in range(8): A(f'v_pk_add_f32 {v(D+2*p,2)}, {v(D+2*p,2)}, s[4:5] op_sel:[0,1] op_sel_hi:[1,1]')
    for j in range(16): A(f'v_rcp_f32 v{D+j}, v{D+j}')
    for p in range(8): A(f'v_pk_mul_f32 {v(G+2*p,2)}, {v(D+2*p,2)}, {v(G+2*p,2)}')
    for g in range(4):
        f0 = FO + 16 * g
        a, hh = 1 - (g >> 1), g & 1
        A(f"""
LH_c{g}:
        s_mov_b32 s52, {g}
        s_add_u32 s63, s63, 1
        s_waitcnt vmcnt({12-4*g})
        v_max3_u32 v241, v{f0}, v{f0+4}, v{f0+8}
        v_max_u32 v241, v241, v{f0+12}
        v_cmp_eq_u32 vcc, -1, v241
        s_cbranch_vccz LH_m{g}
        s_sleep {os.environ.get('RSL', '4')}
        s_cmp_lt_u32 s63, {SPIN}
        s_cbranch_scc1 LH_o{g}
LH_m{g}:
        """)
        n = 0
        for b in (1, 0):
            for k in range(4):
                A(mfma(Dj(a, b), WO + 8 * (4 * hh + k) + 4 * b, f0 + 4 * k, None if hh == 0 and k == 0 else Dj(a, b)))
                if g == 2:
                    j, q = (3, 1)[n >> 2], n & 3
                    A(f'ds_write_b128 v{252+j}, {v(D+16*j+4*q,4)} offset:{(j-1)*4096+q*1024}')
                if g == 3: A(f'v_lshlrev_b32 v{T0+2*n}, 16, v{X+n}\nv_and_b32 v{T0+2*n+1}, 0xffff0000, v{X+n}')
                n += 1
    if STAMP and 'st0' not in EXP: A('s_add_u32 s89, s63, s80')
    stamp(A, 10)
    send()
    for j in range(1, 3):
        A(f's_waitcnt lgkmcnt({12-4*j})')
        for p in range(8): A(f'v_pk_add_f32 {v(D+2*p,2)}, {v(D+2*p,2)}, {v(D+16*j+2*p,2)}')
    for q in range(4):
        A(f's_waitcnt lgkmcnt({3-q})')
        for p in (2 * q, 2 * q + 1):
            A(f'v_pk_add_f32 {v(D+2*p,2)}, {v(D+2*p,2)}, {v(D+48+2*p,2)}')
            A(f'v_pk_fma_f32 {v(D+2*p,2)}, {v(D+2*p,2)}, {v(G+2*p,2)}, {v(T0+2*p,2)}')
            A(f'v_cvt_pk_bf16_f32 v{X+p}, v{D+2*p}, v{D+2*p+1}')
        if q & 1: A(f'buffer_store_dwordx4 {v(X+4*(q>>1),4)}, v249, {s(sA,4)}, s54 offen offset:{32*(q>>1)} {os.environ.get("OST", "")}')
    stamp(A, 11)
    stamp_end(A, sWS, sW, 2)
    if AMP:
        amp(A, 'end')
        A(f'''
        s_cmp_lg_u32 {s(sW)}, 4
        s_cbranch_scc1 L_end
        s_memrealtime s[78:79]
        {'s_mov_b32 s97, ' + AMP[3:] if AMP.startswith('fix') else 's_sub_u32 s97, s97, s96'}
        s_waitcnt lgkmcnt(0)
        s_mov_b32 s96, s78
LH_amp:
        s_memrealtime s[78:79]
        s_waitcnt lgkmcnt(0)
        s_sub_u32 s78, s78, s96
        s_cmp_lt_u32 s78, s97
        s_cbranch_scc1 LH_amp
        ''')
    A(f"""
    s_endpgm
LH_meet:
    s_add_u32 s62, s62, 4
    s_mov_b32 s63, 0
    s_waitcnt lgkmcnt(0)
    s_mov_b64 exec, 1
    ds_add_u32 v247, v240
    s_mov_b64 exec, -1
LH_meetw:
    ds_read_b32 v241, v247
    s_add_u32 s63, s63, 1
    s_waitcnt lgkmcnt(0)
    v_cmp_gt_u32 vcc, s62, v241
    s_cbranch_vccz LH_meetok
    s_sleep {os.environ.get('MEETS', '4')}
    s_cmp_lt_u32 s63, {SPIN * 16}
    s_cbranch_scc1 LH_meetw
LH_meetok:
    s_setpc_b64 s[8:9]
LH_kv:
    buffer_load_dwordx4 v1, {s(sWS,4)}, s47 offen sc1 lds
    s_add_u32 m0, m0, 4096
    s_add_u32 s47, s47, 4096
    s_cmp_lt_u32 m0, s48
    s_cbranch_scc1 LH_kv
    s_setpc_b64 s[8:9]
LH_prep:
    v_lshlrev_b32 v1, 4, v0
    v_cmp_gt_u32 vcc, 32, v0
    v_and_b32 v200, 15, v0
    v_and_b32 v201, 1, v0
    s_lshl_b32 s47, {s(sQB)}, 1
    v_add_u32 v201, s47, v201
    s_add_u32 s61, s3, 8
    s_lshr_b32 s62, s3, 1
    s_lshl_b32 s62, s62, 2
    s_add_u32 s62, s62, 3
    v_cndmask_b32 v200, v201, v200, vcc
    v_mov_b32 v201, s3
    v_mov_b32 v202, s62
    v_cndmask_b32 v201, v201, v202, vcc
    v_cmp_gt_u32 vcc, 16, v0
    v_mov_b32 v202, s61
    v_lshrrev_b32 v203, 3, v200
    v_cndmask_b32 v201, v201, v202, vcc
    v_and_b32 v200, 7, v200
    v_lshlrev_b32 v200, 3, v200
    v_lshl_add_u32 v200, v203, 2, v200
    v_lshrrev_b32 v203, 2, v201
    v_add_u32 v200, v200, v203
    v_and_b32 v201, 3, v201
    v_lshl_add_u32 v200, v201, 6, v200
    v_lshlrev_b32 v251, 7, v200
    s_lshl_b32 s61, s44, 12
    s_add_u32 s47, s61, {L_ONES}
    s_add_u32 s61, s61, {L_EX}
    v_and_b32 v204, 11, v0
    v_cmp_eq_u32 vcc, 0, v204
    v_mov_b32 v204, {hx(VONE)}
    v_and_b32 v205, 0x1ff, v1
    v_cndmask_b32 v232, 0, v204, vcc
    v_add_u32 v231, s47, v205
    v_mov_b32 v233, v232
    v_mov_b64 v[234:235], v[232:233]
    v_mov_b32 v240, 1
    v_mov_b32 v247, {L_FLAG}
    v_mov_b64 v[236:237], -1
    v_mov_b64 v[238:239], -1
    s_lshl_b32 s47, s44, 10
    s_add_u32 s47, s47, {L_H}
    v_add_u32 v248, s47, v1
    v_lshrrev_b32 v207, 5, v0
    v_bfe_u32 v204, v0, 4, 1
    v_lshl_add_u32 v204, v204, 2, v207
    v_bfe_u32 v205, v0, 2, 2
    v_lshl_add_u32 v204, v204, 2, v205
    v_and_b32 v205, 3, v0
    v_lshlrev_b32 v205, 8, v205
    v_lshl_add_u32 v204, v204, 3, v205
    v_add_u32 v230, s47, v204
    v_lshrrev_b32 v204, 3, v0
    v_and_b32 v205, 7, v0
    v_and_b32 v206, 2, v204
    v_lshlrev_b32 v206, 1, v206
    v_xor_b32 v205, v205, v206
    v_lshlrev_b32 v205, 4, v205
    v_lshl_add_u32 v242, v204, 10, v205
    s_lshl_b32 s47, s70, 7
    v_add_u32 v242, s47, v242
    v_add_u32 v243, 7168, v242
    v_and_b32 v205, 1, v0
    v_bfe_u32 v204, v0, 1, 1
    v_lshl_add_u32 v205, v205, 1, v204
    v_lshlrev_b32 v205, 3, v205
    v_bfe_u32 v204, v0, 4, 1
    v_lshl_add_u32 v205, v204, 5, v205
    v_bfe_u32 v206, v0, 2, 2
    v_lshl_add_u32 v204, v207, 2, v206
    v_lshl_add_u32 v205, v204, 7, v205
    v_bfe_u32 v204, v0, 3, 1
    v_xor_b32 v204, s45, v204
    v_lshl_add_u32 v205, v204, 6, v205
    v_add_u32 v244, s61, v205
    v_xor_b32 v245, 64, v244
    v_and_b32 v205, 3, v0
    v_lshl_add_u32 v246, v206, 6, v205
    s_lshl_b32 s47, s3, 1
    s_lshr_b32 s62, s71, 1
    s_add_u32 s47, s47, s62
    s_and_b32 s62, s47, 7
    s_lshl_b32 s62, s62, 3
    s_lshr_b32 s47, s47, 3
    s_lshl_b32 s47, s47, 2
    s_add_u32 s47, s47, s62
    v_add_lshl_u32 v246, v246, s47, 7
    v_lshrrev_b32 v204, 4, v0
    v_cmp_eq_u32 vcc, 1, v204
    s_lshl_b32 s47, s44, 2
    s_add_u32 s47, s47, {L_FLAG+16}
    v_cndmask_b32 v246, v246, v251, vcc
    v_mov_b32 v229, s47
    v_bfe_u32 v204, v0, 2, 1
    v_lshl_add_u32 v250, v205, 6, v204
    v_lshlrev_b32 v250, 7, v250
    v_and_b32 v204, 31, v0
    v_lshlrev_b32 v204, 10, v204
    v_lshl_add_u32 v249, v207, 4, v204
    v_mov_b64 v[224:225], 0
    v_mov_b64 v[226:227], 0
    """)
    for j in range(4):
        A(f's_xor_b32 s47, s44, {j}\ns_lshl_b32 s47, s47, 14\nv_add_u32 v{252+j}, s47, v1')
        A(mfma(D + 16 * j, 224, 224, None))
    A(f"""
    s_setpc_b64 s[8:9]
LH_prep2:
    ds_write_b128 v231, v[232:235]
    ds_write_b128 v231, v[232:235] offset:2048
    s_lshl_b32 s60, s44, 12
    s_add_u32 s60, s60, {L_EX}
    """)
    for j in range(4):
        A(f's_xor_b32 s47, s44, {j}\ns_lshl_b32 s47, s47, 12\ns_add_u32 s47, s47, {L_EX}\nv_add_u32 v{4+j}, s47, v1')
    A('s_waitcnt lgkmcnt(0)\nv_mov_b32 v2, v3\ns_setpc_b64 s[8:9]')

def gen_C(A, patterns):
    sDW, sXs, sIt, sF1, sF3, sOne = 48, 49, 50, 72, 73, 76
    A(f"""
L_C:
    v_mov_b64 v[64:65], 0
    v_mov_b64 v[66:67], 0
    """)
    A(patterns)
    A(f"""
    s_waitcnt lgkmcnt(0)
    """)
    if 'tlb2' in EXP:
        A(f"""
        s_cmp_lg_u32 s44, 0
        s_cbranch_scc1 LC_nt
        s_load_dwordx2 s[8:9], s[0:1], 16
        s_load_dwordx2 s[12:13], s[0:1], 48
        s_and_b32 s47, s43, 15
        s_lshl_b32 s61, s47, {os.environ.get('PGS', '21')}
        s_waitcnt lgkmcnt(0)
        s_mov_b64 s[10:11], {s(sWS,2)}
        s_cmp_eq_u32 s47, 13
        s_cselect_b64 s[10:11], s[8:9], s[10:11]
        s_cmp_eq_u32 s47, 14
        s_cselect_b64 s[10:11], s[12:13], s[10:11]
        s_cmp_ge_u32 s47, 13
        s_cselect_b32 s61, 0, s61
        s_load_dword s6, s[10:11], s61
        s_waitcnt lgkmcnt(0)
LC_nt:
        """)
    A(f"""
    s_lshl_b32 s47, s46, 9
    s_add_u32 s47, s47, {L_X}
    v_add_u32 v4, s47, v4
    v_mov_b32 v1, v4
    v_add_u32 v2, {2*WST}, v2
    v_add_u32 v3, {2*WST}, v3
    s_mov_b32 {s(sDW)}, {hx(-2*WST)}
    s_mov_b32 {s(sXs)}, 0
    s_mov_b32 {s(sIt)}, 0
    s_lshl_b32 s53, {s(sRB)}, 2
    s_lshl_b32 s47, s46, 1
    s_add_u32 s53, s53, s47
    s_and_b32 s47, {s(sCG)}, 7
    s_lshl_b32 s47, s47, 2
    s_lshl_b32 s61, s45, 1
    s_add_u32 s47, s47, s61
    s_lshl_b32 s47, s47, 6
    s_lshl_b32 s59, s46, 4
    s_add_u32 s59, s59, {s(sRB)}
    s_cmp_lt_u32 {s(sCG)}, 8
    s_cselect_b32 s52, 10, 11
    s_cselect_b32 s61, {hx(QF)}, {hx(KV)}
    s_cselect_b32 s58, {hx(f2u(0.25*LOG2E))}, 1.0
    s_cselect_b32 s53, s53, s59
    s_cselect_b32 s60, 1, 32
    s_add_u32 s47, s47, s53
    s_lshl_b32 s47, s47, s52
    s_add_u32 s62, s47, s61
    s_lshl_b32 s47, s60, s52
    s_add_u32 s64, s62, s47
    s_lshl_b32 s47, 64, s52
    s_add_u32 s63, s62, s47
    s_add_u32 s65, s64, s47
    s_mul_i32 s47, s45, {5*256}
    s_add_u32 s47, s47, {L_CS}
    v_lshl_add_u32 v60, v0, 2, s47
    s_lshl_b32 s47, s46, 9
    s_add_u32 s47, s47, {L_RS}
    v_and_b32 v61, 31, v0
    v_lshl_add_u32 v61, v61, 3, s47
    v_lshlrev_b32 v63, 4, v0
    v_and_b32 v72, 15, v0
    v_and_b32 v73, 16, v0
    v_cmp_eq_u32 vcc, 0, v73
    v_lshlrev_b32 v72, 4, v72
    v_add_u32 v72, {L_ONES-1024}, v72
    v_mov_b32 v73, {NT*2048}
    v_cndmask_b32 v72, v72, v63, vcc
    v_cndmask_b32 v73, 0, v73, vcc
    s_lshl_b32 s47, s44, 12
    s_add_u32 s47, s47, {L_ONES}
    v_add_u32 v74, s47, v63
    s_lshl_b32 s66, {s(sQB)}, 3
    s_lshl_b32 s47, s44, 1
    s_add_u32 s66, s66, s47
    s_lshl_b32 s66, s66, 5
    s_add_u32 s66, s66, {s(sHead)}
    s_lshl_b32 s66, s66, 10
    s_add_u32 s66, s66, {hx(OF)}
    s_add_u32 s67, s66, 0x8000
    s_mov_b32 s54, {hx(f2u(2.0**126))}
    s_mov_b32 s55, {hx(f2u(2.0**-106))}
    s_mov_b32 s56, {hx(f2u(2.0**120))}
    s_mov_b32 s57, 0
    """)
    acc = lambda T, i: 96 + (i * 2 + T) * 16
    for i in range(5):
        for T in range(2): A(mfma(acc(T, i), 64, 64, None))
    FB = lambda f: 8 + 20 * f
    Wf = lambda f, i: FB(f) + 4 * i
    Xf = lambda f, T: FB(f) + 12 + 4 * T
    def reads(f, q, withA):
        st, ks = (q >> 1) & 1, q & 1
        r = [f'ds_read_b128 {v(Xf(f,T),4)}, v1 offset:{T*128+(q&3)*32}' for T in range(2)]
        for u in range(2):
            for rd in range(2):
                r.append(f'ds_read_b64_tr_b16 {v(Wf(f,1+u)+2*rd,2)}, v2 offset:{st*WST+(4*ks+rd)*128+u*32}')
        if withA:
            for rd in range(2):
                r.append(f'ds_read_b64_tr_b16 {v(Wf(f,0)+2*rd,2)}, v3 offset:{st*WST+(4*ks+rd)*128}')
        return r
    def kloop(label, withA, adv, lim, tr0):
        for r in reads(0, 0, withA): A(r)
        A(label + ':')
        for q in range(4):
            f = q & 1
            rr = reads(f ^ 1, q + 1, withA)
            A('s_waitcnt lgkmcnt(0)')
            if q & 1: A('s_barrier')
            tiles = [(1, 1), (2, 2), (0, 0)] if withA else [(1, 3), (2, 4)]
            ms = [mfma(acc(T, ai), Wf(f, wi), Xf(f, T), acc(T, ai)) for (wi, ai) in tiles for T in range(2)]
            k = 0
            for m in range(len(ms)):
                A(ms[m])
                for _ in range(3):
                    if k < len(rr): A(rr[k]); k += 1
                if q == 2 and m == len(ms) - 1: A(adv)
                if q == 3 and m == len(ms) - 2: A(f's_add_u32 {s(sIt)}, {s(sIt)}, 1')
                if q == 3 and m == len(ms) - 1 and not STAMP: A(f's_cmp_lt_u32 {s(sIt)}, {lim}')
            assert k == len(rr)
        if STAMP:
            A(f'{TM} s[78:79]\ns_add_u32 m0, {s(sIt)}, {tr0}\ns_waitcnt lgkmcnt(0)\nv_writelane_b32 v79, s78, m0\ns_cmp_lt_u32 {s(sIt)}, {lim}')
        A(f's_cbranch_scc1 {label}')
    A(f"""
    s_mul_i32 s47, s44, {WST}
    s_add_u32 s47, s47, {2*WST+2*PAN}
    v_and_b32 v75, 31, v0
    v_mul_u32_u24 v76, 288, v7
    v_lshl_add_u32 v75, v75, 3, v76
    v_add_u32 v75, s47, v75
    v_lshlrev_b32 v76, 2, v5
    v_add_u32 v76, v76, v7
    v_lshl_add_u32 v76, v76, 2, v6
    v_and_b32 v77, 3, v0
    v_mul_u32_u24 v77, 288, v77
    v_lshl_add_u32 v76, v76, 3, v77
    v_add_u32 v76, s47, v76
    s_and_b32 s47, s3, 3
    s_lshl_b32 s47, s47, 2
    s_add_u32 s47, s47, s45
    s_lshl_b32 s47, s47, 7
    s_add_u32 s47, s47, s59
    s_lshl_b32 s47, s47, 11
    s_add_u32 s8, s47, {hx(KV)}
    s_add_u32 s9, s8, {4*64*2048}
    s_add_u32 s10, s8, {64*2048}
    s_add_u32 s11, s8, {5*64*2048}
    s_lshl_b32 s47, s44, 10
    s_add_u32 s47, s47, {L_H}
    v_add_u32 v77, s47, v63
    v_subrev_u32 v62, {2*WST}, v2
    v_mov_b32 v49, 0
    v_mov_b64 v[50:51], 0
    """)
    stamp(A, 1)
    A('s_barrier')
    stamp(A, 2)
    for r in reads(0, 0, True): A(r)
    eread = lambda q: ([f'ds_read_b128 {v(Xf(q&1,T),4)}, v4 offset:{T*128+q*32}' for T in range(2)] +
                       [f'ds_read_b64_tr_b16 {v(Wf(q&1,1+u)+2*rd,2)}, v62 offset:{(4+(q>>1))*WST+(4*(q&1)+rd)*128+u*32}' for u in range(2) for rd in range(2)])
    for q in range(8):
        f = q & 1
        rr = reads(f ^ 1, q + 1, True) if q < 3 else eread(q - 3) if 3 < q < 7 else []
        if q == 4:
            A('s_barrier')
            for r in eread(0): A(r)
        A('s_waitcnt lgkmcnt(0)')
        if q == 1: A('s_barrier')
        for wi, ai in ([(1, 1), (2, 2), (0, 0)] if q < 4 else [(1, 3), (2, 4)]):
            for T in range(2):
                A(mfma(acc(T, ai), Wf(f, wi), Xf(f, T), acc(T, ai)))
                for _ in range(3):
                    if rr: A(rr.pop(0))
    A(f"""
    v_add_u32 v2, {s(sDW)}, v2
    v_add_u32 v3, {s(sDW)}, v3
    s_mov_b32 {s(sXs)}, {XST}
    s_sub_u32 {s(sDW)}, 0, {s(sDW)}
    v_add_u32 v1, {s(sXs)}, v4
    s_mov_b32 {s(sIt)}, 1
    s_barrier
    """)
    kloop('LC_loopA', True, f"""
        v_add_u32 v2, {s(sDW)}, v2
        v_add_u32 v3, {s(sDW)}, v3
        s_add_u32 {s(sXs)}, {s(sXs)}, {XST}
        s_cmp_ge_u32 {s(sXs)}, {4*XST}
        s_cselect_b32 {s(sXs)}, 0, {s(sXs)}
        s_sub_u32 {s(sDW)}, 0, {s(sDW)}
        v_add_u32 v1, {s(sXs)}, v4
        """, '8', 15)
    if XB: A('s_barrier')
    A("""
    s_waitcnt lgkmcnt(0)
    ds_read_b64 v[68:69], v61
    ds_read_b64 v[70:71], v61 offset:256
    """)
    CO = lambda i: 8 + 4 * i
    for i in range(5): A(f'ds_read_b32 v{CO(i)}, v60 offset:{i*256}')
    for i in range(5): A(f'v_mov_b32 v{CO(i)+1}, 0\nv_mov_b64 {v(CO(i)+2,2)}, 0')
    A('s_waitcnt lgkmcnt(5)\nv_mov_b32 v64, v68\nv_mov_b32 v48, v70')
    K0 = -2.0 * math.sqrt(2.0 / math.pi) * LOG2E
    K1c = K0 * 0.044715
    A('v_rcp_f32 v84, v69\nv_rcp_f32 v92, v71\ns_waitcnt lgkmcnt(0)')
    def readsB(q):
        f, it = (q + 1) & 1, q >> 2
        wo = ((4 - 2 * (it % 3)) + ((q >> 1) & 1)) * WST + 4 * (q & 1) * 128
        r = [f'ds_read_b128 {v(Xf(f,T),4)}, v4 offset:{((3-it)&3)*XST+T*128+(q&3)*32}' for T in range(2)]
        for u in range(2):
            for rd in range(2):
                r.append(f'ds_read_b64_tr_b16 {v(Wf(f,1+u)+2*rd,2)}, v62 offset:{wo+rd*128+u*32}')
        return r
    cst = []
    for T in range(2):
        b = 80 + 8 * T
        cst += [f'v_mul_f32 v{b+3}, s58, v{b+4}', f'v_mul_f32 v{b+2}, v{69+2*T}, v{69+2*T}', f'v_mul_f32 v{b+1}, {hx(f2u(K0))}, v{b+4}',
                f'v_mul_f32 v{b}, v{b+4}, v{b+4}', f'v_mul_f32 v{b}, v{b}, v{b+4}', f'v_mul_f32 v{b}, {hx(f2u(K1c))}, v{b}',
                f'v_mul_f32 v{b+5}, {hx(f2u(2.0**VSC))}, v{b+4}']
    def atile(T, hd):
        a = acc(T, 0) + 8 * hd
        return ([f'v_mul_f32 v{a+j}, v{83+8*T}, v{a+j}' for j in range(8)] + [f'v_cvt_pk_bf16_f32 v{a+p}, v{a+2*p}, v{a+2*p+1}' for p in range(4)]
                + [f'buffer_store_dwordx4 {v(a,4)}, v63, {s(sWS,4)}, s{62+2*T+hd} offen sc1'])
    fill = readsB(0) + cst + atile(0, 0) + atile(0, 1)
    for i in range(5):
        for T in range(2):
            A(mfma(acc(T, i), CO(i), (64, 48)[T], acc(T, i)))
            for _ in range(5 if i or T else 6):
                if fill: A(fill.pop(0))
    assert not fill
    def geglu_plain(T, u):
        a, b, t, r = acc(T, 1 + u), 80 + 8 * T, 52, []
        for h4 in (0, 4):
            J = range(h4, h4 + 4)
            r += [f'v_mul_f32 v{t+j}, v{a+j}, v{a+j}' for j in J] + [f'v_fma_f32 v{t+j}, v{t+j}, v{b}, v{b+1}' for j in J]
            r += [f'v_mul_f32 v{t+j}, v{t+j}, v{a+j}' for j in J] + [f'v_exp_f32 v{t+j}, v{t+j}' for j in J]
            r += [f'v_mul_f32 v{a+j}, v{a+j}, v{a+8+j}' for j in J] + [f'v_fma_f32 v{t+j}, v{t+j}, v{b+2}, v{b+2}' for j in J]
            r += [f'v_rcp_f32 v{t+j}, v{t+j}' for j in J] + [f'v_mul_f32 v{a+j}, v{a+j}, v{t+j}' for j in J]
            r += [f'v_cvt_pk_bf16_f32 v{a+8+p}, v{a+2*p}, v{a+2*p+1}' for p in (h4 // 2, h4 // 2 + 1)]
        return r
    def vtile(T, u):
        a = acc(T, 1 + u)
        r = [f'v_mul_f32 v{a+j}, v{85+8*T}, v{a+j}' for j in range(16)]
        r += [f'v_cvt_pk_bf16_f32 v{a+p}, v{a+2*p}, v{a+2*p+1}' for p in range(8)]
        wr, rd, st = [], [], []
        for hd in range(2):
            o = hd * 1152
            wr.append(f'ds_write2_b64 v75, {v(a+4*hd,2)}, {v(a+4*hd+2,2)} offset0:{o//8} offset1:{(o+576)//8}')
            rd += [f'ds_read_b64_tr_b16 {v(a+8+4*hd,2)}, v76 offset:{o}', f'ds_read_b64_tr_b16 {v(a+8+4*hd+2,2)}, v76 offset:{o+64}']
            st.append((f's_add_u32 s{8+2*u+hd}, s{8+2*u+hd}, 65536\n' if T else '') +
                      f'buffer_store_dwordx4 {v(a+8+4*hd,4)}, v63, {s(sWS,4)}, s{8+2*u+hd} offen offset:1024 sc1')
        return r + [('lds', wr + rd, st)]
    cost = lambda t: 8 if t.startswith(('v_exp', 'v_rcp')) else 4
    STM = int(os.environ.get('STM', '3'))
    STN, STH = [int(t) for t in os.environ.get('STV', '1,0').split(',')]
    def passB(side, ack, budget, late=()):
        side = list(side)
        stores, lds, pend = [], [], 0
        for q in range(28):
            f = (q + 1) & 1
            rr = readsB(q + 1) if q < 27 else []
            if q == 4 * ack - 1: assert not stores and not lds and not any(isinstance(t, tuple) or t.startswith('buffer') for t in side), q
            A(f's_waitcnt lgkmcnt({pend})' + (' vmcnt(0)' if q == 4 * ack + 1 else ''))
            pend = 0
            if q == 4 * ack - 1: side += late
            if q & 1: A('s_barrier')
            for m in range(4):
                A(mfma(acc(m & 1, 3 + (m >> 1)), Wf(f, 1 + (m >> 1)), Xf(f, m & 1), acc(m & 1, 3 + (m >> 1))))
                for _ in range(3):
                    if rr: A(rr.pop(0))
                left = budget[m]
                if m == 2 and lds:
                    _, ops_, st = lds.pop(0)
                    if 'xds' in EXP: ops_ = []
                    for t in ops_: A(t)
                    pend = len(ops_); left = 0
                    stores += [(q + 2, t) for t in st]
                for _ in range(STN if late else 1):
                    if m == STM and (q >= STH or not late):
                        rdy = [x for x in stores if x[0] <= q]
                        if rdy:
                            stores.remove(rdy[0])
                            if 'xst' not in EXP: A(rdy[0][1])
                            left -= 12
                while side and (isinstance(side[0], tuple) or side[0].startswith('buffer') or left >= cost(side[0])):
                    t = side.pop(0)
                    if isinstance(t, tuple): lds.append(t)
                    elif t.startswith('buffer'): stores.append((q + (m >= STM), t))
                    else: left -= cost(t); A(t)
            if STAMP and 'trb' in EXP and q & 3 == 3:
                A(f'{TM} s[78:79]\ns_waitcnt lgkmcnt(0)\nv_writelane_b32 v79, s78, {24+(q>>2)}')
        assert not side and not stores and not lds, len(side)
    BUD = [int(t) for t in os.environ.get('BUD', '8,8,20,20').split(',')]
    stamp(A, 3)
    A(f's_cmp_eq_u32 s71, {os.environ.get("VJ", "3")}\ns_cbranch_scc1 LC_Bv')
    passB(atile(1, 0) + atile(1, 1) + sum((geglu_plain(T, u) for T in range(2) for u in range(2)), []), F1N, BUD)
    for n in range(4): A(f'ds_write_b128 v77, {v(acc(n>>1,1+(n&1))+8,4)} offset:{n*4096}')
    A('LC_g4:\nv_mov_b32 v1, v63\ns_nop 6')
    stamp(A, 4)
    for u in range(2):
        TT = [(acc(T, 3 + u), 80 + 8 * T, 8 + 8 * T) for T in range(2)]
        for a, b, t in TT:
            for p in range(4): A(f'v_pk_mul_f32 {v(t+2*p,2)}, {v(a+2*p,2)}, {v(a+2*p,2)}')
        for a, b, t in TT:
            for p in range(4): A(f'v_pk_fma_f32 {v(t+2*p,2)}, {v(t+2*p,2)}, {v(b,2)}, {v(b,2)} op_sel:[0,0,1] op_sel_hi:[1,0,1]')
        for a, b, t in TT:
            for p in range(4): A(f'v_pk_mul_f32 {v(t+2*p,2)}, {v(t+2*p,2)}, {v(a+2*p,2)}')
        for a, b, t in TT:
            for j in range(8): A(f'v_exp_f32 v{t+j}, v{t+j}')
        for a, b, t in TT:
            for p in range(4): A(f'v_pk_mul_f32 {v(a+2*p,2)}, {v(a+2*p,2)}, {v(a+8+2*p,2)}')
        for a, b, t in TT:
            for p in range(4): A(f'v_pk_fma_f32 {v(t+2*p,2)}, {v(t+2*p,2)}, {v(b+2,2)}, {v(b+2,2)} op_sel:[0,0,0] op_sel_hi:[1,0,0]')
        for a, b, t in TT:
            for j in range(8): A(f'v_rcp_f32 v{t+j}, v{t+j}')
        for a, b, t in TT:
            for p in range(4): A(f'v_pk_mul_f32 {v(a+2*p,2)}, {v(a+2*p,2)}, {v(t+2*p,2)}')
        for T, (a, b, t) in enumerate(TT):
            for p in range(4): A(f'v_cvt_pk_bf16_f32 v{a+8+p}, v{a+2*p}, v{a+2*p+1}')
            A(f'ds_write_b128 v77, {v(a+8,4)} offset:{(4+2*T+u)*4096}')
    def vvariant():
        A('LC_Bv:')
        passB({'a': vtile(0, 0) + atile(1, 0) + vtile(0, 1) + atile(1, 1), 'b': vtile(0, 0) + vtile(0, 1) + atile(1, 0) + atile(1, 1)}[os.environ.get('VORD', 'a')], F1B, [int(t) for t in os.environ.get('BUDV', '12,12,24,24').split(',')], vtile(1, 0)[:-1] + vtile(1, 1)[:-1])
        A('v_lshrrev_b32 v75, 1, v63\nv_sub_u32 v75, v77, v75')
        for n in range(4):
            a = acc(1, 1 + (n >> 1)) + 4 * (n & 1)
            A(f'ds_write2st64_b64 v75, {v(a,2)}, {v(a+2,2)} offset0:{n*8} offset1:{n*8+1}')
        A('s_branch LC_g4')
    QA, QB, CA, CB, OA, OB, SA, SB, PA, PB = 8, 12, 16, 32, 48, 64, 80, 96, 112, 120
    KF = lambda b: 128 + 4 * b
    VF = lambda j: 136 + 4 * j
    A('LC_att:')
    if STAMP: A('v_mov_b32 v144, v79')
    stamp(A, 5)
    A('s_waitcnt lgkmcnt(0)')
    stamp(A, 6)
    A('s_barrier')
    stamp(A, 7)
    A(f"""
    ds_read_b128 {v(QA,4)}, v74 offset:512
    ds_read_b128 {v(KF(0),4)}, v1
    ds_read_b128 {v(KF(1),4)}, v1 offset:2048
    ds_read_b128 {v(QB,4)}, v74 offset:2560
    v_mov_b32 v2, v1
    v_mov_b32 v3, v72
    v_mov_b32 v4, v73
    s_mov_b32 {s(sIt)}, 0
    v_mov_b32 v5, {L_FLAG+16}
    """)
    for j in range(0, 8, 2): A(f'v_mov_b64 {v(VF(0)+j,2)}, 0')
    for j in range(0, 8, 2): A(f'v_mov_b64 {v(PB+j,2)}, 0')
    A('s_waitcnt lgkmcnt(2)')
    A(mfma(SA, KF(0), QA, None))
    A('s_waitcnt lgkmcnt(1)')
    A(mfma(OA, KF(1), QA, None))
    A('s_waitcnt lgkmcnt(0)')
    A(mfma(SB, KF(0), QB, None))
    A(mfma(OB, KF(1), QB, None))
    A('s_nop 6')
    for (S, O, C) in ((SA, OA, CA), (SB, OB, CB)):
        A(f'v_max3_f32 v{C}, v{S}, v{S+1}, v{S+2}\nv_max3_f32 v{C+1}, v{S+3}, v{S+4}, v{S+5}')
        src = [S + j for j in range(6, 16)] + [O + j for j in range(16)]
        for i in range(0, 26, 2): A(f'v_max3_f32 v{C+((i>>1)&1)}, v{C+((i>>1)&1)}, v{src[i]}, v{src[i+1]}')
        A(f'v_mov_b64 {v(O,2)}, 0')
        A(f'v_max_f32 v{C}, v{C}, v{C+1}')
        A(f'v_mov_b32 v{C+1}, v{C}')
        A(f'v_mov_b64 {v(O+2,2)}, 0\nv_mov_b64 {v(O+4,2)}, 0')
        A(f'v_permlane32_swap_b32 v{C}, v{C+1}')
        A(f'v_max_f32 v{C}, v{C}, v{C+1}')
        A(f'v_sub_f32 v{C+1}, {hx(f2u(-BIAS))}, v{C}')
        A(f'v_sub_f32 v{C}, {hx(f2u(-BIAS))}, v{C}')
        for j in range(2, 16, 2): A(f'v_mov_b64 {v(C+j,2)}, {v(C,2)}')
        A(f'v_mov_b64 {v(O+6,2)}, 0\nv_mov_b64 {v(O+8,2)}, 0')
        if S == SA: A(mfma(SA, KF(0), QA, CA))
    stamp(A, 8)
    if 'clk' in EXP: stamp(A, 9, True)
    E = lambda S, j: A(f'v_exp_f32 v{S+j}, v{S+j}')
    Cv = lambda S, P, p: A(f'v_cvt_pk_bf16_f32 v{P+p}, v{S+2*p}, v{S+2*p+1}')
    ORD = {'even': 'm0 e0 e1 e2 e3 e4 c0 c1 m1 e5 e6 c2 e7 e8 c3 e9 e10 c4 m2 e11 e12 c5 e13 e14 e15 c6 c7',
           'tight': 'm0 e0 e1 e2 m1 e3 e4 e5 m2 c0 c1 c2 e6 e7 e8 c3 e9 e10 c4 e11 e12 c5 e13 e14 e15 c6 c7',
           'mid': 'm0 e0 e1 e2 c0 m1 e3 e4 e5 c1 m2 c2 e6 e7 e8 c3 e9 e10 c4 e11 e12 c5 e13 e14 e15 c6 c7',
           'two': 'm0 e0 e1 e2 m1 e3 e4 e5 c0 c1 e6 e7 c2 e8 e9 c3 m2 e10 c4 e11 e12 c5 e13 e14 e15 c6 c7'}[os.environ.get('ORD', 'tight')].split()
    def phase(S, P, *m):
        for t in ORD:
            if t[0] == 'm':
                mm = m[int(t[1])]
                if ('nopv' in EXP and t[1] != '0') or ('noqk' in EXP and t[1] == '0'): mm = 's_nop 0\ns_nop 0\n' + '\n'.join(mm.split('\n')[1:])
                A(mm)
            elif t[0] == 'e' and 'noexp' in EXP: A('s_nop 1')
            elif t[0] == 'e': E(S, int(t[1:]))
            else: Cv(S, P, int(t[1:]))
    if os.environ.get('CPRIO'): A('s_setprio ' + os.environ['CPRIO'])
    if 'smf' in EXP:
        A('v_mov_b32 v152, 0x44444444\nv_and_b32 v153, 12, v0\nv_cmp_eq_u32 vcc, 0, v153\nv_mov_b32 v153, 0x3f803f80\ns_nop 1')
        for j in range(4): A(f'v_cndmask_b32 v{VF(1)+j}, 0, v153, vcc\nv_mov_b32 v{156+j}, 0\nv_mov_b32 v{160+j}, 0')
    A('s_nop 0\n.p2align 3\nLA_loop:')
    for t in range(NT):
        kb = t & 1
        o = t * 2048
        if 'smf' in EXP:
            sm = lambda O, P: f'v_smfmac_f32_32x32x32_bf16 {v(O,16)}, {v(VF(0),4)}, {v(P,8)}, v152'
            sl = lambda L, P: f'v_smfmac_f32_16x16x64_bf16 {v(L,4)}, {v(VF(1),4)}, {v(P,8)}, v152' if 'smf1' not in EXP else 's_nop 0'
            tail = ''
            if t == NT - 3: tail = f'\ns_add_u32 {s(sIt)}, {s(sIt)}, 1'
            if t == NT - 2: tail = '\nds_read_b128 v[148:151], v5'
            if t == NT - 1: tail = (f'\nv_add_u32 v2, {NT*2048}, v2\nv_min3_u32 v148, v148, v149, v150\nv_min_u32 v148, v148, v151'
                                    f'\nv_cmp_lt_u32 vcc, {s(sIt)}, v148')
            phase(SA, PA, mfma(SB, KF(kb), QB, CB) + f'\nds_read_b128 {v(KF(kb),4)}, v2 offset:{o+4096}',
                  sm(OB, PB) + f'\nds_read_b128 {v(VF(0),4)}, v2 offset:{o+1024}', sl(156, PB))
            phase(SB, PB, mfma(SA, KF(kb ^ 1), QA, CA) + '\ns_waitcnt lgkmcnt(0)', sm(OA, PA), sl(160, PA) + tail)
            continue
        phase(SA, PA,
              mfma(SB, KF(kb), QB, CB) + f'\nds_read_b128 {v(KF(kb),4)}, v2 offset:{o+4096}',
              mfma(OB, VF(0), PB, OB) + f'\nds_read_b128 {v(VF(0),4)}, v3 offset:{o+1024}',
              mfma(OB, VF(1), PB + 4, OB) + f'\nds_read_b128 {v(VF(1),4)}, v3 offset:{o+1280}')
        tail = ''
        if t == NT - 3: tail = f'\ns_add_u32 {s(sIt)}, {s(sIt)}, 1'
        if t == NT - 2: tail = '\nds_read_b128 v[148:151], v5'
        if t == NT - 1: tail = (f'\nv_add_u32 v2, {NT*2048}, v2\nv_add_u32 v3, v4, v3\nv_min3_u32 v148, v148, v149, v150\nv_min_u32 v148, v148, v151'
                                f'\nv_cmp_lt_u32 vcc, {s(sIt)}, v148')
        phase(SB, PB,
              mfma(SA, KF(kb ^ 1), QA, CA) + '\ns_waitcnt lgkmcnt(1)',
              mfma(OA, VF(0), PA, OA) + '\ns_waitcnt lgkmcnt(0)',
              mfma(OA, VF(1), PA + 4, OA) + tail)
    if STAMP and 'atr' in EXP:
        A(f's_memtime s[78:79]\ns_add_u32 m0, {s(sIt)}, 15\ns_waitcnt lgkmcnt(0)\nv_writelane_b32 v144, s78, m0')
    A(f'''
    s_cbranch_vccnz LA_loop
    s_cmp_eq_u32 {s(sIt)}, {64//NT}
    s_cbranch_scc1 LA_fini
    s_mov_b32 s47, 0
LA_kvw:
    ds_read_b128 v[148:151], v5
    s_add_u32 s47, s47, 1
    s_waitcnt lgkmcnt(0)
    v_min3_u32 v148, v148, v149, v150
    v_min_u32 v148, v148, v151
    v_cmp_lt_u32 vcc, {s(sIt)}, v148
    s_cbranch_vccnz LA_loop
    s_cmp_lt_u32 s47, {SPIN * 16}
    s_cbranch_scc1 LA_kvw
    s_branch LA_loop
LA_fini:''')
    A(mfma(OB, VF(0), PB, OB))
    A(mfma(OB, VF(1), PB + 4, OB))
    stamp(A, 11)
    if 'clk' in EXP:
        stamp(A, 10, True)
        A('s_sub_u32 s90, s90, s89\ns_add_u32 s90, s90, s80\ns_mov_b32 s89, 0')
    def fin(O, P, T, off, bad):
        A(f'v_rcp_f32 v{T+8}, v{O+8}')
        A(f'v_add_f32 v{T+9}, |v{O}|, |v{O+1}|\nv_add_f32 v{T+10}, |v{O+2}|, |v{O+3}|\nv_add_f32 v{T+11}, |v{O+4}|, |v{O+5}|\nv_add_f32 v{T+12}, |v{O+6}|, |v{O+7}|')
        A(f'v_cmp_gt_f32 s[60:61], s56, v{O+8}')
        A(f'v_add_f32 v{T+9}, v{T+9}, v{T+10}\nv_add_f32 v{T+11}, v{T+11}, v{T+12}')
        A(f'v_mul_f32 v{T}, v{O}, v{T+8}\nv_add_f32 v{T+9}, v{T+9}, v{T+11}\nv_mul_f32 v{T+1}, v{O+1}, v{T+8}')
        A(f'v_cmp_gt_f32 vcc, s54, v{T+9}\nv_cmp_lt_f32 s[58:59], s55, v{T+9}')
        for j in range(2, 8): A(f'v_mul_f32 v{T+j}, v{O+j}, v{T+8}')
        A('s_and_b64 vcc, vcc, s[60:61]')
        for p in range(4): A(f'v_cvt_pk_bf16_f32 v{P+p}, v{T+2*p}, v{T+2*p+1}')
        A(f"""
        s_and_b64 vcc, vcc, s[58:59]
        v_min_u32 v{P}, -2, v{P}
        s_cmp_eq_u64 vcc, -1
        s_cbranch_scc0 {bad}
        buffer_store_dwordx4 {v(P,4)}, v1, {s(sWS,4)}, {off} offen sc1
        """)
    A('LA_fin:')
    fin(OA, PA, SA, 's66', 'LA_fallback')
    A('LA_finb:')
    fin(OB, PB, SB, 's67', 'LA_fallb')
    A('LA_done:')
    if 'noxb' not in EXP: A('s_barrier')
    stamp(A, 12)
    stamp_end(A, sWS, sW, tr=144)
    A('s_endpgm')
    A('LA_fallb:\ns_mov_b32 s57, 1\ns_mov_b32 s66, s67')
    for j in range(0, 4, 2): A(f'v_mov_b64 {v(QA+j,2)}, {v(QB+j,2)}')
    A(f'''
LA_fallback:
    v_mov_b32 v{CA}, 0xff800000
    v_mov_b32 v2, v1
    s_mov_b32 {s(sIt)}, 0
LA_fb1:
    ds_read_b128 {v(KF(0),4)}, v2
    v_add_u32 v2, 0x800, v2
    s_waitcnt lgkmcnt(0)
    ''')
    A(mfma(SA, KF(0), QA, None))
    A('s_nop 11')
    for j in range(0, 16, 2): A(f'v_max3_f32 v{CA}, v{CA}, v{SA+j}, v{SA+j+1}')
    A(f'''
    s_add_u32 {s(sIt)}, {s(sIt)}, 1
    s_cmp_lt_u32 {s(sIt)}, 64
    s_cbranch_scc1 LA_fb1
    v_mov_b32 v{CA+1}, v{CA}
    v_cmp_eq_u32 vcc, 0, v4
    v_lshrrev_b32 v6, {NT.bit_length()-1}, v4
    v_permlane32_swap_b32 v{CA}, v{CA+1}
    v_max_f32 v{CA}, v{CA}, v{CA+1}
    v_sub_f32 v{CA}, 0, v{CA}
    v_cndmask_b32 v3, v1, v3, vcc
    ''')
    for j in range(1, 16): A(f'v_mov_b32 v{CA+j}, v{CA}')
    for j in range(0, 16, 2): A(f'v_mov_b64 {v(OA+j,2)}, 0')
    A(f'''
    v_mov_b32 v2, v1
    s_mov_b32 {s(sIt)}, 0
LA_fb2:
    ds_read_b128 {v(KF(0),4)}, v2
    ds_read_b128 {v(VF(0),4)}, v3 offset:1024
    ds_read_b128 {v(VF(1),4)}, v3 offset:1280
    v_add_u32 v2, 0x800, v2
    v_add_u32 v3, v6, v3
    s_waitcnt lgkmcnt(0)
    ''')
    A(mfma(SA, KF(0), QA, CA))
    A('s_nop 11')
    for j in range(16): E(SA, j)
    A('s_nop 0')
    for p in range(8): Cv(SA, PA, p)
    A('s_nop 1')
    A(mfma(OA, VF(0), PA, OA)); A(mfma(OA, VF(1), PA + 4, OA))
    A(f'''
    s_add_u32 {s(sIt)}, {s(sIt)}, 1
    s_cmp_lt_u32 {s(sIt)}, 64
    s_cbranch_scc1 LA_fb2
    s_nop 11
    v_rcp_f32 v{OA+8}, v{OA+8}
    s_nop 0
    ''')
    for j in range(8): A(f'v_mul_f32 v{OA+j}, v{OA+j}, v{OA+8}')
    for p in range(4): A(f'v_cvt_pk_bf16_f32 v{PA+p}, v{OA+2*p}, v{OA+2*p+1}')
    A(f'''
    v_min_u32 v{PA}, -2, v{PA}
    buffer_store_dwordx4 {v(PA,4)}, v1, {s(sWS,4)}, s66 offen sc1
    s_cmp_eq_u32 s57, 1
    s_cbranch_scc1 LA_done
    s_branch LA_finb
    ''')
    vvariant()

def main(out):
    A = Asm()
    top = f'''; out = x + (MHA(LN x) @ wo) * silu(GEGLU-FFN(LN x)); one persistent launch, 256 workgroups (generated by gen/gen9.py)
; kernarg: x 0, wqkv 8, wo 16, (B_x 24 unused), gate 32, up 40, down 48, out 56, debug 64, ws 72
; @launch grid=(256,1,1) block=(512,1,1) lds={LDS_BYTES}
.amdgcn_target "amdgcn-amd-amdhsa--gfx950"
.text
'''
    gen(A)
    tail = f'''.section .rodata,"a"
.p2align 6
.amdhsa_kernel {NAME}_kernel
  .amdhsa_next_free_vgpr 256
  .amdhsa_next_free_sgpr 100
  .amdhsa_accum_offset 256
  .amdhsa_group_segment_fixed_size 0
  .amdhsa_kernarg_size 80
  .amdhsa_user_sgpr_count 2
  .amdhsa_user_sgpr_kernarg_segment_ptr 1
  .amdhsa_system_sgpr_workgroup_id_x 1
.end_amdhsa_kernel
'''
    open(out, 'w').write(top + A.text() + tail)

if __name__ == '__main__':
    main(sys.argv[1] if len(sys.argv) > 1 else 'cdna_kernels/%s.s' % NAME)
```
